```python
import torch

def _softmax(x, axis=-1):
    return torch.softmax(x, dim=axis)
def _gelu(x):
    return torch.nn.functional.gelu(x, approximate="tanh")
def _silu(x):
    return torch.nn.functional.silu(x)
def _sigmoid(x):
    return torch.sigmoid(x)
def _layernorm(x, axis=-1, eps=1e-5):
    m = x.mean(dim=axis, keepdim=True)
    v = x.var(dim=axis, keepdim=True, unbiased=False)
    return (x - m) / torch.sqrt(v + eps)
def _scatter_add(tgt, idx, src, axis=0):
    return tgt.clone().index_add_(axis, idx, src)
def _segment_sum(src, seg, n):
    out = torch.zeros((n,) + src.shape[1:], dtype=src.dtype)
    return out.index_add_(0, seg, src)
def _pad(x, pw):
    flat = tuple(v for pair in reversed(pw) for v in pair)
    return torch.nn.functional.pad(x, flat)

kernel_name = 'parallel_sum__compressed_kv_cla__glu_gated_swiglu__decode'

def setup_inputs():

    _w = (lambda a: (lambda t: t.to(torch.bfloat16) if t.is_floating_point() else t)(torch.as_tensor(a)))
    def _A_setup():
        B, H, Sq, Sk, D, M = 2, 32, 1, 8192, 128, 512
        Dc = 4 * D
        return {
            "x": _w((lambda *s: torch.randn(*s, dtype=torch.bfloat16) * 0.05)(B, Sq, M)),
            "c_kv": _w((lambda *s: torch.randn(*s, dtype=torch.bfloat16) * 0.8)(B, Sk, Dc)),
            "w_q": _w((lambda *s: torch.randn(*s, dtype=torch.bfloat16) * 1.6)(M, H, D) * (M ** -0.5)),
            "w_uk": _w((lambda *s: torch.randn(*s, dtype=torch.bfloat16) * 1.6)(Dc, H, D) * (Dc ** -0.5)),
            "w_uv": _w((lambda *s: torch.randn(*s, dtype=torch.bfloat16) * 0.8)(Dc, H, D) * (Dc ** -0.5)),
            "w_o": _w((lambda *s: torch.randn(*s, dtype=torch.bfloat16) * 0.8)(H, D, M) * ((H * D) ** -0.5)),
        }
    _A_in = _A_setup()

    def _B_setup():
        B, S, D, F = 2, 1, 512, 1376
        return {
            "x": _w((lambda *s: torch.randn(*s, dtype=torch.bfloat16) * 0.05)(B, S, D)),
            "w1": _w((lambda *s: torch.randn(*s, dtype=torch.bfloat16) * 0.2)(D, F) * (2.0 / D) ** 0.5),
            "w3": _w((lambda *s: torch.randn(*s, dtype=torch.bfloat16) * 0.2)(D, F) * (2.0 / D) ** 0.5),
            "w2": _w((lambda *s: torch.randn(*s, dtype=torch.bfloat16) * 0.2)(F, D) * (2.0 / F) ** 0.5),
        }
    _B_in = _B_setup()

    return {
        "A_x": _A_in["x"],
        "A_c_kv": _A_in["c_kv"],
        "A_w_q": _A_in["w_q"],
        "A_w_uk": _A_in["w_uk"],
        "A_w_uv": _A_in["w_uv"],
        "A_w_o": _A_in["w_o"],
        "B_x": _B_in["x"],
        "B_w1": _B_in["w1"],
        "B_w3": _B_in["w3"],
        "B_w2": _B_in["w2"],
    }

def reference(A_x, A_c_kv, A_w_q, A_w_uk, A_w_uv, A_w_o, B_x, B_w1, B_w3, B_w2):
    def _A_ref(x, c_kv, w_q, w_uk, w_uv, w_o):
        B, Sq, M = x.shape[0], x.shape[1], x.shape[2]
        Sk = c_kv.shape[1]
        H, D = w_q.shape[1], w_q.shape[2]
        q = torch.einsum("bqm,mhd->bhqd", x, w_q)
        k = torch.einsum("bkc,chd->bhkd", c_kv, w_uk)
        v = torch.einsum("bkc,chd->bhkd", c_kv, w_uv)
        scores = torch.einsum("bhqd,bhkd->bhqk", q, k) * (D ** -0.5)
        off = Sk - Sq
        qi = torch.arange(Sq)[:, None]
        kj = torch.arange(Sk)[None, :]
        cmask = kj <= (qi + off)
        scores = torch.where(cmask[None, None], scores, -1e9)
        p = _softmax(scores, axis=-1)
        ctx = torch.einsum("bhqk,bhkd->bhqd", p, v)
        return torch.einsum("bhqd,hdm->bqm", ctx, w_o)

    def _B_ref(x, w1, w3, w2):
        gate = torch.einsum("bsd,df->bsf", x, w1)
        up = torch.einsum("bsd,df->bsf", x, w3)
        h = _silu(gate) * up
        out = torch.einsum("bsf,fd->bsd", h, w2)
        return out

    x = A_x
    xn = _layernorm(x, axis=-1)
    return x + _A_ref(xn, A_c_kv, A_w_q, A_w_uk, A_w_uv, A_w_o) + _B_ref(xn, B_w1, B_w3, B_w2)
```

```python
import sys, math
NAME = "parallel_sum__compressed_kv_cla__glu_gated_swiglu__decode"

WS_EPOCH = 0x0
WS_FB    = 0x1000
WS_QP    = 0x10000
WS_QA    = 0x50000
WS_CP    = 0x60000
WS_EP    = 0xA0000
WS_FP    = 0xE0000
WS_ST    = 0x140000
WS_OP    = 0x200000
WS_STAMP = 0x800000
FP_S = 48
NFFN = 43

R0, R1, R2, R3 = 8192, 40960, 73728, 106496
L_XN  = 0
L_AVQ = L_XN + 2048
L_AVO = L_AVQ + 512
L_AVC = L_AVO + 512
L_WGT = L_AVC + 512
L_QS  = L_WGT + 512
L_GU  = L_QS + 512
L_H   = L_GU + 512
L_FIN = L_H + 512
L_CKV = 32768
L_QAL = 0
L_MX  = 0
L_LP  = 512
L_P   = 4096
LDS_BYTES = 163840

class Gen:
    def __init__(self, stamps=False, nt_ckv=True, nt_w=True, poll_sleep=1, spin=200000):
        self.L = []
        self.stamps = stamps
        self.nt_ckv = nt_ckv
        self.nt_w = nt_w
        self.poll_sleep = poll_sleep
        self.spin = spin
        self.nlab = 0
    def e(self, s): self.L.append("  " + s)
    def lab(self, s): self.L.append(s + ":")
    def newlab(self, p):
        self.nlab += 1
        return f"L_{p}_{self.nlab}"
    def nop(self, n):
        while n > 0:
            k = min(n, 16)
            self.e(f"s_nop {k-1}")
            n -= k
    def stamp(self, idx):
        if not self.stamps: return
        self.e("s_memrealtime s[40:41]")
        self.e("s_waitcnt lgkmcnt(0)")
        self.e(f"v_writelane_b32 v255, s40, {idx}")
    def srd(self, dst, ptr, size):
        self.e(f"s_mov_b32 s{dst}, s{ptr}")
        self.e(f"s_and_b32 s{dst+1}, s{ptr+1}, 0xffff")
        self.e(f"s_mov_b32 s{dst+2}, {size}")
        self.e(f"s_mov_b32 s{dst+3}, 0x20000")

P_X, P_CKV, P_WQ, P_WUK, P_WUV, P_WO, P_BX, P_W1, P_W3, P_W2, P_OUT, P_DBG, P_WS = 64, 66, 68, 70, 72, 74, 76, 78, 80, 82, 84, 86, 88
S_W, S_H, S_I, S_TAG = 3, 4, 5, 6
SRD_WS, SRD_1, SRD_2, SRD_3, SRD_4 = 8, 12, 16, 20, 24
M_G1, M_HI = 44, 46
V_LANE, V_L15, V_G, V_L16B, V_SW, V_TL0, V_TL1 = 1, 2, 3, 4, 5, 6, 7

def vr(a, n): return f"v[{a}:{a+n-1}]"
def sr(a, n): return f"s[{a}:{a+n-1}]"

def build(**kw):
    G = Gen(**kw)
    e, lab, nop = G.e, G.lab, G.nop
    NTW = " nt" if G.nt_w else ""
    NTC = " nt" if G.nt_ckv else ""
    hdr = []
    hdr.append(f"; @launch grid=(256,1,1) block=(256,1,1) lds={LDS_BYTES}")
    hdr.append('.amdgcn_target "amdgcn-amd-amdhsa--gfx950"')
    hdr.append(".text")
    hdr.append(f".globl {NAME}_kernel")
    hdr.append(".p2align 8")
    hdr.append(f".type {NAME}_kernel,@function")
    hdr.append(f"{NAME}_kernel:")

    def poll(units, tagregs, extra_ok=None):
        lp, done = G.newlab("poll"), G.newlab("pdone")
        e(f"s_mov_b32 s48, {G.spin}")
        lab(lp)
        for u in units: e(u)
        e("s_waitcnt vmcnt(0)")
        first = True
        for k in range(0, len(tagregs), 2):
            a = tagregs[k]; b = tagregs[k+1] if k + 1 < len(tagregs) else tagregs[k]
            e(f"v_xor_b32 v61, s{S_TAG}, v{a}")
            e(f"v_xor_b32 v62, s{S_TAG}, v{b}")
            if first:
                e("v_or_b32 v60, v61, v62"); first = False
            else:
                e("v_or3_b32 v60, v60, v61, v62")
        if extra_ok: extra_ok()
        e("v_cmp_ne_u32 vcc, 0, v60")
        e(f"s_cbranch_vccz {done}")
        e("s_sub_u32 s48, s48, 1")
        e(f"s_cbranch_scc1 {done}")
        if G.poll_sleep: e(f"s_sleep {G.poll_sleep}")
        e(f"s_branch {lp}")
        lab(done)

    def dma_tile128(srd, v0, v1, soff_fn, lds_base, flags):
        e(f"s_lshl_b32 s31, s{S_W}, 13")
        for n in range(8):
            soff_fn(n)
            e(f"s_add_u32 m0, s31, {lds_base + n*1024}")
            v = v1 if (n >> 1) & 1 else v0
            nop(1)
            e(f"buffer_load_dwordx4 v{v}, {sr(srd,4)}, s30 offen{flags} lds")

    def gemv_loadB(base, vB, tmp0, tmp1):
        if base + 3*8192 + 1024 + 0 <= 65535 - 0:
            a0, a1, off = V_TL0, V_TL1, base
        else:
            e(f"v_add_u32 v{tmp0}, {base}, v{V_TL0}")
            e(f"v_add_u32 v{tmp1}, {base}, v{V_TL1}")
            a0, a1, off = tmp0, tmp1, 0
        for ks in range(4):
            for t in range(2):
                for u in range(2):
                    r = vB + (t*4 + ks)*4 + 2*u
                    e(f"ds_read_b64_tr_b16 {vr(r,2)}, v{a1 if t else a0} offset:{off + 8192*ks + 1024*u}")
    def gemv_loadA(vaddr, vA, off=0):
        for ks in range(4):
            e(f"ds_read_b128 {vr(vA+4*ks,4)}, v{vaddr} offset:{off + 64*ks}")
    def gemv_mma(vA, vB, vC):
        for ks in range(4):
            for t in range(2):
                c = "0" if ks == 0 else vr(vC+4*t, 4)
                e(f"v_mfma_f32_16x16x32_bf16 {vr(vC+4*t,4)}, {vr(vA+4*ks,4)}, {vr(vB+(t*4+ks)*4,4)}, {c}")
        nop(10)
    def sel_tb(vC, d0, d1):
        e(f"v_cndmask_b32 v{d0}, v{vC}, v{vC+4}, {sr(M_G1,2)}")
        e(f"v_cndmask_b32 v{d1}, v{vC+1}, v{vC+5}, {sr(M_G1,2)}")
    def publish_units(vC, voff, soff, q):
        sel_tb(vC, q, q+2)
        e(f"v_mov_b32 v{q+1}, s{S_TAG}")
        e(f"v_mov_b32 v{q+3}, s{S_TAG}")
        e("s_mov_b32 exec_lo, -1"); e("s_mov_b32 exec_hi, 0")
        e(f"buffer_store_dwordx4 {vr(q,4)}, v{voff}, {sr(SRD_WS,4)}, s{soff} offen sc1")
        e("s_mov_b64 exec, -1")
    def consume4(soff, u0, u1, lds_dst, vtmp):
        poll([f"buffer_load_dwordx4 {vr(u0,4)}, v{V_L16B}, {sr(SRD_WS,4)}, s{soff} offen sc1",
              f"buffer_load_dwordx4 {vr(u1,4)}, v{V_L16B}, {sr(SRD_WS,4)}, s{soff} offen offset:1024 sc1"],
             [u0+1, u0+3, u1+1, u1+3])
        e(f"v_permlane32_swap_b32 v{u0}, v{u0+2}")
        e(f"v_permlane32_swap_b32 v{u1}, v{u1+2}")
        nop(1)
        e(f"v_add_f32 v{u0}, v{u0}, v{u0+2}")
        e(f"v_add_f32 v{u1}, v{u1}, v{u1+2}")
        nop(2)
        e(f"v_permlane16_swap_b32 v{u0}, v{u1}")
        nop(1)
        e(f"v_add_f32 v{u0}, v{u0}, v{u1}")
    def write_av(vsrc, lds_dst, vtmp):
        e(f"v_cvt_pk_bf16_f32 v{vtmp}, v{vsrc}, v{vsrc}")
        nop(1)
        e(f"ds_write_b16 v{V_AVW}, v{vtmp} offset:{lds_dst}")

    def wave_sum(v, tmp):
        for r in (8, 4, 2, 1):
            nop(2)
            e(f"v_add_f32_dpp v{v}, v{v}, v{v} row_ror:{r} row_mask:0xf bank_mask:0xf")
        e(f"v_mov_b32 v{tmp}, v{v}")
        nop(2)
        e(f"v_permlane16_swap_b32 v{v}, v{tmp}")
        nop(1)
        e(f"v_add_f32 v{v}, v{v}, v{tmp}")
        e(f"v_mov_b32 v{tmp}, v{v}")
        nop(2)
        e(f"v_permlane32_swap_b32 v{v}, v{tmp}")
        nop(1)
        e(f"v_add_f32 v{v}, v{v}, v{tmp}")
    def wave_max(v, tmp):
        for r in (8, 4, 2, 1):
            nop(2)
            e(f"v_max_f32_dpp v{v}, v{v}, v{v} row_ror:{r} row_mask:0xf bank_mask:0xf")
        e(f"v_mov_b32 v{tmp}, v{v}")
        nop(2)
        e(f"v_permlane16_swap_b32 v{v}, v{tmp}")
        nop(1)
        e(f"v_max_f32 v{v}, v{v}, v{tmp}")
        e(f"v_mov_b32 v{tmp}, v{v}")
        nop(2)
        e(f"v_permlane32_swap_b32 v{v}, v{tmp}")
        nop(1)
        e(f"v_max_f32 v{v}, v{v}, v{tmp}")
    def xg_reduce(op, v, tmp):
        e(f"v_mov_b32 v{tmp}, v{v}")
        nop(2)
        e(f"v_permlane16_swap_b32 v{v}, v{tmp}")
        nop(1)
        e(f"{op} v{v}, v{v}, v{tmp}")
        e(f"v_mov_b32 v{tmp}, v{v}")
        nop(2)
        e(f"v_permlane32_swap_b32 v{v}, v{tmp}")
        nop(1)
        e(f"{op} v{v}, v{v}, v{tmp}")
    def rbf(v, tmp=None):
        e(f"v_cvt_pk_bf16_f32 v{v}, v{v}, v{v}")
        e(f"v_lshlrev_b32 v{v}, 16, v{v}")
    def store_stamps():
        if not G.stamps: return
        e(f"s_lshl_b32 s30, s2, 2")
        e(f"s_add_u32 s30, s30, s{S_W}")
        e(f"s_lshl_b32 s30, s30, 8")
        e(f"s_add_u32 s30, s30, {WS_STAMP}")
        e(f"v_lshlrev_b32 v60, 2, v{V_LANE}")
        e(f"buffer_store_dword v255, v60, {sr(SRD_WS,4)}, s30 offen")

    V_AVW = 56
    V_AVR = 57

    e("s_cmp_ge_u32 s2, 256")
    e("s_cbranch_scc1 L_end")
    G.stamp(0) if False else None
    if G.stamps:
        e("v_mov_b32 v255, 0")
        e("s_memrealtime s[40:41]")
    e(f"s_load_dwordx16 s[64:79], s[0:1], 0")
    e(f"s_load_dwordx8 s[80:87], s[0:1], 64")
    e(f"s_load_dwordx2 s[88:89], s[0:1], 96")
    e(f"v_and_b32 v{V_LANE}, 63, v0")
    e(f"v_lshrrev_b32 v8, 6, v0")
    e(f"v_and_b32 v{V_L15}, 15, v0")
    e(f"v_readfirstlane_b32 s{S_W}, v8")
    e(f"v_lshrrev_b32 v{V_G}, 4, v{V_LANE}")
    e(f"v_lshlrev_b32 v{V_L16B}, 4, v{V_LANE}")
    e(f"s_mov_b32 s{M_G1}, 0xffff0000"); e(f"s_mov_b32 s{M_G1+1}, 0xffff0000")
    e(f"s_mov_b32 s{M_HI}, 0"); e(f"s_mov_b32 s{M_HI+1}, -1")
    e(f"v_lshlrev_b32 v8, 1, v{V_G}")
    e(f"v_xor_b32 v8, v8, v{V_L15}")
    e(f"v_lshlrev_b32 v{V_SW}, 4, v8")
    e("s_waitcnt lgkmcnt(0)")
    if G.stamps: e("v_writelane_b32 v255, s40, 0")
    e(f"s_load_dword s{S_TAG}, {sr(P_WS,2)}, {WS_EPOCH}")
    G.srd(SRD_WS, P_WS, 0x10000000)
    e("s_cmp_ge_u32 s2, 128")
    e("s_cbranch_scc1 L_att")

    e(f"s_lshr_b32 s{S_H}, s2, 2")
    e(f"s_and_b32 s{S_I}, s2, 3")
    G.srd(SRD_1, P_X, 2048)
    G.srd(SRD_2, P_WQ, 4194304)
    G.srd(SRD_3, P_WUK, 4194304)
    X0, X1 = 8, 12
    e(f"buffer_load_dwordx4 {vr(X0,4)}, v{V_L16B}, {sr(SRD_1,4)}, 0 offen")
    e(f"buffer_load_dwordx4 {vr(X1,4)}, v{V_L16B}, {sr(SRD_1,4)}, 0 offen offset:1024")
    VD0, VD1 = 58, 59
    e(f"v_lshl_add_u32 v{VD0}, v{V_G}, 13, v{V_SW}")
    e(f"v_xor_b32 v{VD1}, 128, v{VD0}")
    e(f"s_lshl_b32 s29, s{S_I}, 7")
    e(f"s_lshl_b32 s28, s{S_W}, 5")
    e("s_add_u32 s29, s29, s28")
    e("s_lshl_b32 s29, s29, 13")
    e(f"s_lshl_b32 s28, s{S_H}, 8")
    e("s_add_u32 s29, s29, s28")
    e("s_mov_b32 s36, s29")
    def soff_q(n):
        if n == 0: e("s_mov_b32 s30, s29")
        else: e(f"s_add_u32 s30, s29, {n*4*8192}")
    dma_tile128(SRD_2, VD0, VD1, soff_q, R0, NTW)
    WUK = 64
    e(f"v_lshlrev_b32 v16, 13, v{V_L15}")
    e(f"v_lshl_add_u32 v16, v{V_G}, 4, v16")
    for ct in range(2):
        if ct == 0: e("s_mov_b32 s30, s36")
        else: e(f"s_add_u32 s30, s36, {16*8192}")
        for ks in range(4):
            e(f"buffer_load_dwordx4 {vr(WUK+(ct*4+ks)*4,4)}, v16, {sr(SRD_3,4)}, s30 offen offset:{64*ks}{NTW}")
    e(f"v_bfe_u32 v17, v{V_LANE}, 2, 2")
    e(f"v_and_b32 v18, 3, v{V_LANE}")
    e(f"v_and_b32 v19, 1, v{V_G}")
    e("v_lshl_add_u32 v20, v19, 2, v17")
    e("v_lshlrev_b32 v20, 1, v20")
    e(f"s_lshl_b32 s28, s{S_W}, 2")
    e("v_xor_b32 v20, s28, v20")
    e("v_lshrrev_b32 v21, 1, v18")
    e("v_add_u32 v20, v20, v21")
    e("v_lshlrev_b32 v20, 4, v20")
    e("v_and_b32 v21, 1, v18")
    e("v_lshl_add_u32 v20, v21, 3, v20")
    e(f"v_lshl_add_u32 v21, v{V_G}, 3, v17")
    e(f"v_lshl_add_u32 v{V_TL0}, v21, 8, v20")
    e(f"v_xor_b32 v{V_TL1}, 32, v{V_TL0}")
    e(f"v_lshrrev_b32 v20, 1, v{V_G}")
    e("v_lshlrev_b32 v20, 8, v20")
    e(f"v_lshl_add_u32 v21, v19, 4, v{V_L15}")
    e(f"s_lshl_b32 s28, s{S_W}, 5")
    e("v_add_u32 v21, s28, v21")
    e(f"v_lshl_add_u32 v{V_AVW}, v21, 1, v20")
    e(f"v_and_b32 v20, 1, v{V_LANE}")
    e("v_lshlrev_b32 v20, 8, v20")
    e(f"v_lshl_add_u32 v{V_AVR}, v{V_G}, 4, v20")
    G.stamp(1)
    e("s_waitcnt vmcnt(16)")
    F0, F1 = 16, 24
    for (X, F) in ((X0, F0), (X1, F1)):
        for k in range(4):
            e(f"v_lshlrev_b32 v{F+2*k}, 16, v{X+k}")
            e(f"v_and_b32 v{F+2*k+1}, 0xffff0000, v{X+k}")
    S0, S1, T0, T1 = 32, 33, 34, 35
    for (F, S) in ((F0, S0), (F1, S1)):
        e(f"v_add_f32 v{S}, v{F}, v{F+1}")
        for k in range(2, 8): e(f"v_add_f32 v{S}, v{S}, v{F+k}")
    wave_sum(S0, T0); wave_sum(S1, T1)
    e("s_mov_b32 s28, 0x3b000000")
    e(f"v_mul_f32 v{S0}, s28, v{S0}")
    e(f"v_mul_f32 v{S1}, s28, v{S1}")
    Q0, Q1 = 36, 37
    for (F, S, Q) in ((F0, S0, Q0), (F1, S1, Q1)):
        for k in range(8):
            e(f"v_sub_f32 v38, v{F+k}, v{S}")
            if k == 0: e(f"v_mul_f32 v{Q}, v38, v38")
            else: e(f"v_fmac_f32 v{Q}, v38, v38")
    wave_sum(Q0, T0); wave_sum(Q1, T1)
    e("s_mov_b32 s29, 0x3727c5ac")
    for (F, S, Q, XB) in ((F0, S0, Q0, 0), (F1, S1, Q1, 1)):
        e(f"v_mul_f32 v{Q}, s28, v{Q}")
        rbf(Q)
        e(f"v_add_f32 v{Q}, s29, v{Q}")
        rbf(Q)
        e(f"v_sqrt_f32 v{Q}, v{Q}")
        nop(1)
        rbf(Q)
        e(f"v_rcp_f32 v{Q}, v{Q}")
        rbf(S)
        for k in range(0, 8, 2):
            e(f"v_sub_f32 v{F+k}, v{F+k}, v{S}")
            e(f"v_sub_f32 v{F+k+1}, v{F+k+1}, v{S}")
            e(f"v_cvt_pk_bf16_f32 v38, v{F+k}, v{F+k+1}")
            e(f"v_lshlrev_b32 v{F+k}, 16, v38")
            e(f"v_and_b32 v{F+k+1}, 0xffff0000, v38")
            e(f"v_mul_f32 v{F+k}, v{F+k}, v{Q}")
            e(f"v_mul_f32 v{F+k+1}, v{F+k+1}, v{Q}")
            e(f"v_cvt_pk_bf16_f32 v{40+XB*4+k//2}, v{F+k}, v{F+k+1}")
        e(f"ds_write_b128 v{V_L16B}, {vr(40+XB*4,4)} offset:{L_XN + XB*1024}")
    G.stamp(2)
    e("s_waitcnt vmcnt(8) lgkmcnt(0)")
    e("s_barrier")
    G.stamp(3)
    VA, VB, VC = 96, 112, 144
    e(f"v_and_b32 v20, 1, v{V_LANE}")
    e("v_lshlrev_b32 v20, 10, v20")
    e(f"v_lshl_add_u32 v20, v{V_G}, 4, v20")
    e(f"s_lshl_b32 s28, s{S_I}, 8")
    e(f"s_add_u32 s28, s28, {L_XN}")
    e("v_add_u32 v20, s28, v20")
    gemv_loadA(20, VA)
    gemv_loadB(R0, VB, 21, 22)
    e("s_waitcnt lgkmcnt(0)")
    gemv_mma(VA, VB, VC)
    V_PUB = 55
    e(f"v_lshlrev_b32 v{V_PUB}, 4, v{V_L15}")
    e(f"v_lshl_add_u32 v{V_PUB}, v{V_G}, 10, v{V_PUB}")
    e(f"s_lshl_b32 s32, s{S_H}, 2")
    e(f"s_add_u32 s32, s32, s{S_W}")
    e("s_lshl_b32 s32, s32, 11")
    e(f"s_lshl_b32 s33, s{S_I}, 8")
    e("s_add_u32 s33, s33, s32")
    e("s_waitcnt lgkmcnt(0)")
    e(f"s_add_u32 s{S_TAG}, s{S_TAG}, 0x9e3779b9")
    e(f"s_add_u32 s34, s33, {WS_QP}")
    publish_units(VC, V_PUB, 34, 48)
    G.stamp(4)
    e(f"s_add_u32 s34, s32, {WS_QP}")
    consume4(34, 40, 44, L_AVQ, 48)
    write_av(40, L_AVQ, 48)
    e("s_waitcnt lgkmcnt(0)")
    e("s_barrier")
    G.stamp(5)
    gemv_loadA(V_AVR, VA, L_AVQ)
    e("s_waitcnt lgkmcnt(0) vmcnt(0)")
    for ks in range(4):
        for ct in range(2):
            c = "0" if ks == 0 else vr(VC+4*ct, 4)
            e(f"v_mfma_f32_16x16x32_bf16 {vr(VC+4*ct,4)}, {vr(VA+4*ks,4)}, {vr(WUK+(ct*4+ks)*4,4)}, {c}")
    nop(10)
    sel_tb(VC, 40, 41)
    e(f"v_cndmask_b32 v40, v40, v41, {sr(M_HI,2)}")
    scale = (128 ** -0.5) * math.log2(math.e)
    import struct
    sc_bits = struct.unpack("<I", struct.pack("<f", scale))[0]
    e(f"v_mul_f32 v40, {hex(sc_bits)}, v40")
    write_av(40, L_QS, 48)
    e("s_waitcnt lgkmcnt(0)")
    e("s_barrier")
    lskip = G.newlab("nopub")
    e(f"s_cmp_lg_u32 s{S_W}, 0")
    e(f"s_cbranch_scc1 {lskip}")
    e(f"ds_read_b128 {vr(40,4)}, v{V_L16B} offset:{L_QS}")
    e(f"v_lshlrev_b32 v44, 4, v{V_L15}")
    e(f"v_lshl_add_u32 v44, v{V_G}, 15, v44")
    e(f"s_lshl_b32 s34, s{S_H}, 10")
    e(f"s_lshl_b32 s35, s{S_I}, 8")
    e("s_add_u32 s34, s34, s35")
    e(f"s_add_u32 s34, s34, {WS_QA}")
    e("s_waitcnt lgkmcnt(0)")
    e("s_mov_b32 exec_lo, -1"); e("s_mov_b32 exec_hi, 0")
    e(f"buffer_store_dwordx4 {vr(40,4)}, v44, {sr(SRD_WS,4)}, s34 offen sc1")
    e("s_mov_b64 exec, 1")
    e(f"v_mov_b32 v46, s{S_TAG}")
    e(f"v_mov_b32 v47, s{S_TAG}")
    e("v_mov_b32 v45, 0")
    e(f"s_lshl_b32 s34, s2, 3")
    e(f"s_add_u32 s34, s34, {WS_FB}")
    e("s_waitcnt vmcnt(0)")
    e(f"buffer_store_dwordx2 {vr(46,2)}, v45, {sr(SRD_WS,4)}, s34 offen sc1")
    e("s_mov_b64 exec, -1")
    lab(lskip)
    G.stamp(6)

    G.srd(SRD_1, P_WUV, 4194304)
    G.srd(SRD_2, P_WO, 4194304)
    lnoffn = G.newlab("noffn"); lafter = G.newlab("afterffn")
    def issue_wuv(base):
        e(f"v_lshl_add_u32 v{VD0}, v{V_G}, 17, v{V_SW}")
        e(f"v_xor_b32 v{VD1}, 128, v{VD0}")
        e(f"s_lshl_b32 s29, s{S_I}, 7")
        e(f"s_lshl_b32 s28, s{S_W}, 2")
        e("s_add_u32 s29, s29, s28")
        e("s_lshl_b32 s29, s29, 13")
        e(f"s_lshl_b32 s28, s{S_H}, 8")
        e("s_add_u32 s29, s29, s28")
        def f(n):
            off = (64*(n & 1) + (n >> 1)) * 8192
            if off == 0: e("s_mov_b32 s30, s29")
            else: e(f"s_add_u32 s30, s29, {off}")
        dma_tile128(SRD_1, VD0, VD1, f, base, NTW)
    def issue_wo(base):
        e(f"v_lshl_add_u32 v{VD0}, v{V_G}, 10, v{V_SW}")
        e(f"v_xor_b32 v{VD1}, 128, v{VD0}")
        e(f"s_lshl_b32 s29, s{S_H}, 7")
        e(f"s_lshl_b32 s28, s{S_W}, 5")
        e("s_add_u32 s29, s29, s28")
        e("s_lshl_b32 s29, s29, 10")
        e(f"s_lshl_b32 s28, s{S_I}, 8")
        e("s_add_u32 s29, s29, s28")
        def f(n):
            if n == 0: e("s_mov_b32 s30, s29")
            else: e(f"s_add_u32 s30, s29, {n*4*1024}")
        dma_tile128(SRD_2, VD0, VD1, f, base, NTW)

    e(f"s_cmp_ge_u32 s2, {NFFN}")
    e(f"s_cbranch_scc1 {lnoffn}")
    G.srd(SRD_3, P_W1, 1409024)
    G.srd(SRD_4, P_W3, 1409024)
    e(f"v_lshrrev_b32 v20, 2, v{V_LANE}")
    e("v_mul_u32_u24 v20, 2752, v20")
    e(f"v_lshrrev_b32 v21, 5, v{V_LANE}")
    e("v_lshlrev_b32 v21, 1, v21")
    e(f"v_and_b32 v22, 3, v{V_LANE}")
    e("v_xor_b32 v21, v21, v22")
    e("v_lshl_add_u32 v20, v21, 4, v20")
    e(f"s_mul_i32 s29, s{S_W}, {128*2752}")
    e("s_lshl_b32 s28, s2, 6")
    e("s_add_u32 s29, s29, s28")
    e(f"s_lshl_b32 s31, s{S_W}, 13")
    for (srd, base) in ((SRD_3, R1), (SRD_4, R2)):
        for n in range(8):
            if n == 0: e("s_mov_b32 s30, s29")
            else: e(f"s_add_u32 s30, s29, {n*16*2752}")
            e(f"s_add_u32 m0, s31, {base + n*1024}")
            nop(1)
            e(f"buffer_load_dwordx4 v20, {sr(srd,4)}, s30 offen{NTW} lds")
    G.srd(SRD_3, P_W2, 1409024)
    e(f"s_and_b32 s28, s{S_W}, 1")
    e("s_lshl_b32 s28, s28, 7")
    e(f"v_xor_b32 v21, s28, v{V_L16B}")
    e("s_lshl_b32 s29, s2, 5")
    e(f"s_lshl_b32 s28, s{S_W}, 3")
    e("s_add_u32 s29, s29, s28")
    e("s_lshl_b32 s29, s29, 10")
    e(f"s_lshl_b32 s31, s{S_W}, 13")
    for j in range(8):
        e(f"v_xor_b32 v22, {32*(j&3)}, v21") if (j & 3) else e("v_mov_b32 v22, v21")
        if j == 0: e("s_mov_b32 s30, s29")
        else: e(f"s_add_u32 s30, s29, {j*1024}")
        e(f"s_add_u32 m0, s31, {R3 + j*1024}")
        nop(1)
        e(f"buffer_load_dwordx4 v22, {sr(SRD_3,4)}, s30 offen{NTW} lds")
    issue_wuv(R0)
    G.stamp(7)
    e("s_waitcnt vmcnt(16)")
    e("s_barrier")
    e(f"v_bfe_u32 v17, v{V_LANE}, 2, 2")
    e(f"v_and_b32 v18, 3, v{V_LANE}")
    e(f"v_and_b32 v19, 1, v{V_G}")
    e(f"s_and_b32 s28, s{S_W}, 1")
    e("s_lshl_b32 s28, s28, 1")
    e("v_lshrrev_b32 v20, 1, v18")
    e("v_add_u32 v20, s28, v20")
    e("v_lshlrev_b32 v21, 1, v19")
    e("v_xor_b32 v20, v20, v21")
    e("v_lshlrev_b32 v20, 4, v20")
    e("v_and_b32 v21, 1, v18")
    e("v_lshl_add_u32 v20, v21, 3, v20")
    e(f"v_lshl_add_u32 v21, v{V_G}, 3, v17")
    e("v_lshl_add_u32 v20, v21, 6, v20")
    e(f"s_lshr_b32 s28, s{S_W}, 1")
    e("s_lshl_b32 s28, s28, 15")
    e(f"s_add_u32 s28, s28, {R1}")
    e("v_add_u32 v20, s28, v20")
    e(f"v_and_b32 v21, 1, v{V_LANE}")
    e("v_lshlrev_b32 v21, 10, v21")
    e(f"v_lshl_add_u32 v21, v{V_G}, 4, v21")
    FA, FB_ = 96, 160
    for ks in range(16):
        e(f"ds_read_b128 {vr(FA+4*ks,4)}, v21 offset:{L_XN + 64*ks}")
        for u in range(2):
            e(f"ds_read_b64_tr_b16 {vr(FB_+4*ks+2*u,2)}, v20 offset:{2048*ks + 256*u}")
    e("s_waitcnt lgkmcnt(0)")
    for ks in range(16):
        c = "0" if ks == 0 else vr(VC+128, 4)
        e(f"v_mfma_f32_16x16x32_bf16 {vr(VC+128,4)}, {vr(FA+4*ks,4)}, {vr(FB_+4*ks,4)}, {c}") if False else None
    GA = 224
    for ks in range(16):
        c = "0" if ks == 0 else vr(GA, 4)
        e(f"v_mfma_f32_16x16x32_bf16 {vr(GA,4)}, {vr(FA+4*ks,4)}, {vr(FB_+4*ks,4)}, {c}")
    nop(10)
    e(f"v_cndmask_b32 v22, v{GA}, v{GA+1}, {sr(M_G1,2)}")
    e(f"v_and_b32 v23, 1, v{V_G}")
    e("v_lshlrev_b32 v23, 7, v23")
    e(f"v_lshl_add_u32 v23, v{V_L15}, 2, v23")
    e(f"s_lshr_b32 s28, s{S_W}, 1")
    e("s_lshl_b32 s28, s28, 8")
    e(f"s_and_b32 s29, s{S_W}, 1")
    e("s_lshl_b32 s29, s29, 6")
    e("s_add_u32 s28, s28, s29")
    e("v_add_u32 v23, s28, v23")
    e(f"ds_write_b32 v23, v22 offset:{L_GU}")
    e("s_waitcnt lgkmcnt(0)")
    e("s_barrier")
    issue_wo(R1)
    e(f"v_lshlrev_b32 v23, 2, v{V_LANE}")
    e(f"ds_read_b32 v24, v23 offset:{L_GU}")
    e(f"ds_read_b32 v25, v23 offset:{L_GU+256}")
    e("s_waitcnt lgkmcnt(0)")
    rbf(24); rbf(25)
    e("v_mul_f32 v26, 0xbfb8aa3b, v24")
    e("v_exp_f32 v26, v26")
    nop(1)
    e("v_add_f32 v26, 1.0, v26")
    e("v_rcp_f32 v26, v26")
    nop(1)
    e("v_mul_f32 v26, v24, v26")
    rbf(26)
    e("v_mul_f32 v26, v26, v25")
    e("v_cvt_pk_bf16_f32 v26, v26, v26")
    e(f"v_lshlrev_b32 v23, 1, v{V_LANE}")
    e(f"ds_write_b16 v23, v26 offset:{L_H}")
    e(f"v_and_b32 v21, 1, v{V_LANE}")
    e("v_lshlrev_b32 v21, 6, v21")
    e(f"v_lshl_add_u32 v21, v{V_G}, 4, v21")
    e("s_waitcnt lgkmcnt(0)")
    e(f"ds_read_b128 {vr(FA,4)}, v21 offset:{L_H}")
    e("s_waitcnt vmcnt(16)")
    e("s_barrier")
    e("v_lshl_add_u32 v20, v19, 2, v17")
    e("v_lshlrev_b32 v20, 1, v20")
    e(f"v_lshl_add_u32 v21, v{V_G}, 3, v17")
    e("v_lshlrev_b32 v21, 10, v21")
    e("v_lshrrev_b32 v22, 1, v18")
    e("v_lshl_add_u32 v21, v22, 4, v21")
    e("v_and_b32 v22, 1, v18")
    e("v_lshl_add_u32 v21, v22, 3, v21")
    e(f"s_lshl_b32 s28, s{S_W}, 8")
    e(f"s_add_u32 s28, s28, {R3}")
    e("v_add_u32 v21, s28, v21")
    for t in range(8):
        e(f"v_xor_b32 v22, {2*t}, v20")
        e(f"v_lshl_add_u32 v{24+t}, v22, 4, v21")
    for t in range(8):
        for u in range(2):
            e(f"ds_read_b64_tr_b16 {vr(FB_+4*t+2*u,2)}, v{24+t} offset:{4096*u}")
    e("s_waitcnt lgkmcnt(0)")
    DA = 100
    for t in range(8):
        e(f"v_mfma_f32_16x16x32_bf16 {vr(DA+4*t,4)}, {vr(FA,4)}, {vr(FB_+4*t,4)}, 0")
    nop(10)
    e(f"v_mul_u32_u24 v20, {FP_S*256}, v{V_G}")
    e(f"v_lshl_add_u32 v20, v{V_L15}, 4, v20")
    e(f"s_mul_i32 s28, s{S_W}, {8*FP_S*256}")
    e("s_lshl_b32 s29, s2, 8")
    e("s_add_u32 s28, s28, s29")
    e(f"s_add_u32 s28, s28, {WS_FP}")
    for j in range(2):
        a = DA + 16*j
        for rr in range(2):
            e(f"v_cndmask_b32 v32, v{a+rr}, v{a+4+rr}, {sr(M_G1,2)}")
            e(f"v_cndmask_b32 v33, v{a+8+rr}, v{a+12+rr}, {sr(M_G1,2)}")
            e(f"v_cndmask_b32 v{36+4*j+2*rr}, v32, v33, {sr(M_HI,2)}")
        e(f"v_mov_b32 v{37+4*j}, s{S_TAG}")
        e(f"v_mov_b32 v{39+4*j}, s{S_TAG}")
        if j == 1: e(f"s_add_u32 s28, s28, {4*FP_S*256}")
        e(f"buffer_store_dwordx4 {vr(36+4*j,4)}, v20, {sr(SRD_WS,4)}, s28 offen sc1")
    e(f"s_branch {lafter}")
    lab(lnoffn)
    issue_wuv(R0)
    issue_wo(R1)
    lab(lafter)
    G.stamp(8)
    BUV, BO = 160, 192
    e("s_waitcnt vmcnt(0)")
    e("s_barrier")
    gemv_loadB(R0, BUV, 21, 22)
    gemv_loadB(R1, BO, 21, 22)
    G.stamp(9)
    e(f"s_lshl_b32 s28, s{S_I}, 5")
    e(f"s_add_u32 s28, s28, s{S_H}")
    e("s_lshl_b32 s28, s28, 11")
    e(f"s_lshr_b32 s29, s{S_W}, 1")
    e("s_lshl_b32 s29, s29, 10")
    e("s_add_u32 s28, s28, s29")
    e(f"s_add_u32 s34, s28, {WS_ST}")
    poll([f"buffer_load_dwordx4 {vr(40,4)}, v{V_L16B}, {sr(SRD_WS,4)}, s34 offen sc1"], [41, 43])
    G.stamp(10)
    e(f"v_lshl_add_u32 v{VD0}, v{V_G}, 15, v{V_SW}")
    e(f"v_xor_b32 v{VD1}, 128, v{VD0}")
    e(f"s_lshl_b32 s29, s{S_W}, 7")
    e(f"s_add_u32 s29, s29, s{S_I}")
    e("s_lshl_b32 s29, s29, 13")
    e(f"s_lshl_b32 s28, s{S_H}, 8")
    e("s_add_u32 s29, s29, s28")
    e(f"s_add_u32 s29, s29, {WS_OP}")
    def soff_ob(n):
        if n == 0: e("s_mov_b32 s30, s29")
        else: e(f"s_add_u32 s30, s29, {n*4*32768}")
    dma_tile128(SRD_WS, VD0, VD1, soff_ob, R2, " sc1")
    e("v_mov_b32 v44, v40")
    wave_max(44, 45)
    e("v_sub_f32 v40, v40, v44")
    e("v_exp_f32 v40, v40")
    nop(1)
    e("v_mul_f32 v44, v40, v42")
    wave_sum(44, 45)
    e("v_rcp_f32 v44, v44")
    nop(1)
    e("v_mul_f32 v40, v40, v44")
    e("v_cvt_pk_bf16_f32 v40, v40, v40")
    e(f"s_lshr_b32 s29, s{S_W}, 1")
    e("s_mul_i32 s28, s29, 384")
    e(f"v_lshlrev_b32 v45, 1, v{V_LANE}")
    e("v_add_u32 v46, s28, v45")
    e(f"ds_write_b16 v46, v40 offset:{L_WGT}")
    e("s_lshl_b32 s28, s29, 7")
    e("s_add_u32 s28, s28, 128")
    e("v_add_u32 v46, s28, v45")
    e("v_mov_b32 v47, 0")
    e(f"ds_write_b16 v46, v47 offset:{L_WGT}")
    e("s_waitcnt vmcnt(0) lgkmcnt(0)")
    e("s_barrier")
    G.stamp(11)
    gemv_loadA(V_AVR, VA, L_WGT)
    gemv_loadB(R2, VB, 21, 22)
    e("s_waitcnt lgkmcnt(0)")
    gemv_mma(VA, VB, VC)
    sel_tb(VC, 40, 41)
    e(f"v_cndmask_b32 v40, v40, v41, {sr(M_HI,2)}")
    write_av(40, L_AVO, 48)
    e("s_waitcnt lgkmcnt(0)")
    e("s_barrier")
    gemv_loadA(V_AVR, VA, L_AVO)
    e("s_waitcnt lgkmcnt(0)")
    gemv_mma(VA, BUV, VC)
    e(f"s_add_u32 s34, s33, {WS_CP}")
    publish_units(VC, V_PUB, 34, 48)
    G.stamp(12)
    e(f"s_add_u32 s34, s32, {WS_CP}")
    consume4(34, 40, 44, L_AVC, 48)
    write_av(40, L_AVC, 48)
    e("s_waitcnt lgkmcnt(0)")
    e("s_barrier")
    G.stamp(13)
    gemv_loadA(V_AVR, VA, L_AVC)
    e("s_waitcnt lgkmcnt(0)")
    gemv_mma(VA, BO, VC)
    e(f"v_lshlrev_b32 v20, 4, v{V_L15}")
    e(f"v_lshl_add_u32 v20, v{V_G}, 13, v20")
    e(f"s_lshl_b32 s28, s{S_I}, 2")
    e(f"s_add_u32 s28, s28, s{S_W}")
    e("s_lshl_b32 s28, s28, 14")
    e(f"s_lshl_b32 s29, s{S_H}, 8")
    e("s_add_u32 s28, s28, s29")
    e(f"s_add_u32 s34, s28, {WS_EP}")
    publish_units(VC, 20, 34, 48)
    G.stamp(14)
    e("s_cmp_lt_u32 s2, 96")
    e("s_cbranch_scc1 L_wdone")
    e("s_sub_u32 s35, s2, 96")
    e(f"v_lshlrev_b32 v20, 4, v0")
    e("s_lshl_b32 s28, s35, 13")
    e(f"s_add_u32 s36, s28, {WS_EP}")
    e(f"s_mul_i32 s28, s35, {FP_S*256}")
    e(f"s_add_u32 s37, s28, {WS_FP}")
    G.srd(SRD_1, P_X, 2048)
    e(f"v_lshlrev_b32 v21, 10, v{V_G}")
    e(f"v_lshl_add_u32 v21, v{V_L15}, 1, v21")
    e("s_lshl_b32 s28, s35, 5")
    e(f"buffer_load_ushort v22, v21, {sr(SRD_1,4)}, s28 offen")
    e("v_cmp_le_u32 s[42:43], 176, v0") if False else None
    e("v_mov_b32 v23, 176")
    e("v_cmp_ge_u32 s[42:43], v0, v23")
    def fix_invalid():
        pass
    units = [f"buffer_load_dwordx4 {vr(100,4)}, v20, {sr(SRD_WS,4)}, s36 offen sc1",
             f"buffer_load_dwordx4 {vr(104,4)}, v20, {sr(SRD_WS,4)}, s36 offen offset:4095 sc1" if False else None]
    e("v_add_u32 v24, 4096, v20")
    e("v_add_u32 v25, 8192, v20")
    lp, done = G.newlab("poll"), G.newlab("pdone")
    e(f"s_mov_b32 s48, {G.spin}")
    lab(lp)
    e(f"buffer_load_dwordx4 {vr(100,4)}, v20, {sr(SRD_WS,4)}, s36 offen sc1")
    e(f"buffer_load_dwordx4 {vr(104,4)}, v24, {sr(SRD_WS,4)}, s36 offen sc1")
    e(f"buffer_load_dwordx4 {vr(108,4)}, v20, {sr(SRD_WS,4)}, s37 offen sc1")
    e(f"buffer_load_dwordx4 {vr(112,4)}, v24, {sr(SRD_WS,4)}, s37 offen sc1")
    e(f"buffer_load_dwordx4 {vr(116,4)}, v25, {sr(SRD_WS,4)}, s37 offen sc1")
    e("s_waitcnt vmcnt(0)")
    e(f"v_mov_b32 v26, s{S_TAG}")
    e("v_cndmask_b32 v117, v117, v26, s[42:43]")
    e("v_cndmask_b32 v119, v119, v26, s[42:43]")
    e("v_cndmask_b32 v116, v116, 0, s[42:43]") if False else None
    e("v_mov_b32 v27, 0")
    e("v_cndmask_b32 v116, v116, v27, s[42:43]")
    e("v_cndmask_b32 v118, v118, v27, s[42:43]")
    first = True
    for a in (100, 104, 108, 112, 116):
        e(f"v_xor_b32 v61, s{S_TAG}, v{a+1}")
        e(f"v_xor_b32 v62, s{S_TAG}, v{a+3}")
        if first: e("v_or_b32 v60, v61, v62"); first = False
        else: e("v_or3_b32 v60, v60, v61, v62")
    e("v_cmp_ne_u32 vcc, 0, v60")
    e(f"s_cbranch_vccz {done}")
    e("s_sub_u32 s48, s48, 1")
    e(f"s_cbranch_scc1 {done}")
    if G.poll_sleep: e(f"s_sleep {G.poll_sleep}")
    e(f"s_branch {lp}")
    lab(done)
    G.stamp(15)
    for rr in (0, 2):
        e(f"v_add_f32 v{100+rr}, v{100+rr}, v{104+rr}")
        e(f"v_add_f32 v{108+rr}, v{108+rr}, v{112+rr}")
        e(f"v_add_f32 v{100+rr}, v{100+rr}, v{116+rr}")
        e(f"v_add_f32 v{100+rr}, v{100+rr}, v{108+rr}")
    nop(1)
    e("v_permlane32_swap_b32 v100, v102")
    nop(1)
    e("v_add_f32 v100, v100, v102")
    e("v_mov_b32 v101, v100")
    nop(2)
    e("v_permlane16_swap_b32 v100, v101")
    nop(1)
    e("v_add_f32 v100, v100, v101")
    e(f"v_lshrrev_b32 v27, 5, v{V_LANE}")
    e("v_lshlrev_b32 v27, 6, v27")
    e(f"v_lshl_add_u32 v27, v{V_L15}, 2, v27")
    e(f"s_lshl_b32 s28, s{S_W}, 7")
    e("v_add_u32 v28, s28, v27")
    e(f"ds_write_b32 v28, v100 offset:{L_FIN}")
    e("s_waitcnt lgkmcnt(0)")
    e("s_barrier")
    e(f"s_cmp_lg_u32 s{S_W}, 0")
    e("s_cbranch_scc1 L_wdone")
    e(f"v_lshlrev_b32 v27, 2, v{V_LANE}")
    for w in range(4):
        e(f"ds_read_b32 v{104+w}, v27 offset:{L_FIN + 128*w}")
    e("s_waitcnt lgkmcnt(0) vmcnt(0)")
    e("v_add_f32 v104, v104, v105")
    e("v_add_f32 v106, v106, v107")
    e("v_add_f32 v104, v104, v106")
    e("v_lshlrev_b32 v22, 16, v22")
    e("v_add_f32 v104, v104, v22")
    e("v_cvt_pk_bf16_f32 v104, v104, v104")
    G.srd(SRD_2, P_OUT, 2048)
    e("s_lshl_b32 s28, s35, 5")
    e("s_mov_b32 exec_lo, -1"); e("s_mov_b32 exec_hi, 0")
    e(f"buffer_store_short v104, v21, {sr(SRD_2,4)}, s28 offen")
    e("s_cmp_lg_u32 s35, 0")
    e("s_cbranch_scc1 L_wdone0")
    e("s_mov_b64 exec, 1")
    e(f"v_mov_b32 v30, s{S_TAG}")
    e("v_mov_b32 v31, 0")
    e(f"buffer_store_dword v30, v31, {sr(SRD_WS,4)}, 0 offen offset:{WS_EPOCH}")
    lab("L_wdone0")
    e("s_mov_b64 exec, -1")
    lab("L_wdone")
    G.stamp(16)
    store_stamps()
    e("s_endpgm")

    lab("L_att")
    e("s_sub_u32 s28, s2, 128")
    e(f"s_lshr_b32 s{S_H}, s28, 6")
    e(f"s_and_b32 s{S_I}, s28, 63")
    G.srd(SRD_1, P_CKV, 16777216)
    VCK = 8
    for idx in range(8):
        x = 32*(idx & 3) + 128*(idx >> 2)
        if x == 0: e(f"v_mov_b32 v{VCK+idx}, v{V_L16B}")
        else: e(f"v_xor_b32 v{VCK+idx}, {x}, v{V_L16B}")
    e("s_lshl_b32 s29, s28, 7")
    e(f"s_lshl_b32 s30, s{S_W}, 5")
    e("s_add_u32 s29, s29, s30")
    e("s_lshl_b32 s29, s29, 10")
    e(f"s_lshl_b32 s31, s{S_W}, 15")
    for j in range(32):
        idx = (j & 3) + 4*((j >> 3) & 1)
        if j == 0: e("s_mov_b32 s30, s29")
        else: e(f"s_add_u32 s30, s29, {j*1024}")
        e(f"s_add_u32 m0, s31, {L_CKV + j*1024}")
        nop(1)
        e(f"buffer_load_dwordx4 v{VCK+idx}, {sr(SRD_1,4)}, s30 offen{NTC} lds")
    G.stamp(1)
    AA, AB = 16, 20
    e(f"v_and_b32 v24, 3, v{V_LANE}")
    e(f"v_bfe_u32 v25, v{V_LANE}, 3, 1")
    e("v_lshl_add_u32 v24, v25, 2, v24")
    e("v_lshlrev_b32 v24, 1, v24")
    e(f"v_xor_b32 v25, v24, v{V_G}")
    e(f"v_lshlrev_b32 v26, 10, v{V_L15}")
    e(f"s_add_u32 s37, s31, {L_CKV}")
    for j in range(4):
        if j == 0: e(f"v_mov_b32 v27, v25")
        else: e(f"v_xor_b32 v27, {4*j}, v25")
        e(f"v_lshl_add_u32 v{AB+j}, v27, 4, v26")
        e(f"v_add_u32 v{AA+j}, s37, v{AB+j}")
        if L_QAL: e(f"v_add_u32 v{AB+j}, {L_QAL}, v{AB+j}")
    e("s_waitcnt lgkmcnt(0)")
    e(f"s_add_u32 s{S_TAG}, s{S_TAG}, 0x9e3779b9")
    CA = 64
    e("s_waitcnt vmcnt(0)")
    G.stamp(2)
    for ks in range(16):
        for kt in range(2):
            e(f"ds_read_b128 {vr(CA+(kt*16+ks)*4,4)}, v{AA+(ks&3)} offset:{16384*kt + 256*(ks>>2)}")
    e(f"v_lshlrev_b32 v28, 4, v{V_L15}")
    e(f"s_lshl_b32 s34, s{S_W}, 8")
    e(f"s_add_u32 s34, s34, {WS_FB}")
    poll([f"buffer_load_dwordx4 {vr(40,4)}, v28, {sr(SRD_WS,4)}, s34 offen sc1"], [40, 41, 42, 43])
    G.stamp(3)
    e(f"s_and_b32 s28, s{S_W}, 1")
    e("s_lshl_b32 s28, s28, 7")
    e(f"v_xor_b32 v29, s28, v{V_L16B}")
    e(f"s_lshl_b32 s29, s{S_H}, 15")
    e(f"s_lshl_b32 s30, s{S_W}, 13")
    e("s_add_u32 s29, s29, s30")
    e(f"s_add_u32 s29, s29, {WS_QA}")
    e(f"s_lshl_b32 s31, s{S_W}, 13")
    for j in range(8):
        if j & 3: e(f"v_xor_b32 v30, {32*(j&3)}, v29")
        else: e("v_mov_b32 v30, v29")
        if j == 0: e("s_mov_b32 s30, s29")
        else: e(f"s_add_u32 s30, s29, {j*1024}")
        e(f"s_add_u32 m0, s31, {L_QAL + j*1024}")
        nop(1)
        e(f"buffer_load_dwordx4 v30, {sr(SRD_WS,4)}, s30 offen sc1 lds")
    e("s_waitcnt vmcnt(0) lgkmcnt(0)")
    e("s_barrier")
    G.stamp(4)
    QB = 32
    SC = 192
    def rdB(ks):
        st = ks % 3
        for ht in range(2):
            e(f"ds_read_b128 {vr(QB+(st*2+ht)*4,4)}, v{AB+(ks&3)} offset:{16384*ht + 256*(ks>>2)}")
    rdB(0); rdB(1)
    for ks in range(16):
        if ks + 2 < 16:
            rdB(ks + 2); e("s_waitcnt lgkmcnt(4)")
        elif ks + 1 < 16: e("s_waitcnt lgkmcnt(2)")
        else: e("s_waitcnt lgkmcnt(0)")
        st = ks % 3
        for kt in range(2):
            for ht in range(2):
                d = SC + (kt*2+ht)*4
                c = "0" if ks == 0 else vr(d, 4)
                e(f"v_mfma_f32_16x16x32_bf16 {vr(d,4)}, {vr(CA+(kt*16+ks)*4,4)}, {vr(QB+(st*2+ht)*4,4)}, {c}")
    nop(10)
    G.stamp(5)
    MXR = 32
    for ht in range(2):
        a = SC + ht*4; b = SC + (2+ht)*4
        e(f"v_max3_f32 v{MXR+ht}, v{a}, v{a+1}, v{a+2}")
        e(f"v_max3_f32 v{MXR+ht}, v{MXR+ht}, v{a+3}, v{b}")
        e(f"v_max3_f32 v{MXR+ht}, v{MXR+ht}, v{b+1}, v{b+2}")
        e(f"v_max_f32 v{MXR+ht}, v{MXR+ht}, v{b+3}")
    for ht in range(2): xg_reduce("v_max_f32", MXR+ht, MXR+2+ht)
    e("s_barrier")
    e(f"v_cndmask_b32 v36, v{MXR}, v{MXR+1}, {sr(M_G1,2)}")
    e(f"v_and_b32 v37, 31, v{V_LANE}")
    e("v_lshlrev_b32 v37, 2, v37")
    e(f"s_lshl_b32 s28, s{S_W}, 7")
    e("v_add_u32 v38, s28, v37")
    e(f"ds_write_b32 v38, v36 offset:{L_MX}")
    e("s_waitcnt lgkmcnt(0)")
    e("s_barrier")
    e(f"v_lshlrev_b32 v39, 2, v{V_L15}")
    for ht in range(2):
        for w in range(4):
            e(f"ds_read_b32 v{40+ht*4+w}, v39 offset:{L_MX + 128*w + 64*ht}")
    e("s_waitcnt lgkmcnt(0)")
    for ht in range(2):
        e(f"v_max3_f32 v{MXR+ht}, v{40+ht*4}, v{41+ht*4}, v{42+ht*4}")
        e(f"v_max_f32 v{MXR+ht}, v{MXR+ht}, v{43+ht*4}")
    LS = 34
    for ht in range(2):
        for kt in range(2):
            d = SC + (kt*2+ht)*4
            for r in range(4):
                e(f"v_sub_f32 v{d+r}, v{d+r}, v{MXR+ht}")
            for r in range(4):
                e(f"v_exp_f32 v{d+r}, v{d+r}")
        nop(1)
        a = SC + ht*4; b = SC + (2+ht)*4
        e(f"v_add_f32 v{LS+ht}, v{a}, v{a+1}")
        for x in (a+2, a+3, b, b+1, b+2, b+3):
            e(f"v_add_f32 v{LS+ht}, v{LS+ht}, v{x}")
    e(f"v_lshrrev_b32 v40, 1, v{V_G}")
    e(f"s_lshl_b32 s28, s{S_W}, 2")
    e("v_add_u32 v40, s28, v40")
    e(f"v_and_b32 v41, 1, v{V_G}")
    e("v_lshlrev_b32 v41, 3, v41")
    e(f"v_lshl_add_u32 v41, v{V_L15}, 8, v41")
    for kt in range(2):
        if kt: e("v_xor_b32 v42, 2, v40")
        else: e("v_mov_b32 v42, v40")
        e(f"v_xor_b32 v42, v42, v{V_L15}")
        e("v_lshl_add_u32 v42, v42, 4, v41")
        for ht in range(2):
            d = SC + (kt*2+ht)*4
            e(f"v_cvt_pk_bf16_f32 v44, v{d}, v{d+1}")
            e(f"v_cvt_pk_bf16_f32 v45, v{d+2}, v{d+3}")
            e(f"ds_write_b64 v42, {vr(44,2)} offset:{L_P + 4096*ht}")
            nop(1)
    for ht in range(2): xg_reduce("v_add_f32", LS+ht, 46+ht)
    e(f"v_cndmask_b32 v36, v{LS}, v{LS+1}, {sr(M_G1,2)}")
    e(f"ds_write_b32 v38, v36 offset:{L_LP}")
    e("s_waitcnt lgkmcnt(0)")
    e("s_barrier")
    G.stamp(6)
    PA = 208
    for ks in range(4):
        e(f"v_add_u32 v40, {4*ks}, v{V_G}")
        e(f"v_xor_b32 v40, v40, v{V_L15}")
        e("v_lshlrev_b32 v40, 4, v40")
        e(f"v_lshl_add_u32 v40, v{V_L15}, 8, v40")
        for ht in range(2):
            e(f"ds_read_b128 {vr(PA+(ht*4+ks)*4,4)}, v40 offset:{L_P + 4096*ht}")
    for w in range(4):
        e(f"ds_read_b32 v{240+w}, v37 offset:{L_LP + 128*w}")
    TB = 8
    e(f"v_bfe_u32 v17, v{V_LANE}, 2, 2")
    e(f"v_and_b32 v18, 3, v{V_LANE}")
    e(f"v_and_b32 v19, 1, v{V_G}")
    e("v_lshl_add_u32 v20, v19, 2, v17")
    e("v_lshlrev_b32 v20, 1, v20")
    e(f"v_lshl_add_u32 v21, v{V_G}, 3, v17")
    e("v_lshlrev_b32 v21, 10, v21")
    e("v_lshrrev_b32 v22, 1, v18")
    e("v_lshl_add_u32 v21, v22, 4, v21")
    e("v_and_b32 v22, 1, v18")
    e("v_lshl_add_u32 v21, v22, 3, v21")
    e(f"s_lshl_b32 s28, s{S_W}, 8")
    e(f"s_add_u32 s28, s28, {L_CKV}")
    e("v_add_u32 v21, s28, v21")
    for t in range(8):
        e(f"v_xor_b32 v22, {2*t}, v20")
        e(f"v_lshl_add_u32 v{TB+t}, v22, 4, v21")
    OC = 64
    PB = 128
    def rdPB(ks):
        st = ks & 1
        if ks == 2:
            for t in range(8): e(f"v_add_u32 v{TB+t}, 65536, v{TB+t}")
        off = (ks & 1) * 32768
        for t in range(8):
            for u in range(2):
                e(f"ds_read_b64_tr_b16 {vr(PB+(st*8+t)*4+2*u,2)}, v{TB+t} offset:{off + 4096*u}")
    rdPB(0)
    for ks in range(4):
        e("s_waitcnt lgkmcnt(0)")
        if ks + 1 < 4: rdPB(ks + 1)
        st = ks & 1
        for t in range(8):
            for ht in range(2):
                d = OC + (ht*8+t)*4
                c = "0" if ks == 0 else vr(d, 4)
                e(f"v_mfma_f32_16x16x32_bf16 {vr(d,4)}, {vr(PA+(ht*4+ks)*4,4)}, {vr(PB+(st*8+t)*4,4)}, {c}")
    nop(10)
    G.stamp(7)
    e("s_sub_u32 s28, s2, 128")
    e("s_lshl_b32 s28, s28, 2")
    e(f"s_add_u32 s28, s28, s{S_W}")
    e("s_lshl_b32 s28, s28, 13")
    e(f"s_add_u32 s34, s28, {WS_OP}")
    e("s_add_u32 s35, s34, 4096")
    e(f"v_lshlrev_b32 v16, 4, v{V_L15}")
    e(f"v_lshl_add_u32 v16, v{V_G}, 10, v16")
    k = 0
    for ht in range(2):
        for r in range(4):
            q = 128 + 4*k; k += 1
            for tp in range(4):
                e(f"v_cvt_pk_bf16_f32 v{q+tp}, v{OC+(ht*8+2*tp)*4+r}, v{OC+(ht*8+2*tp+1)*4+r}")
            e(f"buffer_store_dwordx4 {vr(q,4)}, v16, {sr(SRD_WS,4)}, s{34+ht} offen offset:{r*256} sc1")
    e("v_add_f32 v240, v240, v241")
    e("v_add_f32 v242, v242, v243")
    e("v_add_f32 v46, v240, v242")
    e(f"v_cndmask_b32 v44, v{MXR}, v{MXR+1}, {sr(M_G1,2)}")
    e(f"v_mov_b32 v45, s{S_TAG}")
    e(f"v_mov_b32 v47, s{S_TAG}")
    e(f"v_lshlrev_b32 v17, 11, v{V_LANE}")
    e(f"s_lshl_b32 s28, s{S_W}, 16")
    e("s_sub_u32 s29, s2, 128")
    e("s_lshl_b32 s29, s29, 4")
    e("s_add_u32 s28, s28, s29")
    e(f"s_add_u32 s34, s28, {WS_ST}")
    e("s_waitcnt vmcnt(0)")
    G.stamp(8)
    e("s_mov_b32 exec_lo, -1"); e("s_mov_b32 exec_hi, 0")
    e(f"buffer_store_dwordx4 {vr(44,4)}, v17, {sr(SRD_WS,4)}, s34 offen sc1")
    e("s_mov_b64 exec, -1")
    G.stamp(9)
    store_stamps()
    lab("L_end")
    e("s_endpgm")

    tail = []
    tail.append('.section .rodata,"a"')
    tail.append(".p2align 6")
    tail.append(f".amdhsa_kernel {NAME}_kernel")
    tail.append("  .amdhsa_next_free_vgpr 256")
    tail.append("  .amdhsa_next_free_sgpr 102")
    tail.append("  .amdhsa_accum_offset 256")
    tail.append("  .amdhsa_group_segment_fixed_size 0")
    tail.append("  .amdhsa_kernarg_size 104")
    tail.append("  .amdhsa_user_sgpr_count 2")
    tail.append("  .amdhsa_user_sgpr_kernarg_segment_ptr 1")
    tail.append("  .amdhsa_system_sgpr_workgroup_id_x 1")
    tail.append(".end_amdhsa_kernel")
    import re
    for ln in G.L:
        if "buffer_" in ln:
            m = re.search(r"offset:(\d+)", ln)
            assert not m or int(m.group(1)) <= 4095, ln
    return "\n".join(hdr + G.L + tail) + "\n"

if __name__ == "__main__":
    import argparse
    ap = argparse.ArgumentParser()
    ap.add_argument("-o", default=f"cdna_kernels/{NAME}.s")
    ap.add_argument("--stamps", action="store_true")
    ap.add_argument("--no-nt-ckv", action="store_true")
    ap.add_argument("--no-nt-w", action="store_true")
    a = ap.parse_args()
    s = build(stamps=a.stamps, nt_ckv=not a.no_nt_ckv, nt_w=not a.no_nt_w)
    open(a.o, "w").write(s)
    print("wrote", a.o, len(s), "bytes")
```

```python
import sys, math
NAME = "parallel_sum__compressed_kv_cla__glu_gated_swiglu__decode"

WS_EPOCH = 0x0
WS_FB    = 0x1000
WS_QP    = 0x10000
WS_QA    = 0x50000
WS_CP    = 0x60000
WS_EP    = 0xA0000
WS_FP    = 0xE0000
WS_ST    = 0x140000
WS_OP    = 0x200000
WS_STAMP = 0x800000
FP_S = 48
NFFN = 43

R0, R1, R2, R3 = 8192, 40960, 73728, 106496
L_XN  = 0
L_AVQ = L_XN + 2048
L_AVO = L_AVQ + 512
L_AVC = L_AVO + 512
L_WGT = L_AVC + 512
L_QS  = L_WGT + 512
L_GU  = L_QS + 512
L_H   = L_GU + 512
L_FIN = L_H + 512
L_CKV = 32768
L_QAL = 0
L_MX  = 0
L_LP  = 512
L_P   = 4096
LDS_BYTES = 163840

class Gen:
    def __init__(self, stamps=False, nt_ckv=True, nt_w=True, poll_sleep=1, spin=200000):
        self.L = []
        self.stamps = stamps
        self.nt_ckv = nt_ckv
        self.nt_w = nt_w
        self.poll_sleep = poll_sleep
        self.spin = spin
        self.nlab = 0
    def e(self, s): self.L.append("  " + s)
    def lab(self, s): self.L.append(s + ":")
    def newlab(self, p):
        self.nlab += 1
        return f"L_{p}_{self.nlab}"
    def nop(self, n):
        while n > 0:
            k = min(n, 16)
            self.e(f"s_nop {k-1}")
            n -= k
    def stamp(self, idx):
        if not self.stamps: return
        self.e("s_memrealtime s[40:41]")
        self.e("s_waitcnt lgkmcnt(0)")
        self.e(f"v_writelane_b32 v255, s40, {idx}")
    def srd(self, dst, ptr, size):
        self.e(f"s_mov_b32 s{dst}, s{ptr}")
        self.e(f"s_and_b32 s{dst+1}, s{ptr+1}, 0xffff")
        self.e(f"s_mov_b32 s{dst+2}, {size}")
        self.e(f"s_mov_b32 s{dst+3}, 0x20000")

P_X, P_CKV, P_WQ, P_WUK, P_WUV, P_WO, P_BX, P_W1, P_W3, P_W2, P_OUT, P_DBG, P_WS = 64, 66, 68, 70, 72, 74, 76, 78, 80, 82, 84, 86, 88
S_W, S_H, S_I, S_TAG = 3, 4, 5, 6
SRD_WS, SRD_1, SRD_2, SRD_3, SRD_4 = 8, 12, 16, 20, 24
M_G1, M_HI = 44, 46
V_LANE, V_L15, V_G, V_L16B, V_SW, V_TL0, V_TL1 = 1, 2, 3, 4, 5, 6, 7

def vr(a, n): return f"v[{a}:{a+n-1}]"
def sr(a, n): return f"s[{a}:{a+n-1}]"

def build(extra_empty=0, **kw):
    G = Gen(**kw)
    e, lab, nop = G.e, G.lab, G.nop
    NTW = " nt" if G.nt_w else ""
    NTC = " nt" if G.nt_ckv else ""
    hdr = []
    if extra_empty:
        hdr.append(f"; @launch kernel={NAME}_kernel grid=(256,1,1) block=(256,1,1) lds={LDS_BYTES}")
        for _ in range(extra_empty):
            hdr.append(f"; @launch kernel=empty_kernel grid=(256,1,1) block=(256,1,1) lds=0")
    else:
        hdr.append(f"; @launch grid=(256,1,1) block=(256,1,1) lds={LDS_BYTES}")
    hdr.append('.amdgcn_target "amdgcn-amd-amdhsa--gfx950"')
    hdr.append(".text")
    hdr.append(f".globl {NAME}_kernel")
    hdr.append(".p2align 8")
    hdr.append(f".type {NAME}_kernel,@function")
    hdr.append(f"{NAME}_kernel:")

    def poll(units, tagregs, extra_ok=None):
        lp, done = G.newlab("poll"), G.newlab("pdone")
        e(f"s_mov_b32 s48, {G.spin}")
        lab(lp)
        for u in units: e(u)
        e("s_waitcnt vmcnt(0)")
        first = True
        for k in range(0, len(tagregs), 2):
            a = tagregs[k]; b = tagregs[k+1] if k + 1 < len(tagregs) else tagregs[k]
            e(f"v_xor_b32 v61, s{S_TAG}, v{a}")
            e(f"v_xor_b32 v62, s{S_TAG}, v{b}")
            if first:
                e("v_or_b32 v60, v61, v62"); first = False
            else:
                e("v_or3_b32 v60, v60, v61, v62")
        if extra_ok: extra_ok()
        e("v_cmp_ne_u32 vcc, 0, v60")
        e(f"s_cbranch_vccz {done}")
        e("s_sub_u32 s48, s48, 1")
        e(f"s_cbranch_scc1 {done}")
        if G.poll_sleep: e(f"s_sleep {G.poll_sleep}")
        e(f"s_branch {lp}")
        lab(done)

    def dma_tile128(srd, v0, v1, soff_fn, lds_base, flags):
        e(f"s_lshl_b32 s31, s{S_W}, 13")
        for n in range(8):
            soff_fn(n)
            e(f"s_add_u32 m0, s31, {lds_base + n*1024}")
            v = v1 if (n >> 1) & 1 else v0
            nop(1)
            e(f"buffer_load_dwordx4 v{v}, {sr(srd,4)}, s30 offen{flags} lds")

    def gemv_loadB(base, vB, tmp0, tmp1):
        if base + 3*8192 + 1024 + 0 <= 65535 - 0:
            a0, a1, off = V_TL0, V_TL1, base
        else:
            e(f"v_add_u32 v{tmp0}, {base}, v{V_TL0}")
            e(f"v_add_u32 v{tmp1}, {base}, v{V_TL1}")
            a0, a1, off = tmp0, tmp1, 0
        for ks in range(4):
            for t in range(2):
                for u in range(2):
                    r = vB + (t*4 + ks)*4 + 2*u
                    e(f"ds_read_b64_tr_b16 {vr(r,2)}, v{a1 if t else a0} offset:{off + 8192*ks + 1024*u}")
    def gemv_loadA(vaddr, vA, off=0):
        for ks in range(4):
            e(f"ds_read_b128 {vr(vA+4*ks,4)}, v{vaddr} offset:{off + 64*ks}")
    def gemv_mma(vA, vB, vC):
        for ks in range(4):
            for t in range(2):
                c = "0" if ks == 0 else vr(vC+4*t, 4)
                e(f"v_mfma_f32_16x16x32_bf16 {vr(vC+4*t,4)}, {vr(vA+4*ks,4)}, {vr(vB+(t*4+ks)*4,4)}, {c}")
        nop(10)
    def sel_tb(vC, d0, d1):
        e(f"v_cndmask_b32 v{d0}, v{vC}, v{vC+4}, {sr(M_G1,2)}")
        e(f"v_cndmask_b32 v{d1}, v{vC+1}, v{vC+5}, {sr(M_G1,2)}")
    def publish_units(vC, voff, soff, q):
        sel_tb(vC, q, q+2)
        e(f"v_mov_b32 v{q+1}, s{S_TAG}")
        e(f"v_mov_b32 v{q+3}, s{S_TAG}")
        e("s_mov_b32 exec_lo, -1"); e("s_mov_b32 exec_hi, 0")
        e(f"buffer_store_dwordx4 {vr(q,4)}, v{voff}, {sr(SRD_WS,4)}, s{soff} offen sc1")
        e("s_mov_b64 exec, -1")
    def consume4(soff, u0, u1, lds_dst, vtmp):
        poll([f"buffer_load_dwordx4 {vr(u0,4)}, v{V_L16B}, {sr(SRD_WS,4)}, s{soff} offen sc1",
              f"buffer_load_dwordx4 {vr(u1,4)}, v{V_L16B}, {sr(SRD_WS,4)}, s{soff} offen offset:1024 sc1"],
             [u0+1, u0+3, u1+1, u1+3])
        e(f"v_permlane32_swap_b32 v{u0}, v{u0+2}")
        e(f"v_permlane32_swap_b32 v{u1}, v{u1+2}")
        nop(1)
        e(f"v_add_f32 v{u0}, v{u0}, v{u0+2}")
        e(f"v_add_f32 v{u1}, v{u1}, v{u1+2}")
        nop(2)
        e(f"v_permlane16_swap_b32 v{u0}, v{u1}")
        nop(1)
        e(f"v_add_f32 v{u0}, v{u0}, v{u1}")
    def write_av(vsrc, lds_dst, vtmp):
        e(f"v_cvt_pk_bf16_f32 v{vtmp}, v{vsrc}, v{vsrc}")
        nop(1)
        e(f"ds_write_b16 v{V_AVW}, v{vtmp} offset:{lds_dst}")

    def wave_sum(v, tmp):
        for r in (8, 4, 2, 1):
            nop(2)
            e(f"v_add_f32_dpp v{v}, v{v}, v{v} row_ror:{r} row_mask:0xf bank_mask:0xf")
        e(f"v_mov_b32 v{tmp}, v{v}")
        nop(2)
        e(f"v_permlane16_swap_b32 v{v}, v{tmp}")
        nop(1)
        e(f"v_add_f32 v{v}, v{v}, v{tmp}")
        e(f"v_mov_b32 v{tmp}, v{v}")
        nop(2)
        e(f"v_permlane32_swap_b32 v{v}, v{tmp}")
        nop(1)
        e(f"v_add_f32 v{v}, v{v}, v{tmp}")
    def wave_max(v, tmp):
        for r in (8, 4, 2, 1):
            nop(2)
            e(f"v_max_f32_dpp v{v}, v{v}, v{v} row_ror:{r} row_mask:0xf bank_mask:0xf")
        e(f"v_mov_b32 v{tmp}, v{v}")
        nop(2)
        e(f"v_permlane16_swap_b32 v{v}, v{tmp}")
        nop(1)
        e(f"v_max_f32 v{v}, v{v}, v{tmp}")
        e(f"v_mov_b32 v{tmp}, v{v}")
        nop(2)
        e(f"v_permlane32_swap_b32 v{v}, v{tmp}")
        nop(1)
        e(f"v_max_f32 v{v}, v{v}, v{tmp}")
    def xg_reduce(op, v, tmp):
        e(f"v_mov_b32 v{tmp}, v{v}")
        nop(2)
        e(f"v_permlane16_swap_b32 v{v}, v{tmp}")
        nop(1)
        e(f"{op} v{v}, v{v}, v{tmp}")
        e(f"v_mov_b32 v{tmp}, v{v}")
        nop(2)
        e(f"v_permlane32_swap_b32 v{v}, v{tmp}")
        nop(1)
        e(f"{op} v{v}, v{v}, v{tmp}")
    def rbf(v, tmp=None):
        e(f"v_cvt_pk_bf16_f32 v{v}, v{v}, v{v}")
        e(f"v_lshlrev_b32 v{v}, 16, v{v}")
    def store_stamps():
        if not G.stamps: return
        e(f"s_lshl_b32 s30, s2, 2")
        e(f"s_add_u32 s30, s30, s{S_W}")
        e(f"s_lshl_b32 s30, s30, 8")
        e(f"s_add_u32 s30, s30, {WS_STAMP}")
        e(f"v_lshlrev_b32 v60, 2, v{V_LANE}")
        e(f"buffer_store_dword v255, v60, {sr(SRD_WS,4)}, s30 offen")

    V_AVW = 56
    V_AVR = 57

    e("s_cmp_ge_u32 s2, 256")
    e("s_cbranch_scc1 L_end")
    G.stamp(0) if False else None
    if G.stamps:
        e("v_mov_b32 v255, 0")
        e("s_memrealtime s[40:41]")
    e(f"s_load_dwordx16 s[64:79], s[0:1], 0")
    e(f"s_load_dwordx8 s[80:87], s[0:1], 64")
    e(f"s_load_dwordx2 s[88:89], s[0:1], 96")
    e(f"v_and_b32 v{V_LANE}, 63, v0")
    e(f"v_lshrrev_b32 v8, 6, v0")
    e(f"v_and_b32 v{V_L15}, 15, v0")
    e(f"v_readfirstlane_b32 s{S_W}, v8")
    e(f"v_lshrrev_b32 v{V_G}, 4, v{V_LANE}")
    e(f"v_lshlrev_b32 v{V_L16B}, 4, v{V_LANE}")
    e(f"s_mov_b32 s{M_G1}, 0xffff0000"); e(f"s_mov_b32 s{M_G1+1}, 0xffff0000")
    e(f"s_mov_b32 s{M_HI}, 0"); e(f"s_mov_b32 s{M_HI+1}, -1")
    e(f"v_lshlrev_b32 v8, 1, v{V_G}")
    e(f"v_xor_b32 v8, v8, v{V_L15}")
    e(f"v_lshlrev_b32 v{V_SW}, 4, v8")
    e("s_waitcnt lgkmcnt(0)")
    if G.stamps: e("v_writelane_b32 v255, s40, 0")
    e(f"s_load_dword s{S_TAG}, {sr(P_WS,2)}, {WS_EPOCH}")
    G.srd(SRD_WS, P_WS, 0x10000000)
    e("s_cmp_ge_u32 s2, 128")
    e("s_cbranch_scc1 L_att")

    e(f"s_lshr_b32 s{S_H}, s2, 2")
    e(f"s_and_b32 s{S_I}, s2, 3")
    G.srd(SRD_1, P_X, 2048)
    G.srd(SRD_2, P_WQ, 4194304)
    G.srd(SRD_3, P_WUK, 4194304)
    X0, X1 = 8, 12
    e(f"buffer_load_dwordx4 {vr(X0,4)}, v{V_L16B}, {sr(SRD_1,4)}, 0 offen")
    e(f"buffer_load_dwordx4 {vr(X1,4)}, v{V_L16B}, {sr(SRD_1,4)}, 0 offen offset:1024")
    VD0, VD1 = 58, 59
    e(f"v_lshl_add_u32 v{VD0}, v{V_G}, 13, v{V_SW}")
    e(f"v_xor_b32 v{VD1}, 128, v{VD0}")
    e(f"s_lshl_b32 s29, s{S_I}, 7")
    e(f"s_lshl_b32 s28, s{S_W}, 5")
    e("s_add_u32 s29, s29, s28")
    e("s_lshl_b32 s29, s29, 13")
    e(f"s_lshl_b32 s28, s{S_H}, 8")
    e("s_add_u32 s29, s29, s28")
    e("s_mov_b32 s36, s29")
    def soff_q(n):
        if n == 0: e("s_mov_b32 s30, s29")
        else: e(f"s_add_u32 s30, s29, {n*4*8192}")
    dma_tile128(SRD_2, VD0, VD1, soff_q, R0, NTW)
    WUK = 64
    e(f"v_lshlrev_b32 v16, 13, v{V_L15}")
    e(f"v_lshl_add_u32 v16, v{V_G}, 4, v16")
    for ct in range(2):
        if ct == 0: e("s_mov_b32 s30, s36")
        else: e(f"s_add_u32 s30, s36, {16*8192}")
        for ks in range(4):
            e(f"buffer_load_dwordx4 {vr(WUK+(ct*4+ks)*4,4)}, v16, {sr(SRD_3,4)}, s30 offen offset:{64*ks}{NTW}")
    e(f"v_bfe_u32 v17, v{V_LANE}, 2, 2")
    e(f"v_and_b32 v18, 3, v{V_LANE}")
    e(f"v_and_b32 v19, 1, v{V_G}")
    e("v_lshl_add_u32 v20, v19, 2, v17")
    e("v_lshlrev_b32 v20, 1, v20")
    e(f"s_lshl_b32 s28, s{S_W}, 2")
    e("v_xor_b32 v20, s28, v20")
    e("v_lshrrev_b32 v21, 1, v18")
    e("v_add_u32 v20, v20, v21")
    e("v_lshlrev_b32 v20, 4, v20")
    e("v_and_b32 v21, 1, v18")
    e("v_lshl_add_u32 v20, v21, 3, v20")
    e(f"v_lshl_add_u32 v21, v{V_G}, 3, v17")
    e(f"v_lshl_add_u32 v{V_TL0}, v21, 8, v20")
    e(f"v_xor_b32 v{V_TL1}, 32, v{V_TL0}")
    e(f"v_lshrrev_b32 v20, 1, v{V_G}")
    e("v_lshlrev_b32 v20, 8, v20")
    e(f"v_lshl_add_u32 v21, v19, 4, v{V_L15}")
    e(f"s_lshl_b32 s28, s{S_W}, 5")
    e("v_add_u32 v21, s28, v21")
    e(f"v_lshl_add_u32 v{V_AVW}, v21, 1, v20")
    e(f"v_and_b32 v20, 1, v{V_LANE}")
    e("v_lshlrev_b32 v20, 8, v20")
    e(f"v_lshl_add_u32 v{V_AVR}, v{V_G}, 4, v20")
    G.stamp(1)
    e("s_waitcnt vmcnt(16)")
    F0, F1 = 16, 24
    for (X, F) in ((X0, F0), (X1, F1)):
        for k in range(4):
            e(f"v_lshlrev_b32 v{F+2*k}, 16, v{X+k}")
            e(f"v_and_b32 v{F+2*k+1}, 0xffff0000, v{X+k}")
    S0, S1, T0, T1 = 32, 33, 34, 35
    for (F, S) in ((F0, S0), (F1, S1)):
        e(f"v_add_f32 v{S}, v{F}, v{F+1}")
        for k in range(2, 8): e(f"v_add_f32 v{S}, v{S}, v{F+k}")
    wave_sum(S0, T0); wave_sum(S1, T1)
    e("s_mov_b32 s28, 0x3b000000")
    e(f"v_mul_f32 v{S0}, s28, v{S0}")
    e(f"v_mul_f32 v{S1}, s28, v{S1}")
    Q0, Q1 = 36, 37
    for (F, S, Q) in ((F0, S0, Q0), (F1, S1, Q1)):
        for k in range(8):
            e(f"v_sub_f32 v38, v{F+k}, v{S}")
            if k == 0: e(f"v_mul_f32 v{Q}, v38, v38")
            else: e(f"v_fmac_f32 v{Q}, v38, v38")
    wave_sum(Q0, T0); wave_sum(Q1, T1)
    e("s_mov_b32 s29, 0x3727c5ac")
    for (F, S, Q, XB) in ((F0, S0, Q0, 0), (F1, S1, Q1, 1)):
        e(f"v_mul_f32 v{Q}, s28, v{Q}")
        rbf(Q)
        e(f"v_add_f32 v{Q}, s29, v{Q}")
        rbf(Q)
        e(f"v_sqrt_f32 v{Q}, v{Q}")
        nop(1)
        rbf(Q)
        e(f"v_rcp_f32 v{Q}, v{Q}")
        rbf(S)
        for k in range(0, 8, 2):
            e(f"v_sub_f32 v{F+k}, v{F+k}, v{S}")
            e(f"v_sub_f32 v{F+k+1}, v{F+k+1}, v{S}")
            e(f"v_cvt_pk_bf16_f32 v38, v{F+k}, v{F+k+1}")
            e(f"v_lshlrev_b32 v{F+k}, 16, v38")
            e(f"v_and_b32 v{F+k+1}, 0xffff0000, v38")
            e(f"v_mul_f32 v{F+k}, v{F+k}, v{Q}")
            e(f"v_mul_f32 v{F+k+1}, v{F+k+1}, v{Q}")
            e(f"v_cvt_pk_bf16_f32 v{40+XB*4+k//2}, v{F+k}, v{F+k+1}")
        e(f"ds_write_b128 v{V_L16B}, {vr(40+XB*4,4)} offset:{L_XN + XB*1024}")
    G.stamp(2)
    e("s_waitcnt vmcnt(8) lgkmcnt(0)")
    e("s_barrier")
    G.stamp(3)
    VA, VB, VC = 96, 112, 144
    e(f"v_and_b32 v20, 1, v{V_LANE}")
    e("v_lshlrev_b32 v20, 10, v20")
    e(f"v_lshl_add_u32 v20, v{V_G}, 4, v20")
    e(f"s_lshl_b32 s28, s{S_I}, 8")
    e(f"s_add_u32 s28, s28, {L_XN}")
    e("v_add_u32 v20, s28, v20")
    gemv_loadA(20, VA)
    gemv_loadB(R0, VB, 21, 22)
    e("s_waitcnt lgkmcnt(0)")
    gemv_mma(VA, VB, VC)
    V_PUB = 55
    e(f"v_lshlrev_b32 v{V_PUB}, 4, v{V_L15}")
    e(f"v_lshl_add_u32 v{V_PUB}, v{V_G}, 10, v{V_PUB}")
    e(f"s_lshl_b32 s32, s{S_H}, 2")
    e(f"s_add_u32 s32, s32, s{S_W}")
    e("s_lshl_b32 s32, s32, 11")
    e(f"s_lshl_b32 s33, s{S_I}, 8")
    e("s_add_u32 s33, s33, s32")
    e("s_waitcnt lgkmcnt(0)")
    e(f"s_add_u32 s{S_TAG}, s{S_TAG}, 0x9e3779b9")
    e(f"s_add_u32 s34, s33, {WS_QP}")
    publish_units(VC, V_PUB, 34, 48)
    G.stamp(4)
    e(f"s_add_u32 s34, s32, {WS_QP}")
    consume4(34, 40, 44, L_AVQ, 48)
    write_av(40, L_AVQ, 48)
    e("s_waitcnt lgkmcnt(0)")
    e("s_barrier")
    G.stamp(5)
    gemv_loadA(V_AVR, VA, L_AVQ)
    e("s_waitcnt lgkmcnt(0) vmcnt(0)")
    for ks in range(4):
        for ct in range(2):
            c = "0" if ks == 0 else vr(VC+4*ct, 4)
            e(f"v_mfma_f32_16x16x32_bf16 {vr(VC+4*ct,4)}, {vr(VA+4*ks,4)}, {vr(WUK+(ct*4+ks)*4,4)}, {c}")
    nop(10)
    sel_tb(VC, 40, 41)
    e(f"v_cndmask_b32 v40, v40, v41, {sr(M_HI,2)}")
    scale = (128 ** -0.5) * math.log2(math.e)
    import struct
    sc_bits = struct.unpack("<I", struct.pack("<f", scale))[0]
    e(f"v_mul_f32 v40, {hex(sc_bits)}, v40")
    write_av(40, L_QS, 48)
    e("s_waitcnt lgkmcnt(0)")
    e("s_barrier")
    lskip = G.newlab("nopub")
    e(f"s_cmp_lg_u32 s{S_W}, 0")
    e(f"s_cbranch_scc1 {lskip}")
    e(f"ds_read_b128 {vr(40,4)}, v{V_L16B} offset:{L_QS}")
    e(f"v_lshlrev_b32 v44, 4, v{V_L15}")
    e(f"v_lshl_add_u32 v44, v{V_G}, 15, v44")
    e(f"s_lshl_b32 s34, s{S_H}, 10")
    e(f"s_lshl_b32 s35, s{S_I}, 8")
    e("s_add_u32 s34, s34, s35")
    e(f"s_add_u32 s34, s34, {WS_QA}")
    e("s_waitcnt lgkmcnt(0)")
    e("s_mov_b32 exec_lo, -1"); e("s_mov_b32 exec_hi, 0")
    e(f"buffer_store_dwordx4 {vr(40,4)}, v44, {sr(SRD_WS,4)}, s34 offen sc1")
    e("s_mov_b64 exec, 1")
    e(f"v_mov_b32 v46, s{S_TAG}")
    e(f"v_mov_b32 v47, s{S_TAG}")
    e("v_mov_b32 v45, 0")
    e(f"s_lshl_b32 s34, s2, 3")
    e(f"s_add_u32 s34, s34, {WS_FB}")
    e("s_waitcnt vmcnt(0)")
    e(f"buffer_store_dwordx2 {vr(46,2)}, v45, {sr(SRD_WS,4)}, s34 offen sc1")
    e("s_mov_b64 exec, -1")
    lab(lskip)
    G.stamp(6)

    G.srd(SRD_1, P_WUV, 4194304)
    G.srd(SRD_2, P_WO, 4194304)
    lnoffn = G.newlab("noffn"); lafter = G.newlab("afterffn")
    def issue_wuv(base):
        e(f"v_lshl_add_u32 v{VD0}, v{V_G}, 17, v{V_SW}")
        e(f"v_xor_b32 v{VD1}, 128, v{VD0}")
        e(f"s_lshl_b32 s29, s{S_I}, 7")
        e(f"s_lshl_b32 s28, s{S_W}, 2")
        e("s_add_u32 s29, s29, s28")
        e("s_lshl_b32 s29, s29, 13")
        e(f"s_lshl_b32 s28, s{S_H}, 8")
        e("s_add_u32 s29, s29, s28")
        def f(n):
            off = (64*(n & 1) + (n >> 1)) * 8192
            if off == 0: e("s_mov_b32 s30, s29")
            else: e(f"s_add_u32 s30, s29, {off}")
        dma_tile128(SRD_1, VD0, VD1, f, base, NTW)
    def issue_wo(base):
        e(f"v_lshl_add_u32 v{VD0}, v{V_G}, 10, v{V_SW}")
        e(f"v_xor_b32 v{VD1}, 128, v{VD0}")
        e(f"s_lshl_b32 s29, s{S_H}, 7")
        e(f"s_lshl_b32 s28, s{S_W}, 5")
        e("s_add_u32 s29, s29, s28")
        e("s_lshl_b32 s29, s29, 10")
        e(f"s_lshl_b32 s28, s{S_I}, 8")
        e("s_add_u32 s29, s29, s28")
        def f(n):
            if n == 0: e("s_mov_b32 s30, s29")
            else: e(f"s_add_u32 s30, s29, {n*4*1024}")
        dma_tile128(SRD_2, VD0, VD1, f, base, NTW)

    e(f"s_cmp_ge_u32 s2, {NFFN}")
    e(f"s_cbranch_scc1 {lnoffn}")
    G.srd(SRD_3, P_W1, 1409024)
    G.srd(SRD_4, P_W3, 1409024)
    e(f"v_lshrrev_b32 v20, 2, v{V_LANE}")
    e("v_mul_u32_u24 v20, 2752, v20")
    e(f"v_lshrrev_b32 v21, 5, v{V_LANE}")
    e("v_lshlrev_b32 v21, 1, v21")
    e(f"v_and_b32 v22, 3, v{V_LANE}")
    e("v_xor_b32 v21, v21, v22")
    e("v_lshl_add_u32 v20, v21, 4, v20")
    e(f"s_mul_i32 s29, s{S_W}, {128*2752}")
    e("s_lshl_b32 s28, s2, 6")
    e("s_add_u32 s29, s29, s28")
    e(f"s_lshl_b32 s31, s{S_W}, 13")
    for (srd, base) in ((SRD_3, R1), (SRD_4, R2)):
        for n in range(8):
            if n == 0: e("s_mov_b32 s30, s29")
            else: e(f"s_add_u32 s30, s29, {n*16*2752}")
            e(f"s_add_u32 m0, s31, {base + n*1024}")
            nop(1)
            e(f"buffer_load_dwordx4 v20, {sr(srd,4)}, s30 offen{NTW} lds")
    G.srd(SRD_3, P_W2, 1409024)
    e(f"s_and_b32 s28, s{S_W}, 1")
    e("s_lshl_b32 s28, s28, 7")
    e(f"v_xor_b32 v21, s28, v{V_L16B}")
    e("s_lshl_b32 s29, s2, 5")
    e(f"s_lshl_b32 s28, s{S_W}, 3")
    e("s_add_u32 s29, s29, s28")
    e("s_lshl_b32 s29, s29, 10")
    e(f"s_lshl_b32 s31, s{S_W}, 13")
    for j in range(8):
        e(f"v_xor_b32 v22, {32*(j&3)}, v21") if (j & 3) else e("v_mov_b32 v22, v21")
        if j == 0: e("s_mov_b32 s30, s29")
        else: e(f"s_add_u32 s30, s29, {j*1024}")
        e(f"s_add_u32 m0, s31, {R3 + j*1024}")
        nop(1)
        e(f"buffer_load_dwordx4 v22, {sr(SRD_3,4)}, s30 offen{NTW} lds")
    issue_wuv(R0)
    G.stamp(7)
    e("s_waitcnt vmcnt(16)")
    e("s_barrier")
    e(f"v_bfe_u32 v17, v{V_LANE}, 2, 2")
    e(f"v_and_b32 v18, 3, v{V_LANE}")
    e(f"v_and_b32 v19, 1, v{V_G}")
    e(f"s_and_b32 s28, s{S_W}, 1")
    e("s_lshl_b32 s28, s28, 1")
    e("v_lshrrev_b32 v20, 1, v18")
    e("v_add_u32 v20, s28, v20")
    e("v_lshlrev_b32 v21, 1, v19")
    e("v_xor_b32 v20, v20, v21")
    e("v_lshlrev_b32 v20, 4, v20")
    e("v_and_b32 v21, 1, v18")
    e("v_lshl_add_u32 v20, v21, 3, v20")
    e(f"v_lshl_add_u32 v21, v{V_G}, 3, v17")
    e("v_lshl_add_u32 v20, v21, 6, v20")
    e(f"s_lshr_b32 s28, s{S_W}, 1")
    e("s_lshl_b32 s28, s28, 15")
    e(f"s_add_u32 s28, s28, {R1}")
    e("v_add_u32 v20, s28, v20")
    e(f"v_and_b32 v21, 1, v{V_LANE}")
    e("v_lshlrev_b32 v21, 10, v21")
    e(f"v_lshl_add_u32 v21, v{V_G}, 4, v21")
    FA, FB_ = 96, 160
    for ks in range(16):
        e(f"ds_read_b128 {vr(FA+4*ks,4)}, v21 offset:{L_XN + 64*ks}")
        for u in range(2):
            e(f"ds_read_b64_tr_b16 {vr(FB_+4*ks+2*u,2)}, v20 offset:{2048*ks + 256*u}")
    e("s_waitcnt lgkmcnt(0)")
    for ks in range(16):
        c = "0" if ks == 0 else vr(VC+128, 4)
        e(f"v_mfma_f32_16x16x32_bf16 {vr(VC+128,4)}, {vr(FA+4*ks,4)}, {vr(FB_+4*ks,4)}, {c}") if False else None
    GA = 224
    for ks in range(16):
        c = "0" if ks == 0 else vr(GA, 4)
        e(f"v_mfma_f32_16x16x32_bf16 {vr(GA,4)}, {vr(FA+4*ks,4)}, {vr(FB_+4*ks,4)}, {c}")
    nop(10)
    e(f"v_cndmask_b32 v22, v{GA}, v{GA+1}, {sr(M_G1,2)}")
    e(f"v_and_b32 v23, 1, v{V_G}")
    e("v_lshlrev_b32 v23, 7, v23")
    e(f"v_lshl_add_u32 v23, v{V_L15}, 2, v23")
    e(f"s_lshr_b32 s28, s{S_W}, 1")
    e("s_lshl_b32 s28, s28, 8")
    e(f"s_and_b32 s29, s{S_W}, 1")
    e("s_lshl_b32 s29, s29, 6")
    e("s_add_u32 s28, s28, s29")
    e("v_add_u32 v23, s28, v23")
    e(f"ds_write_b32 v23, v22 offset:{L_GU}")
    e("s_waitcnt lgkmcnt(0)")
    e("s_barrier")
    issue_wo(R1)
    e(f"v_lshlrev_b32 v23, 2, v{V_LANE}")
    e(f"ds_read_b32 v24, v23 offset:{L_GU}")
    e(f"ds_read_b32 v25, v23 offset:{L_GU+256}")
    e("s_waitcnt lgkmcnt(0)")
    rbf(24); rbf(25)
    e("v_mul_f32 v26, 0xbfb8aa3b, v24")
    e("v_exp_f32 v26, v26")
    nop(1)
    e("v_add_f32 v26, 1.0, v26")
    e("v_rcp_f32 v26, v26")
    nop(1)
    e("v_mul_f32 v26, v24, v26")
    rbf(26)
    e("v_mul_f32 v26, v26, v25")
    e("v_cvt_pk_bf16_f32 v26, v26, v26")
    e(f"v_lshlrev_b32 v23, 1, v{V_LANE}")
    e(f"ds_write_b16 v23, v26 offset:{L_H}")
    e(f"v_and_b32 v21, 1, v{V_LANE}")
    e("v_lshlrev_b32 v21, 6, v21")
    e(f"v_lshl_add_u32 v21, v{V_G}, 4, v21")
    e("s_waitcnt lgkmcnt(0)")
    e(f"ds_read_b128 {vr(FA,4)}, v21 offset:{L_H}")
    e("s_waitcnt vmcnt(16)")
    e("s_barrier")
    e("v_lshl_add_u32 v20, v19, 2, v17")
    e("v_lshlrev_b32 v20, 1, v20")
    e(f"v_lshl_add_u32 v21, v{V_G}, 3, v17")
    e("v_lshlrev_b32 v21, 10, v21")
    e("v_lshrrev_b32 v22, 1, v18")
    e("v_lshl_add_u32 v21, v22, 4, v21")
    e("v_and_b32 v22, 1, v18")
    e("v_lshl_add_u32 v21, v22, 3, v21")
    e(f"s_lshl_b32 s28, s{S_W}, 8")
    e(f"s_add_u32 s28, s28, {R3}")
    e("v_add_u32 v21, s28, v21")
    for t in range(8):
        e(f"v_xor_b32 v22, {2*t}, v20")
        e(f"v_lshl_add_u32 v{24+t}, v22, 4, v21")
    for t in range(8):
        for u in range(2):
            e(f"ds_read_b64_tr_b16 {vr(FB_+4*t+2*u,2)}, v{24+t} offset:{4096*u}")
    e("s_waitcnt lgkmcnt(0)")
    DA = 100
    for t in range(8):
        e(f"v_mfma_f32_16x16x32_bf16 {vr(DA+4*t,4)}, {vr(FA,4)}, {vr(FB_+4*t,4)}, 0")
    nop(10)
    e(f"v_mul_u32_u24 v20, {FP_S*256}, v{V_G}")
    e(f"v_lshl_add_u32 v20, v{V_L15}, 4, v20")
    e(f"s_mul_i32 s28, s{S_W}, {8*FP_S*256}")
    e("s_lshl_b32 s29, s2, 8")
    e("s_add_u32 s28, s28, s29")
    e(f"s_add_u32 s28, s28, {WS_FP}")
    for j in range(2):
        a = DA + 16*j
        for rr in range(2):
            e(f"v_cndmask_b32 v32, v{a+rr}, v{a+4+rr}, {sr(M_G1,2)}")
            e(f"v_cndmask_b32 v33, v{a+8+rr}, v{a+12+rr}, {sr(M_G1,2)}")
            e(f"v_cndmask_b32 v{36+4*j+2*rr}, v32, v33, {sr(M_HI,2)}")
        e(f"v_mov_b32 v{37+4*j}, s{S_TAG}")
        e(f"v_mov_b32 v{39+4*j}, s{S_TAG}")
        if j == 1: e(f"s_add_u32 s28, s28, {4*FP_S*256}")
        e(f"buffer_store_dwordx4 {vr(36+4*j,4)}, v20, {sr(SRD_WS,4)}, s28 offen sc1")
    e(f"s_branch {lafter}")
    lab(lnoffn)
    issue_wuv(R0)
    issue_wo(R1)
    lab(lafter)
    G.stamp(8)
    BUV, BO = 160, 192
    e("s_waitcnt vmcnt(0)")
    e("s_barrier")
    gemv_loadB(R0, BUV, 21, 22)
    gemv_loadB(R1, BO, 21, 22)
    G.stamp(9)
    e(f"s_lshl_b32 s28, s{S_I}, 5")
    e(f"s_add_u32 s28, s28, s{S_H}")
    e("s_lshl_b32 s28, s28, 11")
    e(f"s_lshr_b32 s29, s{S_W}, 1")
    e("s_lshl_b32 s29, s29, 10")
    e("s_add_u32 s28, s28, s29")
    e(f"s_add_u32 s34, s28, {WS_ST}")
    poll([f"buffer_load_dwordx4 {vr(40,4)}, v{V_L16B}, {sr(SRD_WS,4)}, s34 offen sc1"], [41, 43])
    G.stamp(10)
    e(f"v_lshl_add_u32 v{VD0}, v{V_G}, 15, v{V_SW}")
    e(f"v_xor_b32 v{VD1}, 128, v{VD0}")
    e(f"s_lshl_b32 s29, s{S_W}, 7")
    e(f"s_add_u32 s29, s29, s{S_I}")
    e("s_lshl_b32 s29, s29, 13")
    e(f"s_lshl_b32 s28, s{S_H}, 8")
    e("s_add_u32 s29, s29, s28")
    e(f"s_add_u32 s29, s29, {WS_OP}")
    def soff_ob(n):
        if n == 0: e("s_mov_b32 s30, s29")
        else: e(f"s_add_u32 s30, s29, {n*4*32768}")
    dma_tile128(SRD_WS, VD0, VD1, soff_ob, R2, " sc1")
    e("v_mov_b32 v44, v40")
    wave_max(44, 45)
    e("v_sub_f32 v40, v40, v44")
    e("v_exp_f32 v40, v40")
    nop(1)
    e("v_mul_f32 v44, v40, v42")
    wave_sum(44, 45)
    e("v_rcp_f32 v44, v44")
    nop(1)
    e("v_mul_f32 v40, v40, v44")
    e("v_cvt_pk_bf16_f32 v40, v40, v40")
    e(f"s_lshr_b32 s29, s{S_W}, 1")
    e("s_mul_i32 s28, s29, 384")
    e(f"v_lshlrev_b32 v45, 1, v{V_LANE}")
    e("v_add_u32 v46, s28, v45")
    e(f"ds_write_b16 v46, v40 offset:{L_WGT}")
    e("s_lshl_b32 s28, s29, 7")
    e("s_add_u32 s28, s28, 128")
    e("v_add_u32 v46, s28, v45")
    e("v_mov_b32 v47, 0")
    e(f"ds_write_b16 v46, v47 offset:{L_WGT}")
    e("s_waitcnt vmcnt(0) lgkmcnt(0)")
    e("s_barrier")
    G.stamp(11)
    gemv_loadA(V_AVR, VA, L_WGT)
    gemv_loadB(R2, VB, 21, 22)
    e("s_waitcnt lgkmcnt(0)")
    gemv_mma(VA, VB, VC)
    sel_tb(VC, 40, 41)
    e(f"v_cndmask_b32 v40, v40, v41, {sr(M_HI,2)}")
    write_av(40, L_AVO, 48)
    e("s_waitcnt lgkmcnt(0)")
    e("s_barrier")
    gemv_loadA(V_AVR, VA, L_AVO)
    e("s_waitcnt lgkmcnt(0)")
    gemv_mma(VA, BUV, VC)
    e(f"s_add_u32 s34, s33, {WS_CP}")
    publish_units(VC, V_PUB, 34, 48)
    G.stamp(12)
    e(f"s_add_u32 s34, s32, {WS_CP}")
    consume4(34, 40, 44, L_AVC, 48)
    write_av(40, L_AVC, 48)
    e("s_waitcnt lgkmcnt(0)")
    e("s_barrier")
    G.stamp(13)
    gemv_loadA(V_AVR, VA, L_AVC)
    e("s_waitcnt lgkmcnt(0)")
    gemv_mma(VA, BO, VC)
    e(f"v_lshlrev_b32 v20, 4, v{V_L15}")
    e(f"v_lshl_add_u32 v20, v{V_G}, 13, v20")
    e(f"s_lshl_b32 s28, s{S_I}, 2")
    e(f"s_add_u32 s28, s28, s{S_W}")
    e("s_lshl_b32 s28, s28, 14")
    e(f"s_lshl_b32 s29, s{S_H}, 8")
    e("s_add_u32 s28, s28, s29")
    e(f"s_add_u32 s34, s28, {WS_EP}")
    publish_units(VC, 20, 34, 48)
    G.stamp(14)
    e("s_cmp_lt_u32 s2, 96")
    e("s_cbranch_scc1 L_wdone")
    e("s_sub_u32 s35, s2, 96")
    e(f"v_lshlrev_b32 v20, 4, v0")
    e("s_lshl_b32 s28, s35, 13")
    e(f"s_add_u32 s36, s28, {WS_EP}")
    e(f"s_mul_i32 s28, s35, {FP_S*256}")
    e(f"s_add_u32 s37, s28, {WS_FP}")
    G.srd(SRD_1, P_X, 2048)
    e(f"v_lshlrev_b32 v21, 10, v{V_G}")
    e(f"v_lshl_add_u32 v21, v{V_L15}, 1, v21")
    e("s_lshl_b32 s28, s35, 5")
    e(f"buffer_load_ushort v22, v21, {sr(SRD_1,4)}, s28 offen")
    e("v_cmp_le_u32 s[42:43], 176, v0") if False else None
    e("v_mov_b32 v23, 176")
    e("v_cmp_ge_u32 s[42:43], v0, v23")
    def fix_invalid():
        pass
    units = [f"buffer_load_dwordx4 {vr(100,4)}, v20, {sr(SRD_WS,4)}, s36 offen sc1",
             f"buffer_load_dwordx4 {vr(104,4)}, v20, {sr(SRD_WS,4)}, s36 offen offset:4095 sc1" if False else None]
    e("v_add_u32 v24, 4096, v20")
    e("v_add_u32 v25, 8192, v20")
    lp, done = G.newlab("poll"), G.newlab("pdone")
    e(f"s_mov_b32 s48, {G.spin}")
    lab(lp)
    e(f"buffer_load_dwordx4 {vr(100,4)}, v20, {sr(SRD_WS,4)}, s36 offen sc1")
    e(f"buffer_load_dwordx4 {vr(104,4)}, v24, {sr(SRD_WS,4)}, s36 offen sc1")
    e(f"buffer_load_dwordx4 {vr(108,4)}, v20, {sr(SRD_WS,4)}, s37 offen sc1")
    e(f"buffer_load_dwordx4 {vr(112,4)}, v24, {sr(SRD_WS,4)}, s37 offen sc1")
    e(f"buffer_load_dwordx4 {vr(116,4)}, v25, {sr(SRD_WS,4)}, s37 offen sc1")
    e("s_waitcnt vmcnt(0)")
    e(f"v_mov_b32 v26, s{S_TAG}")
    e("v_cndmask_b32 v117, v117, v26, s[42:43]")
    e("v_cndmask_b32 v119, v119, v26, s[42:43]")
    e("v_cndmask_b32 v116, v116, 0, s[42:43]") if False else None
    e("v_mov_b32 v27, 0")
    e("v_cndmask_b32 v116, v116, v27, s[42:43]")
    e("v_cndmask_b32 v118, v118, v27, s[42:43]")
    first = True
    for a in (100, 104, 108, 112, 116):
        e(f"v_xor_b32 v61, s{S_TAG}, v{a+1}")
        e(f"v_xor_b32 v62, s{S_TAG}, v{a+3}")
        if first: e("v_or_b32 v60, v61, v62"); first = False
        else: e("v_or3_b32 v60, v60, v61, v62")
    e("v_cmp_ne_u32 vcc, 0, v60")
    e(f"s_cbranch_vccz {done}")
    e("s_sub_u32 s48, s48, 1")
    e(f"s_cbranch_scc1 {done}")
    if G.poll_sleep: e(f"s_sleep {G.poll_sleep}")
    e(f"s_branch {lp}")
    lab(done)
    G.stamp(15)
    for rr in (0, 2):
        e(f"v_add_f32 v{100+rr}, v{100+rr}, v{104+rr}")
        e(f"v_add_f32 v{108+rr}, v{108+rr}, v{112+rr}")
        e(f"v_add_f32 v{100+rr}, v{100+rr}, v{116+rr}")
        e(f"v_add_f32 v{100+rr}, v{100+rr}, v{108+rr}")
    nop(1)
    e("v_permlane32_swap_b32 v100, v102")
    nop(1)
    e("v_add_f32 v100, v100, v102")
    e("v_mov_b32 v101, v100")
    nop(2)
    e("v_permlane16_swap_b32 v100, v101")
    nop(1)
    e("v_add_f32 v100, v100, v101")
    e(f"v_lshrrev_b32 v27, 5, v{V_LANE}")
    e("v_lshlrev_b32 v27, 6, v27")
    e(f"v_lshl_add_u32 v27, v{V_L15}, 2, v27")
    e(f"s_lshl_b32 s28, s{S_W}, 7")
    e("v_add_u32 v28, s28, v27")
    e(f"ds_write_b32 v28, v100 offset:{L_FIN}")
    e("s_waitcnt lgkmcnt(0)")
    e("s_barrier")
    e(f"s_cmp_lg_u32 s{S_W}, 0")
    e("s_cbranch_scc1 L_wdone")
    e(f"v_lshlrev_b32 v27, 2, v{V_LANE}")
    for w in range(4):
        e(f"ds_read_b32 v{104+w}, v27 offset:{L_FIN + 128*w}")
    e("s_waitcnt lgkmcnt(0) vmcnt(0)")
    e("v_add_f32 v104, v104, v105")
    e("v_add_f32 v106, v106, v107")
    e("v_add_f32 v104, v104, v106")
    e("v_lshlrev_b32 v22, 16, v22")
    e("v_add_f32 v104, v104, v22")
    e("v_cvt_pk_bf16_f32 v104, v104, v104")
    G.srd(SRD_2, P_OUT, 2048)
    e("s_lshl_b32 s28, s35, 5")
    e("s_mov_b32 exec_lo, -1"); e("s_mov_b32 exec_hi, 0")
    e(f"buffer_store_short v104, v21, {sr(SRD_2,4)}, s28 offen")
    e("s_cmp_lg_u32 s35, 0")
    e("s_cbranch_scc1 L_wdone0")
    e("s_mov_b64 exec, 1")
    e(f"v_mov_b32 v30, s{S_TAG}")
    e("v_mov_b32 v31, 0")
    e(f"buffer_store_dword v30, v31, {sr(SRD_WS,4)}, 0 offen offset:{WS_EPOCH}")
    lab("L_wdone0")
    e("s_mov_b64 exec, -1")
    lab("L_wdone")
    G.stamp(16)
    store_stamps()
    e("s_endpgm")

    lab("L_att")
    e("s_sub_u32 s28, s2, 128")
    e(f"s_lshr_b32 s{S_H}, s28, 6")
    e(f"s_and_b32 s{S_I}, s28, 63")
    G.srd(SRD_1, P_CKV, 16777216)
    VCK = 8
    for idx in range(8):
        x = 32*(idx & 3) + 128*(idx >> 2)
        if x == 0: e(f"v_mov_b32 v{VCK+idx}, v{V_L16B}")
        else: e(f"v_xor_b32 v{VCK+idx}, {x}, v{V_L16B}")
    e("s_lshl_b32 s29, s28, 7")
    e(f"s_lshl_b32 s30, s{S_W}, 5")
    e("s_add_u32 s29, s29, s30")
    e("s_lshl_b32 s29, s29, 10")
    e(f"s_lshl_b32 s31, s{S_W}, 15")
    for j in range(32):
        idx = (j & 3) + 4*((j >> 3) & 1)
        if j == 0: e("s_mov_b32 s30, s29")
        else: e(f"s_add_u32 s30, s29, {j*1024}")
        e(f"s_add_u32 m0, s31, {L_CKV + j*1024}")
        nop(1)
        e(f"buffer_load_dwordx4 v{VCK+idx}, {sr(SRD_1,4)}, s30 offen{NTC} lds")
    G.stamp(1)
    AA, AB = 16, 20
    e(f"v_and_b32 v24, 3, v{V_LANE}")
    e(f"v_bfe_u32 v25, v{V_LANE}, 3, 1")
    e("v_lshl_add_u32 v24, v25, 2, v24")
    e("v_lshlrev_b32 v24, 1, v24")
    e(f"v_xor_b32 v25, v24, v{V_G}")
    e(f"v_lshlrev_b32 v26, 10, v{V_L15}")
    e(f"s_add_u32 s37, s31, {L_CKV}")
    for j in range(4):
        if j == 0: e(f"v_mov_b32 v27, v25")
        else: e(f"v_xor_b32 v27, {4*j}, v25")
        e(f"v_lshl_add_u32 v{AB+j}, v27, 4, v26")
        e(f"v_add_u32 v{AA+j}, s37, v{AB+j}")
        if L_QAL: e(f"v_add_u32 v{AB+j}, {L_QAL}, v{AB+j}")
    e("s_waitcnt lgkmcnt(0)")
    e(f"s_add_u32 s{S_TAG}, s{S_TAG}, 0x9e3779b9")
    CA = 64
    e("s_waitcnt vmcnt(0)")
    G.stamp(2)
    for ks in range(16):
        for kt in range(2):
            e(f"ds_read_b128 {vr(CA+(kt*16+ks)*4,4)}, v{AA+(ks&3)} offset:{16384*kt + 256*(ks>>2)}")
    e(f"v_lshlrev_b32 v28, 4, v{V_L15}")
    e(f"s_lshl_b32 s34, s{S_W}, 8")
    e(f"s_add_u32 s34, s34, {WS_FB}")
    poll([f"buffer_load_dwordx4 {vr(40,4)}, v28, {sr(SRD_WS,4)}, s34 offen sc1"], [40, 41, 42, 43])
    G.stamp(3)
    e(f"s_and_b32 s28, s{S_W}, 1")
    e("s_lshl_b32 s28, s28, 7")
    e(f"v_xor_b32 v29, s28, v{V_L16B}")
    e(f"s_lshl_b32 s29, s{S_H}, 15")
    e(f"s_lshl_b32 s30, s{S_W}, 13")
    e("s_add_u32 s29, s29, s30")
    e(f"s_add_u32 s29, s29, {WS_QA}")
    e(f"s_lshl_b32 s31, s{S_W}, 13")
    for j in range(8):
        if j & 3: e(f"v_xor_b32 v30, {32*(j&3)}, v29")
        else: e("v_mov_b32 v30, v29")
        if j == 0: e("s_mov_b32 s30, s29")
        else: e(f"s_add_u32 s30, s29, {j*1024}")
        e(f"s_add_u32 m0, s31, {L_QAL + j*1024}")
        nop(1)
        e(f"buffer_load_dwordx4 v30, {sr(SRD_WS,4)}, s30 offen sc1 lds")
    e("s_waitcnt vmcnt(0) lgkmcnt(0)")
    e("s_barrier")
    G.stamp(4)
    QB = 32
    SC = 192
    def rdB(ks):
        st = ks % 3
        for ht in range(2):
            e(f"ds_read_b128 {vr(QB+(st*2+ht)*4,4)}, v{AB+(ks&3)} offset:{16384*ht + 256*(ks>>2)}")
    rdB(0); rdB(1)
    for ks in range(16):
        if ks + 2 < 16:
            rdB(ks + 2); e("s_waitcnt lgkmcnt(4)")
        elif ks + 1 < 16: e("s_waitcnt lgkmcnt(2)")
        else: e("s_waitcnt lgkmcnt(0)")
        st = ks % 3
        for kt in range(2):
            for ht in range(2):
                d = SC + (kt*2+ht)*4
                c = "0" if ks == 0 else vr(d, 4)
                e(f"v_mfma_f32_16x16x32_bf16 {vr(d,4)}, {vr(CA+(kt*16+ks)*4,4)}, {vr(QB+(st*2+ht)*4,4)}, {c}")
    nop(10)
    G.stamp(5)
    MXR = 32
    for ht in range(2):
        a = SC + ht*4; b = SC + (2+ht)*4
        e(f"v_max3_f32 v{MXR+ht}, v{a}, v{a+1}, v{a+2}")
        e(f"v_max3_f32 v{MXR+ht}, v{MXR+ht}, v{a+3}, v{b}")
        e(f"v_max3_f32 v{MXR+ht}, v{MXR+ht}, v{b+1}, v{b+2}")
        e(f"v_max_f32 v{MXR+ht}, v{MXR+ht}, v{b+3}")
    for ht in range(2): xg_reduce("v_max_f32", MXR+ht, MXR+2+ht)
    e("s_barrier")
    e(f"v_cndmask_b32 v36, v{MXR}, v{MXR+1}, {sr(M_G1,2)}")
    e(f"v_and_b32 v37, 31, v{V_LANE}")
    e("v_lshlrev_b32 v37, 2, v37")
    e(f"s_lshl_b32 s28, s{S_W}, 7")
    e("v_add_u32 v38, s28, v37")
    e(f"ds_write_b32 v38, v36 offset:{L_MX}")
    e("s_waitcnt lgkmcnt(0)")
    e("s_barrier")
    e(f"v_lshlrev_b32 v39, 2, v{V_L15}")
    for ht in range(2):
        for w in range(4):
            e(f"ds_read_b32 v{40+ht*4+w}, v39 offset:{L_MX + 128*w + 64*ht}")
    e("s_waitcnt lgkmcnt(0)")
    for ht in range(2):
        e(f"v_max3_f32 v{MXR+ht}, v{40+ht*4}, v{41+ht*4}, v{42+ht*4}")
        e(f"v_max_f32 v{MXR+ht}, v{MXR+ht}, v{43+ht*4}")
    LS = 34
    for ht in range(2):
        for kt in range(2):
            d = SC + (kt*2+ht)*4
            for r in range(4):
                e(f"v_sub_f32 v{d+r}, v{d+r}, v{MXR+ht}")
            for r in range(4):
                e(f"v_exp_f32 v{d+r}, v{d+r}")
        nop(1)
        a = SC + ht*4; b = SC + (2+ht)*4
        e(f"v_add_f32 v{LS+ht}, v{a}, v{a+1}")
        for x in (a+2, a+3, b, b+1, b+2, b+3):
            e(f"v_add_f32 v{LS+ht}, v{LS+ht}, v{x}")
    e(f"v_lshrrev_b32 v40, 1, v{V_G}")
    e(f"s_lshl_b32 s28, s{S_W}, 2")
    e("v_add_u32 v40, s28, v40")
    e(f"v_and_b32 v41, 1, v{V_G}")
    e("v_lshlrev_b32 v41, 3, v41")
    e(f"v_lshl_add_u32 v41, v{V_L15}, 8, v41")
    for kt in range(2):
        if kt: e("v_xor_b32 v42, 2, v40")
        else: e("v_mov_b32 v42, v40")
        e(f"v_xor_b32 v42, v42, v{V_L15}")
        e("v_lshl_add_u32 v42, v42, 4, v41")
        for ht in range(2):
            d = SC + (kt*2+ht)*4
            e(f"v_cvt_pk_bf16_f32 v44, v{d}, v{d+1}")
            e(f"v_cvt_pk_bf16_f32 v45, v{d+2}, v{d+3}")
            e(f"ds_write_b64 v42, {vr(44,2)} offset:{L_P + 4096*ht}")
            nop(1)
    for ht in range(2): xg_reduce("v_add_f32", LS+ht, 46+ht)
    e(f"v_cndmask_b32 v36, v{LS}, v{LS+1}, {sr(M_G1,2)}")
    e(f"ds_write_b32 v38, v36 offset:{L_LP}")
    e("s_waitcnt lgkmcnt(0)")
    e("s_barrier")
    G.stamp(6)
    PA = 208
    for ks in range(4):
        e(f"v_add_u32 v40, {4*ks}, v{V_G}")
        e(f"v_xor_b32 v40, v40, v{V_L15}")
        e("v_lshlrev_b32 v40, 4, v40")
        e(f"v_lshl_add_u32 v40, v{V_L15}, 8, v40")
        for ht in range(2):
            e(f"ds_read_b128 {vr(PA+(ht*4+ks)*4,4)}, v40 offset:{L_P + 4096*ht}")
    for w in range(4):
        e(f"ds_read_b32 v{240+w}, v37 offset:{L_LP + 128*w}")
    TB = 8
    e(f"v_bfe_u32 v17, v{V_LANE}, 2, 2")
    e(f"v_and_b32 v18, 3, v{V_LANE}")
    e(f"v_and_b32 v19, 1, v{V_G}")
    e("v_lshl_add_u32 v20, v19, 2, v17")
    e("v_lshlrev_b32 v20, 1, v20")
    e(f"v_lshl_add_u32 v21, v{V_G}, 3, v17")
    e("v_lshlrev_b32 v21, 10, v21")
    e("v_lshrrev_b32 v22, 1, v18")
    e("v_lshl_add_u32 v21, v22, 4, v21")
    e("v_and_b32 v22, 1, v18")
    e("v_lshl_add_u32 v21, v22, 3, v21")
    e(f"s_lshl_b32 s28, s{S_W}, 8")
    e(f"s_add_u32 s28, s28, {L_CKV}")
    e("v_add_u32 v21, s28, v21")
    for t in range(8):
        e(f"v_xor_b32 v22, {2*t}, v20")
        e(f"v_lshl_add_u32 v{TB+t}, v22, 4, v21")
    OC = 64
    PB = 128
    def rdPB(ks):
        st = ks & 1
        if ks == 2:
            for t in range(8): e(f"v_add_u32 v{TB+t}, 65536, v{TB+t}")
        off = (ks & 1) * 32768
        for t in range(8):
            for u in range(2):
                e(f"ds_read_b64_tr_b16 {vr(PB+(st*8+t)*4+2*u,2)}, v{TB+t} offset:{off + 4096*u}")
    rdPB(0)
    for ks in range(4):
        e("s_waitcnt lgkmcnt(0)")
        if ks + 1 < 4: rdPB(ks + 1)
        st = ks & 1
        for t in range(8):
            for ht in range(2):
                d = OC + (ht*8+t)*4
                c = "0" if ks == 0 else vr(d, 4)
                e(f"v_mfma_f32_16x16x32_bf16 {vr(d,4)}, {vr(PA+(ht*4+ks)*4,4)}, {vr(PB+(st*8+t)*4,4)}, {c}")
    nop(10)
    G.stamp(7)
    e("s_sub_u32 s28, s2, 128")
    e("s_lshl_b32 s28, s28, 2")
    e(f"s_add_u32 s28, s28, s{S_W}")
    e("s_lshl_b32 s28, s28, 13")
    e(f"s_add_u32 s34, s28, {WS_OP}")
    e("s_add_u32 s35, s34, 4096")
    e(f"v_lshlrev_b32 v16, 4, v{V_L15}")
    e(f"v_lshl_add_u32 v16, v{V_G}, 10, v16")
    k = 0
    for ht in range(2):
        for r in range(4):
            q = 128 + 4*k; k += 1
            for tp in range(4):
                e(f"v_cvt_pk_bf16_f32 v{q+tp}, v{OC+(ht*8+2*tp)*4+r}, v{OC+(ht*8+2*tp+1)*4+r}")
            e(f"buffer_store_dwordx4 {vr(q,4)}, v16, {sr(SRD_WS,4)}, s{34+ht} offen offset:{r*256} sc1")
    e("v_add_f32 v240, v240, v241")
    e("v_add_f32 v242, v242, v243")
    e("v_add_f32 v46, v240, v242")
    e(f"v_cndmask_b32 v44, v{MXR}, v{MXR+1}, {sr(M_G1,2)}")
    e(f"v_mov_b32 v45, s{S_TAG}")
    e(f"v_mov_b32 v47, s{S_TAG}")
    e(f"v_lshlrev_b32 v17, 11, v{V_LANE}")
    e(f"s_lshl_b32 s28, s{S_W}, 16")
    e("s_sub_u32 s29, s2, 128")
    e("s_lshl_b32 s29, s29, 4")
    e("s_add_u32 s28, s28, s29")
    e(f"s_add_u32 s34, s28, {WS_ST}")
    e("s_waitcnt vmcnt(0)")
    G.stamp(8)
    e("s_mov_b32 exec_lo, -1"); e("s_mov_b32 exec_hi, 0")
    e(f"buffer_store_dwordx4 {vr(44,4)}, v17, {sr(SRD_WS,4)}, s34 offen sc1")
    e("s_mov_b64 exec, -1")
    G.stamp(9)
    store_stamps()
    lab("L_end")
    e("s_endpgm")

    tail = []
    if extra_empty:
        tail += [".globl empty_kernel", ".p2align 8", ".type empty_kernel,@function", "empty_kernel:", "  s_endpgm"]
        tail += ['.section .rodata,"a"', ".p2align 6", ".amdhsa_kernel empty_kernel", "  .amdhsa_next_free_vgpr 32",
                 "  .amdhsa_next_free_sgpr 16", "  .amdhsa_accum_offset 32", "  .amdhsa_group_segment_fixed_size 0",
                 "  .amdhsa_kernarg_size 104", "  .amdhsa_user_sgpr_count 2", "  .amdhsa_user_sgpr_kernarg_segment_ptr 1",
                 "  .amdhsa_system_sgpr_workgroup_id_x 1", ".end_amdhsa_kernel"]
    tail.append('.section .rodata,"a"')
    tail.append(".p2align 6")
    tail.append(f".amdhsa_kernel {NAME}_kernel")
    tail.append("  .amdhsa_next_free_vgpr 256")
    tail.append("  .amdhsa_next_free_sgpr 102")
    tail.append("  .amdhsa_accum_offset 256")
    tail.append("  .amdhsa_group_segment_fixed_size 0")
    tail.append("  .amdhsa_kernarg_size 104")
    tail.append("  .amdhsa_user_sgpr_count 2")
    tail.append("  .amdhsa_user_sgpr_kernarg_segment_ptr 1")
    tail.append("  .amdhsa_system_sgpr_workgroup_id_x 1")
    tail.append(".end_amdhsa_kernel")
    import re
    for ln in G.L:
        if "buffer_" in ln:
            m = re.search(r"offset:(\d+)", ln)
            assert not m or int(m.group(1)) <= 4095, ln
    return "\n".join(hdr + G.L + tail) + "\n"

if __name__ == "__main__":
    import argparse
    ap = argparse.ArgumentParser()
    ap.add_argument("-o", default=f"cdna_kernels/{NAME}.s")
    ap.add_argument("--stamps", action="store_true")
    ap.add_argument("--no-nt-ckv", action="store_true")
    ap.add_argument("--no-nt-w", action="store_true")
    ap.add_argument("--extra-empty", type=int, default=0)
    a = ap.parse_args()
    s = build(stamps=a.stamps, nt_ckv=not a.no_nt_ckv, nt_w=not a.no_nt_w, extra_empty=a.extra_empty)
    open(a.o, "w").write(s)
    print("wrote", a.o, len(s), "bytes")
```

```python
import sys, math, struct, re
NAME = "parallel_sum__compressed_kv_cla__glu_gated_swiglu__decode"

WS_EPOCH = 0x0
WS_FB    = 0x1000
WS_LF    = 0x5000
WS_F1    = 0x8000
WS_QP    = 0x20000
WS_QA    = 0x60000
WS_CP    = 0x70000
WS_EP    = 0xB0000
WS_FP    = 0xF0000
WS_SS    = 0x150000
WS_CF    = 0x170000
WS_OP    = 0x200000
WS_STAMP = 0x800000
FP_S = 48
NFFN = 86

R0, R1, R2, R3 = 8192, 40960, 73728, 106496
L_XN  = 0
L_AVQ = L_XN + 2048
L_AVO = L_AVQ + 512
L_AVC = L_AVO + 512
L_WGT = L_AVC + 512
L_QS  = L_WGT + 512
L_GU  = L_QS + 512
L_H   = L_GU + 512
L_FIN = L_H + 512
L_CKV = 32768
L_QAL = 0
L_MX  = 0
L_LP  = 512
L_P   = 4096
LDS_BYTES = 163840

P_X, P_CKV, P_WQ, P_WUK, P_WUV, P_WO, P_BX, P_W1, P_W3, P_W2, P_OUT, P_DBG, P_WS = 64, 66, 68, 70, 72, 74, 76, 78, 80, 82, 84, 86, 88
S_W, S_H, S_I, S_TAG = 3, 4, 5, 6
SRD_WS, SRD_1, SRD_2, SRD_3, SRD_4 = 8, 12, 16, 20, 24
M_G1, M_HI = 44, 46
V_LANE, V_L15, V_G, V_L16B, V_SW, V_TL0, V_TL1 = 1, 2, 3, 4, 5, 6, 7

def vr(a, n): return f"v[{a}:{a+n-1}]"
def ar(a, n): return f"a[{a}:{a+n-1}]"
def sr(a, n): return f"s[{a}:{a+n-1}]"

class Gen:
    def __init__(self, stamps=False, nt_ckv=True, nt_w=True, poll_sleep=1, spin=200000,
                 thr_n=3, thr_w=2, late_wait='B', poll2=False, uk_early=True, thr2_w=0):
        self.L = []
        self.stamps = stamps; self.nt_ckv = nt_ckv; self.nt_w = nt_w
        self.poll_sleep = poll_sleep; self.spin = spin
        self.thr_n = thr_n; self.thr_w = thr_w; self.late_wait = late_wait; self.poll2 = poll2; self.uk_early = uk_early; self.thr2_w = thr2_w
        self.nlab = 0
    def e(self, s): self.L.append("  " + s)
    def lab(self, s): self.L.append(s + ":")
    def newlab(self, p):
        self.nlab += 1
        return f"L_{p}_{self.nlab}"
    def nop(self, n):
        while n > 0:
            k = min(n, 16)
            self.e(f"s_nop {k-1}")
            n -= k
    def stamp(self, idx):
        if not self.stamps: return
        self.e("s_memrealtime s[40:41]")
        self.e("s_waitcnt lgkmcnt(0)")
        self.e(f"v_writelane_b32 v255, s40, {idx}")
    def stampval(self, idx, sreg):
        if not self.stamps: return
        self.e(f"v_writelane_b32 v255, s{sreg}, {idx}")
    def srd(self, dst, ptr, size):
        self.e(f"s_mov_b32 s{dst}, s{ptr}")
        self.e(f"s_and_b32 s{dst+1}, s{ptr+1}, 0xffff")
        self.e(f"s_mov_b32 s{dst+2}, {size}")
        self.e(f"s_mov_b32 s{dst+3}, 0x20000")

def build(extra_empty=0, prepost=False, **kw):
    G = Gen(**kw)
    e, lab, nop = G.e, G.lab, G.nop
    NTW = " nt" if G.nt_w else ""
    NTC = " nt" if G.nt_ckv else ""
    hdr = []
    if prepost:
        hdr.append(f"; @launch kernel=pre_kernel grid=(256,1,1) block=(64,1,1) lds=0")
        hdr.append(f"; @launch kernel={NAME}_kernel grid=(256,1,1) block=(256,1,1) lds={LDS_BYTES}")
        hdr.append(f"; @launch kernel=post_kernel grid=(256,1,1) block=(64,1,1) lds=0")
    elif extra_empty:
        hdr.append(f"; @launch kernel={NAME}_kernel grid=(256,1,1) block=(256,1,1) lds={LDS_BYTES}")
        for _ in range(extra_empty):
            hdr.append(f"; @launch kernel=empty_kernel grid=(256,1,1) block=(256,1,1) lds=0")
    else:
        hdr.append(f"; @launch grid=(256,1,1) block=(256,1,1) lds={LDS_BYTES}")
    hdr.append('.amdgcn_target "amdgcn-amd-amdhsa--gfx950"')
    hdr.append(".text")
    hdr.append(f".globl {NAME}_kernel")
    hdr.append(".p2align 8")
    hdr.append(f".type {NAME}_kernel,@function")
    hdr.append(f"{NAME}_kernel:")

    def lo32():
        e("s_mov_b32 exec_lo, -1"); e("s_mov_b32 exec_hi, 0")
    def check_tags(tagregs):
        first = True
        for k in range(0, len(tagregs), 2):
            a = tagregs[k]; b = tagregs[k+1] if k + 1 < len(tagregs) else tagregs[k]
            e(f"v_xor_b32 v61, s{S_TAG}, v{a}")
            e(f"v_xor_b32 v62, s{S_TAG}, v{b}")
            if first:
                e("v_or_b32 v60, v61, v62"); first = False
            else:
                e("v_or3_b32 v60, v60, v61, v62")
        e("v_cmp_ne_u32 vcc, 0, v60")
    def poll(mk_loads, base, nregs, tagoffs, cnt_idx=None, alt=None, pre_issued=False):
        lp, done = G.newlab("poll"), G.newlab("pdone")
        e(f"s_mov_b32 s48, {G.spin}")
        if G.poll2 and alt is not None:
            nld = nregs // 4 if nregs >= 4 else 1
            done1 = G.newlab("pdone1")
            mk_loads(base)
            lab(lp)
            mk_loads(alt)
            e(f"s_waitcnt vmcnt({nld})")
            check_tags([base + o for o in tagoffs])
            e(f"s_cbranch_vccz {done}")
            mk_loads(base)
            e(f"s_waitcnt vmcnt({nld})")
            check_tags([alt + o for o in tagoffs])
            e(f"s_cbranch_vccz {done1}")
            e("s_sub_u32 s48, s48, 1")
            e(f"s_cbranch_scc0 {lp}")
            e(f"s_branch {done}")
            lab(done1)
            e("s_waitcnt vmcnt(0)")
            for r in range(nregs): e(f"v_mov_b32 v{base+r}, v{alt+r}")
            lab(done)
        else:
            if pre_issued:
                skip = G.newlab("pskip")
                e(f"s_branch {skip}")
            lab(lp)
            mk_loads(base)
            if pre_issued: lab(skip)
            e("s_waitcnt vmcnt(0)")
            check_tags([base + o for o in tagoffs])
            e(f"s_cbranch_vccz {done}")
            e("s_sub_u32 s48, s48, 1")
            e(f"s_cbranch_scc1 {done}")
            if G.poll_sleep: e(f"s_sleep {G.poll_sleep}")
            e(f"s_branch {lp}")
            lab(done)
        if cnt_idx is not None: G.stampval(cnt_idx, 48)

    def dma_tile128(srd, v0, v1, soff_fn, lds_base, flags):
        e(f"s_lshl_b32 s31, s{S_W}, 13")
        for n in range(8):
            soff_fn(n)
            e(f"s_add_u32 m0, s31, {lds_base + n*1024}")
            v = v1 if (n >> 1) & 1 else v0
            nop(1)
            e(f"buffer_load_dwordx4 v{v}, {sr(srd,4)}, s30 offen{flags} lds")
    def gemv_loadB(base, vB, tmp0, tmp1):
        if base + 3*8192 + 1024 <= 65535:
            a0, a1, off = V_TL0, V_TL1, base
        else:
            e(f"v_add_u32 v{tmp0}, {base}, v{V_TL0}")
            e(f"v_add_u32 v{tmp1}, {base}, v{V_TL1}")
            a0, a1, off = tmp0, tmp1, 0
        for ks in range(4):
            for t in range(2):
                for u in range(2):
                    r = vB + (t*4 + ks)*4 + 2*u
                    e(f"ds_read_b64_tr_b16 {vr(r,2)}, v{a1 if t else a0} offset:{off + 8192*ks + 1024*u}")
    def gemv_loadA(vaddr, vA, off=0):
        for ks in range(4):
            e(f"ds_read_b128 {vr(vA+4*ks,4)}, v{vaddr} offset:{off + 64*ks}")
    def gemv_mma(vA, vB, vC):
        for ks in range(4):
            for t in range(2):
                c = "0" if ks == 0 else vr(vC+4*t, 4)
                e(f"v_mfma_f32_16x16x32_bf16 {vr(vC+4*t,4)}, {vr(vA+4*ks,4)}, {vr(vB+(t*4+ks)*4,4)}, {c}")
        nop(9)
    def sel_tb(vC, d0, d1):
        e(f"v_cndmask_b32 v{d0}, v{vC}, v{vC+4}, {sr(M_G1,2)}")
        e(f"v_cndmask_b32 v{d1}, v{vC+1}, v{vC+5}, {sr(M_G1,2)}")
    def publish_units(vC, voff, soff, q):
        sel_tb(vC, q, q+2)
        e(f"v_mov_b32 v{q+1}, s{S_TAG}")
        e(f"v_mov_b32 v{q+3}, s{S_TAG}")
        lo32()
        e(f"buffer_store_dwordx4 {vr(q,4)}, v{voff}, {sr(SRD_WS,4)}, s{soff} offen sc1")
        e("s_mov_b64 exec, -1")
    def consume4(soff, u0, cnt_idx=None):
        u1 = u0 + 4
        def ld(b):
            e(f"buffer_load_dwordx4 {vr(b,4)}, v{V_L16B}, {sr(SRD_WS,4)}, s{soff} offen sc1")
            e(f"buffer_load_dwordx4 {vr(b+4,4)}, v{V_L16B}, {sr(SRD_WS,4)}, s{soff} offen offset:1024 sc1")
        poll(ld, u0, 8, [1, 3, 5, 7], cnt_idx, alt=232)
        e(f"v_permlane32_swap_b32 v{u0}, v{u0+2}")
        e(f"v_permlane32_swap_b32 v{u1}, v{u1+2}")
        nop(1)
        e(f"v_add_f32 v{u0}, v{u0}, v{u0+2}")
        e(f"v_add_f32 v{u1}, v{u1}, v{u1+2}")
        nop(2)
        e(f"v_permlane16_swap_b32 v{u0}, v{u1}")
        nop(1)
        e(f"v_add_f32 v{u0}, v{u0}, v{u1}")
    def write_av(vsrc, lds_dst, vtmp):
        e(f"v_cvt_pk_bf16_f32 v{vtmp}, v{vsrc}, v{vsrc}")
        e(f"ds_write_b16 v{V_AVW}, v{vtmp} offset:{lds_dst}")
    def wave_red(op, v, tmp):
        for r in (8, 4, 2, 1):
            nop(2)
            e(f"{op}_dpp v{v}, v{v}, v{v} row_ror:{r} row_mask:0xf bank_mask:0xf")
        xg_reduce(op, v, tmp)
    def wave_red2(op, va, vb, ta, tb):
        for r in (8, 4, 2, 1):
            nop(1)
            e(f"{op}_dpp v{va}, v{va}, v{va} row_ror:{r} row_mask:0xf bank_mask:0xf")
            e(f"{op}_dpp v{vb}, v{vb}, v{vb} row_ror:{r} row_mask:0xf bank_mask:0xf")
        xg_reduce2(op, va, vb, ta, tb)
    def xg_reduce(op, v, tmp):
        e(f"v_mov_b32 v{tmp}, v{v}")
        nop(2)
        e(f"v_permlane16_swap_b32 v{v}, v{tmp}")
        nop(1)
        e(f"{op} v{v}, v{v}, v{tmp}")
        e(f"v_mov_b32 v{tmp}, v{v}")
        nop(2)
        e(f"v_permlane32_swap_b32 v{v}, v{tmp}")
        nop(1)
        e(f"{op} v{v}, v{v}, v{tmp}")
    def xg_reduce2(op, va, vb, ta, tb, emit=None):
        em = emit or e
        for perm in ("v_permlane16_swap_b32", "v_permlane32_swap_b32"):
            em(f"v_mov_b32 v{ta}, v{va}")
            em(f"v_mov_b32 v{tb}, v{vb}")
            em("s_nop 0")
            em(f"{perm} v{va}, v{ta}")
            em(f"{perm} v{vb}, v{tb}")
            em("s_nop 0")
            em(f"{op} v{va}, v{va}, v{ta}")
            em(f"{op} v{vb}, v{vb}, v{tb}")
    def rbf(v):
        e(f"v_cvt_pk_bf16_f32 v{v}, v{v}, v{v}")
        e(f"v_lshlrev_b32 v{v}, 16, v{v}")
    def store_stamps():
        if not G.stamps: return
        e("s_getreg_b32 s30, hwreg(HW_REG_XCC_ID)")
        e("v_writelane_b32 v255, s30, 40")
        e("s_getreg_b32 s30, hwreg(HW_REG_HW_ID)")
        e("v_writelane_b32 v255, s30, 41")
        e(f"s_lshl_b32 s30, s2, 2")
        e(f"s_add_u32 s30, s30, s{S_W}")
        e(f"s_lshl_b32 s30, s30, 8")
        e(f"s_add_u32 s30, s30, {WS_STAMP}")
        e(f"v_lshlrev_b32 v60, 2, v{V_LANE}")
        e(f"buffer_store_dword v255, v60, {sr(SRD_WS,4)}, s30 offen")

    V_AVW, V_AVR, V_PUB, VD0, VD1 = 56, 57, 55, 58, 59

    e("s_cmp_ge_u32 s2, 256")
    e("s_cbranch_scc1 L_end")
    if G.stamps:
        e("v_mov_b32 v255, 0")
        e("s_memrealtime s[40:41]")
    e(f"s_load_dwordx16 s[64:79], s[0:1], 0")
    e(f"s_load_dwordx8 s[80:87], s[0:1], 64")
    e(f"s_load_dwordx2 s[88:89], s[0:1], 96")
    e(f"v_and_b32 v{V_LANE}, 63, v0")
    e(f"v_lshrrev_b32 v8, 6, v0")
    e(f"v_and_b32 v{V_L15}, 15, v0")
    e(f"v_readfirstlane_b32 s{S_W}, v8")
    e(f"v_lshrrev_b32 v{V_G}, 4, v{V_LANE}")
    e(f"v_lshlrev_b32 v{V_L16B}, 4, v{V_LANE}")
    e(f"s_mov_b32 s{M_G1}, 0xffff0000"); e(f"s_mov_b32 s{M_G1+1}, 0xffff0000")
    e(f"s_mov_b32 s{M_HI}, 0"); e(f"s_mov_b32 s{M_HI+1}, -1")
    e(f"v_lshlrev_b32 v8, 1, v{V_G}")
    e(f"v_xor_b32 v8, v8, v{V_L15}")
    e(f"v_lshlrev_b32 v{V_SW}, 4, v8")
    e("s_cmp_ge_u32 s2, 128")
    e("s_cbranch_scc1 L_att")

    e(f"s_lshr_b32 s{S_H}, s2, 2")
    e(f"s_and_b32 s{S_I}, s2, 3")
    e(f"v_lshl_add_u32 v{VD0}, v{V_G}, 13, v{V_SW}")
    e(f"v_xor_b32 v{VD1}, 128, v{VD0}")
    e(f"s_lshl_b32 s29, s{S_I}, 7")
    e(f"s_lshl_b32 s28, s{S_W}, 5")
    e("s_add_u32 s29, s29, s28")
    e("s_lshl_b32 s29, s29, 13")
    e(f"s_lshl_b32 s28, s{S_H}, 8")
    e("s_add_u32 s29, s29, s28")
    e("s_mov_b32 s36, s29")
    e("s_waitcnt lgkmcnt(0)")
    if G.stamps: e("v_writelane_b32 v255, s40, 0")
    G.srd(SRD_1, P_X, 2048)
    G.srd(SRD_2, P_WQ, 4194304)
    X0, X1 = 8, 12
    e(f"buffer_load_dwordx4 {vr(X0,4)}, v{V_L16B}, {sr(SRD_1,4)}, 0 offen")
    e(f"buffer_load_dwordx4 {vr(X1,4)}, v{V_L16B}, {sr(SRD_1,4)}, 0 offen offset:1024")
    def soff_q(n):
        if n == 0: e("s_mov_b32 s30, s29")
        else: e(f"s_add_u32 s30, s29, {n*4*8192}")
    dma_tile128(SRD_2, VD0, VD1, soff_q, R0, NTW)
    e(f"s_load_dword s{S_TAG}, {sr(P_WS,2)}, {WS_EPOCH}")
    G.srd(SRD_WS, P_WS, 0x10000000)
    G.srd(SRD_3, P_WUK, 4194304)
    e(f"v_bfe_u32 v17, v{V_LANE}, 2, 2")
    e(f"v_and_b32 v18, 3, v{V_LANE}")
    e(f"v_and_b32 v19, 1, v{V_G}")
    e("v_lshl_add_u32 v20, v19, 2, v17")
    e("v_lshlrev_b32 v20, 1, v20")
    e(f"s_lshl_b32 s28, s{S_W}, 2")
    e("v_xor_b32 v20, s28, v20")
    e("v_lshrrev_b32 v21, 1, v18")
    e("v_add_u32 v20, v20, v21")
    e("v_lshlrev_b32 v20, 4, v20")
    e("v_and_b32 v21, 1, v18")
    e("v_lshl_add_u32 v20, v21, 3, v20")
    e(f"v_lshl_add_u32 v21, v{V_G}, 3, v17")
    e(f"v_lshl_add_u32 v{V_TL0}, v21, 8, v20")
    e(f"v_xor_b32 v{V_TL1}, 32, v{V_TL0}")
    e(f"v_lshrrev_b32 v20, 1, v{V_G}")
    e("v_lshlrev_b32 v20, 8, v20")
    e(f"v_lshl_add_u32 v21, v19, 4, v{V_L15}")
    e(f"s_lshl_b32 s28, s{S_W}, 5")
    e("v_add_u32 v21, s28, v21")
    e(f"v_lshl_add_u32 v{V_AVW}, v21, 1, v20")
    e(f"v_and_b32 v20, 1, v{V_LANE}")
    e("v_lshlrev_b32 v20, 8, v20")
    e(f"v_lshl_add_u32 v{V_AVR}, v{V_G}, 4, v20")
    e(f"v_lshlrev_b32 v{V_PUB}, 4, v{V_L15}")
    e(f"v_lshl_add_u32 v{V_PUB}, v{V_G}, 10, v{V_PUB}")
    e(f"s_lshl_b32 s32, s{S_H}, 2")
    e(f"s_add_u32 s32, s32, s{S_W}")
    e("s_lshl_b32 s32, s32, 11")
    e(f"s_lshl_b32 s33, s{S_I}, 8")
    e("s_add_u32 s33, s33, s32")
    e(f"v_and_b32 v52, 1, v{V_LANE}")
    e("v_lshlrev_b32 v52, 10, v52")
    e(f"v_lshl_add_u32 v52, v{V_G}, 4, v52")
    e(f"s_lshl_b32 s28, s{S_I}, 8")
    e(f"s_add_u32 s28, s28, {L_XN}")
    e("v_add_u32 v52, s28, v52")
    e(f"v_and_b32 v22, 3, v{V_LANE}")
    e(f"v_bfe_u32 v23, v{V_LANE}, 3, 1")
    e("v_lshl_add_u32 v22, v23, 2, v22")
    e("v_lshlrev_b32 v22, 1, v22")
    e(f"v_xor_b32 v22, v22, v{V_G}")
    e(f"v_lshlrev_b32 v23, 8, v{V_L15}")
    e(f"s_lshl_b32 s28, s{S_W}, 13")
    e(f"s_add_u32 s28, s28, {R1}")
    e("v_add_u32 v23, s28, v23")
    for ks in range(4):
        e(f"v_xor_b32 v24, {4*ks}, v22")
        e(f"v_lshl_add_u32 v{240+ks}, v24, 4, v23")
    WUK = 64
    def issue_uk():
        def soff_uk(n):
            if n == 0: e("s_mov_b32 s30, s36")
            else: e(f"s_add_u32 s30, s36, {n*4*8192}")
        dma_tile128(SRD_3, VD0, VD1, soff_uk, R1, NTW)
    if G.uk_early: issue_uk()
    G.stamp(1)
    e(f"s_waitcnt vmcnt({16 if G.uk_early else 8})")
    F0, F1 = 16, 24
    for (X, F) in ((X0, F0), (X1, F1)):
        for k in range(4):
            e(f"v_lshlrev_b32 v{F+2*k}, 16, v{X+k}")
            e(f"v_and_b32 v{F+2*k+1}, 0xffff0000, v{X+k}")
    S0, S1, T0, T1 = 32, 33, 34, 35
    e(f"v_add_f32 v{S0}, v{F0}, v{F0+1}"); e(f"v_add_f32 v{S1}, v{F1}, v{F1+1}")
    for k in range(2, 8):
        e(f"v_add_f32 v{S0}, v{S0}, v{F0+k}"); e(f"v_add_f32 v{S1}, v{S1}, v{F1+k}")
    wave_red2("v_add_f32", S0, S1, T0, T1)
    e("s_mov_b32 s28, 0x3b000000")
    e(f"v_mul_f32 v{S0}, s28, v{S0}")
    e(f"v_mul_f32 v{S1}, s28, v{S1}")
    Q0, Q1 = 36, 37
    for k in range(8):
        e(f"v_sub_f32 v38, v{F0+k}, v{S0}")
        e(f"v_sub_f32 v39, v{F1+k}, v{S1}")
        if k == 0:
            e(f"v_mul_f32 v{Q0}, v38, v38"); e(f"v_mul_f32 v{Q1}, v39, v39")
        else:
            e(f"v_fmac_f32 v{Q0}, v38, v38"); e(f"v_fmac_f32 v{Q1}, v39, v39")
    wave_red2("v_add_f32", Q0, Q1, T0, T1)
    e("s_mov_b32 s29, 0x3727c5ac")
    def both(f):
        f(Q0, S0); f(Q1, S1)
    both(lambda Q, S: e(f"v_mul_f32 v{Q}, s28, v{Q}"))
    both(lambda Q, S: e(f"v_cvt_pk_bf16_f32 v{Q}, v{Q}, v{Q}"))
    both(lambda Q, S: e(f"v_lshlrev_b32 v{Q}, 16, v{Q}"))
    both(lambda Q, S: e(f"v_add_f32 v{Q}, s29, v{Q}"))
    both(lambda Q, S: e(f"v_cvt_pk_bf16_f32 v{Q}, v{Q}, v{Q}"))
    both(lambda Q, S: e(f"v_lshlrev_b32 v{Q}, 16, v{Q}"))
    both(lambda Q, S: e(f"v_sqrt_f32 v{Q}, v{Q}"))
    both(lambda Q, S: e(f"v_cvt_pk_bf16_f32 v{S}, v{S}, v{S}"))
    both(lambda Q, S: e(f"v_cvt_pk_bf16_f32 v{Q}, v{Q}, v{Q}"))
    both(lambda Q, S: e(f"v_lshlrev_b32 v{S}, 16, v{S}"))
    both(lambda Q, S: e(f"v_lshlrev_b32 v{Q}, 16, v{Q}"))
    both(lambda Q, S: e(f"v_rcp_f32 v{Q}, v{Q}"))
    for (F, S, Q, XB) in ((F0, S0, Q0, 0), (F1, S1, Q1, 1)):
        for k in range(0, 8, 2):
            e(f"v_sub_f32 v{F+k}, v{F+k}, v{S}")
            e(f"v_sub_f32 v{F+k+1}, v{F+k+1}, v{S}")
            e(f"v_cvt_pk_bf16_f32 v38, v{F+k}, v{F+k+1}")
            e(f"v_lshlrev_b32 v{F+k}, 16, v38")
            e(f"v_and_b32 v{F+k+1}, 0xffff0000, v38")
            e(f"v_mul_f32 v{F+k}, v{F+k}, v{Q}")
            e(f"v_mul_f32 v{F+k+1}, v{F+k+1}, v{Q}")
            e(f"v_cvt_pk_bf16_f32 v{40+XB*4+k//2}, v{F+k}, v{F+k+1}")
        e(f"ds_write_b128 v{V_L16B}, {vr(40+XB*4,4)} offset:{L_XN + XB*1024}")
    if not G.uk_early: issue_uk()
    G.stamp(2)
    e("s_waitcnt vmcnt(8) lgkmcnt(0)")
    e("s_barrier")
    G.stamp(3)
    VA, VB, VC = 96, 112, 144
    gemv_loadA(52, VA)
    gemv_loadB(R0, VB, 21, 22)
    e(f"s_add_u32 s{S_TAG}, s{S_TAG}, 0x9e3779b9")
    e(f"s_add_u32 s34, s33, {WS_QP}")
    e("s_waitcnt lgkmcnt(0)")
    gemv_mma(VA, VB, VC)
    publish_units(VC, V_PUB, 34, 48)
    G.stamp(4)
    e("s_waitcnt vmcnt(1)")
    for ct in range(2):
        for ks in range(4):
            e(f"ds_read_b128 {vr(WUK+(ct*4+ks)*4,4)}, v{240+ks} offset:{4096*ct}")
    e(f"s_add_u32 s34, s32, {WS_QP}")
    consume4(34, 40, 32)
    write_av(40, L_AVQ, 48)
    e("s_waitcnt lgkmcnt(0)")
    e("s_barrier")
    G.stamp(5)
    gemv_loadA(V_AVR, VA, L_AVQ)
    e("s_waitcnt lgkmcnt(0) vmcnt(0)")
    for ks in range(4):
        for ct in range(2):
            c = "0" if ks == 0 else vr(VC+4*ct, 4)
            e(f"v_mfma_f32_16x16x32_bf16 {vr(VC+4*ct,4)}, {vr(VA+4*ks,4)}, {vr(WUK+(ct*4+ks)*4,4)}, {c}")
    nop(9)
    sel_tb(VC, 40, 41)
    e(f"v_cndmask_b32 v40, v40, v41, {sr(M_HI,2)}")
    scale = (128 ** -0.5) * math.log2(math.e)
    sc_bits = struct.unpack("<I", struct.pack("<f", scale))[0]
    e(f"v_mul_f32 v40, {hex(sc_bits)}, v40")
    write_av(40, L_QS, 48)
    e(f"v_lshlrev_b32 v44, 4, v{V_L15}")
    e(f"v_lshl_add_u32 v44, v{V_G}, 15, v44")
    e(f"s_lshl_b32 s34, s{S_H}, 10")
    e(f"s_lshl_b32 s35, s{S_I}, 8")
    e("s_add_u32 s34, s34, s35")
    e(f"s_add_u32 s34, s34, {WS_QA}")
    e("s_waitcnt lgkmcnt(0)")
    e("s_barrier")
    lskip = G.newlab("nopub")
    e(f"s_cmp_lg_u32 s{S_W}, 0")
    e(f"s_cbranch_scc1 {lskip}")
    e(f"ds_read_b128 {vr(40,4)}, v{V_L16B} offset:{L_QS}")
    e(f"v_mov_b32 v46, s{S_TAG}")
    e(f"v_mov_b32 v47, s{S_TAG}")
    e("v_mov_b32 v45, 0")
    e(f"s_lshl_b32 s35, s2, 7")
    e(f"s_add_u32 s35, s35, {WS_FB}")
    e("s_waitcnt lgkmcnt(0)")
    lo32()
    e(f"buffer_store_dwordx4 {vr(40,4)}, v44, {sr(SRD_WS,4)}, s34 offen sc1")
    e("s_mov_b64 exec, 1")
    e("s_waitcnt vmcnt(0)")
    e(f"buffer_store_dwordx2 {vr(46,2)}, v45, {sr(SRD_WS,4)}, s35 offen sc1")
    e("s_mov_b64 exec, -1")
    lab(lskip)
    G.stamp(6)

    def gate_B():
        e(f"s_mov_b32 s34, {WS_FB}")
        e(f"v_lshlrev_b32 v52, 7, v{V_LANE}")
        e("v_add_u32 v53, 8192, v52")
        def ldFB(b):
            e(f"buffer_load_dwordx2 {vr(b,2)}, v52, {sr(SRD_WS,4)}, s34 offen sc1")
            e(f"buffer_load_dwordx2 {vr(b+2,2)}, v53, {sr(SRD_WS,4)}, s34 offen sc1")
        poll(ldFB, 40, 4, [0, 1, 2, 3], 33)
    G.srd(SRD_1, P_WUV, 4194304)
    G.srd(SRD_2, P_WO, 4194304)
    lnoffn = G.newlab("noffn"); lafter = G.newlab("afterffn")
    def issue_wuv(base):
        e(f"v_lshl_add_u32 v{VD0}, v{V_G}, 17, v{V_SW}")
        e(f"v_xor_b32 v{VD1}, 128, v{VD0}")
        e(f"s_lshl_b32 s29, s{S_I}, 7")
        e(f"s_lshl_b32 s28, s{S_W}, 2")
        e("s_add_u32 s29, s29, s28")
        e("s_lshl_b32 s29, s29, 13")
        e(f"s_lshl_b32 s28, s{S_H}, 8")
        e("s_add_u32 s29, s29, s28")
        def f(n):
            off = (64*(n & 1) + (n >> 1)) * 8192
            if off == 0: e("s_mov_b32 s30, s29")
            else: e(f"s_add_u32 s30, s29, {off}")
        dma_tile128(SRD_1, VD0, VD1, f, base, NTW)
    def issue_wo(base):
        e(f"v_lshl_add_u32 v{VD0}, v{V_G}, 10, v{V_SW}")
        e(f"v_xor_b32 v{VD1}, 128, v{VD0}")
        e(f"s_lshl_b32 s29, s{S_H}, 7")
        e(f"s_lshl_b32 s28, s{S_W}, 5")
        e("s_add_u32 s29, s29, s28")
        e("s_lshl_b32 s29, s29, 10")
        e(f"s_lshl_b32 s28, s{S_I}, 8")
        e("s_add_u32 s29, s29, s28")
        def f(n):
            if n == 0: e("s_mov_b32 s30, s29")
            else: e(f"s_add_u32 s30, s29, {n*4*1024}")
        dma_tile128(SRD_2, VD0, VD1, f, base, NTW)

    e(f"s_cmp_ge_u32 s2, {NFFN}")
    e(f"s_cbranch_scc1 {lnoffn}")
    e("s_lshr_b32 s37, s2, 1")
    e("s_and_b32 s38, s2, 1")
    G.srd(SRD_3, P_W1, 1409024)
    G.srd(SRD_4, P_W3, 1409024)
    e(f"v_lshrrev_b32 v20, 2, v{V_LANE}")
    e("v_mul_u32_u24 v20, 2752, v20")
    e(f"v_lshrrev_b32 v21, 5, v{V_LANE}")
    e("v_lshlrev_b32 v21, 1, v21")
    e(f"v_and_b32 v22, 3, v{V_LANE}")
    e("v_xor_b32 v21, v21, v22")
    e("v_lshl_add_u32 v20, v21, 4, v20")
    e("s_lshl_b32 s29, s38, 2")
    e(f"s_add_u32 s29, s29, s{S_W}")
    e(f"s_mul_i32 s29, s29, {64*2752}")
    e("s_lshl_b32 s28, s37, 6")
    e("s_add_u32 s29, s29, s28")
    e(f"s_lshl_b32 s31, s{S_W}, 12")
    for (srd, base) in ((SRD_3, R1), (SRD_4, R1 + 16384)):
        for n in range(4):
            if n == 0: e("s_mov_b32 s30, s29")
            else: e(f"s_add_u32 s30, s29, {n*16*2752}")
            e(f"s_add_u32 m0, s31, {base + n*1024}")
            nop(1)
            e(f"buffer_load_dwordx4 v20, {sr(srd,4)}, s30 offen lds")
    G.srd(SRD_3, P_W2, 1409024)
    e(f"v_lshrrev_b32 v21, 5, v{V_LANE}")
    e(f"v_and_b32 v22, 31, v{V_LANE}")
    e("v_lshlrev_b32 v23, 1, v21")
    e("v_xor_b32 v22, v22, v23")
    e(f"s_and_b32 s28, s{S_W}, 1")
    e("s_lshl_b32 s28, s28, 3")
    e("v_xor_b32 v22, s28, v22")
    e("v_lshlrev_b32 v22, 4, v22")
    e("v_lshl_add_u32 v22, v21, 10, v22")
    e("v_xor_b32 v23, 64, v22")
    e("s_lshl_b32 s29, s37, 5")
    e(f"s_lshl_b32 s28, s{S_W}, 3")
    e("s_add_u32 s29, s29, s28")
    e("s_lshl_b32 s29, s29, 10")
    e("s_lshl_b32 s28, s38, 9")
    e("s_add_u32 s29, s29, s28")
    for n in range(4):
        if n == 0: e("s_mov_b32 s30, s29")
        else: e(f"s_add_u32 s30, s29, {n*2048}")
        e(f"s_add_u32 m0, s31, {R3 + n*1024}")
        nop(1)
        e(f"buffer_load_dwordx4 v{23 if n & 1 else 22}, {sr(SRD_3,4)}, s30 offen{NTW} lds")
    e(f"v_bfe_u32 v17, v{V_LANE}, 2, 2")
    e(f"v_and_b32 v18, 3, v{V_LANE}")
    e(f"v_and_b32 v19, 1, v{V_G}")
    e(f"s_and_b32 s28, s{S_W}, 1")
    e("s_lshl_b32 s28, s28, 1")
    e("v_lshrrev_b32 v20, 1, v18")
    e("v_add_u32 v20, s28, v20")
    e("v_lshlrev_b32 v21, 1, v19")
    e("v_xor_b32 v20, v20, v21")
    e("v_lshlrev_b32 v20, 4, v20")
    e("v_and_b32 v21, 1, v18")
    e("v_lshl_add_u32 v20, v21, 3, v20")
    e(f"v_lshl_add_u32 v21, v{V_G}, 3, v17")
    e("v_lshl_add_u32 v20, v21, 6, v20")
    e(f"s_lshr_b32 s28, s{S_W}, 1")
    e("s_lshl_b32 s28, s28, 14")
    e(f"s_add_u32 s28, s28, {R1}")
    e("v_add_u32 v20, s28, v20")
    e(f"v_and_b32 v21, 1, v{V_LANE}")
    e("v_lshlrev_b32 v21, 10, v21")
    e(f"v_lshl_add_u32 v21, v{V_G}, 4, v21")
    e("s_lshl_b32 s28, s38, 9")
    e("v_add_u32 v21, s28, v21")
    FA, FB_ = 96, 128
    e("s_waitcnt vmcnt(4)")
    e("s_barrier")
    for ks in range(8):
        e(f"ds_read_b128 {vr(FA+4*ks,4)}, v21 offset:{L_XN + 64*ks}")
        for u in range(2):
            e(f"ds_read_b64_tr_b16 {vr(FB_+4*ks+2*u,2)}, v20 offset:{2048*ks + 256*u}")
    GA = 224
    e("s_lshl_b32 s34, s2, 2")
    e(f"s_add_u32 s34, s34, s{S_W}")
    e("s_lshl_b32 s34, s34, 8")
    e(f"s_add_u32 s34, s34, {WS_F1}")
    e("s_xor_b32 s35, s2, 1")
    e("s_lshl_b32 s35, s35, 2")
    e(f"s_add_u32 s35, s35, s{S_W}")
    e("s_lshl_b32 s35, s35, 8")
    e(f"s_add_u32 s35, s35, {WS_F1}")
    e(f"v_lshlrev_b32 v26, 4, v{V_L15}")
    e("s_waitcnt lgkmcnt(0)")
    for ks in range(8):
        c = "0" if ks == 0 else vr(GA, 4)
        e(f"v_mfma_f32_16x16x32_bf16 {vr(GA,4)}, {vr(FA+4*ks,4)}, {vr(FB_+4*ks,4)}, {c}")
    nop(9)
    e(f"v_mov_b32 v40, v{GA}")
    e(f"v_mov_b32 v41, s{S_TAG}")
    e(f"v_mov_b32 v42, v{GA+1}")
    e(f"v_mov_b32 v43, s{S_TAG}")
    e("s_mov_b64 exec, 0xffff")
    e(f"buffer_store_dwordx4 {vr(40,4)}, v26, {sr(SRD_WS,4)}, s34 offen sc1")
    e("s_mov_b64 exec, -1")
    G.stamp(17)
    def ldF(b): e(f"buffer_load_dwordx4 {vr(b,4)}, v26, {sr(SRD_WS,4)}, s35 offen sc1")
    poll(ldF, 44, 4, [1, 3], 34)
    G.stamp(18)
    issue_wuv(R0)
    issue_wo(R2)
    e(f"v_add_f32 v{GA}, v{GA}, v44")
    e(f"v_add_f32 v{GA+1}, v{GA+1}, v46")
    e(f"v_cndmask_b32 v22, v{GA}, v{GA+1}, {sr(M_G1,2)}")
    e(f"v_and_b32 v23, 1, v{V_G}")
    e("v_lshlrev_b32 v23, 7, v23")
    e(f"v_lshl_add_u32 v23, v{V_L15}, 2, v23")
    e(f"s_lshr_b32 s28, s{S_W}, 1")
    e("s_lshl_b32 s28, s28, 8")
    e(f"s_and_b32 s29, s{S_W}, 1")
    e("s_lshl_b32 s29, s29, 6")
    e("s_add_u32 s28, s28, s29")
    e("v_add_u32 v23, s28, v23")
    e(f"ds_write_b32 v23, v22 offset:{L_GU}")
    e("s_waitcnt lgkmcnt(0)")
    e("s_barrier")
    e(f"v_lshlrev_b32 v23, 2, v{V_LANE}")
    e(f"ds_read_b32 v24, v23 offset:{L_GU}")
    e(f"ds_read_b32 v25, v23 offset:{L_GU+256}")
    e("v_lshl_add_u32 v20, v19, 2, v17")
    e("v_lshlrev_b32 v20, 1, v20")
    e(f"s_lshl_b32 s28, s{S_W}, 3")
    e("v_xor_b32 v20, s28, v20")
    e(f"v_lshl_add_u32 v21, v{V_G}, 3, v17")
    e("v_lshlrev_b32 v21, 9, v21")
    e("v_lshrrev_b32 v22, 1, v18")
    e("v_lshl_add_u32 v21, v22, 4, v21")
    e("v_and_b32 v22, 1, v18")
    e("v_lshl_add_u32 v21, v22, 3, v21")
    e(f"v_add_u32 v21, {R3}, v21")
    for t in range(4):
        e(f"v_xor_b32 v22, {2*t}, v20")
        e(f"v_lshl_add_u32 v{28+t}, v22, 4, v21")
    e("s_waitcnt lgkmcnt(0)")
    for t in range(4):
        for u in range(2):
            e(f"ds_read_b64_tr_b16 {vr(FB_+4*t+2*u,2)}, v{28+t} offset:{2048*u}")
    rbf(24); rbf(25)
    e("v_mul_f32 v26, 0xbfb8aa3b, v24")
    e("v_exp_f32 v26, v26")
    nop(1)
    e("v_add_f32 v26, 1.0, v26")
    e("v_rcp_f32 v26, v26")
    nop(1)
    e("v_mul_f32 v26, v24, v26")
    rbf(26)
    e("v_mul_f32 v26, v26, v25")
    e("v_cvt_pk_bf16_f32 v26, v26, v26")
    e(f"v_lshlrev_b32 v23, 1, v{V_LANE}")
    e(f"ds_write_b16 v23, v26 offset:{L_H}")
    e(f"v_and_b32 v21, 1, v{V_LANE}")
    e("v_lshlrev_b32 v21, 6, v21")
    e(f"v_lshl_add_u32 v21, v{V_G}, 4, v21")
    e("s_waitcnt lgkmcnt(0)")
    e(f"ds_read_b128 {vr(FA,4)}, v21 offset:{L_H}")
    e(f"v_mul_u32_u24 v20, {FP_S*256}, v{V_G}")
    e(f"v_lshl_add_u32 v20, v{V_L15}, 4, v20")
    e("s_lshl_b32 s28, s38, 2")
    e(f"s_add_u32 s28, s28, s{S_W}")
    e(f"s_mul_i32 s28, s28, {4*FP_S*256}")
    e("s_lshl_b32 s29, s37, 8")
    e("s_add_u32 s28, s28, s29")
    e(f"s_add_u32 s28, s28, {WS_FP}")
    DA = 100
    e("s_waitcnt lgkmcnt(0)")
    for t in range(4):
        e(f"v_mfma_f32_16x16x32_bf16 {vr(DA+4*t,4)}, {vr(FA,4)}, {vr(FB_+4*t,4)}, 0")
    nop(9)
    for rr in range(2):
        e(f"v_cndmask_b32 v32, v{DA+rr}, v{DA+4+rr}, {sr(M_G1,2)}")
        e(f"v_cndmask_b32 v33, v{DA+8+rr}, v{DA+12+rr}, {sr(M_G1,2)}")
        e(f"v_cndmask_b32 v{36+2*rr}, v32, v33, {sr(M_HI,2)}")
    e(f"v_mov_b32 v37, s{S_TAG}")
    e(f"v_mov_b32 v39, s{S_TAG}")
    e(f"buffer_store_dwordx4 {vr(36,4)}, v20, {sr(SRD_WS,4)}, s28 offen sc1")
    e(f"s_branch {lafter}")
    lab(lnoffn)
    if G.late_wait == 'B': gate_B()
    G.stamp(7)
    issue_wuv(R0)
    issue_wo(R2)
    lab(lafter)
    e("s_waitcnt vmcnt(0)")
    e("s_barrier")
    G.stamp(8)
    BUV, BO = 160, 192
    gemv_loadB(R0, BUV, 21, 22)
    gemv_loadB(R2, BO, 21, 22)
    e(f"s_lshl_b32 s28, s{S_I}, 7")
    e(f"s_lshr_b32 s29, s{S_W}, 1")
    e("s_lshl_b32 s29, s29, 6")
    e("s_add_u32 s28, s28, s29")
    e("s_lshl_b32 s34, s28, 7")
    e(f"s_add_u32 s34, s34, {WS_CF}")
    e("s_lshl_b32 s28, s29, 10")
    e(f"s_lshl_b32 s29, s{S_I}, 8")
    e("s_add_u32 s28, s28, s29")
    e(f"s_lshl_b32 s29, s{S_H}, 3")
    e("s_add_u32 s28, s28, s29")
    e(f"s_add_u32 s35, s28, {WS_SS}")
    e(f"v_lshlrev_b32 v52, 7, v{V_LANE}")
    e(f"v_lshlrev_b32 v53, 10, v{V_LANE}")
    e(f"s_add_u32 s28, s32, {WS_CP}")
    e(f"buffer_load_dwordx4 {vr(232,4)}, v{V_L16B}, {sr(SRD_WS,4)}, s28 offen sc1")
    e(f"buffer_load_dwordx4 {vr(236,4)}, v{V_L16B}, {sr(SRD_WS,4)}, s28 offen offset:1024 sc1")
    lnw = G.newlab("nowarm")
    e("s_cmp_lt_u32 s2, 96")
    e(f"s_cbranch_scc1 {lnw}")
    e("s_sub_u32 s28, s2, 96")
    e("s_lshl_b32 s28, s28, 13")
    e(f"s_add_u32 s28, s28, {WS_EP}")
    e(f"v_lshlrev_b32 v20, 4, v0")
    e("v_add_u32 v24, 4096, v20")
    e(f"buffer_load_dwordx4 {vr(244,4)}, v20, {sr(SRD_WS,4)}, s28 offen sc1")
    e(f"buffer_load_dwordx4 {vr(248,4)}, v24, {sr(SRD_WS,4)}, s28 offen sc1")
    lab(lnw)
    e(f"v_lshl_add_u32 v{VD0}, v{V_G}, 15, v{V_SW}")
    e(f"v_xor_b32 v{VD1}, 128, v{VD0}")
    e(f"s_lshl_b32 s29, s{S_W}, 7")
    e(f"s_add_u32 s29, s29, s{S_I}")
    e("s_lshl_b32 s29, s29, 13")
    e(f"s_lshl_b32 s28, s{S_H}, 8")
    e("s_add_u32 s29, s29, s28")
    e(f"s_add_u32 s29, s29, {WS_OP}")
    G.stamp(9)
    def ldC(b): e(f"buffer_load_dwordx2 {vr(b,2)}, v52, {sr(SRD_WS,4)}, s34 offen sc1")
    poll(ldC, 40, 2, [0, 1], 35)
    G.stamp(10)
    e(f"buffer_load_dwordx2 {vr(42,2)}, v53, {sr(SRD_WS,4)}, s35 offen sc1")
    def soff_ob(n):
        if n == 0: e("s_mov_b32 s30, s29")
        else: e(f"s_add_u32 s30, s29, {n*4*32768}")
    dma_tile128(SRD_WS, VD0, VD1, soff_ob, R1, " sc1")
    e("s_waitcnt vmcnt(8)")
    e("v_mov_b32 v40, v42")
    e("v_mov_b32 v42, v43")
    e("v_mov_b32 v44, v40")
    wave_red("v_max_f32", 44, 45)
    e("v_sub_f32 v40, v40, v44")
    e("v_exp_f32 v40, v40")
    nop(1)
    e("v_mul_f32 v44, v40, v42")
    wave_red("v_add_f32", 44, 45)
    e("v_rcp_f32 v44, v44")
    nop(1)
    e("v_mul_f32 v40, v40, v44")
    e("v_cvt_pk_bf16_f32 v40, v40, v40")
    e(f"s_lshr_b32 s29, s{S_W}, 1")
    e("s_mul_i32 s28, s29, 384")
    e(f"v_lshlrev_b32 v45, 1, v{V_LANE}")
    e("v_add_u32 v46, s28, v45")
    e(f"ds_write_b16 v46, v40 offset:{L_WGT}")
    e("s_lshl_b32 s28, s29, 7")
    e("s_add_u32 s28, s28, 128")
    e("v_add_u32 v46, s28, v45")
    e("v_mov_b32 v47, 0")
    e(f"ds_write_b16 v46, v47 offset:{L_WGT}")
    e(f"v_add_u32 v21, {R1}, v{V_TL0}")
    e(f"v_add_u32 v22, {R1}, v{V_TL1}")
    e(f"s_add_u32 s34, s33, {WS_CP}")
    e("s_waitcnt vmcnt(0) lgkmcnt(0)")
    e("s_barrier")
    G.stamp(11)
    gemv_loadA(V_AVR, VA, L_WGT)
    for ks in range(4):
        for t in range(2):
            for u in range(2):
                r = VB + (t*4 + ks)*4 + 2*u
                e(f"ds_read_b64_tr_b16 {vr(r,2)}, v{21+t} offset:{8192*ks + 1024*u}")
    e("s_waitcnt lgkmcnt(0)")
    gemv_mma(VA, VB, VC)
    sel_tb(VC, 40, 41)
    e(f"v_cndmask_b32 v40, v40, v41, {sr(M_HI,2)}")
    write_av(40, L_AVO, 48)
    e("s_waitcnt lgkmcnt(0)")
    e("s_barrier")
    gemv_loadA(V_AVR, VA, L_AVO)
    e("s_waitcnt lgkmcnt(0)")
    gemv_mma(VA, BUV, VC)
    publish_units(VC, V_PUB, 34, 48)
    G.stamp(12)
    e(f"s_add_u32 s34, s32, {WS_CP}")
    e(f"v_lshlrev_b32 v20, 4, v{V_L15}")
    e(f"v_lshl_add_u32 v20, v{V_G}, 13, v20")
    e(f"s_lshl_b32 s28, s{S_I}, 2")
    e(f"s_add_u32 s28, s28, s{S_W}")
    e("s_lshl_b32 s28, s28, 14")
    e(f"s_lshl_b32 s29, s{S_H}, 8")
    e("s_add_u32 s28, s28, s29")
    e(f"s_add_u32 s39, s28, {WS_EP}")
    consume4(34, 40, 36)
    write_av(40, L_AVC, 48)
    e("s_waitcnt lgkmcnt(0)")
    e("s_barrier")
    G.stamp(13)
    gemv_loadA(V_AVR, VA, L_AVC)
    e("s_waitcnt lgkmcnt(0)")
    gemv_mma(VA, BO, VC)
    publish_units(VC, 20, 39, 48)
    G.stamp(14)
    e("s_cmp_lt_u32 s2, 96")
    e("s_cbranch_scc1 L_wdone")
    e("s_sub_u32 s35, s2, 96")
    e(f"v_lshlrev_b32 v20, 4, v0")
    e("s_lshl_b32 s28, s35, 13")
    e(f"s_add_u32 s36, s28, {WS_EP}")
    e(f"s_mul_i32 s28, s35, {FP_S*256}")
    e(f"s_add_u32 s37, s28, {WS_FP}")
    G.srd(SRD_1, P_X, 2048)
    e(f"v_lshlrev_b32 v21, 10, v{V_G}")
    e(f"v_lshl_add_u32 v21, v{V_L15}, 1, v21")
    e("s_lshl_b32 s28, s35, 5")
    e(f"buffer_load_ushort v22, v21, {sr(SRD_1,4)}, s28 offen")
    e("v_add_u32 v24, 4096, v20")
    e("v_add_u32 v25, 8192, v20")
    e("v_mov_b32 v23, 176")
    e("v_cmp_ge_u32 s[42:43], v0, v23")
    e(f"v_mov_b32 v26, s{S_TAG}")
    e("v_mov_b32 v27, 0")
    def ldFP(b):
        e(f"buffer_load_dwordx4 {vr(b,4)}, v20, {sr(SRD_WS,4)}, s37 offen sc1")
        e(f"buffer_load_dwordx4 {vr(b+4,4)}, v24, {sr(SRD_WS,4)}, s37 offen sc1")
        e(f"buffer_load_dwordx4 {vr(b+8,4)}, v25, {sr(SRD_WS,4)}, s37 offen sc1")
    def ldE(b):
        e(f"buffer_load_dwordx4 {vr(b,4)}, v20, {sr(SRD_WS,4)}, s36 offen sc1")
        e(f"buffer_load_dwordx4 {vr(b+4,4)}, v24, {sr(SRD_WS,4)}, s36 offen sc1")
    ldFP(108)
    poll(ldE, 100, 8, [1, 3, 5, 7], 37, alt=232)
    G.stamp(19)
    lp, done, skip = G.newlab("pollfp"), G.newlab("pfpdone"), G.newlab("pfpskip")
    e(f"s_mov_b32 s48, {G.spin}")
    e(f"s_branch {skip}")
    lab(lp)
    ldFP(108)
    lab(skip)
    e("s_waitcnt vmcnt(0)")
    e("v_cndmask_b32 v117, v117, v26, s[42:43]")
    e("v_cndmask_b32 v119, v119, v26, s[42:43]")
    check_tags([109, 111, 113, 115, 117, 119])
    e(f"s_cbranch_vccz {done}")
    e("s_sub_u32 s48, s48, 1")
    e(f"s_cbranch_scc1 {done}")
    e(f"s_branch {lp}")
    lab(done)
    e("v_cndmask_b32 v116, v116, v27, s[42:43]")
    e("v_cndmask_b32 v118, v118, v27, s[42:43]")
    G.stamp(15)
    for rr in (0, 2):
        e(f"v_add_f32 v{100+rr}, v{100+rr}, v{104+rr}")
        e(f"v_add_f32 v{108+rr}, v{108+rr}, v{112+rr}")
    for rr in (0, 2):
        e(f"v_add_f32 v{100+rr}, v{100+rr}, v{116+rr}")
    for rr in (0, 2):
        e(f"v_add_f32 v{100+rr}, v{100+rr}, v{108+rr}")
    nop(2)
    e("v_permlane32_swap_b32 v100, v102")
    nop(1)
    e("v_add_f32 v100, v100, v102")
    e("v_mov_b32 v101, v100")
    nop(2)
    e("v_permlane16_swap_b32 v100, v101")
    e(f"v_lshrrev_b32 v27, 5, v{V_LANE}")
    e("v_add_f32 v100, v100, v101")
    e("v_lshlrev_b32 v27, 6, v27")
    e(f"v_lshl_add_u32 v27, v{V_L15}, 2, v27")
    e(f"s_lshl_b32 s28, s{S_W}, 7")
    e("v_add_u32 v28, s28, v27")
    e(f"ds_write_b32 v28, v100 offset:{L_FIN}")
    G.srd(SRD_2, P_OUT, 2048)
    e("s_waitcnt lgkmcnt(0)")
    e("s_barrier")
    e(f"s_cmp_lg_u32 s{S_W}, 0")
    e("s_cbranch_scc1 L_wdone")
    e(f"v_lshlrev_b32 v27, 2, v{V_LANE}")
    for w in range(4):
        e(f"ds_read_b32 v{104+w}, v27 offset:{L_FIN + 128*w}")
    e("s_lshl_b32 s28, s35, 5")
    e("v_lshlrev_b32 v22, 16, v22")
    e("s_waitcnt lgkmcnt(0)")
    e("v_add_f32 v104, v104, v105")
    e("v_add_f32 v106, v106, v107")
    e("v_add_f32 v104, v104, v22")
    e("v_add_f32 v104, v104, v106")
    e("v_cvt_pk_bf16_f32 v104, v104, v104")
    lo32()
    e(f"buffer_store_short v104, v21, {sr(SRD_2,4)}, s28 offen")
    e("s_cmp_lg_u32 s35, 0")
    e("s_cbranch_scc1 L_wdone0")
    e("s_mov_b64 exec, 1")
    e(f"v_mov_b32 v30, s{S_TAG}")
    e("v_mov_b32 v31, 0")
    e(f"buffer_store_dword v30, v31, {sr(SRD_WS,4)}, 0 offen offset:{WS_EPOCH}")
    lab("L_wdone0")
    e("s_mov_b64 exec, -1")
    lab("L_wdone")
    G.stamp(16)
    store_stamps()
    e("s_endpgm")

    lab("L_att")
    e("s_sub_u32 s28, s2, 128")
    e(f"s_lshr_b32 s{S_H}, s28, 6")
    e(f"s_and_b32 s{S_I}, s28, 63")
    VCK = 8
    for idx in range(8):
        x = 32*(idx & 3) + 128*(idx >> 2)
        if x == 0: e(f"v_mov_b32 v{VCK+idx}, v{V_L16B}")
        else: e(f"v_xor_b32 v{VCK+idx}, {x}, v{V_L16B}")
    e("s_lshl_b32 s29, s28, 7")
    e(f"s_lshl_b32 s30, s{S_W}, 5")
    e("s_add_u32 s29, s29, s30")
    e("s_lshl_b32 s29, s29, 10")
    e(f"s_lshl_b32 s31, s{S_W}, 15")
    e("s_waitcnt lgkmcnt(0)")
    if G.stamps: e("v_writelane_b32 v255, s40, 0")
    G.srd(SRD_1, P_CKV, 16777216)
    e(f"s_load_dword s{S_TAG}, {sr(P_WS,2)}, {WS_EPOCH}")
    G.srd(SRD_WS, P_WS, 0x10000000)
    setup = []
    su = setup.append
    AA, AB, TB, TB2 = 16, 20, 24, 48
    su(f"v_and_b32 v32, 3, v{V_LANE}")
    su(f"v_bfe_u32 v33, v{V_LANE}, 3, 1")
    su("v_lshl_add_u32 v32, v33, 2, v32")
    su("v_lshlrev_b32 v32, 1, v32")
    su(f"v_xor_b32 v33, v32, v{V_G}")
    su(f"v_lshlrev_b32 v34, 10, v{V_L15}")
    su(f"s_add_u32 s37, s31, {L_CKV}")
    for j in range(4):
        su(f"v_xor_b32 v35, {4*j}, v33")
        su(f"v_lshl_add_u32 v{AB+j}, v35, 4, v34")
        su(f"v_add_u32 v{AA+j}, s37, v{AB+j}")
        if L_QAL: su(f"v_add_u32 v{AB+j}, {L_QAL}, v{AB+j}")
    su(f"v_bfe_u32 v32, v{V_LANE}, 2, 2")
    su(f"v_and_b32 v33, 3, v{V_LANE}")
    su(f"v_and_b32 v34, 1, v{V_G}")
    su("v_lshl_add_u32 v35, v34, 2, v32")
    su("v_lshlrev_b32 v35, 1, v35")
    su(f"v_lshl_add_u32 v36, v{V_G}, 3, v32")
    su("v_lshlrev_b32 v36, 10, v36")
    su("v_lshrrev_b32 v37, 1, v33")
    su("v_lshl_add_u32 v36, v37, 4, v36")
    su("v_and_b32 v37, 1, v33")
    su("v_lshl_add_u32 v36, v37, 3, v36")
    su(f"s_lshl_b32 s28, s{S_W}, 8")
    su(f"s_add_u32 s28, s28, {L_CKV}")
    su("v_add_u32 v36, s28, v36")
    for t in range(8):
        su(f"v_xor_b32 v37, {2*t}, v35")
        su(f"v_lshl_add_u32 v{TB+t}, v37, 4, v36")
        su(f"v_add_u32 v{TB2+t}, 65536, v{TB+t}")
    su(f"v_and_b32 v57, 31, v{V_LANE}")
    su("v_lshlrev_b32 v57, 2, v57")
    su(f"s_lshl_b32 s28, s{S_W}, 7")
    su("v_add_u32 v56, s28, v57")
    su(f"v_lshlrev_b32 v58, 2, v{V_L15}")
    su(f"v_lshrrev_b32 v32, 1, v{V_G}")
    su(f"s_lshl_b32 s28, s{S_W}, 2")
    su("v_add_u32 v32, s28, v32")
    su(f"v_and_b32 v33, 1, v{V_G}")
    su("v_lshlrev_b32 v33, 3, v33")
    su(f"v_lshl_add_u32 v33, v{V_L15}, 8, v33")
    su(f"v_xor_b32 v34, v32, v{V_L15}")
    su("v_lshl_add_u32 v59, v34, 4, v33")
    su("v_xor_b32 v63, 32, v59")
    for ks in range(4):
        su(f"v_add_u32 v34, {4*ks}, v{V_G}")
        su(f"v_xor_b32 v34, v34, v{V_L15}")
        su("v_lshlrev_b32 v34, 4, v34")
        su(f"v_lshl_add_u32 v{120+ks}, v{V_L15}, 8, v34")
    su(f"v_lshlrev_b32 v126, 4, v{V_L15}")
    su(f"v_lshl_add_u32 v124, v{V_G}, 10, v126")
    su(f"v_lshlrev_b32 v125, 3, v{V_LANE}")
    su(f"v_and_b32 v126, 31, v{V_LANE}")
    su("v_lshlrev_b32 v126, 7, v126")
    su(f"s_and_b32 s28, s{S_W}, 1")
    su("s_lshl_b32 s28, s28, 7")
    su(f"v_xor_b32 v127, s28, v{V_L16B}")
    si = 0
    per = (len(setup) + G.thr_n) // max(G.thr_n, 1) if G.thr_n else 0
    for j in range(32):
        idx = (j & 3) + 4*((j >> 3) & 1)
        if j == 0: e("s_mov_b32 s30, s29")
        else: e(f"s_add_u32 s30, s29, {j*1024}")
        e(f"s_add_u32 m0, s31, {L_CKV + j*1024}")
        nop(1)
        e(f"buffer_load_dwordx4 v{VCK+idx}, {sr(SRD_1,4)}, s30 offen{NTC} lds")
        if j == 1:
            for s_ in setup: e(s_)
        w_now = G.thr_w if j < G.thr_n else G.thr2_w
        if w_now and j >= w_now - 1 and j < 31:
            e(f"s_waitcnt vmcnt({w_now - 1})")
    e("s_waitcnt lgkmcnt(0)")
    e(f"s_add_u32 s{S_TAG}, s{S_TAG}, 0x9e3779b9")
    lsk = G.newlab("noL")
    if G.late_wait != 'L': e(f"s_branch {lsk}")
    e(f"s_cmp_lg_u32 s{S_W}, 0")
    e(f"s_cbranch_scc1 {lsk}")
    e("s_sub_u32 s28, s2, 128")
    e("s_lshl_b32 s28, s28, 7")
    e(f"s_add_u32 s28, s28, {WS_LF}")
    e(f"v_mov_b32 v40, s{S_TAG}")
    e(f"v_mov_b32 v41, s{S_TAG}")
    e("v_mov_b32 v42, 0")
    e("s_mov_b64 exec, 1")
    e(f"buffer_store_dwordx2 {vr(40,2)}, v42, {sr(SRD_WS,4)}, s28 offen sc1")
    e("s_mov_b64 exec, -1")
    lab(lsk)
    G.stamp(1)
    e(f"s_lshl_b32 s34, s{S_W}, 12")
    e(f"s_add_u32 s34, s34, {WS_FB}")
    def ldB(b): e(f"buffer_load_dwordx2 {vr(b,2)}, v126, {sr(SRD_WS,4)}, s34 offen sc1")
    ldB(40)
    e(f"s_lshl_b32 s29, s{S_H}, 15")
    e(f"s_lshl_b32 s30, s{S_W}, 13")
    e("s_add_u32 s29, s29, s30")
    e(f"s_add_u32 s29, s29, {WS_QA}")
    e(f"s_lshl_b32 s31, s{S_W}, 13")
    e("s_waitcnt vmcnt(1)")
    G.stamp(2)
    for ks in range(16):
        for kt in range(2):
            e(f"ds_read_b128 {ar((kt*16+ks)*4,4)}, v{AA+(ks&3)} offset:{16384*kt + 256*(ks>>2)}")
    poll(ldB, 40, 2, [0, 1], 32, pre_issued=True)
    G.stamp(3)
    for j in range(8):
        if j & 3: e(f"v_xor_b32 v30 if False else v44, {32*(j&3)}, v127".replace("v30 if False else ", ""))
        else: e("v_mov_b32 v44, v127")
        if j == 0: e("s_mov_b32 s30, s29")
        else: e(f"s_add_u32 s30, s29, {j*1024}")
        e(f"s_add_u32 m0, s31, {L_QAL + j*1024}")
        nop(1)
        e(f"buffer_load_dwordx4 v44, {sr(SRD_WS,4)}, s30 offen sc1 lds")
    e("s_sub_u32 s28, s2, 128")
    e("s_lshl_b32 s28, s28, 2")
    e(f"s_add_u32 s28, s28, s{S_W}")
    e("s_lshl_b32 s28, s28, 13")
    e(f"s_add_u32 s34, s28, {WS_OP}")
    e("s_add_u32 s35, s34, 4096")
    e("s_sub_u32 s28, s2, 128")
    e("s_lshl_b32 s28, s28, 2")
    e(f"s_add_u32 s28, s28, s{S_W}")
    e("s_lshl_b32 s28, s28, 8")
    e(f"s_add_u32 s36, s28, {WS_SS}")
    e(f"s_lshl_b32 s28, s{S_W}, 7")
    e("s_sub_u32 s29, s2, 128")
    e("s_add_u32 s28, s28, s29")
    e("s_lshl_b32 s28, s28, 7")
    e(f"s_add_u32 s37, s28, {WS_CF}")
    e("s_waitcnt vmcnt(0) lgkmcnt(0)")
    e("s_barrier")
    G.stamp(4)
    QB, SC = 64, 192
    def rdB(ks):
        st = ks % 3
        for ht in range(2):
            e(f"ds_read_b128 {vr(QB+(st*2+ht)*4,4)}, v{AB+(ks&3)} offset:{16384*ht + 256*(ks>>2)}")
    rdB(0); rdB(1)
    for ks in range(16):
        if ks + 2 < 16:
            rdB(ks + 2); e("s_waitcnt lgkmcnt(4)")
        elif ks + 1 < 16: e("s_waitcnt lgkmcnt(2)")
        else: e("s_waitcnt lgkmcnt(0)")
        st = ks % 3
        for kt in range(2):
            for ht in range(2):
                d = SC + (kt*2+ht)*4
                c = "0" if ks == 0 else vr(d, 4)
                e(f"v_mfma_f32_16x16x32_bf16 {vr(d,4)}, {ar((kt*16+ks)*4,4)}, {vr(QB+(st*2+ht)*4,4)}, {c}")
    trs = []
    for ks in range(4):
        for t in range(8):
            for u in range(2):
                base = (TB2 if ks >= 2 else TB) + t
                trs.append(f"ds_read_b64_tr_b16 {ar((ks*8+t)*4+2*u,2)}, v{base} offset:{(ks&1)*32768 + 4096*u}")
    ntr0 = 8
    for s_ in trs[:ntr0]: e(s_)
    nop(4)
    G.stamp(5)
    MXR = 32
    for ht in range(2):
        a = SC + ht*4; b = SC + (2+ht)*4
        e(f"v_max3_f32 v{MXR+ht}, v{a}, v{a+1}, v{a+2}")
    for ht in range(2):
        a = SC + ht*4; b = SC + (2+ht)*4
        e(f"v_max3_f32 v{MXR+ht}, v{MXR+ht}, v{a+3}, v{b}")
    for ht in range(2):
        a = SC + ht*4; b = SC + (2+ht)*4
        e(f"v_max3_f32 v{MXR+ht}, v{MXR+ht}, v{b+1}, v{b+2}")
    for ht in range(2):
        a = SC + ht*4; b = SC + (2+ht)*4
        e(f"v_max_f32 v{MXR+ht}, v{MXR+ht}, v{b+3}")
    xg_reduce2("v_max_f32", MXR, MXR+1, MXR+2, MXR+3)
    e(f"v_cndmask_b32 v36, v{MXR}, v{MXR+1}, {sr(M_G1,2)}")
    e("s_barrier")
    e(f"ds_write_b32 v56, v36 offset:{L_MX}")
    e("s_waitcnt lgkmcnt(0)")
    e("s_barrier")
    for ht in range(2):
        for w in range(4):
            e(f"ds_read_b32 v{40+ht*4+w}, v58 offset:{L_MX + 128*w + 64*ht}")
    e("s_waitcnt lgkmcnt(0)")
    sm = []
    a_ = sm.append
    for ht in range(2):
        a_(f"v_max3_f32 v{MXR+ht}, v{40+ht*4}, v{41+ht*4}, v{42+ht*4}")
    for ht in range(2):
        a_(f"v_max_f32 v{MXR+ht}, v{MXR+ht}, v{43+ht*4}")
    LS = 34
    for kt in range(2):
        for ht in range(2):
            d = SC + (kt*2+ht)*4
            for r in range(4): a_(f"v_sub_f32 v{d+r}, v{d+r}, v{MXR+ht}")
    for kt in range(2):
        for ht in range(2):
            d = SC + (kt*2+ht)*4
            for r in range(4): a_(f"v_exp_f32 v{d+r}, v{d+r}")
    pk = 44
    for kt in range(2):
        for ht in range(2):
            d = SC + (kt*2+ht)*4
            q = pk + (kt*2+ht)*2 if False else 88 + (kt*2+ht)*2
            a_(f"v_cvt_pk_bf16_f32 v{q}, v{d}, v{d+1}")
            a_(f"v_cvt_pk_bf16_f32 v{q+1}, v{d+2}, v{d+3}")
            a_(f"ds_write_b64 v{63 if kt else 59}, {vr(q,2)} offset:{L_P + 4096*ht}")
    for ht in range(2):
        a = SC + ht*4
        a_(f"v_add_f32 v{LS+ht}, v{a}, v{a+1}")
    for x in (2, 3, 8, 9, 10, 11):
        for ht in range(2):
            a_(f"v_add_f32 v{LS+ht}, v{LS+ht}, v{SC+ht*4+x}")
    xg_reduce2("v_add_f32", LS, LS+1, 46, 47, emit=a_)
    a_(f"v_cndmask_b32 v36, v{LS}, v{LS+1}, {sr(M_G1,2)}")
    a_(f"ds_write_b32 v56, v36 offset:{L_LP}")
    rest = trs[ntr0:]
    out = []
    k = 0
    for idx, ins in enumerate(sm):
        out.append(ins)
        want = (idx + 1) * len(rest) // (len(sm) - 4)
        while k < min(want, len(rest)):
            out.append(rest[k]); k += 1
    while k < len(rest): out.append(rest[k]); k += 1
    for ins in out: e(ins)
    e("s_waitcnt lgkmcnt(0)")
    e("s_barrier")
    G.stamp(6)
    PA, OC = 208, 128
    for ks in range(4):
        for ht in range(2):
            e(f"ds_read_b128 {vr(PA+(ht*4+ks)*4,4)}, v{120+ks} offset:{L_P + 4096*ht}")
    for w in range(4):
        e(f"ds_read_b32 v{240+w}, v57 offset:{L_LP + 128*w}")
    def mm(ks, t, ht):
        d = OC + (ht*8+t)*4
        c = "0" if ks == 0 else vr(d, 4)
        e(f"v_mfma_f32_16x16x32_bf16 {vr(d,4)}, {vr(PA+(ht*4+ks)*4,4)}, {ar((ks*8+t)*4,4)}, {c}")
    for ks in range(3):
        e(f"s_waitcnt lgkmcnt({4 + 2*(3-ks)})")
        for t in range(8):
            for ht in range(2): mm(ks, t, ht)
    e("s_waitcnt lgkmcnt(0)")
    for t in range(8): mm(3, t, 0)
    ST0 = 88
    cv = []
    for tp in range(4):
        for r in range(4):
            cv.append(f"v_cvt_pk_bf16_f32 v{ST0+4*r+tp}, v{OC+(2*tp)*4+r}, v{OC+(2*tp+1)*4+r}")
    for t in range(8):
        mm(3, t, 1)
        if t >= 1:
            e(cv[2*(t-1)]); e(cv[2*(t-1)+1])
    e(cv[14]); e(cv[15])
    G.stamp(7)
    for r in range(4):
        e(f"buffer_store_dwordx4 {vr(ST0+4*r,4)}, v124, {sr(SRD_WS,4)}, s34 offen offset:{r*256} sc1")
    e("v_add_f32 v240, v240, v241")
    e("v_add_f32 v242, v242, v243")
    e(f"v_cndmask_b32 v44, v{MXR}, v{MXR+1}, {sr(M_G1,2)}")
    e(f"v_mov_b32 v46, s{S_TAG}")
    e("v_add_f32 v45, v240, v242")
    e(f"v_mov_b32 v47, s{S_TAG}")
    e("v_mov_b32 v43, 0")
    lo32()
    e(f"buffer_store_dwordx2 {vr(44,2)}, v125, {sr(SRD_WS,4)}, s36 offen sc1")
    e("s_mov_b64 exec, -1")
    for r in range(4):
        for tp in range(4):
            e(f"v_cvt_pk_bf16_f32 v{ST0+16+4*r+tp}, v{OC+(8+2*tp)*4+r}, v{OC+(8+2*tp+1)*4+r}")
        e(f"buffer_store_dwordx4 {vr(ST0+16+4*r,4)}, v124, {sr(SRD_WS,4)}, s35 offen offset:{r*256} sc1")
    e("s_mov_b64 exec, 1")
    e("s_waitcnt vmcnt(0)")
    G.stamp(8)
    e(f"buffer_store_dwordx2 {vr(46,2)}, v43, {sr(SRD_WS,4)}, s37 offen sc1")
    e("s_mov_b64 exec, -1")
    G.stamp(9)
    store_stamps()
    lab("L_end")
    e("s_endpgm")

    tail = []
    if prepost:
        for nm, off, spin in (("pre_kernel", 0x900000, 400), ("post_kernel", 0x900100, 0)):
            tail += [f".globl {nm}", ".p2align 8", f".type {nm},@function", f"{nm}:",
                     "  s_memrealtime s[10:11]",
                     "  s_cmp_ge_u32 s2, 1", f"  s_cbranch_scc1 L_{nm}_end",
                     "  s_load_dwordx2 s[4:5], s[0:1], 96"]
            if spin:
                tail += [f"  s_mov_b32 s6, {spin}", f"L_{nm}_sp:", "  s_sleep 8", "  s_sub_u32 s6, s6, 1", "  s_cmp_lg_u32 s6, 0", f"  s_cbranch_scc1 L_{nm}_sp",
                         "  s_memrealtime s[10:11]"]
            tail += ["  s_waitcnt lgkmcnt(0)", "  s_mov_b32 s12, s4", "  s_and_b32 s13, s5, 0xffff", "  s_mov_b32 s14, 0x10000000", "  s_mov_b32 s15, 0x20000",
                     "  v_mov_b32 v1, s10", f"  v_mov_b32 v2, {off}", "  s_mov_b64 exec, 1",
                     "  buffer_store_dword v1, v2, s[12:15], 0 offen", "  s_waitcnt vmcnt(0)", f"L_{nm}_end:", "  s_endpgm"]
        tail.append('.section .rodata,"a"')
        for nm in ("pre_kernel", "post_kernel"):
            tail += [".p2align 6", f".amdhsa_kernel {nm}", "  .amdhsa_next_free_vgpr 32",
                 "  .amdhsa_next_free_sgpr 24", "  .amdhsa_accum_offset 32", "  .amdhsa_group_segment_fixed_size 0",
                 "  .amdhsa_kernarg_size 104", "  .amdhsa_user_sgpr_count 2", "  .amdhsa_user_sgpr_kernarg_segment_ptr 1",
                 "  .amdhsa_system_sgpr_workgroup_id_x 1", ".end_amdhsa_kernel"]
    if extra_empty:
        tail += [".globl empty_kernel", ".p2align 8", ".type empty_kernel,@function", "empty_kernel:", "  s_endpgm"]
        tail += ['.section .rodata,"a"', ".p2align 6", ".amdhsa_kernel empty_kernel", "  .amdhsa_next_free_vgpr 32",
                 "  .amdhsa_next_free_sgpr 16", "  .amdhsa_accum_offset 32", "  .amdhsa_group_segment_fixed_size 0",
                 "  .amdhsa_kernarg_size 104", "  .amdhsa_user_sgpr_count 2", "  .amdhsa_user_sgpr_kernarg_segment_ptr 1",
                 "  .amdhsa_system_sgpr_workgroup_id_x 1", ".end_amdhsa_kernel"]
    tail.append('.section .rodata,"a"')
    tail.append(".p2align 6")
    tail.append(f".amdhsa_kernel {NAME}_kernel")
    tail.append("  .amdhsa_next_free_vgpr 384")
    tail.append("  .amdhsa_next_free_sgpr 102")
    tail.append("  .amdhsa_accum_offset 256")
    tail.append("  .amdhsa_group_segment_fixed_size 0")
    tail.append("  .amdhsa_kernarg_size 104")
    tail.append("  .amdhsa_user_sgpr_count 2")
    tail.append("  .amdhsa_user_sgpr_kernarg_segment_ptr 1")
    tail.append("  .amdhsa_system_sgpr_workgroup_id_x 1")
    tail.append(".end_amdhsa_kernel")
    for ln in G.L:
        if "buffer_" in ln:
            m = re.search(r"offset:(\d+)", ln)
            assert not m or int(m.group(1)) <= 4095, ln
    return "\n".join(hdr + G.L + tail) + "\n"

if __name__ == "__main__":
    import argparse
    ap = argparse.ArgumentParser()
    ap.add_argument("-o", default=f"cdna_kernels/{NAME}.s")
    ap.add_argument("--stamps", action="store_true")
    ap.add_argument("--no-nt-ckv", action="store_true")
    ap.add_argument("--no-nt-w", action="store_true")
    ap.add_argument("--extra-empty", type=int, default=0)
    ap.add_argument("--prepost", action="store_true")
    ap.add_argument("--thr-n", type=int, default=3)
    ap.add_argument("--thr-w", type=int, default=2)
    ap.add_argument("--late-wait", default="B")
    ap.add_argument("--thr2-w", type=int, default=0)
    ap.add_argument("--uk-late", action="store_true")
    ap.add_argument("--poll2", action="store_true")
    ap.add_argument("--poll-sleep", type=int, default=1)
    a = ap.parse_args()
    s = build(stamps=a.stamps, nt_ckv=not a.no_nt_ckv, nt_w=not a.no_nt_w, extra_empty=a.extra_empty, prepost=a.prepost,
              thr_n=a.thr_n, thr_w=a.thr_w, late_wait=a.late_wait, thr2_w=a.thr2_w, uk_early=not a.uk_late, poll2=a.poll2, poll_sleep=a.poll_sleep)
    open(a.o, "w").write(s)
    print("wrote", a.o, len(s), "bytes")
```

```python
import sys, math, struct, re
NAME = "parallel_sum__compressed_kv_cla__glu_gated_swiglu__decode"

WS_EPOCH = 0x0
WS_FB    = 0x1000
WS_F1    = 0x8000
WS_QP    = 0x20000
WS_QA    = 0x60000
WS_CP    = 0x70000
WS_EP    = 0xB0000
WS_FP    = 0xF0000
WS_SU    = 0x150000
WS_OP    = 0x200000
WS_STAMP = 0x800000
FP_S = 48
NFFN = 86

R0, R1, R2 = 8192, 40960, 73728
L_XN  = 0
L_AVQ = 2048
L_AVO = L_AVQ + 512
L_AVC = L_AVO + 512
L_WGT = L_AVC + 512
L_QS  = L_WGT + 512
L_FIN = L_QS + 512
L_CKV = 32768
L_QAL = 0
L_MX  = 0
L_LP  = 512
L_P   = 4096
L_GU  = 16384
L_H   = 16384 + 512
LDS_BYTES = 163840

P_X, P_CKV, P_WQ, P_WUK, P_WUV, P_WO, P_BX, P_W1, P_W3, P_W2, P_OUT, P_DBG, P_WS = 64, 66, 68, 70, 72, 74, 76, 78, 80, 82, 84, 86, 88
S_W, S_H, S_I, S_TAG = 3, 4, 5, 6
SRD_WS, SRD_1, SRD_2, SRD_3, SRD_4 = 8, 12, 16, 20, 24
M_G1, M_HI = 44, 46
V_LANE, V_L15, V_G, V_L16B, V_SW, V_TL0, V_TL1 = 1, 2, 3, 4, 5, 6, 7

def vr(a, n): return f"v[{a}:{a+n-1}]"
def ar(a, n): return f"a[{a}:{a+n-1}]"
def sr(a, n): return f"s[{a}:{a+n-1}]"
def fbits(x): return hex(struct.unpack("<I", struct.pack("<f", x))[0])

class Gen:
    def __init__(self, **kw):
        d = dict(stamps=False, nt_ckv=True, nt_w=True, spin=200000, thr_n=4, thr_w=3, thr2_w=0,
                 gate='N', depth=3, sl_unit=1, sl_flag=2, uk_late=1)
        d.update(kw)
        self.__dict__.update(d)
        self.L = []
        self.nlab = 0
    def e(self, s): self.L.append("  " + s)
    def lab(self, s): self.L.append(s + ":")
    def newlab(self, p):
        self.nlab += 1
        return f"L_{p}_{self.nlab}"
    def nop(self, n):
        while n > 0:
            k = min(n, 16)
            self.e(f"s_nop {k-1}")
            n -= k
    def stamp(self, idx):
        if not self.stamps: return
        self.e("s_memrealtime s[40:41]")
        self.e("s_waitcnt lgkmcnt(0)")
        self.e(f"v_writelane_b32 v255, s40, {idx}")
    def stampval(self, idx, sreg):
        if not self.stamps: return
        self.e(f"v_writelane_b32 v255, s{sreg}, {idx}")
    def srd(self, dst, ptr, size):
        self.e(f"s_mov_b32 s{dst}, s{ptr}")
        self.e(f"s_and_b32 s{dst+1}, s{ptr+1}, 0xffff")
        self.e(f"s_mov_b32 s{dst+2}, {size}")
        self.e(f"s_mov_b32 s{dst+3}, 0x20000")

def build(extra_empty=0, prepost=False, **kw):
    G = Gen(**kw)
    e, lab, nop = G.e, G.lab, G.nop
    NTW = " nt" if G.nt_w else ""
    NTC = " nt" if G.nt_ckv else ""
    hdr = []
    if prepost:
        hdr.append(f"; @launch kernel=pre_kernel grid=(256,1,1) block=(64,1,1) lds=0")
        hdr.append(f"; @launch kernel={NAME}_kernel grid=(256,1,1) block=(256,1,1) lds={LDS_BYTES}")
        hdr.append(f"; @launch kernel=post_kernel grid=(256,1,1) block=(64,1,1) lds=0")
    elif extra_empty:
        hdr.append(f"; @launch kernel={NAME}_kernel grid=(256,1,1) block=(256,1,1) lds={LDS_BYTES}")
        for _ in range(extra_empty):
            hdr.append(f"; @launch kernel=empty_kernel grid=(256,1,1) block=(256,1,1) lds=0")
    else:
        hdr.append(f"; @launch grid=(256,1,1) block=(256,1,1) lds={LDS_BYTES}")
    hdr.append('.amdgcn_target "amdgcn-amd-amdhsa--gfx950"')
    hdr.append(".text")
    hdr.append(f".globl {NAME}_kernel")
    hdr.append(".p2align 8")
    hdr.append(f".type {NAME}_kernel,@function")
    hdr.append(f"{NAME}_kernel:")

    def lo32():
        e("s_mov_b32 exec_lo, -1"); e("s_mov_b32 exec_hi, 0")
    def check_tags(tagregs):
        first = True
        for k in range(0, len(tagregs), 2):
            a = tagregs[k]; b = tagregs[k+1] if k + 1 < len(tagregs) else tagregs[k]
            e(f"v_xor_b32 v61, s{S_TAG}, v{a}")
            e(f"v_xor_b32 v62, s{S_TAG}, v{b}")
            if first:
                e("v_or_b32 v60, v61, v62"); first = False
            else:
                e("v_or3_b32 v60, v60, v61, v62")
        e("v_cmp_ne_u32 vcc, 0, v60")
    def poll(mk_loads, base, nregs, tagoffs, ring, nld, sleep, cnt_idx=None):
        ring = ring[:G.depth]
        D = len(ring)
        lp, done = G.newlab("poll"), G.newlab("pdone")
        e(f"s_mov_b32 s48, {G.spin}")
        for k in range(D - 1):
            mk_loads(ring[k])
            if sleep: e(f"s_sleep {sleep}")
        exits = [G.newlab("pexit") for _ in range(D)]
        lab(lp)
        for k in range(D):
            mk_loads(ring[(k + D - 1) % D])
            e(f"s_waitcnt vmcnt({(D-1)*nld})")
            check_tags([ring[k] + o for o in tagoffs])
            e(f"s_cbranch_vccz {exits[k]}")
            if sleep: e(f"s_sleep {sleep}")
        e("s_sub_u32 s48, s48, 1")
        e(f"s_cbranch_scc0 {lp}")
        for k in range(D):
            lab(exits[k])
            for r in range(nregs): e(f"v_mov_b32 v{base+r}, v{ring[k]+r}")
            if k < D - 1: e(f"s_branch {done}")
        lab(done)
        if cnt_idx is not None: G.stampval(cnt_idx, 48)
    def dma_tile128(srd, v0, v1, soff_fn, lds_base, flags):
        e(f"s_lshl_b32 s31, s{S_W}, 13")
        for n in range(8):
            soff_fn(n)
            e(f"s_add_u32 m0, s31, {lds_base + n*1024}")
            v = v1 if (n >> 1) & 1 else v0
            nop(1)
            e(f"buffer_load_dwordx4 v{v}, {sr(srd,4)}, s30 offen{flags} lds")
    def lin(step):
        def f(n):
            if n == 0: e("s_mov_b32 s30, s29")
            else: e(f"s_add_u32 s30, s29, {n*step}")
        return f
    def gemv_loadB(base, vB, tmp0, tmp1):
        if base + 3*8192 + 1024 <= 65535:
            a0, a1, off = V_TL0, V_TL1, base
        else:
            e(f"v_add_u32 v{tmp0}, {base}, v{V_TL0}")
            e(f"v_add_u32 v{tmp1}, {base}, v{V_TL1}")
            a0, a1, off = tmp0, tmp1, 0
        for ks in range(4):
            for t in range(2):
                for u in range(2):
                    r = vB + (t*4 + ks)*4 + 2*u
                    e(f"ds_read_b64_tr_b16 {vr(r,2)}, v{a1 if t else a0} offset:{off + 8192*ks + 1024*u}")
    def gemv_loadA(vaddr, vA, off=0):
        for ks in range(4):
            e(f"ds_read_b128 {vr(vA+4*ks,4)}, v{vaddr} offset:{off + 64*ks}")
    def gemv_mma(vA, vB, vC):
        for ks in range(4):
            for t in range(2):
                c = "0" if ks == 0 else vr(vC+4*t, 4)
                e(f"v_mfma_f32_16x16x32_bf16 {vr(vC+4*t,4)}, {vr(vA+4*ks,4)}, {vr(vB+(t*4+ks)*4,4)}, {c}")
        nop(9)
    def sel_tb(vC, d0, d1):
        e(f"v_cndmask_b32 v{d0}, v{vC}, v{vC+4}, {sr(M_G1,2)}")
        e(f"v_cndmask_b32 v{d1}, v{vC+1}, v{vC+5}, {sr(M_G1,2)}")
    def publish_units(vC, voff, soff, q):
        sel_tb(vC, q, q+2)
        lo32()
        e(f"buffer_store_dwordx4 {vr(q,4)}, v{voff}, {sr(SRD_WS,4)}, s{soff} offen sc1")
        e("s_mov_b64 exec, -1")
    def wave_red(op, v, tmp):
        for r in (8, 4, 2, 1):
            nop(2)
            e(f"{op}_dpp v{v}, v{v}, v{v} row_ror:{r} row_mask:0xf bank_mask:0xf")
        e(f"v_mov_b32 v{tmp}, v{v}")
        nop(2)
        e(f"v_permlane16_swap_b32 v{v}, v{tmp}")
        nop(1)
        e(f"{op} v{v}, v{v}, v{tmp}")
        e(f"v_mov_b32 v{tmp}, v{v}")
        nop(2)
        e(f"v_permlane32_swap_b32 v{v}, v{tmp}")
        nop(1)
        e(f"{op} v{v}, v{v}, v{tmp}")
    def xg_reduce2(op, va, vb, ta, tb, emit=None):
        em = emit or e
        for perm in ("v_permlane16_swap_b32", "v_permlane32_swap_b32"):
            em(f"v_mov_b32 v{ta}, v{va}")
            em(f"v_mov_b32 v{tb}, v{vb}")
            em("s_nop 0")
            em(f"{perm} v{va}, v{ta}")
            em(f"{perm} v{vb}, v{tb}")
            em("s_nop 0")
            em(f"{op} v{va}, v{va}, v{ta}")
            em(f"{op} v{vb}, v{vb}, v{tb}")
    def wave_red2(op, va, vb, ta, tb):
        for r in (8, 4, 2, 1):
            nop(1)
            e(f"{op}_dpp v{va}, v{va}, v{va} row_ror:{r} row_mask:0xf bank_mask:0xf")
            e(f"{op}_dpp v{vb}, v{vb}, v{vb} row_ror:{r} row_mask:0xf bank_mask:0xf")
        xg_reduce2(op, va, vb, ta, tb)
    def rbf(v):
        e(f"v_cvt_pk_bf16_f32 v{v}, v{v}, v{v}")
        e(f"v_lshlrev_b32 v{v}, 16, v{v}")
    def layernorm(X0, X1, F0, F1, T, OUT):
        S0, S1, T0, T1, Q0, Q1, U0, U1 = range(T, T+8)
        for (X, F) in ((X0, F0), (X1, F1)):
            for k in range(4):
                e(f"v_lshlrev_b32 v{F+2*k}, 16, v{X+k}")
                e(f"v_and_b32 v{F+2*k+1}, 0xffff0000, v{X+k}")
        e(f"v_add_f32 v{S0}, v{F0}, v{F0+1}"); e(f"v_add_f32 v{S1}, v{F1}, v{F1+1}")
        for k in range(2, 8):
            e(f"v_add_f32 v{S0}, v{S0}, v{F0+k}"); e(f"v_add_f32 v{S1}, v{S1}, v{F1+k}")
        wave_red2("v_add_f32", S0, S1, T0, T1)
        e("s_mov_b32 s28, 0x3b000000")
        e(f"v_mul_f32 v{S0}, s28, v{S0}")
        e(f"v_mul_f32 v{S1}, s28, v{S1}")
        for k in range(8):
            e(f"v_sub_f32 v{U0}, v{F0+k}, v{S0}")
            e(f"v_sub_f32 v{U1}, v{F1+k}, v{S1}")
            if k == 0:
                e(f"v_mul_f32 v{Q0}, v{U0}, v{U0}"); e(f"v_mul_f32 v{Q1}, v{U1}, v{U1}")
            else:
                e(f"v_fmac_f32 v{Q0}, v{U0}, v{U0}"); e(f"v_fmac_f32 v{Q1}, v{U1}, v{U1}")
        wave_red2("v_add_f32", Q0, Q1, T0, T1)
        e("s_mov_b32 s29, 0x3727c5ac")
        def both(f): f(Q0, S0); f(Q1, S1)
        both(lambda Q, S: e(f"v_mul_f32 v{Q}, s28, v{Q}"))
        both(lambda Q, S: e(f"v_cvt_pk_bf16_f32 v{Q}, v{Q}, v{Q}"))
        both(lambda Q, S: e(f"v_lshlrev_b32 v{Q}, 16, v{Q}"))
        both(lambda Q, S: e(f"v_add_f32 v{Q}, s29, v{Q}"))
        both(lambda Q, S: e(f"v_cvt_pk_bf16_f32 v{Q}, v{Q}, v{Q}"))
        both(lambda Q, S: e(f"v_lshlrev_b32 v{Q}, 16, v{Q}"))
        both(lambda Q, S: e(f"v_sqrt_f32 v{Q}, v{Q}"))
        both(lambda Q, S: e(f"v_cvt_pk_bf16_f32 v{S}, v{S}, v{S}"))
        both(lambda Q, S: e(f"v_cvt_pk_bf16_f32 v{Q}, v{Q}, v{Q}"))
        both(lambda Q, S: e(f"v_lshlrev_b32 v{S}, 16, v{S}"))
        both(lambda Q, S: e(f"v_lshlrev_b32 v{Q}, 16, v{Q}"))
        both(lambda Q, S: e(f"v_rcp_f32 v{Q}, v{Q}"))
        for (F, S, Q, XB) in ((F0, S0, Q0, 0), (F1, S1, Q1, 1)):
            for k in range(0, 8, 2):
                e(f"v_sub_f32 v{F+k}, v{F+k}, v{S}")
                e(f"v_sub_f32 v{F+k+1}, v{F+k+1}, v{S}")
                e(f"v_cvt_pk_bf16_f32 v{U0}, v{F+k}, v{F+k+1}")
                e(f"v_lshlrev_b32 v{F+k}, 16, v{U0}")
                e(f"v_and_b32 v{F+k+1}, 0xffff0000, v{U0}")
                e(f"v_mul_f32 v{F+k}, v{F+k}, v{Q}")
                e(f"v_mul_f32 v{F+k+1}, v{F+k+1}, v{Q}")
                e(f"v_cvt_pk_bf16_f32 v{OUT+XB*4+k//2}, v{F+k}, v{F+k+1}")
    def store_stamps():
        if not G.stamps: return
        e("s_getreg_b32 s30, hwreg(HW_REG_XCC_ID)")
        e("v_writelane_b32 v255, s30, 40")
        e(f"s_lshl_b32 s30, s2, 2")
        e(f"s_add_u32 s30, s30, s{S_W}")
        e(f"s_lshl_b32 s30, s30, 8")
        e(f"s_add_u32 s30, s30, {WS_STAMP}")
        e(f"v_lshlrev_b32 v60, 2, v{V_LANE}")
        e(f"buffer_store_dword v255, v60, {sr(SRD_WS,4)}, s30 offen")

    e("s_cmp_ge_u32 s2, 256")
    e("s_cbranch_scc1 L_end")
    if G.stamps:
        e("v_mov_b32 v255, 0")
        e("s_memrealtime s[40:41]")
    e(f"s_load_dwordx16 s[64:79], s[0:1], 0")
    e(f"s_load_dwordx8 s[80:87], s[0:1], 64")
    e(f"s_load_dwordx2 s[88:89], s[0:1], 96")
    e(f"v_and_b32 v{V_LANE}, 63, v0")
    e(f"v_lshrrev_b32 v8, 6, v0")
    e(f"v_and_b32 v{V_L15}, 15, v0")
    e(f"v_readfirstlane_b32 s{S_W}, v8")
    e(f"v_lshrrev_b32 v{V_G}, 4, v{V_LANE}")
    e(f"v_lshlrev_b32 v{V_L16B}, 4, v{V_LANE}")
    e(f"s_mov_b32 s{M_G1}, 0xffff0000"); e(f"s_mov_b32 s{M_G1+1}, 0xffff0000")
    e(f"s_mov_b32 s{M_HI}, 0"); e(f"s_mov_b32 s{M_HI+1}, -1")
    e("s_cmp_ge_u32 s2, 128")
    e("s_cbranch_scc1 L_att")

    V_AVW, V_AVR, V_PUB, VD0, VD1 = 56, 57, 55, 58, 59
    RING8 = [224, 232, 240]
    RING4 = [224, 228, 232]
    PUBQ = 48
    e(f"v_lshlrev_b32 v8, 1, v{V_G}")
    e(f"v_xor_b32 v8, v8, v{V_L15}")
    e(f"v_lshlrev_b32 v{V_SW}, 4, v8")
    e(f"s_lshr_b32 s{S_H}, s2, 2")
    e(f"s_and_b32 s{S_I}, s2, 3")
    e(f"v_lshl_add_u32 v{VD0}, v{V_G}, 13, v{V_SW}")
    e(f"v_xor_b32 v{VD1}, 128, v{VD0}")
    e(f"s_lshl_b32 s29, s{S_I}, 7")
    e(f"s_lshl_b32 s28, s{S_W}, 5")
    e("s_add_u32 s29, s29, s28")
    e("s_lshl_b32 s29, s29, 13")
    e(f"s_lshl_b32 s28, s{S_H}, 8")
    e("s_add_u32 s29, s29, s28")
    e("s_waitcnt lgkmcnt(0)")
    if G.stamps: e("v_writelane_b32 v255, s40, 0")
    G.srd(SRD_1, P_X, 2048)
    G.srd(SRD_2, P_WQ, 4194304)
    X0, X1 = 8, 12
    e(f"buffer_load_dwordx4 {vr(X0,4)}, v{V_L16B}, {sr(SRD_1,4)}, 0 offen")
    e(f"buffer_load_dwordx4 {vr(X1,4)}, v{V_L16B}, {sr(SRD_1,4)}, 0 offen offset:1024")
    dma_tile128(SRD_2, VD0, VD1, lin(4*8192), R0, NTW)
    e(f"s_load_dword s{S_TAG}, {sr(P_WS,2)}, {WS_EPOCH}")
    G.srd(SRD_3, P_WUK, 4194304)
    e("s_mov_b32 s36, s29")
    def issue_uk():
        e("s_mov_b32 s29, s36")
        dma_tile128(SRD_3, VD0, VD1, lin(4*8192), R1, NTW)
    if not G.uk_late: issue_uk()
    G.srd(SRD_WS, P_WS, 0x10000000)
    e(f"v_bfe_u32 v17, v{V_LANE}, 2, 2")
    e(f"v_and_b32 v18, 3, v{V_LANE}")
    e(f"v_and_b32 v19, 1, v{V_G}")
    e("v_lshl_add_u32 v20, v19, 2, v17")
    e("v_lshlrev_b32 v20, 1, v20")
    e(f"s_lshl_b32 s28, s{S_W}, 2")
    e("v_xor_b32 v20, s28, v20")
    e("v_lshrrev_b32 v21, 1, v18")
    e("v_add_u32 v20, v20, v21")
    e("v_lshlrev_b32 v20, 4, v20")
    e("v_and_b32 v21, 1, v18")
    e("v_lshl_add_u32 v20, v21, 3, v20")
    e(f"v_lshl_add_u32 v21, v{V_G}, 3, v17")
    e(f"v_lshl_add_u32 v{V_TL0}, v21, 8, v20")
    e(f"v_xor_b32 v{V_TL1}, 32, v{V_TL0}")
    e(f"v_lshrrev_b32 v20, 1, v{V_G}")
    e("v_lshlrev_b32 v20, 8, v20")
    e(f"v_lshl_add_u32 v21, v19, 4, v{V_L15}")
    e(f"s_lshl_b32 s28, s{S_W}, 5")
    e("v_add_u32 v21, s28, v21")
    e(f"v_lshl_add_u32 v{V_AVW}, v21, 1, v20")
    e(f"v_and_b32 v20, 1, v{V_LANE}")
    e("v_lshlrev_b32 v20, 8, v20")
    e(f"v_lshl_add_u32 v{V_AVR}, v{V_G}, 4, v20")
    e(f"v_lshlrev_b32 v{V_PUB}, 4, v{V_L15}")
    e(f"v_lshl_add_u32 v{V_PUB}, v{V_G}, 10, v{V_PUB}")
    e(f"s_lshl_b32 s32, s{S_H}, 2")
    e(f"s_add_u32 s32, s32, s{S_W}")
    e("s_lshl_b32 s32, s32, 11")
    e(f"s_lshl_b32 s33, s{S_I}, 8")
    e("s_add_u32 s33, s33, s32")
    e(f"v_and_b32 v52, 1, v{V_LANE}")
    e("v_lshlrev_b32 v52, 10, v52")
    e(f"v_lshl_add_u32 v52, v{V_G}, 4, v52")
    e(f"s_lshl_b32 s28, s{S_I}, 8")
    e(f"s_add_u32 s28, s28, {L_XN}")
    e("v_add_u32 v52, s28, v52")
    e(f"v_and_b32 v22, 3, v{V_LANE}")
    e(f"v_bfe_u32 v23, v{V_LANE}, 3, 1")
    e("v_lshl_add_u32 v22, v23, 2, v22")
    e("v_lshlrev_b32 v22, 1, v22")
    e(f"v_xor_b32 v22, v22, v{V_G}")
    e(f"v_lshlrev_b32 v23, 8, v{V_L15}")
    e(f"s_lshl_b32 s28, s{S_W}, 13")
    e(f"s_add_u32 s28, s28, {R1}")
    e("v_add_u32 v23, s28, v23")
    for ks in range(4):
        e(f"v_xor_b32 v24, {4*ks}, v22")
        e(f"v_lshl_add_u32 v{248+ks}, v24, 4, v23")
    G.stamp(1)
    e(f"s_waitcnt vmcnt({8 if G.uk_late else 16})")
    layernorm(X0, X1, 16, 24, 32, 40)
    e(f"ds_write_b128 v{V_L16B}, {vr(40,4)} offset:{L_XN}")
    e(f"ds_write_b128 v{V_L16B}, {vr(44,4)} offset:{L_XN + 1024}")
    if G.uk_late: issue_uk()
    G.stamp(2)
    e("s_waitcnt vmcnt(8) lgkmcnt(0)")
    e("s_barrier")
    G.stamp(3)
    VA, VB, VC, WUK = 96, 112, 144, 64
    gemv_loadA(52, VA)
    gemv_loadB(R0, VB, 21, 22)
    e(f"s_add_u32 s{S_TAG}, s{S_TAG}, 0x9e3779b9")
    e(f"s_add_u32 s34, s33, {WS_QP}")
    e(f"v_mov_b32 v{PUBQ+1}, s{S_TAG}")
    e(f"v_mov_b32 v{PUBQ+3}, s{S_TAG}")
    e("s_waitcnt lgkmcnt(0)")
    gemv_mma(VA, VB, VC)
    publish_units(VC, V_PUB, 34, PUBQ)
    G.stamp(4)
    def consume4(soff, u0, lds_dst, cnt_idx):
        u1 = u0 + 4
        def ld(b):
            e(f"buffer_load_dwordx4 {vr(b,4)}, v{V_L16B}, {sr(SRD_WS,4)}, s{soff} offen sc1")
            e(f"buffer_load_dwordx4 {vr(b+4,4)}, v{V_L16B}, {sr(SRD_WS,4)}, s{soff} offen offset:1024 sc1")
        poll(ld, u0, 8, [1, 3, 5, 7], RING8, 2, G.sl_unit, cnt_idx)
        nop(1)
        e(f"v_permlane32_swap_b32 v{u0}, v{u0+2}")
        e(f"v_permlane32_swap_b32 v{u1}, v{u1+2}")
        nop(1)
        e(f"v_add_f32 v{u0}, v{u0}, v{u0+2}")
        e(f"v_add_f32 v{u1}, v{u1}, v{u1+2}")
        nop(2)
        e(f"v_permlane16_swap_b32 v{u0}, v{u1}")
        nop(1)
        e(f"v_add_f32 v{u0}, v{u0}, v{u1}")
        write_av(u0, lds_dst)
    def write_av(vsrc, lds_dst):
        e(f"v_cvt_pk_bf16_f32 v54, v{vsrc}, v{vsrc}")
        e(f"ds_write_b16 v{V_AVW}, v54 offset:{lds_dst}")
    e(f"s_add_u32 s34, s32, {WS_QP}")
    e("s_waitcnt vmcnt(1)")
    for ct in range(2):
        for ks in range(4):
            e(f"ds_read_b128 {vr(WUK+(ct*4+ks)*4,4)}, v{248+ks} offset:{4096*ct}")
    consume4(34, 40, L_AVQ, 32)
    e("s_waitcnt lgkmcnt(0)")
    e("s_barrier")
    G.stamp(5)
    gemv_loadA(V_AVR, VA, L_AVQ)
    e(f"v_lshlrev_b32 v44, 4, v{V_L15}")
    e(f"v_lshl_add_u32 v44, v{V_G}, 15, v44")
    e(f"s_lshl_b32 s34, s{S_H}, 10")
    e(f"s_lshl_b32 s35, s{S_I}, 8")
    e("s_add_u32 s34, s34, s35")
    e(f"s_add_u32 s34, s34, {WS_QA}")
    e(f"s_lshl_b32 s35, s2, 7")
    e(f"s_add_u32 s35, s35, {WS_FB}")
    e("s_waitcnt lgkmcnt(0)")
    for ks in range(4):
        for ct in range(2):
            c = "0" if ks == 0 else vr(VC+4*ct, 4)
            e(f"v_mfma_f32_16x16x32_bf16 {vr(VC+4*ct,4)}, {vr(VA+4*ks,4)}, {vr(WUK+(ct*4+ks)*4,4)}, {c}")
    nop(9)
    sel_tb(VC, 40, 41)
    e(f"v_cndmask_b32 v40, v40, v41, {sr(M_HI,2)}")
    e(f"v_mul_f32 v40, {fbits((128 ** -0.5) * math.log2(math.e))}, v40")
    write_av(40, L_QS)
    e("s_waitcnt lgkmcnt(0)")
    e("s_barrier")
    lskip = G.newlab("nopub")
    e(f"s_cmp_lg_u32 s{S_W}, 0")
    e(f"s_cbranch_scc1 {lskip}")
    e(f"ds_read_b128 {vr(40,4)}, v{V_L16B} offset:{L_QS}")
    e(f"v_mov_b32 v46, s{S_TAG}")
    e(f"v_mov_b32 v47, s{S_TAG}")
    e("v_mov_b32 v45, 0")
    e("s_waitcnt lgkmcnt(0)")
    lo32()
    e(f"buffer_store_dwordx4 {vr(40,4)}, v44, {sr(SRD_WS,4)}, s34 offen sc1")
    e("s_mov_b64 exec, 1")
    e("s_waitcnt vmcnt(0)")
    e(f"buffer_store_dwordx2 {vr(46,2)}, v45, {sr(SRD_WS,4)}, s35 offen sc1")
    e("s_mov_b64 exec, -1")
    if G.gate == 'B':
        e(f"s_mov_b32 s34, {WS_FB}")
        e(f"v_lshlrev_b32 v52, 7, v{V_LANE}")
        e("v_add_u32 v53, 8192, v52")
        def ldFB(b):
            e(f"buffer_load_dwordx2 {vr(b,2)}, v52, {sr(SRD_WS,4)}, s34 offen sc1")
            e(f"buffer_load_dwordx2 {vr(b+2,2)}, v53, {sr(SRD_WS,4)}, s34 offen sc1")
        poll(ldFB, 40, 4, [0, 1, 2, 3], RING4, 2, 4, 33)
    lab(lskip)
    G.stamp(6)
    e("s_barrier")
    G.stamp(7)
    G.srd(SRD_1, P_WUV, 4194304)
    G.srd(SRD_2, P_WO, 4194304)
    e(f"v_lshl_add_u32 v{VD0}, v{V_G}, 17, v{V_SW}")
    e(f"v_xor_b32 v{VD1}, 128, v{VD0}")
    e(f"s_lshl_b32 s29, s{S_I}, 7")
    e(f"s_lshl_b32 s28, s{S_W}, 2")
    e("s_add_u32 s29, s29, s28")
    e("s_lshl_b32 s29, s29, 13")
    e(f"s_lshl_b32 s28, s{S_H}, 8")
    e("s_add_u32 s29, s29, s28")
    def f_uv(n):
        off = (64*(n & 1) + (n >> 1)) * 8192
        if off == 0: e("s_mov_b32 s30, s29")
        else: e(f"s_add_u32 s30, s29, {off}")
    dma_tile128(SRD_1, VD0, VD1, f_uv, R0, NTW)
    e(f"v_lshl_add_u32 v{VD0}, v{V_G}, 10, v{V_SW}")
    e(f"v_xor_b32 v{VD1}, 128, v{VD0}")
    e(f"s_lshl_b32 s29, s{S_H}, 7")
    e(f"s_lshl_b32 s28, s{S_W}, 5")
    e("s_add_u32 s29, s29, s28")
    e("s_lshl_b32 s29, s29, 10")
    e(f"s_lshl_b32 s28, s{S_I}, 8")
    e("s_add_u32 s29, s29, s28")
    dma_tile128(SRD_2, VD0, VD1, lin(4*1024), R2, NTW)
    e(f"s_lshl_b32 s28, s{S_I}, 7")
    e(f"s_lshr_b32 s29, s{S_W}, 1")
    e("s_lshl_b32 s29, s29, 6")
    e("s_add_u32 s28, s28, s29")
    e("s_lshl_b32 s34, s28, 9")
    e(f"s_lshl_b32 s29, s{S_H}, 4")
    e("s_add_u32 s34, s34, s29")
    e(f"s_add_u32 s34, s34, {WS_SU}")
    e(f"v_lshlrev_b32 v52, 9, v{V_LANE}")
    e(f"s_add_u32 s28, s32, {WS_CP}")
    e(f"buffer_load_dwordx4 {vr(232,4)}, v{V_L16B}, {sr(SRD_WS,4)}, s28 offen sc1")
    e(f"buffer_load_dwordx4 {vr(236,4)}, v{V_L16B}, {sr(SRD_WS,4)}, s28 offen offset:1024 sc1")
    lnw = G.newlab("nowarm")
    e("s_cmp_lt_u32 s2, 96")
    e(f"s_cbranch_scc1 {lnw}")
    e("s_sub_u32 s28, s2, 96")
    e("s_lshl_b32 s28, s28, 13")
    e(f"s_add_u32 s28, s28, {WS_EP}")
    e(f"v_lshlrev_b32 v20, 4, v0")
    e("v_add_u32 v24, 4096, v20")
    e(f"buffer_load_dwordx4 {vr(244,4)}, v20, {sr(SRD_WS,4)}, s28 offen sc1")
    e(f"buffer_load_dwordx4 {vr(248,4)}, v24, {sr(SRD_WS,4)}, s28 offen sc1")
    lab(lnw)
    e(f"v_lshl_add_u32 v{VD0}, v{V_G}, 15, v{V_SW}")
    e(f"v_xor_b32 v{VD1}, 128, v{VD0}")
    e(f"s_lshl_b32 s29, s{S_W}, 7")
    e(f"s_add_u32 s29, s29, s{S_I}")
    e("s_lshl_b32 s29, s29, 13")
    e(f"s_lshl_b32 s28, s{S_H}, 8")
    e("s_add_u32 s29, s29, s28")
    e(f"s_add_u32 s29, s29, {WS_OP}")
    e(f"v_lshlrev_b32 v53, 4, v{V_L15}")
    e(f"v_lshl_add_u32 v53, v{V_G}, 13, v53")
    e(f"s_lshl_b32 s28, s{S_I}, 2")
    e(f"s_add_u32 s28, s28, s{S_W}")
    e("s_lshl_b32 s28, s28, 14")
    e(f"s_lshl_b32 s39, s{S_H}, 8")
    e("s_add_u32 s28, s28, s39")
    e(f"s_add_u32 s39, s28, {WS_EP}")
    e(f"v_add_u32 v21, {R1}, v{V_TL0}")
    e(f"v_add_u32 v22, {R1}, v{V_TL1}")
    e("s_waitcnt vmcnt(0)")
    e("s_barrier")
    G.stamp(8)
    BUV, BO = 160, 192
    gemv_loadB(R0, BUV, 25, 26)
    gemv_loadB(R2, BO, 25, 26)
    G.stamp(9)
    lodd = G.newlab("codd"); lj = G.newlab("cjoin")
    e(f"s_and_b32 s28, s{S_W}, 1")
    e("s_cmp_lg_u32 s28, 0")
    e(f"s_cbranch_scc1 {lodd}")
    def ldC(b): e(f"buffer_load_dwordx4 {vr(b,4)}, v52, {sr(SRD_WS,4)}, s34 offen sc1")
    poll(ldC, 40, 4, [1, 3], RING4, 1, G.sl_flag, 35)
    lab(lodd)
    e("s_barrier")
    G.stamp(10)
    dma_tile128(SRD_WS, VD0, VD1, lin(4*32768), R1, " sc1")
    e(f"s_and_b32 s28, s{S_W}, 1")
    e("s_cmp_lg_u32 s28, 0")
    e(f"s_cbranch_scc1 {lj}")
    e("v_mov_b32 v44, v40")
    wave_red("v_max_f32", 44, 45)
    e("v_sub_f32 v40, v40, v44")
    e("v_exp_f32 v40, v40")
    nop(1)
    e("v_mul_f32 v44, v40, v42")
    wave_red("v_add_f32", 44, 45)
    e("v_rcp_f32 v44, v44")
    e(f"s_lshr_b32 s29, s{S_W}, 1")
    e("s_mul_i32 s28, s29, 384")
    e(f"v_lshlrev_b32 v45, 1, v{V_LANE}")
    e("v_mul_f32 v40, v40, v44")
    e("v_add_u32 v46, s28, v45")
    e("v_cvt_pk_bf16_f32 v40, v40, v40")
    e("s_lshl_b32 s28, s29, 7")
    e("s_add_u32 s28, s28, 128")
    e(f"ds_write_b16 v46, v40 offset:{L_WGT}")
    e("v_add_u32 v46, s28, v45")
    e("v_mov_b32 v47, 0")
    e(f"ds_write_b16 v46, v47 offset:{L_WGT}")
    lab(lj)
    e(f"s_add_u32 s34, s33, {WS_CP}")
    e("s_waitcnt vmcnt(0) lgkmcnt(0)")
    e("s_barrier")
    G.stamp(11)
    gemv_loadA(V_AVR, VA, L_WGT)
    for ks in range(4):
        for t in range(2):
            for u in range(2):
                r = VB + (t*4 + ks)*4 + 2*u
                e(f"ds_read_b64_tr_b16 {vr(r,2)}, v{21+t} offset:{8192*ks + 1024*u}")
    e("s_waitcnt lgkmcnt(0)")
    gemv_mma(VA, VB, VC)
    sel_tb(VC, 40, 41)
    e(f"v_cndmask_b32 v40, v40, v41, {sr(M_HI,2)}")
    write_av(40, L_AVO)
    e("s_waitcnt lgkmcnt(0)")
    e("s_barrier")
    gemv_loadA(V_AVR, VA, L_AVO)
    e("s_waitcnt lgkmcnt(0)")
    gemv_mma(VA, BUV, VC)
    publish_units(VC, V_PUB, 34, PUBQ)
    G.stamp(12)
    e(f"s_add_u32 s34, s32, {WS_CP}")
    consume4(34, 40, L_AVC, 36)
    e("s_waitcnt lgkmcnt(0)")
    e("s_barrier")
    G.stamp(13)
    gemv_loadA(V_AVR, VA, L_AVC)
    e("s_waitcnt lgkmcnt(0)")
    gemv_mma(VA, BO, VC)
    publish_units(VC, 53, 39, PUBQ)
    G.stamp(14)
    e("s_cmp_lt_u32 s2, 96")
    e("s_cbranch_scc1 L_wdone")
    e("s_sub_u32 s35, s2, 96")
    e(f"v_lshlrev_b32 v20, 4, v0")
    e("s_lshl_b32 s28, s35, 13")
    e(f"s_add_u32 s36, s28, {WS_EP}")
    e(f"s_mul_i32 s28, s35, {FP_S*256}")
    e(f"s_add_u32 s37, s28, {WS_FP}")
    G.srd(SRD_1, P_X, 2048)
    e(f"v_lshlrev_b32 v21, 10, v{V_G}")
    e(f"v_lshl_add_u32 v21, v{V_L15}, 1, v21")
    e("s_lshl_b32 s28, s35, 5")
    e(f"buffer_load_ushort v22, v21, {sr(SRD_1,4)}, s28 offen")
    e("v_add_u32 v24, 4096, v20")
    e("v_add_u32 v25, 8192, v20")
    e("v_mov_b32 v23, 176")
    e("v_cmp_ge_u32 s[42:43], v0, v23")
    e(f"v_mov_b32 v26, s{S_TAG}")
    e("v_mov_b32 v27, 0")
    def ldFP(b):
        e(f"buffer_load_dwordx4 {vr(b,4)}, v20, {sr(SRD_WS,4)}, s37 offen sc1")
        e(f"buffer_load_dwordx4 {vr(b+4,4)}, v24, {sr(SRD_WS,4)}, s37 offen sc1")
        e(f"buffer_load_dwordx4 {vr(b+8,4)}, v25, {sr(SRD_WS,4)}, s37 offen sc1")
    def ldE(b):
        e(f"buffer_load_dwordx4 {vr(b,4)}, v20, {sr(SRD_WS,4)}, s36 offen sc1")
        e(f"buffer_load_dwordx4 {vr(b+4,4)}, v24, {sr(SRD_WS,4)}, s36 offen sc1")
    ldFP(108)
    poll(ldE, 100, 8, [1, 3, 5, 7], RING8, 2, G.sl_unit, 37)
    G.stamp(19)
    lp, done, skip = G.newlab("pollfp"), G.newlab("pfpdone"), G.newlab("pfpskip")
    e(f"s_mov_b32 s48, {G.spin}")
    e(f"s_branch {skip}")
    lab(lp)
    ldFP(108)
    e("s_waitcnt vmcnt(0)")
    lab(skip)
    e("v_cndmask_b32 v117, v117, v26, s[42:43]")
    e("v_cndmask_b32 v119, v119, v26, s[42:43]")
    check_tags([109, 111, 113, 115, 117, 119])
    e(f"s_cbranch_vccz {done}")
    e("s_sub_u32 s48, s48, 1")
    e(f"s_cbranch_scc0 {lp}")
    lab(done)
    G.stampval(38, 48)
    e("v_cndmask_b32 v116, v116, v27, s[42:43]")
    e("v_cndmask_b32 v118, v118, v27, s[42:43]")
    G.stamp(15)
    for rr in (0, 2):
        e(f"v_add_f32 v{100+rr}, v{100+rr}, v{104+rr}")
        e(f"v_add_f32 v{108+rr}, v{108+rr}, v{112+rr}")
    for rr in (0, 2):
        e(f"v_add_f32 v{100+rr}, v{100+rr}, v{116+rr}")
    for rr in (0, 2):
        e(f"v_add_f32 v{100+rr}, v{100+rr}, v{108+rr}")
    nop(2)
    e("v_permlane32_swap_b32 v100, v102")
    nop(1)
    e("v_add_f32 v100, v100, v102")
    e("v_mov_b32 v101, v100")
    nop(2)
    e("v_permlane16_swap_b32 v100, v101")
    e(f"v_lshrrev_b32 v27, 5, v{V_LANE}")
    e("v_add_f32 v100, v100, v101")
    e("v_lshlrev_b32 v27, 6, v27")
    e(f"v_lshl_add_u32 v27, v{V_L15}, 2, v27")
    e(f"s_lshl_b32 s28, s{S_W}, 7")
    e("v_add_u32 v28, s28, v27")
    e(f"ds_write_b32 v28, v100 offset:{L_FIN}")
    G.srd(SRD_2, P_OUT, 2048)
    e("s_waitcnt lgkmcnt(0)")
    e("s_barrier")
    e(f"s_cmp_lg_u32 s{S_W}, 0")
    e("s_cbranch_scc1 L_wdone")
    e(f"v_lshlrev_b32 v27, 2, v{V_LANE}")
    for w in range(4):
        e(f"ds_read_b32 v{104+w}, v27 offset:{L_FIN + 128*w}")
    e("s_lshl_b32 s28, s35, 5")
    e("v_lshlrev_b32 v22, 16, v22")
    e("s_waitcnt lgkmcnt(0)")
    e("v_add_f32 v104, v104, v105")
    e("v_add_f32 v106, v106, v107")
    e("v_add_f32 v104, v104, v22")
    e("v_add_f32 v104, v104, v106")
    e("v_cvt_pk_bf16_f32 v104, v104, v104")
    lo32()
    e(f"buffer_store_short v104, v21, {sr(SRD_2,4)}, s28 offen")
    e("s_cmp_lg_u32 s35, 0")
    e("s_cbranch_scc1 L_wdone0")
    e("s_mov_b64 exec, 1")
    e(f"v_mov_b32 v30, s{S_TAG}")
    e("v_mov_b32 v31, 0")
    e(f"buffer_store_dword v30, v31, {sr(SRD_WS,4)}, 0 offen offset:{WS_EPOCH}")
    lab("L_wdone0")
    e("s_mov_b64 exec, -1")
    lab("L_wdone")
    G.stamp(16)
    store_stamps()
    e("s_endpgm")

    lab("L_att")
    S_A, S_FS, S_HF = 38, 37, 39
    e(f"s_sub_u32 s{S_A}, s2, 128")
    e(f"s_lshr_b32 s{S_H}, s{S_A}, 6")
    VCK = 8
    for idx in range(8):
        x = 32*(idx & 3) + 128*(idx >> 2)
        if x == 0: e(f"v_mov_b32 v{VCK+idx}, v{V_L16B}")
        else: e(f"v_xor_b32 v{VCK+idx}, {x}, v{V_L16B}")
    e(f"s_lshl_b32 s29, s{S_A}, 7")
    e(f"s_lshl_b32 s30, s{S_W}, 5")
    e("s_add_u32 s29, s29, s30")
    e("s_lshl_b32 s29, s29, 10")
    e(f"s_lshl_b32 s31, s{S_W}, 15")
    e("s_waitcnt lgkmcnt(0)")
    if G.stamps: e("v_writelane_b32 v255, s40, 0")
    G.srd(SRD_1, P_CKV, 16777216)
    G.srd(SRD_2, P_X, 2048)
    XA0, XA1 = 88, 92
    e(f"buffer_load_dwordx4 {vr(XA0,4)}, v{V_L16B}, {sr(SRD_2,4)}, 0 offen")
    e(f"buffer_load_dwordx4 {vr(XA1,4)}, v{V_L16B}, {sr(SRD_2,4)}, 0 offen offset:1024")
    e(f"s_load_dword s{S_TAG}, {sr(P_WS,2)}, {WS_EPOCH}")
    G.srd(SRD_WS, P_WS, 0x10000000)
    setup = []
    su = setup.append
    AA, AB, TB, TB2 = 16, 20, 24, 48
    su(f"v_and_b32 v32, 3, v{V_LANE}")
    su(f"v_bfe_u32 v33, v{V_LANE}, 3, 1")
    su("v_lshl_add_u32 v32, v33, 2, v32")
    su("v_lshlrev_b32 v32, 1, v32")
    su(f"v_xor_b32 v33, v32, v{V_G}")
    su(f"v_lshlrev_b32 v34, 10, v{V_L15}")
    su(f"s_add_u32 s37, s31, {L_CKV}")
    for j in range(4):
        su(f"v_xor_b32 v35, {4*j}, v33")
        su(f"v_lshl_add_u32 v{AB+j}, v35, 4, v34")
        su(f"v_add_u32 v{AA+j}, s37, v{AB+j}")
        if L_QAL: su(f"v_add_u32 v{AB+j}, {L_QAL}, v{AB+j}")
    su(f"v_bfe_u32 v32, v{V_LANE}, 2, 2")
    su(f"v_and_b32 v33, 3, v{V_LANE}")
    su(f"v_and_b32 v34, 1, v{V_G}")
    su("v_lshl_add_u32 v35, v34, 2, v32")
    su("v_lshlrev_b32 v35, 1, v35")
    su(f"v_lshl_add_u32 v36, v{V_G}, 3, v32")
    su("v_lshlrev_b32 v36, 10, v36")
    su("v_lshrrev_b32 v37, 1, v33")
    su("v_lshl_add_u32 v36, v37, 4, v36")
    su("v_and_b32 v37, 1, v33")
    su("v_lshl_add_u32 v36, v37, 3, v36")
    su(f"s_lshl_b32 s28, s{S_W}, 8")
    su(f"s_add_u32 s28, s28, {L_CKV}")
    su("v_add_u32 v36, s28, v36")
    for t in range(8):
        su(f"v_xor_b32 v37, {2*t}, v35")
        su(f"v_lshl_add_u32 v{TB+t}, v37, 4, v36")
        su(f"v_add_u32 v{TB2+t}, 65536, v{TB+t}")
    su(f"v_and_b32 v57, 31, v{V_LANE}")
    su("v_lshlrev_b32 v57, 2, v57")
    su(f"s_lshl_b32 s28, s{S_W}, 7")
    su("v_add_u32 v56, s28, v57")
    su(f"v_lshlrev_b32 v58, 2, v{V_L15}")
    su(f"v_lshrrev_b32 v32, 1, v{V_G}")
    su(f"s_lshl_b32 s28, s{S_W}, 2")
    su("v_add_u32 v32, s28, v32")
    su(f"v_and_b32 v33, 1, v{V_G}")
    su("v_lshlrev_b32 v33, 3, v33")
    su(f"v_lshl_add_u32 v33, v{V_L15}, 8, v33")
    su(f"v_xor_b32 v34, v32, v{V_L15}")
    su("v_lshl_add_u32 v59, v34, 4, v33")
    su("v_xor_b32 v63, 32, v59")
    for ks in range(4):
        su(f"v_add_u32 v34, {4*ks}, v{V_G}")
        su(f"v_xor_b32 v34, v34, v{V_L15}")
        su("v_lshlrev_b32 v34, 4, v34")
        su(f"v_lshl_add_u32 v{120+ks}, v{V_L15}, 8, v34")
    su(f"v_lshlrev_b32 v126, 4, v{V_L15}")
    su(f"v_lshl_add_u32 v124, v{V_G}, 10, v126")
    su(f"v_lshlrev_b32 v125, 4, v{V_LANE}")
    su(f"v_and_b32 v126, 31, v{V_LANE}")
    su("v_lshlrev_b32 v126, 7, v126")
    su(f"s_and_b32 s28, s{S_W}, 1")
    su("s_lshl_b32 s28, s28, 7")
    su(f"v_xor_b32 v127, s28, v{V_L16B}")
    for j in range(32):
        idx = (j & 3) + 4*((j >> 3) & 1)
        if j == 0: e("s_mov_b32 s30, s29")
        else: e(f"s_add_u32 s30, s29, {j*1024}")
        e(f"s_add_u32 m0, s31, {L_CKV + j*1024}")
        nop(1)
        e(f"buffer_load_dwordx4 v{VCK+idx}, {sr(SRD_1,4)}, s30 offen{NTC} lds")
        if j == 1:
            for s_ in setup: e(s_)
        w_now = G.thr_w if j < G.thr_n else G.thr2_w
        if w_now and j >= w_now - 1 and j < 31:
            e(f"s_waitcnt vmcnt({w_now - 1})")
    G.stamp(1)
    e(f"s_lshl_b32 s34, s{S_W}, 12")
    e(f"s_add_u32 s34, s34, {WS_FB}")
    def ldB(b): e(f"buffer_load_dwordx2 {vr(b,2)}, v126, {sr(SRD_WS,4)}, s34 offen sc1")
    ldB(244)
    lnoln = G.newlab("noln")
    e(f"s_cmp_ge_u32 s{S_A}, {NFFN}")
    e(f"s_cbranch_scc1 {lnoln}")
    e("s_waitcnt vmcnt(33)")
    layernorm(XA0, XA1, 96, 104, 112, 64)
    e(f"s_lshl_b32 s28, s{S_W}, 13")
    e(f"v_add_u32 v72, s28, v{V_L16B}")
    e(f"ds_write_b128 v72, {vr(64,4)} offset:{L_QAL}")
    e(f"ds_write_b128 v72, {vr(68,4)} offset:{L_QAL + 1024}")
    e(f"v_and_b32 v73, 1, v{V_LANE}")
    e("v_lshlrev_b32 v73, 10, v73")
    e(f"v_lshl_add_u32 v73, v{V_G}, 4, v73")
    e(f"s_and_b32 s39, s{S_A}, 1")
    e("s_lshl_b32 s29, s39, 9")
    e("s_add_u32 s28, s28, s29")
    e("v_add_u32 v73, s28, v73")
    e("s_waitcnt lgkmcnt(0)")
    for ks in range(8):
        e(f"ds_read_b128 {ar(176+4*ks,4)}, v73 offset:{L_QAL + 64*ks}")
    lab(lnoln)
    e("s_waitcnt lgkmcnt(0)")
    e(f"s_add_u32 s{S_TAG}, s{S_TAG}, 0x9e3779b9")
    e(f"s_lshl_b32 s29, s{S_H}, 15")
    e(f"s_lshl_b32 s30, s{S_W}, 13")
    e("s_add_u32 s29, s29, s30")
    e(f"s_add_u32 s29, s29, {WS_QA}")
    e(f"s_lshl_b32 s31, s{S_W}, 13")
    e("s_waitcnt vmcnt(1)")
    G.stamp(2)
    for ks in range(16):
        for kt in range(2):
            e(f"ds_read_b128 {ar((kt*16+ks)*4,4)}, v{AA+(ks&3)} offset:{16384*kt + 256*(ks>>2)}")
    poll(ldB, 40, 2, [0, 1], [244, 246, 248], 1, G.sl_flag, 32)
    G.stamp(3)
    for j in range(8):
        if j & 3: e(f"v_xor_b32 v44, {32*(j&3)}, v127")
        else: e("v_mov_b32 v44, v127")
        if j == 0: e("s_mov_b32 s30, s29")
        else: e(f"s_add_u32 s30, s29, {j*1024}")
        e(f"s_add_u32 m0, s31, {L_QAL + j*1024}")
        nop(1)
        e(f"buffer_load_dwordx4 v44, {sr(SRD_WS,4)}, s30 offen sc1 lds")
    e(f"s_lshl_b32 s28, s{S_A}, 2")
    e(f"s_add_u32 s28, s28, s{S_W}")
    e("s_lshl_b32 s28, s28, 13")
    e(f"s_add_u32 s34, s28, {WS_OP}")
    e("s_add_u32 s35, s34, 4096")
    e(f"s_lshl_b32 s28, s{S_W}, 7")
    e(f"s_add_u32 s28, s28, s{S_A}")
    e("s_lshl_b32 s28, s28, 9")
    e(f"s_add_u32 s36, s28, {WS_SU}")
    e("s_waitcnt vmcnt(0) lgkmcnt(0)")
    e("s_barrier")
    G.stamp(4)
    QB, SC = 64, 192
    def rdB(ks):
        st = ks % 3
        for ht in range(2):
            e(f"ds_read_b128 {vr(QB+(st*2+ht)*4,4)}, v{AB+(ks&3)} offset:{16384*ht + 256*(ks>>2)}")
    rdB(0); rdB(1)
    for ks in range(16):
        if ks + 2 < 16:
            rdB(ks + 2); e("s_waitcnt lgkmcnt(4)")
        elif ks + 1 < 16: e("s_waitcnt lgkmcnt(2)")
        else: e("s_waitcnt lgkmcnt(0)")
        st = ks % 3
        for kt in range(2):
            for ht in range(2):
                d = SC + (kt*2+ht)*4
                c = "0" if ks == 0 else vr(d, 4)
                e(f"v_mfma_f32_16x16x32_bf16 {vr(d,4)}, {ar((kt*16+ks)*4,4)}, {vr(QB+(st*2+ht)*4,4)}, {c}")
    trs = []
    for ks in range(4):
        for t in range(8):
            for u in range(2):
                base = (TB2 if ks >= 2 else TB) + t
                trs.append(f"ds_read_b64_tr_b16 {ar((ks*8+t)*4+2*u,2)}, v{base} offset:{(ks&1)*32768 + 4096*u}")
    ntr0 = 8
    for s_ in trs[:ntr0]: e(s_)
    nop(2)
    nop(2)
    G.stamp(5)
    MXR = 32
    for step in range(4):
        for ht in range(2):
            a = SC + ht*4; b = SC + (2+ht)*4
            if step == 0: e(f"v_max3_f32 v{MXR+ht}, v{a}, v{a+1}, v{a+2}")
            elif step == 1: e(f"v_max3_f32 v{MXR+ht}, v{MXR+ht}, v{a+3}, v{b}")
            elif step == 2: e(f"v_max3_f32 v{MXR+ht}, v{MXR+ht}, v{b+1}, v{b+2}")
            else: e(f"v_max_f32 v{MXR+ht}, v{MXR+ht}, v{b+3}")
    xg_reduce2("v_max_f32", MXR, MXR+1, MXR+2, MXR+3)
    e(f"v_cndmask_b32 v36, v{MXR}, v{MXR+1}, {sr(M_G1,2)}")
    e("s_barrier")
    e(f"ds_write_b32 v56, v36 offset:{L_MX}")
    e("s_waitcnt lgkmcnt(0)")
    e("s_barrier")
    for ht in range(2):
        for w in range(4):
            e(f"ds_read_b32 v{40+ht*4+w}, v58 offset:{L_MX + 128*w + 64*ht}")
    e("s_waitcnt lgkmcnt(0)")
    sm = []
    a_ = sm.append
    for ht in range(2):
        a_(f"v_max3_f32 v{MXR+ht}, v{40+ht*4}, v{41+ht*4}, v{42+ht*4}")
    for ht in range(2):
        a_(f"v_max_f32 v{MXR+ht}, v{MXR+ht}, v{43+ht*4}")
    LS = 34
    for kt in range(2):
        for ht in range(2):
            d = SC + (kt*2+ht)*4
            for r in range(4): a_(f"v_sub_f32 v{d+r}, v{d+r}, v{MXR+ht}")
    for kt in range(2):
        for ht in range(2):
            d = SC + (kt*2+ht)*4
            for r in range(4): a_(f"v_exp_f32 v{d+r}, v{d+r}")
    for kt in range(2):
        for ht in range(2):
            d = SC + (kt*2+ht)*4
            q = 88 + (kt*2+ht)*2
            a_(f"v_cvt_pk_bf16_f32 v{q}, v{d}, v{d+1}")
            a_(f"v_cvt_pk_bf16_f32 v{q+1}, v{d+2}, v{d+3}")
            a_(f"ds_write_b64 v{63 if kt else 59}, {vr(q,2)} offset:{L_P + 4096*ht}")
    for ht in range(2):
        a = SC + ht*4
        a_(f"v_add_f32 v{LS+ht}, v{a}, v{a+1}")
    for x in (2, 3, 8, 9, 10, 11):
        for ht in range(2):
            a_(f"v_add_f32 v{LS+ht}, v{LS+ht}, v{SC+ht*4+x}")
    xg_reduce2("v_add_f32", LS, LS+1, 46, 47, emit=a_)
    a_(f"v_cndmask_b32 v36, v{LS}, v{LS+1}, {sr(M_G1,2)}")
    a_(f"ds_write_b32 v56, v36 offset:{L_LP}")
    rest = trs[ntr0:]
    out = []
    k = 0
    for idx, ins in enumerate(sm):
        out.append(ins)
        want = (idx + 1) * len(rest) // (len(sm) - 4)
        while k < min(want, len(rest)):
            out.append(rest[k]); k += 1
    while k < len(rest): out.append(rest[k]); k += 1
    for ins in out: e(ins)
    e("s_waitcnt lgkmcnt(0)")
    e("s_barrier")
    G.stamp(6)
    PA, OC = 208, 128
    for ks in range(4):
        for ht in range(2):
            e(f"ds_read_b128 {vr(PA+(ht*4+ks)*4,4)}, v{120+ks} offset:{L_P + 4096*ht}")
    for w in range(4):
        e(f"ds_read_b32 v{240+w}, v57 offset:{L_LP + 128*w}")
    def mm(ks, t, ht):
        d = OC + (ht*8+t)*4
        c = "0" if ks == 0 else vr(d, 4)
        e(f"v_mfma_f32_16x16x32_bf16 {vr(d,4)}, {vr(PA+(ht*4+ks)*4,4)}, {ar((ks*8+t)*4,4)}, {c}")
    for ks in range(3):
        e(f"s_waitcnt lgkmcnt({4 + 2*(3-ks)})")
        for t in range(8):
            for ht in range(2): mm(ks, t, ht)
    e("s_waitcnt lgkmcnt(0)")
    for t in range(8): mm(3, t, 0)
    ST0 = 88
    cv = []
    for tp in range(4):
        for r in range(4):
            cv.append(f"v_cvt_pk_bf16_f32 v{ST0+4*r+tp}, v{OC+(2*tp)*4+r}, v{OC+(2*tp+1)*4+r}")
    for t in range(8):
        mm(3, t, 1)
        if t >= 1:
            e(cv[2*(t-1)]); e(cv[2*(t-1)+1])
    e(cv[14]); e(cv[15])
    G.stamp(7)
    for r in range(4):
        e(f"buffer_store_dwordx4 {vr(ST0+4*r,4)}, v124, {sr(SRD_WS,4)}, s34 offen offset:{r*256} sc1")
    e("v_add_f32 v240, v240, v241")
    e("v_add_f32 v242, v242, v243")
    e(f"v_cndmask_b32 v44, v{MXR}, v{MXR+1}, {sr(M_G1,2)}")
    e(f"v_mov_b32 v45, s{S_TAG}")
    e("v_add_f32 v46, v240, v242")
    e(f"v_mov_b32 v47, s{S_TAG}")
    nop(2)
    for r in range(4):
        for tp in range(4):
            e(f"v_cvt_pk_bf16_f32 v{ST0+16+4*r+tp}, v{OC+(8+2*tp)*4+r}, v{OC+(8+2*tp+1)*4+r}")
        e(f"buffer_store_dwordx4 {vr(ST0+16+4*r,4)}, v124, {sr(SRD_WS,4)}, s35 offen offset:{r*256} sc1")
    lo32()
    e("s_waitcnt vmcnt(0)")
    G.stamp(8)
    e(f"buffer_store_dwordx4 {vr(44,4)}, v125, {sr(SRD_WS,4)}, s36 offen sc1")
    e("s_mov_b64 exec, -1")
    G.stamp(9)
    e(f"s_cmp_ge_u32 s{S_A}, {NFFN}")
    e("s_cbranch_scc1 L_adone")
    W1L, W2L = L_CKV, L_CKV + 32768
    e(f"s_lshr_b32 s37, s{S_A}, 1")
    G.srd(SRD_1, P_W1, 1409024)
    G.srd(SRD_2, P_W3, 1409024)
    G.srd(SRD_3, P_W2, 1409024)
    e(f"v_lshrrev_b32 v64, 2, v{V_LANE}")
    e("v_mul_u32_u24 v64, 2752, v64")
    e(f"v_lshrrev_b32 v65, 5, v{V_LANE}")
    e("v_lshlrev_b32 v66, 1, v65")
    e(f"v_and_b32 v67, 3, v{V_LANE}")
    e("v_xor_b32 v67, v66, v67")
    e("v_lshl_add_u32 v64, v67, 4, v64")
    e("s_lshl_b32 s29, s39, 2")
    e(f"s_add_u32 s29, s29, s{S_W}")
    e(f"s_mul_i32 s29, s29, {64*2752}")
    e("s_lshl_b32 s28, s37, 6")
    e("s_add_u32 s29, s29, s28")
    e(f"s_lshl_b32 s31, s{S_W}, 12")
    for (srd, base) in ((SRD_1, W1L), (SRD_2, W1L + 16384)):
        for n in range(4):
            if n == 0: e("s_mov_b32 s30, s29")
            else: e(f"s_add_u32 s30, s29, {n*16*2752}")
            e(f"s_add_u32 m0, s31, {base + n*1024}")
            nop(1)
            e(f"buffer_load_dwordx4 v64, {sr(srd,4)}, s30 offen lds")
    e(f"v_and_b32 v67, 31, v{V_LANE}")
    e("v_xor_b32 v67, v67, v66")
    e(f"s_and_b32 s28, s{S_W}, 1")
    e("s_lshl_b32 s28, s28, 3")
    e("v_xor_b32 v67, s28, v67")
    e("v_lshlrev_b32 v67, 4, v67")
    e("v_lshl_add_u32 v67, v65, 10, v67")
    e("v_xor_b32 v68, 64, v67")
    e("s_lshl_b32 s29, s37, 5")
    e(f"s_lshl_b32 s28, s{S_W}, 3")
    e("s_add_u32 s29, s29, s28")
    e("s_lshl_b32 s29, s29, 10")
    e("s_lshl_b32 s28, s39, 9")
    e("s_add_u32 s29, s29, s28")
    for n in range(4):
        if n == 0: e("s_mov_b32 s30, s29")
        else: e(f"s_add_u32 s30, s29, {n*2048}")
        e(f"s_add_u32 m0, s31, {W2L + n*1024}")
        nop(1)
        e(f"buffer_load_dwordx4 v{68 if n & 1 else 67}, {sr(SRD_3,4)}, s30 offen{NTW} lds")
    e(f"v_bfe_u32 v17, v{V_LANE}, 2, 2")
    e(f"v_and_b32 v18, 3, v{V_LANE}")
    e(f"v_and_b32 v19, 1, v{V_G}")
    e(f"s_and_b32 s28, s{S_W}, 1")
    e("s_lshl_b32 s28, s28, 1")
    e("v_lshrrev_b32 v20, 1, v18")
    e("v_add_u32 v20, s28, v20")
    e("v_lshlrev_b32 v21, 1, v19")
    e("v_xor_b32 v20, v20, v21")
    e("v_lshlrev_b32 v20, 4, v20")
    e("v_and_b32 v21, 1, v18")
    e("v_lshl_add_u32 v20, v21, 3, v20")
    e(f"v_lshl_add_u32 v21, v{V_G}, 3, v17")
    e("v_lshl_add_u32 v20, v21, 6, v20")
    e(f"s_lshr_b32 s28, s{S_W}, 1")
    e("s_lshl_b32 s28, s28, 14")
    e(f"s_add_u32 s28, s28, {W1L}")
    e("v_add_u32 v20, s28, v20")
    FB_, GA = 128, 160
    e(f"s_lshl_b32 s34, s{S_A}, 2")
    e(f"s_add_u32 s34, s34, s{S_W}")
    e("s_lshl_b32 s34, s34, 8")
    e(f"s_add_u32 s34, s34, {WS_F1}")
    e(f"s_xor_b32 s35, s{S_A}, 1")
    e("s_lshl_b32 s35, s35, 2")
    e(f"s_add_u32 s35, s35, s{S_W}")
    e("s_lshl_b32 s35, s35, 8")
    e(f"s_add_u32 s35, s35, {WS_F1}")
    e(f"v_lshlrev_b32 v26, 4, v{V_L15}")
    e(f"v_mov_b32 v41, s{S_TAG}")
    e(f"v_mov_b32 v43, s{S_TAG}")
    e("s_waitcnt vmcnt(4)")
    e("s_barrier")
    for ks in range(8):
        for u in range(2):
            e(f"ds_read_b64_tr_b16 {vr(FB_+4*ks+2*u,2)}, v20 offset:{2048*ks + 256*u}")
    e("s_waitcnt lgkmcnt(0)")
    for ks in range(8):
        c = "0" if ks == 0 else vr(GA, 4)
        e(f"v_mfma_f32_16x16x32_bf16 {vr(GA,4)}, {ar(176+4*ks,4)}, {vr(FB_+4*ks,4)}, {c}")
    e("v_lshl_add_u32 v20, v19, 2, v17")
    e("v_lshlrev_b32 v20, 1, v20")
    e(f"s_lshl_b32 s28, s{S_W}, 3")
    e("v_xor_b32 v20, s28, v20")
    e(f"v_lshl_add_u32 v21, v{V_G}, 3, v17")
    e("v_lshlrev_b32 v21, 9, v21")
    e("v_lshrrev_b32 v22, 1, v18")
    e("v_lshl_add_u32 v21, v22, 4, v21")
    e("v_and_b32 v22, 1, v18")
    e("v_lshl_add_u32 v21, v22, 3, v21")
    e(f"v_add_u32 v21, {W2L}, v21")
    for t in range(4):
        e(f"v_xor_b32 v22, {2*t}, v20")
        e(f"v_lshl_add_u32 v{28+t}, v22, 4, v21")
    e(f"v_mov_b32 v40, v{GA}")
    e(f"v_mov_b32 v42, v{GA+1}")
    e("s_mov_b64 exec, 0xffff")
    e(f"buffer_store_dwordx4 {vr(40,4)}, v26, {sr(SRD_WS,4)}, s34 offen sc1")
    e("s_mov_b64 exec, -1")
    G.stamp(17)
    def ldF(b): e(f"buffer_load_dwordx4 {vr(b,4)}, v26, {sr(SRD_WS,4)}, s35 offen sc1")
    poll(ldF, 44, 4, [1, 3], [224, 228, 232], 1, G.sl_unit, 34)
    G.stamp(18)
    e(f"v_add_f32 v{GA}, v{GA}, v44")
    e(f"v_add_f32 v{GA+1}, v{GA+1}, v46")
    e(f"v_and_b32 v23, 1, v{V_G}")
    e("v_lshlrev_b32 v23, 7, v23")
    e(f"v_lshl_add_u32 v23, v{V_L15}, 2, v23")
    e(f"v_cndmask_b32 v22, v{GA}, v{GA+1}, {sr(M_G1,2)}")
    e(f"s_lshr_b32 s28, s{S_W}, 1")
    e("s_lshl_b32 s28, s28, 8")
    e(f"s_and_b32 s29, s{S_W}, 1")
    e("s_lshl_b32 s29, s29, 6")
    e("s_add_u32 s28, s28, s29")
    e("v_add_u32 v23, s28, v23")
    e(f"ds_write_b32 v23, v22 offset:{L_GU}")
    e("s_waitcnt lgkmcnt(0)")
    e("s_barrier")
    e(f"v_lshlrev_b32 v23, 2, v{V_LANE}")
    e(f"ds_read_b32 v24, v23 offset:{L_GU}")
    e(f"ds_read_b32 v25, v23 offset:{L_GU+256}")
    for t in range(4):
        for u in range(2):
            e(f"ds_read_b64_tr_b16 {vr(FB_+4*t+2*u,2)}, v{28+t} offset:{2048*u}")
    e(f"v_mul_u32_u24 v20, {FP_S*256}, v{V_G}")
    e(f"v_lshl_add_u32 v20, v{V_L15}, 4, v20")
    e("s_lshl_b32 s28, s39, 2")
    e(f"s_add_u32 s28, s28, s{S_W}")
    e(f"s_mul_i32 s28, s28, {4*FP_S*256}")
    e("s_lshl_b32 s29, s37, 8")
    e("s_add_u32 s28, s28, s29")
    e(f"s_add_u32 s28, s28, {WS_FP}")
    e("s_waitcnt lgkmcnt(8)")
    rbf(24); rbf(25)
    e("v_mul_f32 v26, 0xbfb8aa3b, v24")
    e("v_exp_f32 v26, v26")
    e(f"v_lshlrev_b32 v23, 1, v{V_LANE}")
    e("v_add_f32 v26, 1.0, v26")
    e("v_rcp_f32 v26, v26")
    e(f"v_and_b32 v21, 1, v{V_LANE}")
    e("v_mul_f32 v26, v24, v26")
    rbf(26)
    e("v_mul_f32 v26, v26, v25")
    e("v_cvt_pk_bf16_f32 v26, v26, v26")
    e(f"ds_write_b16 v23, v26 offset:{L_H}")
    e("v_lshlrev_b32 v21, 6, v21")
    e(f"v_lshl_add_u32 v21, v{V_G}, 4, v21")
    e("s_waitcnt lgkmcnt(0)")
    FA, DA = 96, 100
    e(f"ds_read_b128 {vr(FA,4)}, v21 offset:{L_H}")
    e(f"v_mov_b32 v37, s{S_TAG}")
    e(f"v_mov_b32 v39, s{S_TAG}")
    e("s_waitcnt lgkmcnt(0)")
    for t in range(4):
        e(f"v_mfma_f32_16x16x32_bf16 {vr(DA+4*t,4)}, {vr(FA,4)}, {vr(FB_+4*t,4)}, 0")
    nop(9)
    for rr in range(2):
        e(f"v_cndmask_b32 v32, v{DA+rr}, v{DA+4+rr}, {sr(M_G1,2)}")
        e(f"v_cndmask_b32 v33, v{DA+8+rr}, v{DA+12+rr}, {sr(M_G1,2)}")
        e(f"v_cndmask_b32 v{36+2*rr}, v32, v33, {sr(M_HI,2)}")
    e(f"buffer_store_dwordx4 {vr(36,4)}, v20, {sr(SRD_WS,4)}, s28 offen sc1")
    G.stamp(10)
    lab("L_adone")
    store_stamps()
    lab("L_end")
    e("s_endpgm")

    tail = []
    if prepost:
        for nm, off, spin in (("pre_kernel", 0x900000, 400), ("post_kernel", 0x900100, 0)):
            tail += [f".globl {nm}", ".p2align 8", f".type {nm},@function", f"{nm}:",
                     "  s_memrealtime s[10:11]",
                     "  s_cmp_ge_u32 s2, 1", f"  s_cbranch_scc1 L_{nm}_end",
                     "  s_load_dwordx2 s[4:5], s[0:1], 96"]
            if spin:
                tail += [f"  s_mov_b32 s6, {spin}", f"L_{nm}_sp:", "  s_sleep 8", "  s_sub_u32 s6, s6, 1", "  s_cmp_lg_u32 s6, 0", f"  s_cbranch_scc1 L_{nm}_sp",
                         "  s_memrealtime s[10:11]"]
            tail += ["  s_waitcnt lgkmcnt(0)", "  s_mov_b32 s12, s4", "  s_and_b32 s13, s5, 0xffff", "  s_mov_b32 s14, 0x10000000", "  s_mov_b32 s15, 0x20000",
                     "  v_mov_b32 v1, s10", f"  v_mov_b32 v2, {off}", "  s_mov_b64 exec, 1",
                     "  buffer_store_dword v1, v2, s[12:15], 0 offen", "  s_waitcnt vmcnt(0)", f"L_{nm}_end:", "  s_endpgm"]
        tail.append('.section .rodata,"a"')
        for nm in ("pre_kernel", "post_kernel"):
            tail += [".p2align 6", f".amdhsa_kernel {nm}", "  .amdhsa_next_free_vgpr 32",
                 "  .amdhsa_next_free_sgpr 24", "  .amdhsa_accum_offset 32", "  .amdhsa_group_segment_fixed_size 0",
                 "  .amdhsa_kernarg_size 104", "  .amdhsa_user_sgpr_count 2", "  .amdhsa_user_sgpr_kernarg_segment_ptr 1",
                 "  .amdhsa_system_sgpr_workgroup_id_x 1", ".end_amdhsa_kernel"]
    if extra_empty:
        tail += [".globl empty_kernel", ".p2align 8", ".type empty_kernel,@function", "empty_kernel:", "  s_endpgm"]
        tail += ['.section .rodata,"a"', ".p2align 6", ".amdhsa_kernel empty_kernel", "  .amdhsa_next_free_vgpr 32",
                 "  .amdhsa_next_free_sgpr 16", "  .amdhsa_accum_offset 32", "  .amdhsa_group_segment_fixed_size 0",
                 "  .amdhsa_kernarg_size 104", "  .amdhsa_user_sgpr_count 2", "  .amdhsa_user_sgpr_kernarg_segment_ptr 1",
                 "  .amdhsa_system_sgpr_workgroup_id_x 1", ".end_amdhsa_kernel"]
    tail.append('.section .rodata,"a"')
    tail.append(".p2align 6")
    tail.append(f".amdhsa_kernel {NAME}_kernel")
    tail.append("  .amdhsa_next_free_vgpr 464")
    tail.append("  .amdhsa_next_free_sgpr 102")
    tail.append("  .amdhsa_accum_offset 256")
    tail.append("  .amdhsa_group_segment_fixed_size 0")
    tail.append("  .amdhsa_kernarg_size 104")
    tail.append("  .amdhsa_user_sgpr_count 2")
    tail.append("  .amdhsa_user_sgpr_kernarg_segment_ptr 1")
    tail.append("  .amdhsa_system_sgpr_workgroup_id_x 1")
    tail.append(".end_amdhsa_kernel")
    for ln in G.L:
        if "buffer_" in ln:
            m = re.search(r"offset:(\d+)", ln)
            assert not m or int(m.group(1)) <= 4095, ln
    return "\n".join(hdr + G.L + tail) + "\n"

if __name__ == "__main__":
    import argparse
    ap = argparse.ArgumentParser()
    ap.add_argument("-o", default=f"cdna_kernels/{NAME}.s")
    ap.add_argument("--stamps", action="store_true")
    ap.add_argument("--extra-empty", type=int, default=0)
    ap.add_argument("--prepost", action="store_true")
    ap.add_argument("--set", action="append", default=[], help="key=value generator option")
    a = ap.parse_args()
    kw = {}
    for s_ in a.set:
        k, v = s_.split("=")
        kw[k] = int(v) if re.fullmatch(r"-?\d+", v) else v
    s = build(stamps=a.stamps, extra_empty=a.extra_empty, prepost=a.prepost, **kw)
    open(a.o, "w").write(s)
    print("wrote", a.o, len(s), "bytes")
```

```python
import sys, math, struct, re
NAME = "parallel_sum__compressed_kv_cla__glu_gated_swiglu__decode"

WS_EPOCH = 0x0
WS_FB    = 0x1000
WS_F1    = 0x8000
WS_F1F   = 0x640000
WS_QP    = 0x20000
WS_QA    = 0x60000
WS_CP    = 0x70000
WS_EP    = 0xB0000
WS_FP    = 0xF0000
WS_SU    = 0x150000
WS_QPF   = 0x190000
WS_CPF   = 0x600000
WS_CF    = 0x1D0000
WS_OP    = 0x200000
WS_STAMP = 0x800000
FP_S = 48
NFFN = 86

R0, R1, R2 = 8192, 40960, 73728
L_XN  = 0
L_AVQ = 2048
L_AVO = L_AVQ + 512
L_AVC = L_AVO + 512
L_WGT = L_AVC + 512
L_QS  = L_WGT + 512
L_FIN = L_QS + 512
L_GUW = L_FIN + 512
L_HW = L_GUW + 512
L_CKV = 32768
L_QAL = 0
L_MX  = 0
L_LP  = 512
L_P   = 4096
L_GU  = 16384
L_H   = 16384 + 512
LDS_BYTES = 163840

P_X, P_CKV, P_WQ, P_WUK, P_WUV, P_WO, P_BX, P_W1, P_W3, P_W2, P_OUT, P_DBG, P_WS = 64, 66, 68, 70, 72, 74, 76, 78, 80, 82, 84, 86, 88
S_W, S_H, S_I, S_TAG = 3, 4, 5, 6
SRD_WS, SRD_1, SRD_2, SRD_3, SRD_4 = 8, 12, 16, 20, 24
M_G1, M_HI = 44, 46
V_LANE, V_L15, V_G, V_L16B, V_SW, V_TL0, V_TL1 = 1, 2, 3, 4, 5, 6, 7

def vr(a, n): return f"v[{a}:{a+n-1}]"
def ar(a, n): return f"a[{a}:{a+n-1}]"
def sr(a, n): return f"s[{a}:{a+n-1}]"
def fbits(x): return hex(struct.unpack("<I", struct.pack("<f", x))[0])

class Gen:
    def __init__(self, **kw):
        d = dict(stamps=False, nt_ckv=True, nt_w=True, spin=200000, thr_n=4, thr_w=3, thr2_w=0,
                 gate='N', depth=3, sl_unit=1, sl_flag=2, uk_late=1, fast_k=6)
        d.update(kw)
        self.__dict__.update(d)
        self.L = []
        self.nlab = 0
    def e(self, s): self.L.append("  " + s)
    def lab(self, s): self.L.append(s + ":")
    def newlab(self, p):
        self.nlab += 1
        return f"L_{p}_{self.nlab}"
    def nop(self, n):
        while n > 0:
            k = min(n, 16)
            self.e(f"s_nop {k-1}")
            n -= k
    def stamp(self, idx):
        if not self.stamps: return
        self.e("s_memrealtime s[40:41]")
        self.e("s_waitcnt lgkmcnt(0)")
        self.e(f"v_writelane_b32 v255, s40, {idx}")
    def stampval(self, idx, sreg):
        if not self.stamps: return
        self.e(f"v_writelane_b32 v255, s{sreg}, {idx}")
    def srd(self, dst, ptr, size):
        self.e(f"s_mov_b32 s{dst}, s{ptr}")
        self.e(f"s_and_b32 s{dst+1}, s{ptr+1}, 0xffff")
        self.e(f"s_mov_b32 s{dst+2}, {size}")
        self.e(f"s_mov_b32 s{dst+3}, 0x20000")

def build(extra_empty=0, prepost=False, **kw):
    G = Gen(**kw)
    e, lab, nop = G.e, G.lab, G.nop
    NTW = " nt" if G.nt_w else ""
    NTC = " nt" if G.nt_ckv else ""
    hdr = []
    if prepost:
        hdr.append(f"; @launch kernel=pre_kernel grid=(256,1,1) block=(64,1,1) lds=0")
        hdr.append(f"; @launch kernel={NAME}_kernel grid=(256,1,1) block=(256,1,1) lds={LDS_BYTES}")
        hdr.append(f"; @launch kernel=post_kernel grid=(256,1,1) block=(64,1,1) lds=0")
    elif extra_empty:
        hdr.append(f"; @launch kernel={NAME}_kernel grid=(256,1,1) block=(256,1,1) lds={LDS_BYTES}")
        for _ in range(extra_empty):
            hdr.append(f"; @launch kernel=empty_kernel grid=(256,1,1) block=(256,1,1) lds=0")
    else:
        hdr.append(f"; @launch grid=(256,1,1) block=(256,1,1) lds={LDS_BYTES}")
    hdr.append('.amdgcn_target "amdgcn-amd-amdhsa--gfx950"')
    hdr.append(".text")
    hdr.append(f".globl {NAME}_kernel")
    hdr.append(".p2align 8")
    hdr.append(f".type {NAME}_kernel,@function")
    hdr.append(f"{NAME}_kernel:")

    def lo32():
        e("s_mov_b32 exec_lo, -1"); e("s_mov_b32 exec_hi, 0")
    def check_tags(tagregs):
        first = True
        for k in range(0, len(tagregs), 2):
            a = tagregs[k]; b = tagregs[k+1] if k + 1 < len(tagregs) else tagregs[k]
            e(f"v_xor_b32 v61, s{S_TAG}, v{a}")
            e(f"v_xor_b32 v62, s{S_TAG}, v{b}")
            if first:
                e("v_or_b32 v60, v61, v62"); first = False
            else:
                e("v_or3_b32 v60, v60, v61, v62")
        e("v_cmp_ne_u32 vcc, 0, v60")
    def poll(mk_loads, base, nregs, tagoffs, ring, nld, sleep, cnt_idx=None):
        ring = ring[:G.depth]
        D = len(ring)
        lp, done = G.newlab("poll"), G.newlab("pdone")
        e(f"s_mov_b32 s48, {G.spin}")
        mk = mk_loads if isinstance(mk_loads, (list, tuple)) else [mk_loads] * D
        for k in range(D - 1):
            mk[k](ring[k])
            if sleep: e(f"s_sleep {sleep}")
        exits = [G.newlab("pexit") for _ in range(D)]
        lab(lp)
        for k in range(D):
            mk[(k + D - 1) % D](ring[(k + D - 1) % D])
            e(f"s_waitcnt vmcnt({(D-1)*nld})")
            check_tags([ring[k] + o for o in tagoffs])
            e(f"s_cbranch_vccz {exits[k]}")
            if sleep: e(f"s_sleep {sleep}")
        e("s_sub_u32 s48, s48, 1")
        e(f"s_cbranch_scc0 {lp}")
        for k in range(D):
            lab(exits[k])
            for r in range(nregs): e(f"v_mov_b32 v{base+r}, v{ring[k]+r}")
            if k < D - 1: e(f"s_branch {done}")
        lab(done)
        if cnt_idx is not None: G.stampval(cnt_idx, 48)
    def dual_poll(ld_fast, ld_slow, slow_store, base, nregs, tagoffs, ring, nld, cnt_idx):
        lp, x0, x1, done = G.newlab("fp"), G.newlab("fx0"), G.newlab("fx1"), G.newlab("fdone")
        r0, r1 = ring[0], ring[1]
        e(f"s_mov_b32 s49, {G.fast_k}")
        ld_fast(r0)
        lab(lp)
        for (a, b, x) in ((r0, r1, x0), (r1, r0, x1)):
            ld_fast(b)
            e(f"s_waitcnt vmcnt({nld})")
            check_tags([a + o for o in tagoffs])
            e(f"s_cbranch_vccz {x}")
        e("s_sub_u32 s49, s49, 1")
        e(f"s_cbranch_scc0 {lp}")
        slow_store()
        poll([ld_fast, ld_slow, ld_slow], base, nregs, tagoffs, ring, nld, G.sl_unit, cnt_idx)
        e(f"s_branch {done}")
        for (a, x) in ((r0, x0), (r1, x1)):
            lab(x)
            for r in range(nregs): e(f"v_mov_b32 v{base+r}, v{a+r}")
            slow_store()
            if x == x0: e(f"s_branch {done}")
        lab(done)
        G.stampval(cnt_idx + 10, 49)
    def dma_tile128(srd, v0, v1, soff_fn, lds_base, flags):
        e(f"s_lshl_b32 s31, s{S_W}, 13")
        for n in range(8):
            soff_fn(n)
            e(f"s_add_u32 m0, s31, {lds_base + n*1024}")
            v = v1 if (n >> 1) & 1 else v0
            nop(1)
            e(f"buffer_load_dwordx4 v{v}, {sr(srd,4)}, s30 offen{flags} lds")
    def lin(step):
        def f(n):
            if n == 0: e("s_mov_b32 s30, s29")
            else: e(f"s_add_u32 s30, s29, {n*step}")
        return f
    def gemv_loadB(base, vB, tmp0, tmp1):
        if base + 3*8192 + 1024 <= 65535:
            a0, a1, off = V_TL0, V_TL1, base
        else:
            e(f"v_add_u32 v{tmp0}, {base}, v{V_TL0}")
            e(f"v_add_u32 v{tmp1}, {base}, v{V_TL1}")
            a0, a1, off = tmp0, tmp1, 0
        for ks in range(4):
            for t in range(2):
                for u in range(2):
                    r = vB + (t*4 + ks)*4 + 2*u
                    e(f"ds_read_b64_tr_b16 {vr(r,2)}, v{a1 if t else a0} offset:{off + 8192*ks + 1024*u}")
    def gemv_loadA(vaddr, vA, off=0):
        for ks in range(4):
            e(f"ds_read_b128 {vr(vA+4*ks,4)}, v{vaddr} offset:{off + 64*ks}")
    def gemv_mma(vA, vB, vC):
        for ks in range(4):
            for t in range(2):
                c = "0" if ks == 0 else vr(vC+4*t, 4)
                e(f"v_mfma_f32_16x16x32_bf16 {vr(vC+4*t,4)}, {vr(vA+4*ks,4)}, {vr(vB+(t*4+ks)*4,4)}, {c}")
        nop(9)
    def sel_tb(vC, d0, d1):
        e(f"v_cndmask_b32 v{d0}, v{vC}, v{vC+4}, {sr(M_G1,2)}")
        e(f"v_cndmask_b32 v{d1}, v{vC+1}, v{vC+5}, {sr(M_G1,2)}")
    def publish_units(vC, voff, soff, q, fast=False):
        sel_tb(vC, q, q+2)
        lo32()
        e(f"buffer_store_dwordx4 {vr(q,4)}, v{voff}, {sr(SRD_WS,4)}, s{soff} offen" + ("" if fast else " sc1"))
        e("s_mov_b64 exec, -1")
    def wave_red(op, v, tmp):
        for r in (8, 4, 2, 1):
            nop(2)
            e(f"{op}_dpp v{v}, v{v}, v{v} row_ror:{r} row_mask:0xf bank_mask:0xf")
        e(f"v_mov_b32 v{tmp}, v{v}")
        nop(2)
        e(f"v_permlane16_swap_b32 v{v}, v{tmp}")
        nop(1)
        e(f"{op} v{v}, v{v}, v{tmp}")
        e(f"v_mov_b32 v{tmp}, v{v}")
        nop(2)
        e(f"v_permlane32_swap_b32 v{v}, v{tmp}")
        nop(1)
        e(f"{op} v{v}, v{v}, v{tmp}")
    def xg_reduce2(op, va, vb, ta, tb, emit=None):
        em = emit or e
        for perm in ("v_permlane16_swap_b32", "v_permlane32_swap_b32"):
            em(f"v_mov_b32 v{ta}, v{va}")
            em(f"v_mov_b32 v{tb}, v{vb}")
            em("s_nop 0")
            em(f"{perm} v{va}, v{ta}")
            em(f"{perm} v{vb}, v{tb}")
            em("s_nop 0")
            em(f"{op} v{va}, v{va}, v{ta}")
            em(f"{op} v{vb}, v{vb}, v{tb}")
    def wave_red2(op, va, vb, ta, tb):
        for r in (8, 4, 2, 1):
            nop(1)
            e(f"{op}_dpp v{va}, v{va}, v{va} row_ror:{r} row_mask:0xf bank_mask:0xf")
            e(f"{op}_dpp v{vb}, v{vb}, v{vb} row_ror:{r} row_mask:0xf bank_mask:0xf")
        xg_reduce2(op, va, vb, ta, tb)
    def rbf(v):
        e(f"v_cvt_pk_bf16_f32 v{v}, v{v}, v{v}")
        e(f"v_lshlrev_b32 v{v}, 16, v{v}")
    def layernorm(X0, X1, F0, F1, T, OUT):
        S0, S1, T0, T1, Q0, Q1, U0, U1 = range(T, T+8)
        for (X, F) in ((X0, F0), (X1, F1)):
            for k in range(4):
                e(f"v_lshlrev_b32 v{F+2*k}, 16, v{X+k}")
                e(f"v_and_b32 v{F+2*k+1}, 0xffff0000, v{X+k}")
        e(f"v_add_f32 v{S0}, v{F0}, v{F0+1}"); e(f"v_add_f32 v{S1}, v{F1}, v{F1+1}")
        for k in range(2, 8):
            e(f"v_add_f32 v{S0}, v{S0}, v{F0+k}"); e(f"v_add_f32 v{S1}, v{S1}, v{F1+k}")
        wave_red2("v_add_f32", S0, S1, T0, T1)
        e("s_mov_b32 s28, 0x3b000000")
        e(f"v_mul_f32 v{S0}, s28, v{S0}")
        e(f"v_mul_f32 v{S1}, s28, v{S1}")
        for k in range(8):
            e(f"v_sub_f32 v{U0}, v{F0+k}, v{S0}")
            e(f"v_sub_f32 v{U1}, v{F1+k}, v{S1}")
            if k == 0:
                e(f"v_mul_f32 v{Q0}, v{U0}, v{U0}"); e(f"v_mul_f32 v{Q1}, v{U1}, v{U1}")
            else:
                e(f"v_fmac_f32 v{Q0}, v{U0}, v{U0}"); e(f"v_fmac_f32 v{Q1}, v{U1}, v{U1}")
        wave_red2("v_add_f32", Q0, Q1, T0, T1)
        e("s_mov_b32 s29, 0x3727c5ac")
        def both(f): f(Q0, S0); f(Q1, S1)
        both(lambda Q, S: e(f"v_mul_f32 v{Q}, s28, v{Q}"))
        both(lambda Q, S: e(f"v_cvt_pk_bf16_f32 v{Q}, v{Q}, v{Q}"))
        both(lambda Q, S: e(f"v_lshlrev_b32 v{Q}, 16, v{Q}"))
        both(lambda Q, S: e(f"v_add_f32 v{Q}, s29, v{Q}"))
        both(lambda Q, S: e(f"v_cvt_pk_bf16_f32 v{Q}, v{Q}, v{Q}"))
        both(lambda Q, S: e(f"v_lshlrev_b32 v{Q}, 16, v{Q}"))
        both(lambda Q, S: e(f"v_sqrt_f32 v{Q}, v{Q}"))
        both(lambda Q, S: e(f"v_cvt_pk_bf16_f32 v{S}, v{S}, v{S}"))
        both(lambda Q, S: e(f"v_cvt_pk_bf16_f32 v{Q}, v{Q}, v{Q}"))
        both(lambda Q, S: e(f"v_lshlrev_b32 v{S}, 16, v{S}"))
        both(lambda Q, S: e(f"v_lshlrev_b32 v{Q}, 16, v{Q}"))
        both(lambda Q, S: e(f"v_rcp_f32 v{Q}, v{Q}"))
        for (F, S, Q, XB) in ((F0, S0, Q0, 0), (F1, S1, Q1, 1)):
            for k in range(0, 8, 2):
                e(f"v_sub_f32 v{F+k}, v{F+k}, v{S}")
                e(f"v_sub_f32 v{F+k+1}, v{F+k+1}, v{S}")
                e(f"v_cvt_pk_bf16_f32 v{U0}, v{F+k}, v{F+k+1}")
                e(f"v_lshlrev_b32 v{F+k}, 16, v{U0}")
                e(f"v_and_b32 v{F+k+1}, 0xffff0000, v{U0}")
                e(f"v_mul_f32 v{F+k}, v{F+k}, v{Q}")
                e(f"v_mul_f32 v{F+k+1}, v{F+k+1}, v{Q}")
                e(f"v_cvt_pk_bf16_f32 v{OUT+XB*4+k//2}, v{F+k}, v{F+k+1}")
    def layernorm1(X, F, T, OUT):
        S, Q, T0, T1, U, C = range(T, T+6)
        for k in range(4):
            e(f"v_lshlrev_b32 v{F+2*k}, 16, v{X+k}")
            e(f"v_and_b32 v{F+2*k+1}, 0xffff0000, v{X+k}")
        e(f"v_readfirstlane_b32 s28, v{F}")
        nop(2)
        for k in range(8): e(f"v_subrev_f32 v{F+k}, s28, v{F+k}")
        e(f"v_add_f32 v{S}, v{F}, v{F+1}")
        e(f"v_mul_f32 v{Q}, v{F}, v{F}")
        e(f"v_fmac_f32 v{Q}, v{F+1}, v{F+1}")
        for k in range(2, 8):
            e(f"v_add_f32 v{S}, v{S}, v{F+k}")
            e(f"v_fmac_f32 v{Q}, v{F+k}, v{F+k}")
        wave_red2("v_add_f32", S, Q, T0, T1)
        e("s_mov_b32 s29, 0x3b000000")
        e(f"v_mul_f32 v{S}, s29, v{S}")
        e(f"v_mul_f32 v{Q}, s29, v{Q}")
        e(f"v_fma_f32 v{Q}, -v{S}, v{S}, v{Q}")
        e(f"v_add_f32 v{U}, s28, v{S}")
        e(f"v_max_f32 v{Q}, 0, v{Q}")
        e(f"v_cvt_pk_bf16_f32 v{U}, v{U}, v{U}")
        e(f"v_cvt_pk_bf16_f32 v{Q}, v{Q}, v{Q}")
        e(f"v_lshlrev_b32 v{U}, 16, v{U}")
        e(f"v_lshlrev_b32 v{Q}, 16, v{Q}")
        e("s_mov_b32 s29, 0x3727c5ac")
        e(f"v_add_f32 v{Q}, s29, v{Q}")
        e(f"v_subrev_f32 v{U}, s28, v{U}")
        e(f"v_cvt_pk_bf16_f32 v{Q}, v{Q}, v{Q}")
        e(f"v_lshlrev_b32 v{Q}, 16, v{Q}")
        e(f"v_sqrt_f32 v{Q}, v{Q}")
        for k in range(4): e(f"v_sub_f32 v{F+k}, v{F+k}, v{U}")
        e(f"v_cvt_pk_bf16_f32 v{Q}, v{Q}, v{Q}")
        for k in range(4, 8): e(f"v_sub_f32 v{F+k}, v{F+k}, v{U}")
        e(f"v_lshlrev_b32 v{Q}, 16, v{Q}")
        e(f"v_rcp_f32 v{Q}, v{Q}")
        for k in range(0, 8, 2):
            e(f"v_cvt_pk_bf16_f32 v{OUT+k//2}, v{F+k}, v{F+k+1}")
        for k in range(0, 8, 2):
            e(f"v_lshlrev_b32 v{F+k}, 16, v{OUT+k//2}")
            e(f"v_and_b32 v{F+k+1}, 0xffff0000, v{OUT+k//2}")
        for k in range(8): e(f"v_mul_f32 v{F+k}, v{F+k}, v{Q}")
        for k in range(0, 8, 2):
            e(f"v_cvt_pk_bf16_f32 v{OUT+k//2}, v{F+k}, v{F+k+1}")
    def store_stamps():
        if not G.stamps: return
        e("s_getreg_b32 s30, hwreg(HW_REG_XCC_ID)")
        e("v_writelane_b32 v255, s30, 40")
        e(f"s_lshl_b32 s30, s2, 2")
        e(f"s_add_u32 s30, s30, s{S_W}")
        e(f"s_lshl_b32 s30, s30, 8")
        e(f"s_add_u32 s30, s30, {WS_STAMP}")
        e(f"v_lshlrev_b32 v60, 2, v{V_LANE}")
        e(f"buffer_store_dword v255, v60, {sr(SRD_WS,4)}, s30 offen")

    e("s_cmp_ge_u32 s2, 256")
    e("s_cbranch_scc1 L_end")
    if G.stamps:
        e("v_mov_b32 v255, 0")
        e("s_memrealtime s[40:41]")
    e(f"s_load_dwordx16 s[64:79], s[0:1], 0")
    e(f"s_load_dwordx8 s[80:87], s[0:1], 64")
    e(f"s_load_dwordx2 s[88:89], s[0:1], 96")
    e(f"v_and_b32 v{V_LANE}, 63, v0")
    e(f"v_lshrrev_b32 v8, 6, v0")
    e(f"v_and_b32 v{V_L15}, 15, v0")
    e(f"v_readfirstlane_b32 s{S_W}, v8")
    e(f"v_lshrrev_b32 v{V_G}, 4, v{V_LANE}")
    e(f"v_lshlrev_b32 v{V_L16B}, 4, v{V_LANE}")
    e(f"s_mov_b32 s{M_G1}, 0xffff0000"); e(f"s_mov_b32 s{M_G1+1}, 0xffff0000")
    e(f"s_mov_b32 s{M_HI}, 0"); e(f"s_mov_b32 s{M_HI+1}, -1")
    e("s_cmp_ge_u32 s2, 128")
    e("s_cbranch_scc1 L_att")

    V_AVW, V_AVR, V_PUB, VD0, VD1 = 56, 57, 55, 58, 59
    RING8 = [224, 232, 240]
    RING4 = [224, 228, 232]
    PUBQ = 48
    e(f"v_lshlrev_b32 v8, 1, v{V_G}")
    e(f"v_xor_b32 v8, v8, v{V_L15}")
    e(f"v_lshlrev_b32 v{V_SW}, 4, v8")
    e("s_and_b32 s28, s2, 7")
    e("s_lshl_b32 s28, s28, 2")
    e("s_bfe_u32 s29, s2, 0x20003")
    e(f"s_add_u32 s{S_H}, s28, s29")
    e(f"s_lshr_b32 s{S_I}, s2, 5")
    e(f"v_lshl_add_u32 v{VD0}, v{V_G}, 13, v{V_SW}")
    e(f"v_xor_b32 v{VD1}, 128, v{VD0}")
    e(f"s_lshl_b32 s29, s{S_I}, 7")
    e(f"s_lshl_b32 s28, s{S_W}, 5")
    e("s_add_u32 s29, s29, s28")
    e("s_lshl_b32 s29, s29, 13")
    e(f"s_lshl_b32 s28, s{S_H}, 8")
    e("s_add_u32 s29, s29, s28")
    e("s_waitcnt lgkmcnt(0)")
    if G.stamps: e("v_writelane_b32 v255, s40, 0")
    G.srd(SRD_1, P_X, 2048)
    G.srd(SRD_2, P_WQ, 4194304)
    X0, X1 = 8, 12
    e(f"s_lshr_b32 s37, s{S_W}, 1")
    e("s_lshl_b32 s37, s37, 10")
    e(f"buffer_load_dwordx4 {vr(X0,4)}, v{V_L16B}, {sr(SRD_1,4)}, s37 offen")
    dma_tile128(SRD_2, VD0, VD1, lin(4*8192), R0, NTW)
    e(f"s_load_dword s{S_TAG}, {sr(P_WS,2)}, {WS_EPOCH}")
    G.srd(SRD_3, P_WUK, 4194304)
    dma_tile128(SRD_3, VD0, VD1, lin(4*8192), R1, NTW)
    G.srd(SRD_WS, P_WS, 0x10000000)
    e(f"s_lshl_b32 s32, s{S_H}, 2")
    e(f"s_add_u32 s32, s32, s{S_W}")
    e("s_lshl_b32 s32, s32, 11")
    for reg in (WS_QPF, WS_QP):
        e(f"s_add_u32 s28, s32, {reg}")
        e(f"buffer_load_dwordx4 {vr(232,4)}, v{V_L16B}, {sr(SRD_WS,4)}, s28 offen sc1")
        e(f"buffer_load_dwordx4 {vr(236,4)}, v{V_L16B}, {sr(SRD_WS,4)}, s28 offen offset:1024 sc1")
    e(f"v_bfe_u32 v17, v{V_LANE}, 2, 2")
    e(f"v_and_b32 v18, 3, v{V_LANE}")
    e(f"v_and_b32 v19, 1, v{V_G}")
    e("v_lshl_add_u32 v20, v19, 2, v17")
    e("v_lshlrev_b32 v20, 1, v20")
    e(f"s_lshl_b32 s28, s{S_W}, 2")
    e("v_xor_b32 v20, s28, v20")
    e("v_lshrrev_b32 v21, 1, v18")
    e("v_add_u32 v20, v20, v21")
    e("v_lshlrev_b32 v20, 4, v20")
    e("v_and_b32 v21, 1, v18")
    e("v_lshl_add_u32 v20, v21, 3, v20")
    e(f"v_lshl_add_u32 v21, v{V_G}, 3, v17")
    e(f"v_lshl_add_u32 v{V_TL0}, v21, 8, v20")
    e(f"v_xor_b32 v{V_TL1}, 32, v{V_TL0}")
    e(f"v_lshrrev_b32 v20, 1, v{V_G}")
    e("v_lshlrev_b32 v20, 8, v20")
    e(f"v_lshl_add_u32 v21, v19, 4, v{V_L15}")
    e(f"s_lshl_b32 s28, s{S_W}, 5")
    e("v_add_u32 v21, s28, v21")
    e(f"v_lshl_add_u32 v{V_AVW}, v21, 1, v20")
    e(f"v_and_b32 v20, 1, v{V_LANE}")
    e("v_lshlrev_b32 v20, 8, v20")
    e(f"v_lshl_add_u32 v{V_AVR}, v{V_G}, 4, v20")
    e(f"v_lshlrev_b32 v{V_PUB}, 4, v{V_L15}")
    e(f"v_lshl_add_u32 v{V_PUB}, v{V_G}, 10, v{V_PUB}")
    e(f"s_lshl_b32 s32, s{S_H}, 2")
    e(f"s_add_u32 s32, s32, s{S_W}")
    e("s_lshl_b32 s32, s32, 11")
    e(f"s_lshl_b32 s33, s{S_I}, 8")
    e("s_add_u32 s33, s33, s32")
    e(f"v_and_b32 v52, 1, v{V_LANE}")
    e("v_lshlrev_b32 v52, 10, v52")
    e(f"v_lshl_add_u32 v52, v{V_G}, 4, v52")
    e(f"s_lshl_b32 s28, s{S_I}, 8")
    e(f"s_add_u32 s28, s28, {L_XN}")
    e("v_add_u32 v52, s28, v52")
    e(f"v_and_b32 v22, 3, v{V_LANE}")
    e(f"v_bfe_u32 v23, v{V_LANE}, 3, 1")
    e("v_lshl_add_u32 v22, v23, 2, v22")
    e("v_lshlrev_b32 v22, 1, v22")
    e(f"v_xor_b32 v22, v22, v{V_G}")
    e(f"v_lshlrev_b32 v23, 8, v{V_L15}")
    e(f"s_lshl_b32 s28, s{S_W}, 13")
    e(f"s_add_u32 s28, s28, {R1}")
    e("v_add_u32 v23, s28, v23")
    for ks in range(4):
        e(f"v_xor_b32 v24, {4*ks}, v22")
        e(f"v_lshl_add_u32 v{248+ks}, v24, 4, v23")
    G.stamp(1)
    e("s_waitcnt vmcnt(20)")
    layernorm1(X0, 16, 24, 40)
    e(f"v_add_u32 v30, s37, v{V_L16B}")
    e(f"ds_write_b128 v30, {vr(40,4)} offset:{L_XN}")
    G.stamp(2)
    e("s_waitcnt vmcnt(12) lgkmcnt(0)")
    e("s_barrier")
    G.stamp(3)
    VA, VB, VC, WUK = 96, 112, 144, 64
    gemv_loadA(52, VA)
    gemv_loadB(R0, VB, 21, 22)
    e(f"s_add_u32 s{S_TAG}, s{S_TAG}, 0x9e3779b9")
    e(f"s_add_u32 s34, s33, {WS_QP}")
    e(f"s_add_u32 s35, s33, {WS_QPF}")
    e(f"v_mov_b32 v{PUBQ+1}, s{S_TAG}")
    e(f"v_mov_b32 v{PUBQ+3}, s{S_TAG}")
    e("s_waitcnt lgkmcnt(0)")
    gemv_mma(VA, VB, VC)
    publish_units(VC, V_PUB, 35, PUBQ, fast=True)
    G.stamp(4)
    e("s_mov_b32 s37, s34")
    def consume4(soff, u0, lds_dst, cnt_idx, sfast, spub, voff, q):
        u1 = u0 + 4
        def mk(sreg):
            def ld(b):
                e(f"buffer_load_dwordx4 {vr(b,4)}, v{V_L16B}, {sr(SRD_WS,4)}, s{sreg} offen sc1")
                e(f"buffer_load_dwordx4 {vr(b+4,4)}, v{V_L16B}, {sr(SRD_WS,4)}, s{sreg} offen offset:1024 sc1")
            return ld
        def slow_store():
            lo32()
            e(f"buffer_store_dwordx4 {vr(q,4)}, v{voff}, {sr(SRD_WS,4)}, s{spub} offen sc1")
            e("s_mov_b64 exec, -1")
        dual_poll(mk(sfast), mk(soff), slow_store, u0, 8, [1, 3, 5, 7], RING8, 2, cnt_idx)
        nop(1)
        e(f"v_permlane32_swap_b32 v{u0}, v{u0+2}")
        e(f"v_permlane32_swap_b32 v{u1}, v{u1+2}")
        nop(1)
        e(f"v_add_f32 v{u0}, v{u0}, v{u0+2}")
        e(f"v_add_f32 v{u1}, v{u1}, v{u1+2}")
        nop(2)
        e(f"v_permlane16_swap_b32 v{u0}, v{u1}")
        nop(1)
        e(f"v_add_f32 v{u0}, v{u0}, v{u1}")
        write_av(u0, lds_dst)
    def write_av(vsrc, lds_dst):
        e(f"v_cvt_pk_bf16_f32 v54, v{vsrc}, v{vsrc}")
        e(f"ds_write_b16 v{V_AVW}, v54 offset:{lds_dst}")
    e(f"s_add_u32 s34, s32, {WS_QP}")
    e(f"s_add_u32 s35, s32, {WS_QPF}")
    e("s_waitcnt vmcnt(1)")
    for ct in range(2):
        for ks in range(4):
            e(f"ds_read_b128 {vr(WUK+(ct*4+ks)*4,4)}, v{248+ks} offset:{4096*ct}")
    consume4(34, 40, L_AVQ, 32, 35, 37, V_PUB, PUBQ)
    e("s_waitcnt lgkmcnt(0)")
    e("s_barrier")
    G.stamp(5)
    gemv_loadA(V_AVR, VA, L_AVQ)
    e(f"v_lshlrev_b32 v44, 4, v{V_L15}")
    e(f"v_lshl_add_u32 v44, v{V_G}, 15, v44")
    e(f"s_lshl_b32 s34, s{S_H}, 10")
    e(f"s_lshl_b32 s35, s{S_I}, 8")
    e("s_add_u32 s34, s34, s35")
    e(f"s_add_u32 s34, s34, {WS_QA}")
    e(f"s_lshl_b32 s35, s{S_H}, 2")
    e(f"s_add_u32 s35, s35, s{S_I}")
    e("s_lshl_b32 s35, s35, 4")
    e(f"s_add_u32 s35, s35, {WS_FB}")
    e("s_waitcnt lgkmcnt(0)")
    for ks in range(4):
        for ct in range(2):
            c = "0" if ks == 0 else vr(VC+4*ct, 4)
            e(f"v_mfma_f32_16x16x32_bf16 {vr(VC+4*ct,4)}, {vr(VA+4*ks,4)}, {vr(WUK+(ct*4+ks)*4,4)}, {c}")
    nop(9)
    sel_tb(VC, 40, 41)
    e(f"v_cndmask_b32 v40, v40, v41, {sr(M_HI,2)}")
    e(f"v_mul_f32 v40, {fbits((128 ** -0.5) * math.log2(math.e))}, v40")
    write_av(40, L_QS)
    e("s_waitcnt lgkmcnt(0)")
    e("s_barrier")
    def ldFB(b):
        e(f"buffer_load_dwordx2 {vr(b,2)}, v{V_L16B}, {sr(SRD_WS,4)}, s34 offen sc1")
        e(f"buffer_load_dwordx2 {vr(b+2,2)}, v{V_L16B}, {sr(SRD_WS,4)}, s34 offen offset:1024 sc1")
    def gate_poll():
        e("s_and_b32 s34, s2, 7")
        e("s_lshl_b32 s34, s34, 11")
        e(f"s_add_u32 s34, s34, {WS_FB}")
        poll(ldFB, 40, 4, [0, 1, 2, 3], RING4, 2, 4, 33)
    lskip = G.newlab("nopub")
    e(f"s_cmp_lg_u32 s{S_W}, 0")
    e(f"s_cbranch_scc1 {lskip}")
    e(f"ds_read_b128 {vr(40,4)}, v{V_L16B} offset:{L_QS}")
    e(f"v_mov_b32 v46, s{S_TAG}")
    e(f"v_mov_b32 v47, s{S_TAG}")
    e(f"v_lshlrev_b32 v45, 11, v{V_LANE}")
    e("s_waitcnt lgkmcnt(0)")
    lo32()
    e(f"buffer_store_dwordx4 {vr(40,4)}, v44, {sr(SRD_WS,4)}, s34 offen sc1")
    e("s_mov_b64 exec, 0xff")
    e("s_waitcnt vmcnt(0)")
    e(f"buffer_store_dwordx2 {vr(46,2)}, v45, {sr(SRD_WS,4)}, s35 offen sc1")
    e("s_mov_b64 exec, -1")
    if G.gate == 'B': gate_poll()
    lab(lskip)
    G.stamp(6)
    e("s_barrier")
    G.stamp(7)
    G.srd(SRD_1, P_WUV, 4194304)
    G.srd(SRD_2, P_WO, 4194304)
    e(f"v_lshl_add_u32 v{VD0}, v{V_G}, 17, v{V_SW}")
    e(f"v_xor_b32 v{VD1}, 128, v{VD0}")
    e(f"s_lshl_b32 s29, s{S_I}, 7")
    e(f"s_lshl_b32 s28, s{S_W}, 2")
    e("s_add_u32 s29, s29, s28")
    e("s_lshl_b32 s29, s29, 13")
    e(f"s_lshl_b32 s28, s{S_H}, 8")
    e("s_add_u32 s29, s29, s28")
    def f_uv(n):
        off = (64*(n & 1) + (n >> 1)) * 8192
        if off == 0: e("s_mov_b32 s30, s29")
        else: e(f"s_add_u32 s30, s29, {off}")
    dma_tile128(SRD_1, VD0, VD1, f_uv, R0, NTW)
    e(f"v_lshl_add_u32 v{VD0}, v{V_G}, 10, v{V_SW}")
    e(f"v_xor_b32 v{VD1}, 128, v{VD0}")
    e(f"s_lshl_b32 s29, s{S_H}, 7")
    e(f"s_lshl_b32 s28, s{S_W}, 5")
    e("s_add_u32 s29, s29, s28")
    e("s_lshl_b32 s29, s29, 10")
    e(f"s_lshl_b32 s28, s{S_I}, 8")
    e("s_add_u32 s29, s29, s28")
    dma_tile128(SRD_2, VD0, VD1, lin(4*1024), R2, NTW)
    R3, RW2 = 106496, 139264
    S_FS, S_HF = 50, 51
    lnf1 = G.newlab("noffn1")
    e("s_lshr_b32 s28, s2, 4")
    e("s_lshl_b32 s28, s28, 3")
    e("s_and_b32 s29, s2, 7")
    e(f"s_add_u32 s{S_FS}, s28, s29")
    e(f"s_bfe_u32 s{S_HF}, s2, 0x10003")
    e(f"s_cmp_ge_u32 s{S_FS}, 43")
    e(f"s_cbranch_scc1 {lnf1}")
    G.srd(SRD_1, P_W1, 1409024)
    G.srd(SRD_2, P_W3, 1409024)
    G.srd(SRD_3, P_W2, 1409024)
    e(f"v_lshrrev_b32 v64, 2, v{V_LANE}")
    e("v_mul_u32_u24 v64, 2752, v64")
    e(f"v_lshrrev_b32 v65, 5, v{V_LANE}")
    e("v_lshlrev_b32 v66, 1, v65")
    e(f"v_and_b32 v67, 3, v{V_LANE}")
    e("v_xor_b32 v67, v66, v67")
    e("v_lshl_add_u32 v64, v67, 4, v64")
    e(f"s_lshl_b32 s29, s{S_HF}, 2")
    e(f"s_add_u32 s29, s29, s{S_W}")
    e(f"s_mul_i32 s29, s29, {64*2752}")
    e(f"s_lshl_b32 s28, s{S_FS}, 6")
    e("s_add_u32 s29, s29, s28")
    e(f"s_lshl_b32 s31, s{S_W}, 12")
    for (srd, base) in ((SRD_1, R3), (SRD_2, R3 + 16384)):
        for n in range(4):
            if n == 0: e("s_mov_b32 s30, s29")
            else: e(f"s_add_u32 s30, s29, {n*16*2752}")
            e(f"s_add_u32 m0, s31, {base + n*1024}")
            nop(1)
            e(f"buffer_load_dwordx4 v64, {sr(srd,4)}, s30 offen lds")
    e(f"v_and_b32 v67, 31, v{V_LANE}")
    e("v_xor_b32 v67, v67, v66")
    e(f"s_and_b32 s28, s{S_W}, 1")
    e("s_lshl_b32 s28, s28, 3")
    e("v_xor_b32 v67, s28, v67")
    e("v_lshlrev_b32 v67, 4, v67")
    e("v_lshl_add_u32 v67, v65, 10, v67")
    e("v_xor_b32 v68, 64, v67")
    e(f"s_lshl_b32 s29, s{S_FS}, 5")
    e(f"s_lshl_b32 s28, s{S_W}, 3")
    e("s_add_u32 s29, s29, s28")
    e("s_lshl_b32 s29, s29, 10")
    e(f"s_lshl_b32 s28, s{S_HF}, 9")
    e("s_add_u32 s29, s29, s28")
    for n in range(4):
        if n == 0: e("s_mov_b32 s30, s29")
        else: e(f"s_add_u32 s30, s29, {n*2048}")
        e(f"s_add_u32 m0, s31, {RW2 + n*1024}")
        nop(1)
        e(f"buffer_load_dwordx4 v{68 if n & 1 else 67}, {sr(SRD_3,4)}, s30 offen{NTW} lds")
    lab(lnf1)
    e(f"s_lshl_b32 s28, s{S_I}, 7")
    e(f"s_lshr_b32 s29, s{S_W}, 1")
    e("s_lshl_b32 s29, s29, 6")
    e("s_add_u32 s28, s28, s29")
    e("s_lshl_b32 s38, s28, 9")
    e(f"s_lshl_b32 s29, s{S_H}, 4")
    e("s_add_u32 s38, s38, s29")
    e(f"s_add_u32 s38, s38, {WS_SU}")
    e(f"v_lshlrev_b32 v52, 9, v{V_LANE}")
    e("s_and_b32 s34, s2, 7")
    e("s_lshl_b32 s34, s34, 13")
    e(f"s_lshl_b32 s28, s{S_I}, 11")
    e("s_add_u32 s34, s34, s28")
    e(f"s_add_u32 s34, s34, {WS_CF}")
    for reg in (WS_CPF, WS_CP):
        e(f"s_add_u32 s28, s32, {reg}")
        e(f"buffer_load_dwordx4 {vr(232,4)}, v{V_L16B}, {sr(SRD_WS,4)}, s28 offen sc1")
        e(f"buffer_load_dwordx4 {vr(236,4)}, v{V_L16B}, {sr(SRD_WS,4)}, s28 offen offset:1024 sc1")
    lnw = G.newlab("nowarm")
    e("s_cmp_lt_u32 s2, 96")
    e(f"s_cbranch_scc1 {lnw}")
    e("s_sub_u32 s28, s2, 96")
    e("s_lshl_b32 s28, s28, 13")
    e(f"s_add_u32 s28, s28, {WS_EP}")
    e(f"v_lshlrev_b32 v20, 4, v0")
    e("v_add_u32 v24, 4096, v20")
    e(f"buffer_load_dwordx4 {vr(244,4)}, v20, {sr(SRD_WS,4)}, s28 offen sc1")
    e(f"buffer_load_dwordx4 {vr(248,4)}, v24, {sr(SRD_WS,4)}, s28 offen sc1")
    lab(lnw)
    e(f"v_lshl_add_u32 v{VD0}, v{V_G}, 15, v{V_SW}")
    e(f"v_xor_b32 v{VD1}, 128, v{VD0}")
    e(f"s_lshl_b32 s29, s{S_W}, 7")
    e(f"s_add_u32 s29, s29, s{S_I}")
    e("s_lshl_b32 s29, s29, 13")
    e(f"s_lshl_b32 s28, s{S_H}, 8")
    e("s_add_u32 s29, s29, s28")
    e(f"s_add_u32 s29, s29, {WS_OP}")
    e(f"v_lshlrev_b32 v53, 4, v{V_L15}")
    e(f"v_lshl_add_u32 v53, v{V_G}, 13, v53")
    e(f"s_lshl_b32 s28, s{S_I}, 2")
    e(f"s_add_u32 s28, s28, s{S_W}")
    e("s_lshl_b32 s28, s28, 14")
    e(f"s_lshl_b32 s39, s{S_H}, 8")
    e("s_add_u32 s28, s28, s39")
    e(f"s_add_u32 s39, s28, {WS_EP}")
    e(f"v_add_u32 v21, {R1}, v{V_TL0}")
    e(f"v_add_u32 v22, {R1}, v{V_TL1}")
    lw1 = G.newlab("w1"); lw2 = G.newlab("w2")
    e(f"s_cmp_ge_u32 s{S_FS}, 43")
    e(f"s_cbranch_scc1 {lw1}")
    e("s_waitcnt vmcnt(16)")
    e(f"s_branch {lw2}")
    lab(lw1)
    e("s_waitcnt vmcnt(0)")
    lab(lw2)
    e("s_barrier")
    G.stamp(8)
    BUV, BO = 160, 192
    gemv_loadB(R0, BUV, 25, 26)
    gemv_loadB(R2, BO, 25, 26)
    G.stamp(9)
    SAVE_S = [34, 35, 36, 37, 29]
    for k_, r_ in enumerate(SAVE_S): e(f"s_mov_b32 s{56+k_}, s{r_}")
    e("v_mov_b32 v69, v20"); e("v_mov_b32 v70, v21"); e("v_mov_b32 v71, v22"); e("v_mov_b32 v72, v24")
    lnf2 = G.newlab("noffn2")
    e(f"s_cmp_ge_u32 s{S_FS}, 43")
    e(f"s_cbranch_scc1 {lnf2}")
    e(f"v_bfe_u32 v17, v{V_LANE}, 2, 2")
    e(f"v_and_b32 v18, 3, v{V_LANE}")
    e(f"v_and_b32 v19, 1, v{V_G}")
    e(f"s_and_b32 s28, s{S_W}, 1")
    e("s_lshl_b32 s28, s28, 1")
    e("v_lshrrev_b32 v20, 1, v18")
    e("v_add_u32 v20, s28, v20")
    e("v_lshlrev_b32 v21, 1, v19")
    e("v_xor_b32 v20, v20, v21")
    e("v_lshlrev_b32 v20, 4, v20")
    e("v_and_b32 v21, 1, v18")
    e("v_lshl_add_u32 v20, v21, 3, v20")
    e(f"v_lshl_add_u32 v21, v{V_G}, 3, v17")
    e("v_lshl_add_u32 v20, v21, 6, v20")
    e(f"s_lshr_b32 s28, s{S_W}, 1")
    e("s_lshl_b32 s28, s28, 14")
    e(f"s_add_u32 s28, s28, {R3}")
    e("v_add_u32 v20, s28, v20")
    e(f"v_and_b32 v21, 1, v{V_LANE}")
    e("v_lshlrev_b32 v21, 10, v21")
    e(f"v_lshl_add_u32 v21, v{V_G}, 4, v21")
    e(f"s_lshl_b32 s28, s{S_HF}, 9")
    e("v_add_u32 v21, s28, v21")
    FA, FB_, GA = 96, 128, 76
    e("s_lshl_b32 s28, s2, 2")
    e(f"s_add_u32 s28, s28, s{S_W}")
    e("s_lshl_b32 s28, s28, 8")
    e(f"s_add_u32 s34, s28, {WS_F1}")
    e(f"s_add_u32 s35, s28, {WS_F1F}")
    e("s_xor_b32 s28, s2, 8")
    e("s_lshl_b32 s28, s28, 2")
    e(f"s_add_u32 s28, s28, s{S_W}")
    e("s_lshl_b32 s28, s28, 8")
    e(f"s_add_u32 s36, s28, {WS_F1}")
    e(f"s_add_u32 s37, s28, {WS_F1F}")
    e(f"v_lshlrev_b32 v26, 4, v{V_L15}")
    e(f"v_mov_b32 v41, s{S_TAG}")
    e(f"v_mov_b32 v43, s{S_TAG}")
    e(f"buffer_load_dwordx4 {vr(232,4)}, v26, {sr(SRD_WS,4)}, s37 offen sc1")
    e("s_waitcnt vmcnt(%d)" % (5 + 4))
    e("s_barrier")
    for ks in range(8):
        e(f"ds_read_b128 {vr(FA+4*ks,4)}, v21 offset:{L_XN + 64*ks}")
        for u in range(2):
            e(f"ds_read_b64_tr_b16 {vr(FB_+4*ks+2*u,2)}, v20 offset:{2048*ks + 256*u}")
    e("s_waitcnt lgkmcnt(0)")
    for ks in range(8):
        c = "0" if ks == 0 else vr(GA, 4)
        e(f"v_mfma_f32_16x16x32_bf16 {vr(GA,4)}, {vr(FA+4*ks,4)}, {vr(FB_+4*ks,4)}, {c}")
    e("v_lshl_add_u32 v20, v19, 2, v17")
    e("v_lshlrev_b32 v20, 1, v20")
    e(f"s_lshl_b32 s28, s{S_W}, 3")
    e("v_xor_b32 v20, s28, v20")
    e(f"v_lshl_add_u32 v21, v{V_G}, 3, v17")
    e("v_lshlrev_b32 v21, 9, v21")
    e("v_lshrrev_b32 v22, 1, v18")
    e("v_lshl_add_u32 v21, v22, 4, v21")
    e("v_and_b32 v22, 1, v18")
    e("v_lshl_add_u32 v21, v22, 3, v21")
    e(f"v_add_u32 v21, {RW2}, v21")
    for t in range(4):
        e(f"v_xor_b32 v22, {2*t}, v20")
        e(f"v_lshl_add_u32 v{28+t}, v22, 4, v21")
    e(f"v_mov_b32 v40, v{GA}")
    e(f"v_mov_b32 v42, v{GA+1}")
    e("s_mov_b64 exec, 0xffff")
    e(f"buffer_store_dwordx4 {vr(40,4)}, v26, {sr(SRD_WS,4)}, s35 offen")
    e("s_mov_b64 exec, -1")
    G.stamp(17)
    def ldF(sreg):
        return lambda b: e(f"buffer_load_dwordx4 {vr(b,4)}, v26, {sr(SRD_WS,4)}, s{sreg} offen sc1")
    def f1_slow():
        e("s_mov_b64 exec, 0xffff")
        e(f"buffer_store_dwordx4 {vr(40,4)}, v26, {sr(SRD_WS,4)}, s34 offen sc1")
        e("s_mov_b64 exec, -1")
    dual_poll(ldF(37), ldF(36), f1_slow, 44, 4, [1, 3], RING4, 1, 34)
    G.stamp(18)
    e(f"v_add_f32 v{GA}, v{GA}, v44")
    e(f"v_add_f32 v{GA+1}, v{GA+1}, v46")
    e(f"v_and_b32 v23, 1, v{V_G}")
    e("v_lshlrev_b32 v23, 7, v23")
    e(f"v_lshl_add_u32 v23, v{V_L15}, 2, v23")
    e(f"v_cndmask_b32 v22, v{GA}, v{GA+1}, {sr(M_G1,2)}")
    e(f"s_lshr_b32 s28, s{S_W}, 1")
    e("s_lshl_b32 s28, s28, 8")
    e(f"s_and_b32 s29, s{S_W}, 1")
    e("s_lshl_b32 s29, s29, 6")
    e("s_add_u32 s28, s28, s29")
    e("v_add_u32 v23, s28, v23")
    e(f"ds_write_b32 v23, v22 offset:{L_GUW}")
    e("s_waitcnt lgkmcnt(0)")
    e("s_barrier")
    e(f"v_lshlrev_b32 v23, 2, v{V_LANE}")
    e(f"ds_read_b32 v24, v23 offset:{L_GUW}")
    e(f"ds_read_b32 v25, v23 offset:{L_GUW+256}")
    for t in range(4):
        for u in range(2):
            e(f"ds_read_b64_tr_b16 {vr(FB_+4*t+2*u,2)}, v{28+t} offset:{2048*u}")
    e(f"v_mul_u32_u24 v20, {FP_S*256}, v{V_G}")
    e(f"v_lshl_add_u32 v20, v{V_L15}, 4, v20")
    e(f"s_lshl_b32 s28, s{S_HF}, 2")
    e(f"s_add_u32 s28, s28, s{S_W}")
    e(f"s_mul_i32 s28, s28, {4*FP_S*256}")
    e(f"s_lshl_b32 s29, s{S_FS}, 8")
    e("s_add_u32 s28, s28, s29")
    e(f"s_add_u32 s28, s28, {WS_FP}")
    e("s_waitcnt lgkmcnt(8)")
    rbf(24); rbf(25)
    e("v_mul_f32 v26, 0xbfb8aa3b, v24")
    e("v_exp_f32 v26, v26")
    e(f"v_lshlrev_b32 v23, 1, v{V_LANE}")
    e("v_add_f32 v26, 1.0, v26")
    e("v_rcp_f32 v26, v26")
    e(f"v_and_b32 v21, 1, v{V_LANE}")
    e("v_mul_f32 v26, v24, v26")
    rbf(26)
    e("v_mul_f32 v26, v26, v25")
    e("v_cvt_pk_bf16_f32 v26, v26, v26")
    e(f"ds_write_b16 v23, v26 offset:{L_HW}")
    e("v_lshlrev_b32 v21, 6, v21")
    e(f"v_lshl_add_u32 v21, v{V_G}, 4, v21")
    e("s_waitcnt lgkmcnt(0)")
    DA = 100
    e(f"ds_read_b128 {vr(FA,4)}, v21 offset:{L_HW}")
    e(f"v_mov_b32 v37, s{S_TAG}")
    e(f"v_mov_b32 v39, s{S_TAG}")
    e("s_waitcnt lgkmcnt(0)")
    for t in range(4):
        e(f"v_mfma_f32_16x16x32_bf16 {vr(DA+4*t,4)}, {vr(FA,4)}, {vr(FB_+4*t,4)}, 0")
    nop(9)
    for rr in range(2):
        e(f"v_cndmask_b32 v32, v{DA+rr}, v{DA+4+rr}, {sr(M_G1,2)}")
        e(f"v_cndmask_b32 v33, v{DA+8+rr}, v{DA+12+rr}, {sr(M_G1,2)}")
        e(f"v_cndmask_b32 v{36+2*rr}, v32, v33, {sr(M_HI,2)}")
    e(f"buffer_store_dwordx4 {vr(36,4)}, v20, {sr(SRD_WS,4)}, s28 offen sc1")
    G.stamp(20)
    lab(lnf2)
    for k_, r_ in enumerate(SAVE_S): e(f"s_mov_b32 s{r_}, s{56+k_}")
    e("v_mov_b32 v20, v69"); e("v_mov_b32 v21, v70"); e("v_mov_b32 v22, v71"); e("v_mov_b32 v24, v72")

    lodd = G.newlab("codd"); lj = G.newlab("cjoin")
    e(f"s_cmp_lg_u32 s{S_W}, 0")
    e(f"s_cbranch_scc1 {lodd}")
    poll(ldFB, 40, 4, [0, 1, 2, 3], RING4, 2, G.sl_flag, 35)
    lab(lodd)
    e("s_barrier")
    G.stamp(10)
    e(f"buffer_load_dwordx4 {vr(40,4)}, v52, {sr(SRD_WS,4)}, s38 offen sc1")
    dma_tile128(SRD_WS, VD0, VD1, lin(4*32768), R1, " sc1")
    e(f"s_and_b32 s28, s{S_W}, 1")
    e("s_cmp_lg_u32 s28, 0")
    e(f"s_cbranch_scc1 {lj}")
    e("s_waitcnt vmcnt(8)")
    e("v_mov_b32 v44, v40")
    wave_red("v_max_f32", 44, 45)
    e("v_sub_f32 v40, v40, v44")
    e("v_exp_f32 v40, v40")
    nop(1)
    e("v_mul_f32 v44, v40, v42")
    wave_red("v_add_f32", 44, 45)
    e("v_rcp_f32 v44, v44")
    e(f"s_lshr_b32 s29, s{S_W}, 1")
    e("s_mul_i32 s28, s29, 384")
    e(f"v_lshlrev_b32 v45, 1, v{V_LANE}")
    e("v_mul_f32 v40, v40, v44")
    e("v_add_u32 v46, s28, v45")
    e("v_cvt_pk_bf16_f32 v40, v40, v40")
    e("s_lshl_b32 s28, s29, 7")
    e("s_add_u32 s28, s28, 128")
    e(f"ds_write_b16 v46, v40 offset:{L_WGT}")
    e("v_add_u32 v46, s28, v45")
    e("v_mov_b32 v47, 0")
    e(f"ds_write_b16 v46, v47 offset:{L_WGT}")
    lab(lj)
    e(f"s_add_u32 s34, s33, {WS_CP}")
    e(f"s_add_u32 s35, s33, {WS_CPF}")
    e("s_waitcnt vmcnt(0) lgkmcnt(0)")
    e("s_barrier")
    G.stamp(11)
    gemv_loadA(V_AVR, VA, L_WGT)
    for ks in range(4):
        for t in range(2):
            for u in range(2):
                r = VB + (t*4 + ks)*4 + 2*u
                e(f"ds_read_b64_tr_b16 {vr(r,2)}, v{21+t} offset:{8192*ks + 1024*u}")
    e("s_waitcnt lgkmcnt(0)")
    gemv_mma(VA, VB, VC)
    sel_tb(VC, 40, 41)
    e(f"v_cndmask_b32 v40, v40, v41, {sr(M_HI,2)}")
    write_av(40, L_AVO)
    e("s_waitcnt lgkmcnt(0)")
    e("s_barrier")
    gemv_loadA(V_AVR, VA, L_AVO)
    e("s_waitcnt lgkmcnt(0)")
    gemv_mma(VA, BUV, VC)
    publish_units(VC, V_PUB, 35, PUBQ, fast=True)
    G.stamp(12)
    e("s_mov_b32 s37, s34")
    e(f"s_add_u32 s34, s32, {WS_CP}")
    e(f"s_add_u32 s35, s32, {WS_CPF}")
    consume4(34, 40, L_AVC, 36, 35, 37, V_PUB, PUBQ)
    e("s_waitcnt lgkmcnt(0)")
    e("s_barrier")
    G.stamp(13)
    gemv_loadA(V_AVR, VA, L_AVC)
    e("s_waitcnt lgkmcnt(0)")
    gemv_mma(VA, BO, VC)
    publish_units(VC, 53, 39, PUBQ)
    G.stamp(14)
    e("s_cmp_lt_u32 s2, 96")
    e("s_cbranch_scc1 L_wdone")
    e("s_sub_u32 s35, s2, 96")
    e(f"v_lshlrev_b32 v20, 4, v0")
    e("s_lshl_b32 s28, s35, 13")
    e(f"s_add_u32 s36, s28, {WS_EP}")
    e(f"s_mul_i32 s28, s35, {FP_S*256}")
    e(f"s_add_u32 s37, s28, {WS_FP}")
    G.srd(SRD_1, P_X, 2048)
    e(f"v_lshlrev_b32 v21, 10, v{V_G}")
    e(f"v_lshl_add_u32 v21, v{V_L15}, 1, v21")
    e("s_lshl_b32 s28, s35, 5")
    e(f"buffer_load_ushort v22, v21, {sr(SRD_1,4)}, s28 offen")
    e("v_add_u32 v24, 4096, v20")
    e("v_add_u32 v25, 8192, v20")
    e("v_mov_b32 v23, 176")
    e("v_cmp_ge_u32 s[42:43], v0, v23")
    e(f"v_mov_b32 v26, s{S_TAG}")
    e("v_mov_b32 v27, 0")
    def ldFP(b):
        e(f"buffer_load_dwordx4 {vr(b,4)}, v20, {sr(SRD_WS,4)}, s37 offen sc1")
        e(f"buffer_load_dwordx4 {vr(b+4,4)}, v24, {sr(SRD_WS,4)}, s37 offen sc1")
        e(f"buffer_load_dwordx4 {vr(b+8,4)}, v25, {sr(SRD_WS,4)}, s37 offen sc1")
    def ldE(b):
        e(f"buffer_load_dwordx4 {vr(b,4)}, v20, {sr(SRD_WS,4)}, s36 offen sc1")
        e(f"buffer_load_dwordx4 {vr(b+4,4)}, v24, {sr(SRD_WS,4)}, s36 offen sc1")
    ldFP(108)
    poll(ldE, 100, 8, [1, 3, 5, 7], RING8, 2, G.sl_unit, 37)
    G.stamp(19)
    lp, done, skip = G.newlab("pollfp"), G.newlab("pfpdone"), G.newlab("pfpskip")
    e(f"s_mov_b32 s48, {G.spin}")
    e(f"s_branch {skip}")
    lab(lp)
    ldFP(108)
    e("s_waitcnt vmcnt(0)")
    lab(skip)
    e("v_cndmask_b32 v117, v117, v26, s[42:43]")
    e("v_cndmask_b32 v119, v119, v26, s[42:43]")
    check_tags([109, 111, 113, 115, 117, 119])
    e(f"s_cbranch_vccz {done}")
    e("s_sub_u32 s48, s48, 1")
    e(f"s_cbranch_scc0 {lp}")
    lab(done)
    G.stampval(38, 48)
    e("v_cndmask_b32 v116, v116, v27, s[42:43]")
    e("v_cndmask_b32 v118, v118, v27, s[42:43]")
    G.stamp(15)
    for rr in (0, 2):
        e(f"v_add_f32 v{100+rr}, v{100+rr}, v{104+rr}")
        e(f"v_add_f32 v{108+rr}, v{108+rr}, v{112+rr}")
    for rr in (0, 2):
        e(f"v_add_f32 v{100+rr}, v{100+rr}, v{116+rr}")
    for rr in (0, 2):
        e(f"v_add_f32 v{100+rr}, v{100+rr}, v{108+rr}")
    nop(2)
    e("v_permlane32_swap_b32 v100, v102")
    nop(1)
    e("v_add_f32 v100, v100, v102")
    e("v_mov_b32 v101, v100")
    nop(2)
    e("v_permlane16_swap_b32 v100, v101")
    e(f"v_lshrrev_b32 v27, 5, v{V_LANE}")
    e("v_add_f32 v100, v100, v101")
    e("v_lshlrev_b32 v27, 6, v27")
    e(f"v_lshl_add_u32 v27, v{V_L15}, 2, v27")
    e(f"s_lshl_b32 s28, s{S_W}, 7")
    e("v_add_u32 v28, s28, v27")
    e(f"ds_write_b32 v28, v100 offset:{L_FIN}")
    G.srd(SRD_2, P_OUT, 2048)
    e("s_waitcnt lgkmcnt(0)")
    e("s_barrier")
    e(f"s_cmp_lg_u32 s{S_W}, 0")
    e("s_cbranch_scc1 L_wdone")
    e(f"v_lshlrev_b32 v27, 2, v{V_LANE}")
    for w in range(4):
        e(f"ds_read_b32 v{104+w}, v27 offset:{L_FIN + 128*w}")
    e("s_lshl_b32 s28, s35, 5")
    e("v_lshlrev_b32 v22, 16, v22")
    e("s_waitcnt lgkmcnt(0)")
    e("v_add_f32 v104, v104, v105")
    e("v_add_f32 v106, v106, v107")
    e("v_add_f32 v104, v104, v22")
    e("v_add_f32 v104, v104, v106")
    e("v_cvt_pk_bf16_f32 v104, v104, v104")
    lo32()
    e(f"buffer_store_short v104, v21, {sr(SRD_2,4)}, s28 offen")
    e("s_cmp_lg_u32 s35, 0")
    e("s_cbranch_scc1 L_wdone0")
    e("s_mov_b64 exec, 1")
    e(f"v_mov_b32 v30, s{S_TAG}")
    e("v_mov_b32 v31, 0")
    e(f"buffer_store_dword v30, v31, {sr(SRD_WS,4)}, 0 offen offset:{WS_EPOCH}")
    lab("L_wdone0")
    e("s_mov_b64 exec, -1")
    lab("L_wdone")
    G.stamp(16)
    store_stamps()
    e("s_endpgm")

    lab("L_att")
    S_A, S_FS, S_HF = 38, 37, 39
    e(f"s_sub_u32 s{S_A}, s2, 128")
    e(f"s_lshr_b32 s{S_H}, s{S_A}, 6")
    VCK = 8
    for idx in range(8):
        x = 32*(idx & 3) + 128*(idx >> 2)
        if x == 0: e(f"v_mov_b32 v{VCK+idx}, v{V_L16B}")
        else: e(f"v_xor_b32 v{VCK+idx}, {x}, v{V_L16B}")
    e(f"s_lshl_b32 s29, s{S_A}, 7")
    e(f"s_lshl_b32 s30, s{S_W}, 5")
    e("s_add_u32 s29, s29, s30")
    e("s_lshl_b32 s29, s29, 10")
    e(f"s_lshl_b32 s31, s{S_W}, 15")
    e("s_waitcnt lgkmcnt(0)")
    if G.stamps: e("v_writelane_b32 v255, s40, 0")
    G.srd(SRD_1, P_CKV, 16777216)
    e(f"s_load_dword s{S_TAG}, {sr(P_WS,2)}, {WS_EPOCH}")
    G.srd(SRD_WS, P_WS, 0x10000000)
    setup = []
    su = setup.append
    AA, AB, TB, TB2 = 16, 20, 24, 48
    su(f"v_and_b32 v32, 3, v{V_LANE}")
    su(f"v_bfe_u32 v33, v{V_LANE}, 3, 1")
    su("v_lshl_add_u32 v32, v33, 2, v32")
    su("v_lshlrev_b32 v32, 1, v32")
    su(f"v_xor_b32 v33, v32, v{V_G}")
    su(f"v_lshlrev_b32 v34, 10, v{V_L15}")
    su(f"s_add_u32 s37, s31, {L_CKV}")
    for j in range(4):
        su(f"v_xor_b32 v35, {4*j}, v33")
        su(f"v_lshl_add_u32 v{AB+j}, v35, 4, v34")
        su(f"v_add_u32 v{AA+j}, s37, v{AB+j}")
        if L_QAL: su(f"v_add_u32 v{AB+j}, {L_QAL}, v{AB+j}")
    su(f"v_bfe_u32 v32, v{V_LANE}, 2, 2")
    su(f"v_and_b32 v33, 3, v{V_LANE}")
    su(f"v_and_b32 v34, 1, v{V_G}")
    su("v_lshl_add_u32 v35, v34, 2, v32")
    su("v_lshlrev_b32 v35, 1, v35")
    su(f"v_lshl_add_u32 v36, v{V_G}, 3, v32")
    su("v_lshlrev_b32 v36, 10, v36")
    su("v_lshrrev_b32 v37, 1, v33")
    su("v_lshl_add_u32 v36, v37, 4, v36")
    su("v_and_b32 v37, 1, v33")
    su("v_lshl_add_u32 v36, v37, 3, v36")
    su(f"s_lshl_b32 s28, s{S_W}, 8")
    su(f"s_add_u32 s28, s28, {L_CKV}")
    su("v_add_u32 v36, s28, v36")
    for t in range(8):
        su(f"v_xor_b32 v37, {2*t}, v35")
        su(f"v_lshl_add_u32 v{TB+t}, v37, 4, v36")
        su(f"v_add_u32 v{TB2+t}, 65536, v{TB+t}")
    su(f"v_and_b32 v57, 31, v{V_LANE}")
    su("v_lshlrev_b32 v57, 2, v57")
    su(f"s_lshl_b32 s28, s{S_W}, 7")
    su("v_add_u32 v56, s28, v57")
    su(f"v_lshlrev_b32 v58, 2, v{V_L15}")
    su(f"v_lshrrev_b32 v32, 1, v{V_G}")
    su(f"s_lshl_b32 s28, s{S_W}, 2")
    su("v_add_u32 v32, s28, v32")
    su(f"v_and_b32 v33, 1, v{V_G}")
    su("v_lshlrev_b32 v33, 3, v33")
    su(f"v_lshl_add_u32 v33, v{V_L15}, 8, v33")
    su(f"v_xor_b32 v34, v32, v{V_L15}")
    su("v_lshl_add_u32 v59, v34, 4, v33")
    su("v_xor_b32 v63, 32, v59")
    for ks in range(4):
        su(f"v_add_u32 v34, {4*ks}, v{V_G}")
        su(f"v_xor_b32 v34, v34, v{V_L15}")
        su("v_lshlrev_b32 v34, 4, v34")
        su(f"v_lshl_add_u32 v{120+ks}, v{V_L15}, 8, v34")
    su(f"v_lshlrev_b32 v126, 4, v{V_L15}")
    su(f"v_lshl_add_u32 v124, v{V_G}, 10, v126")
    su(f"v_lshlrev_b32 v125, 4, v{V_LANE}")
    su(f"v_and_b32 v126, 31, v{V_LANE}")
    su("v_lshlrev_b32 v126, 7, v126")
    su(f"s_and_b32 s28, s{S_W}, 1")
    su("s_lshl_b32 s28, s28, 7")
    su(f"v_xor_b32 v127, s28, v{V_L16B}")
    for j in range(32):
        idx = (j & 3) + 4*((j >> 3) & 1)
        if j == 0: e("s_mov_b32 s30, s29")
        else: e(f"s_add_u32 s30, s29, {j*1024}")
        e(f"s_add_u32 m0, s31, {L_CKV + j*1024}")
        nop(1)
        e(f"buffer_load_dwordx4 v{VCK+idx}, {sr(SRD_1,4)}, s30 offen{NTC} lds")
        if j == 1:
            for s_ in setup: e(s_)
        w_now = G.thr_w if j < G.thr_n else G.thr2_w
        if w_now and j >= w_now - 1 and j < 31:
            e(f"s_waitcnt vmcnt({w_now - 1})")
    G.stamp(1)
    e("s_and_b32 s34, s2, 7")
    e("s_lshl_b32 s34, s34, 11")
    e(f"s_add_u32 s34, s34, {WS_FB}")
    e("s_waitcnt lgkmcnt(0)")
    e(f"s_add_u32 s{S_TAG}, s{S_TAG}, 0x9e3779b9")
    e(f"s_lshl_b32 s29, s{S_H}, 15")
    e(f"s_lshl_b32 s30, s{S_W}, 13")
    e("s_add_u32 s29, s29, s30")
    e(f"s_add_u32 s29, s29, {WS_QA}")
    e(f"s_lshl_b32 s31, s{S_W}, 13")
    e("s_waitcnt vmcnt(0)")
    G.stamp(2)
    for ks in range(16):
        for kt in range(2):
            e(f"ds_read_b128 {ar((kt*16+ks)*4,4)}, v{AA+(ks&3)} offset:{16384*kt + 256*(ks>>2)}")
    lbp = G.newlab("nobpoll")
    e(f"s_cmp_lg_u32 s{S_W}, 0")
    e(f"s_cbranch_scc1 {lbp}")
    poll(ldFB, 40, 4, [0, 1, 2, 3], [240, 244, 248], 2, G.sl_flag, 32)
    lab(lbp)
    e("s_barrier")
    G.stamp(3)
    for j in range(8):
        if j & 3: e(f"v_xor_b32 v44, {32*(j&3)}, v127")
        else: e("v_mov_b32 v44, v127")
        if j == 0: e("s_mov_b32 s30, s29")
        else: e(f"s_add_u32 s30, s29, {j*1024}")
        e(f"s_add_u32 m0, s31, {L_QAL + j*1024}")
        nop(1)
        e(f"buffer_load_dwordx4 v44, {sr(SRD_WS,4)}, s30 offen sc1 lds")
    e(f"s_lshl_b32 s28, s{S_A}, 2")
    e(f"s_add_u32 s28, s28, s{S_W}")
    e("s_lshl_b32 s28, s28, 13")
    e(f"s_add_u32 s34, s28, {WS_OP}")
    e("s_add_u32 s35, s34, 4096")
    e(f"s_lshl_b32 s28, s{S_W}, 7")
    e(f"s_add_u32 s28, s28, s{S_A}")
    e("s_lshl_b32 s28, s28, 9")
    e(f"s_add_u32 s36, s28, {WS_SU}")
    e(f"s_lshl_b32 s28, s{S_W}, 7")
    e(f"s_add_u32 s28, s28, s{S_A}")
    e("s_lshl_b32 s28, s28, 4")
    e(f"s_add_u32 s37, s28, {WS_CF}")
    e(f"v_lshlrev_b32 v126, 13, v{V_LANE}")
    e(f"v_mov_b32 v252, s{S_TAG}")
    e(f"v_mov_b32 v253, s{S_TAG}")
    e("s_waitcnt vmcnt(0) lgkmcnt(0)")
    e("s_barrier")
    G.stamp(4)
    QB, SC = 64, 192
    def rdB(ks):
        st = ks % 3
        for ht in range(2):
            e(f"ds_read_b128 {vr(QB+(st*2+ht)*4,4)}, v{AB+(ks&3)} offset:{16384*ht + 256*(ks>>2)}")
    rdB(0); rdB(1)
    for ks in range(16):
        if ks + 2 < 16:
            rdB(ks + 2); e("s_waitcnt lgkmcnt(4)")
        elif ks + 1 < 16: e("s_waitcnt lgkmcnt(2)")
        else: e("s_waitcnt lgkmcnt(0)")
        st = ks % 3
        for kt in range(2):
            for ht in range(2):
                d = SC + (kt*2+ht)*4
                c = "0" if ks == 0 else vr(d, 4)
                e(f"v_mfma_f32_16x16x32_bf16 {vr(d,4)}, {ar((kt*16+ks)*4,4)}, {vr(QB+(st*2+ht)*4,4)}, {c}")
    trs = []
    for ks in range(4):
        for t in range(8):
            for u in range(2):
                base = (TB2 if ks >= 2 else TB) + t
                trs.append(f"ds_read_b64_tr_b16 {ar((ks*8+t)*4+2*u,2)}, v{base} offset:{(ks&1)*32768 + 4096*u}")
    ntr0 = 8
    for s_ in trs[:ntr0]: e(s_)
    nop(2)
    nop(2)
    G.stamp(5)
    MXR = 32
    for step in range(4):
        for ht in range(2):
            a = SC + ht*4; b = SC + (2+ht)*4
            if step == 0: e(f"v_max3_f32 v{MXR+ht}, v{a}, v{a+1}, v{a+2}")
            elif step == 1: e(f"v_max3_f32 v{MXR+ht}, v{MXR+ht}, v{a+3}, v{b}")
            elif step == 2: e(f"v_max3_f32 v{MXR+ht}, v{MXR+ht}, v{b+1}, v{b+2}")
            else: e(f"v_max_f32 v{MXR+ht}, v{MXR+ht}, v{b+3}")
    xg_reduce2("v_max_f32", MXR, MXR+1, MXR+2, MXR+3)
    e(f"v_cndmask_b32 v36, v{MXR}, v{MXR+1}, {sr(M_G1,2)}")
    e("s_barrier")
    e(f"ds_write_b32 v56, v36 offset:{L_MX}")
    e("s_waitcnt lgkmcnt(0)")
    e("s_barrier")
    for ht in range(2):
        for w in range(4):
            e(f"ds_read_b32 v{40+ht*4+w}, v58 offset:{L_MX + 128*w + 64*ht}")
    e("s_waitcnt lgkmcnt(0)")
    sm = []
    a_ = sm.append
    for ht in range(2):
        a_(f"v_max3_f32 v{MXR+ht}, v{40+ht*4}, v{41+ht*4}, v{42+ht*4}")
    for ht in range(2):
        a_(f"v_max_f32 v{MXR+ht}, v{MXR+ht}, v{43+ht*4}")
    LS = 34
    for kt in range(2):
        for ht in range(2):
            d = SC + (kt*2+ht)*4
            for r in range(4): a_(f"v_sub_f32 v{d+r}, v{d+r}, v{MXR+ht}")
    for kt in range(2):
        for ht in range(2):
            d = SC + (kt*2+ht)*4
            for r in range(4): a_(f"v_exp_f32 v{d+r}, v{d+r}")
    for kt in range(2):
        for ht in range(2):
            d = SC + (kt*2+ht)*4
            q = 88 + (kt*2+ht)*2
            a_(f"v_cvt_pk_bf16_f32 v{q}, v{d}, v{d+1}")
            a_(f"v_cvt_pk_bf16_f32 v{q+1}, v{d+2}, v{d+3}")
            a_(f"ds_write_b64 v{63 if kt else 59}, {vr(q,2)} offset:{L_P + 4096*ht}")
    for ht in range(2):
        a = SC + ht*4
        a_(f"v_add_f32 v{LS+ht}, v{a}, v{a+1}")
    for x in (2, 3, 8, 9, 10, 11):
        for ht in range(2):
            a_(f"v_add_f32 v{LS+ht}, v{LS+ht}, v{SC+ht*4+x}")
    xg_reduce2("v_add_f32", LS, LS+1, 46, 47, emit=a_)
    a_(f"v_cndmask_b32 v36, v{LS}, v{LS+1}, {sr(M_G1,2)}")
    a_(f"ds_write_b32 v56, v36 offset:{L_LP}")
    rest = trs[ntr0:]
    out = []
    k = 0
    for idx, ins in enumerate(sm):
        out.append(ins)
        want = (idx + 1) * len(rest) // (len(sm) - 4)
        while k < min(want, len(rest)):
            out.append(rest[k]); k += 1
    while k < len(rest): out.append(rest[k]); k += 1
    for ins in out: e(ins)
    e("s_waitcnt lgkmcnt(0)")
    e("s_barrier")
    G.stamp(6)
    PA, OC = 208, 128
    for ks in range(4):
        for ht in range(2):
            e(f"ds_read_b128 {vr(PA+(ht*4+ks)*4,4)}, v{120+ks} offset:{L_P + 4096*ht}")
    for w in range(4):
        e(f"ds_read_b32 v{240+w}, v57 offset:{L_LP + 128*w}")
    def mm(ks, t, ht):
        d = OC + (ht*8+t)*4
        c = "0" if ks == 0 else vr(d, 4)
        e(f"v_mfma_f32_16x16x32_bf16 {vr(d,4)}, {vr(PA+(ht*4+ks)*4,4)}, {ar((ks*8+t)*4,4)}, {c}")
    for ks in range(3):
        e(f"s_waitcnt lgkmcnt({4 + 2*(3-ks)})")
        for t in range(8):
            for ht in range(2): mm(ks, t, ht)
    e("s_waitcnt lgkmcnt(0)")
    for t in range(8): mm(3, t, 0)
    ST0 = 88
    cv = []
    for tp in range(4):
        for r in range(4):
            cv.append(f"v_cvt_pk_bf16_f32 v{ST0+4*r+tp}, v{OC+(2*tp)*4+r}, v{OC+(2*tp+1)*4+r}")
    for t in range(8):
        mm(3, t, 1)
        if t >= 1:
            e(cv[2*(t-1)]); e(cv[2*(t-1)+1])
    e(cv[14]); e(cv[15])
    G.stamp(7)
    for r in range(4):
        e(f"buffer_store_dwordx4 {vr(ST0+4*r,4)}, v124, {sr(SRD_WS,4)}, s34 offen offset:{r*256} sc1")
    e("v_add_f32 v240, v240, v241")
    e("v_add_f32 v242, v242, v243")
    e(f"v_cndmask_b32 v44, v{MXR}, v{MXR+1}, {sr(M_G1,2)}")
    e("v_mov_b32 v45, 0")
    e("v_add_f32 v46, v240, v242")
    e("v_mov_b32 v47, 0")
    nop(2)
    for r in range(4):
        for tp in range(4):
            e(f"v_cvt_pk_bf16_f32 v{ST0+16+4*r+tp}, v{OC+(8+2*tp)*4+r}, v{OC+(8+2*tp+1)*4+r}")
        e(f"buffer_store_dwordx4 {vr(ST0+16+4*r,4)}, v124, {sr(SRD_WS,4)}, s35 offen offset:{r*256} sc1")
    lo32()
    e(f"buffer_store_dwordx4 {vr(44,4)}, v125, {sr(SRD_WS,4)}, s36 offen sc1")
    e("s_mov_b64 exec, 0xff")
    e("s_waitcnt vmcnt(0)")
    G.stamp(8)
    e(f"buffer_store_dwordx2 {vr(252,2)}, v126, {sr(SRD_WS,4)}, s37 offen sc1")
    e("s_mov_b64 exec, -1")
    G.stamp(9)
    lab("L_adone")
    store_stamps()
    lab("L_end")
    e("s_endpgm")

    tail = []
    if prepost:
        for nm, off, spin in (("pre_kernel", 0x900000, 400), ("post_kernel", 0x900100, 0)):
            tail += [f".globl {nm}", ".p2align 8", f".type {nm},@function", f"{nm}:",
                     "  s_memrealtime s[10:11]",
                     "  s_cmp_ge_u32 s2, 1", f"  s_cbranch_scc1 L_{nm}_end",
                     "  s_load_dwordx2 s[4:5], s[0:1], 96"]
            if spin:
                tail += [f"  s_mov_b32 s6, {spin}", f"L_{nm}_sp:", "  s_sleep 8", "  s_sub_u32 s6, s6, 1", "  s_cmp_lg_u32 s6, 0", f"  s_cbranch_scc1 L_{nm}_sp",
                         "  s_memrealtime s[10:11]"]
            tail += ["  s_waitcnt lgkmcnt(0)", "  s_mov_b32 s12, s4", "  s_and_b32 s13, s5, 0xffff", "  s_mov_b32 s14, 0x10000000", "  s_mov_b32 s15, 0x20000",
                     "  v_mov_b32 v1, s10", f"  v_mov_b32 v2, {off}", "  s_mov_b64 exec, 1",
                     "  buffer_store_dword v1, v2, s[12:15], 0 offen", "  s_waitcnt vmcnt(0)", f"L_{nm}_end:", "  s_endpgm"]
        tail.append('.section .rodata,"a"')
        for nm in ("pre_kernel", "post_kernel"):
            tail += [".p2align 6", f".amdhsa_kernel {nm}", "  .amdhsa_next_free_vgpr 32",
                 "  .amdhsa_next_free_sgpr 24", "  .amdhsa_accum_offset 32", "  .amdhsa_group_segment_fixed_size 0",
                 "  .amdhsa_kernarg_size 104", "  .amdhsa_user_sgpr_count 2", "  .amdhsa_user_sgpr_kernarg_segment_ptr 1",
                 "  .amdhsa_system_sgpr_workgroup_id_x 1", ".end_amdhsa_kernel"]
    if extra_empty:
        tail += [".globl empty_kernel", ".p2align 8", ".type empty_kernel,@function", "empty_kernel:", "  s_endpgm"]
        tail += ['.section .rodata,"a"', ".p2align 6", ".amdhsa_kernel empty_kernel", "  .amdhsa_next_free_vgpr 32",
                 "  .amdhsa_next_free_sgpr 16", "  .amdhsa_accum_offset 32", "  .amdhsa_group_segment_fixed_size 0",
                 "  .amdhsa_kernarg_size 104", "  .amdhsa_user_sgpr_count 2", "  .amdhsa_user_sgpr_kernarg_segment_ptr 1",
                 "  .amdhsa_system_sgpr_workgroup_id_x 1", ".end_amdhsa_kernel"]
    tail.append('.section .rodata,"a"')
    tail.append(".p2align 6")
    tail.append(f".amdhsa_kernel {NAME}_kernel")
    tail.append("  .amdhsa_next_free_vgpr 384")
    tail.append("  .amdhsa_next_free_sgpr 102")
    tail.append("  .amdhsa_accum_offset 256")
    tail.append("  .amdhsa_group_segment_fixed_size 0")
    tail.append("  .amdhsa_kernarg_size 104")
    tail.append("  .amdhsa_user_sgpr_count 2")
    tail.append("  .amdhsa_user_sgpr_kernarg_segment_ptr 1")
    tail.append("  .amdhsa_system_sgpr_workgroup_id_x 1")
    tail.append(".end_amdhsa_kernel")
    for ln in G.L:
        if "buffer_" in ln:
            m = re.search(r"offset:(\d+)", ln)
            assert not m or int(m.group(1)) <= 4095, ln
    return "\n".join(hdr + G.L + tail) + "\n"

if __name__ == "__main__":
    import argparse
    ap = argparse.ArgumentParser()
    ap.add_argument("-o", default=f"cdna_kernels/{NAME}.s")
    ap.add_argument("--stamps", action="store_true")
    ap.add_argument("--extra-empty", type=int, default=0)
    ap.add_argument("--prepost", action="store_true")
    ap.add_argument("--set", action="append", default=[], help="key=value generator option")
    a = ap.parse_args()
    kw = {}
    for s_ in a.set:
        k, v = s_.split("=")
        kw[k] = int(v) if re.fullmatch(r"-?\d+", v) else v
    s = build(stamps=a.stamps, extra_empty=a.extra_empty, prepost=a.prepost, **kw)
    open(a.o, "w").write(s)
    print("wrote", a.o, len(s), "bytes")
```

```python
import sys, math, struct, re
NAME = "parallel_sum__compressed_kv_cla__glu_gated_swiglu__decode"

WS_EPOCH = 0x0
WS_FB    = 0x1000
WS_F1    = 0x8000
WS_F1F   = 0x640000
WS_QP    = 0x20000
WS_QA    = 0x60000
WS_CP    = 0x70000
WS_EP    = 0xB0000
WS_FP    = 0xF0000
WS_SU    = 0x150000
WS_QPF   = 0x190000
WS_CPF   = 0x600000
WS_CF    = 0x1D0000
WS_OP    = 0x200000
WS_STAMP = 0x800000
FP_S = 48
NFFN = 86

R0, R1, R2 = 8192, 40960, 73728
L_XN  = 0
L_AVQ = 2048
L_AVO = L_AVQ + 512
L_AVC = L_AVO + 512
L_WGT = L_AVC + 512
L_QS  = L_WGT + 512
L_FIN = L_QS + 512
L_GUW = L_FIN + 512
L_HW = L_GUW + 512
L_CKV = 32768
L_QAL = 0
L_MX  = 0
L_LP  = 512
L_P   = 4096
L_GU  = 16384
L_H   = 16384 + 512
LDS_BYTES = 163840

P_X, P_CKV, P_WQ, P_WUK, P_WUV, P_WO, P_BX, P_W1, P_W3, P_W2, P_OUT, P_DBG, P_WS = 64, 66, 68, 70, 72, 74, 76, 78, 80, 82, 84, 86, 88
S_W, S_H, S_I, S_TAG = 3, 4, 5, 6
SRD_WS, SRD_1, SRD_2, SRD_3, SRD_4 = 8, 12, 16, 20, 24
M_G1, M_HI = 44, 46
V_LANE, V_L15, V_G, V_L16B, V_SW, V_TL0, V_TL1 = 1, 2, 3, 4, 5, 6, 7

def vr(a, n): return f"v[{a}:{a+n-1}]"
def ar(a, n): return f"a[{a}:{a+n-1}]"
def sr(a, n): return f"s[{a}:{a+n-1}]"
def fbits(x): return hex(struct.unpack("<I", struct.pack("<f", x))[0])

class Gen:
    def __init__(self, **kw):
        d = dict(stamps=False, nt_ckv=True, nt_w=True, spin=200000, thr_n=4, thr_w=3, thr2_w=0,
                 gate='N', depth=3, sl_unit=1, sl_flag=2, uk_late=1, fast_k=24)
        d.update(kw)
        self.__dict__.update(d)
        self.L = []
        self.nlab = 0
    def e(self, s): self.L.append("  " + s)
    def lab(self, s): self.L.append(s + ":")
    def newlab(self, p):
        self.nlab += 1
        return f"L_{p}_{self.nlab}"
    def nop(self, n):
        while n > 0:
            k = min(n, 16)
            self.e(f"s_nop {k-1}")
            n -= k
    def stamp(self, idx):
        if not self.stamps: return
        self.e("s_memrealtime s[40:41]")
        self.e("s_waitcnt lgkmcnt(0)")
        self.e(f"v_writelane_b32 v255, s40, {idx}")
    def stampval(self, idx, sreg):
        if not self.stamps: return
        self.e(f"v_writelane_b32 v255, s{sreg}, {idx}")
    def srd(self, dst, ptr, size):
        self.e(f"s_mov_b32 s{dst}, s{ptr}")
        self.e(f"s_and_b32 s{dst+1}, s{ptr+1}, 0xffff")
        self.e(f"s_mov_b32 s{dst+2}, {size}")
        self.e(f"s_mov_b32 s{dst+3}, 0x20000")

def build(extra_empty=0, prepost=False, **kw):
    G = Gen(**kw)
    e, lab, nop = G.e, G.lab, G.nop
    NTW = " nt" if G.nt_w else ""
    NTC = " nt" if G.nt_ckv else ""
    hdr = []
    if prepost:
        hdr.append(f"; @launch kernel=pre_kernel grid=(256,1,1) block=(64,1,1) lds=0")
        hdr.append(f"; @launch kernel={NAME}_kernel grid=(256,1,1) block=(256,1,1) lds={LDS_BYTES}")
        hdr.append(f"; @launch kernel=post_kernel grid=(256,1,1) block=(64,1,1) lds=0")
    elif extra_empty:
        hdr.append(f"; @launch kernel={NAME}_kernel grid=(256,1,1) block=(256,1,1) lds={LDS_BYTES}")
        for _ in range(extra_empty):
            hdr.append(f"; @launch kernel=empty_kernel grid=(256,1,1) block=(256,1,1) lds=0")
    else:
        hdr.append(f"; @launch grid=(256,1,1) block=(256,1,1) lds={LDS_BYTES}")
    hdr.append('.amdgcn_target "amdgcn-amd-amdhsa--gfx950"')
    hdr.append(".text")
    hdr.append(f".globl {NAME}_kernel")
    hdr.append(".p2align 8")
    hdr.append(f".type {NAME}_kernel,@function")
    hdr.append(f"{NAME}_kernel:")

    def lo32():
        e("s_mov_b32 exec_lo, -1"); e("s_mov_b32 exec_hi, 0")
    def check_tags(tagregs):
        first = True
        for k in range(0, len(tagregs), 2):
            a = tagregs[k]; b = tagregs[k+1] if k + 1 < len(tagregs) else tagregs[k]
            e(f"v_xor_b32 v61, s{S_TAG}, v{a}")
            e(f"v_xor_b32 v62, s{S_TAG}, v{b}")
            if first:
                e("v_or_b32 v60, v61, v62"); first = False
            else:
                e("v_or3_b32 v60, v60, v61, v62")
        e("v_cmp_ne_u32 vcc, 0, v60")
    def poll(mk_loads, base, nregs, tagoffs, ring, nld, sleep, cnt_idx=None):
        ring = ring[:G.depth]
        D = len(ring)
        lp, done = G.newlab("poll"), G.newlab("pdone")
        e(f"s_mov_b32 s48, {G.spin}")
        mk = mk_loads if isinstance(mk_loads, (list, tuple)) else [mk_loads] * D
        for k in range(D - 1):
            mk[k](ring[k])
            if sleep: e(f"s_sleep {sleep}")
        exits = [G.newlab("pexit") for _ in range(D)]
        lab(lp)
        for k in range(D):
            mk[(k + D - 1) % D](ring[(k + D - 1) % D])
            e(f"s_waitcnt vmcnt({(D-1)*nld})")
            check_tags([ring[k] + o for o in tagoffs])
            e(f"s_cbranch_vccz {exits[k]}")
            if sleep: e(f"s_sleep {sleep}")
        e("s_sub_u32 s48, s48, 1")
        e(f"s_cbranch_scc0 {lp}")
        for k in range(D):
            lab(exits[k])
            for r in range(nregs): e(f"v_mov_b32 v{base+r}, v{ring[k]+r}")
            if k < D - 1: e(f"s_branch {done}")
        lab(done)
        if cnt_idx is not None: G.stampval(cnt_idx, 48)
    def dual_poll(ld_fast, ld_slow, slow_store, base, nregs, tagoffs, ring, nld, cnt_idx):
        lp, x0, x1, done = G.newlab("fp"), G.newlab("fx0"), G.newlab("fx1"), G.newlab("fdone")
        r0, r1 = ring[0], ring[1]
        e(f"s_mov_b32 s49, {G.fast_k}")
        ld_fast(r0)
        lab(lp)
        for (a, b, x) in ((r0, r1, x0), (r1, r0, x1)):
            ld_fast(b)
            e(f"s_waitcnt vmcnt({nld})")
            check_tags([a + o for o in tagoffs])
            e(f"s_cbranch_vccz {x}")
        e("s_sub_u32 s49, s49, 1")
        e(f"s_cbranch_scc0 {lp}")
        slow_store()
        poll([ld_fast, ld_slow, ld_fast], base, nregs, tagoffs, ring, nld, G.sl_unit, cnt_idx)
        e(f"s_branch {done}")
        for (a, x) in ((r0, x0), (r1, x1)):
            lab(x)
            for r in range(nregs): e(f"v_mov_b32 v{base+r}, v{a+r}")
            slow_store()
            if x == x0: e(f"s_branch {done}")
        lab(done)
        G.stampval(cnt_idx + 10, 49)
    def dma_tile128(srd, v0, v1, soff_fn, lds_base, flags):
        e(f"s_lshl_b32 s31, s{S_W}, 13")
        for n in range(8):
            soff_fn(n)
            e(f"s_add_u32 m0, s31, {lds_base + n*1024}")
            v = v1 if (n >> 1) & 1 else v0
            nop(1)
            e(f"buffer_load_dwordx4 v{v}, {sr(srd,4)}, s30 offen{flags} lds")
    def lin(step):
        def f(n):
            if n == 0: e("s_mov_b32 s30, s29")
            else: e(f"s_add_u32 s30, s29, {n*step}")
        return f
    def gemv_loadB(base, vB, tmp0, tmp1):
        if base + 3*8192 + 1024 <= 65535:
            a0, a1, off = V_TL0, V_TL1, base
        else:
            e(f"v_add_u32 v{tmp0}, {base}, v{V_TL0}")
            e(f"v_add_u32 v{tmp1}, {base}, v{V_TL1}")
            a0, a1, off = tmp0, tmp1, 0
        for ks in range(4):
            for t in range(2):
                for u in range(2):
                    r = vB + (t*4 + ks)*4 + 2*u
                    e(f"ds_read_b64_tr_b16 {vr(r,2)}, v{a1 if t else a0} offset:{off + 8192*ks + 1024*u}")
    def gemv_loadA(vaddr, vA, off=0):
        for ks in range(4):
            e(f"ds_read_b128 {vr(vA+4*ks,4)}, v{vaddr} offset:{off + 64*ks}")
    def gemv_mma(vA, vB, vC):
        for ks in range(4):
            for t in range(2):
                c = "0" if ks == 0 else vr(vC+4*t, 4)
                e(f"v_mfma_f32_16x16x32_bf16 {vr(vC+4*t,4)}, {vr(vA+4*ks,4)}, {vr(vB+(t*4+ks)*4,4)}, {c}")
        nop(9)
    def sel_tb(vC, d0, d1):
        e(f"v_cndmask_b32 v{d0}, v{vC}, v{vC+4}, {sr(M_G1,2)}")
        e(f"v_cndmask_b32 v{d1}, v{vC+1}, v{vC+5}, {sr(M_G1,2)}")
    def publish_units(vC, voff, soff, q, fast=False):
        sel_tb(vC, q, q+2)
        lo32()
        e(f"buffer_store_dwordx4 {vr(q,4)}, v{voff}, {sr(SRD_WS,4)}, s{soff} offen" + ("" if fast else " sc1"))
        e("s_mov_b64 exec, -1")
    def wave_red(op, v, tmp):
        for r in (8, 4, 2, 1):
            nop(2)
            e(f"{op}_dpp v{v}, v{v}, v{v} row_ror:{r} row_mask:0xf bank_mask:0xf")
        e(f"v_mov_b32 v{tmp}, v{v}")
        nop(2)
        e(f"v_permlane16_swap_b32 v{v}, v{tmp}")
        nop(1)
        e(f"{op} v{v}, v{v}, v{tmp}")
        e(f"v_mov_b32 v{tmp}, v{v}")
        nop(2)
        e(f"v_permlane32_swap_b32 v{v}, v{tmp}")
        nop(1)
        e(f"{op} v{v}, v{v}, v{tmp}")
    def xg_reduce2(op, va, vb, ta, tb, emit=None):
        em = emit or e
        for perm in ("v_permlane16_swap_b32", "v_permlane32_swap_b32"):
            em(f"v_mov_b32 v{ta}, v{va}")
            em(f"v_mov_b32 v{tb}, v{vb}")
            em("s_nop 0")
            em(f"{perm} v{va}, v{ta}")
            em(f"{perm} v{vb}, v{tb}")
            em("s_nop 0")
            em(f"{op} v{va}, v{va}, v{ta}")
            em(f"{op} v{vb}, v{vb}, v{tb}")
    def wave_red2(op, va, vb, ta, tb):
        for r in (8, 4, 2, 1):
            nop(1)
            e(f"{op}_dpp v{va}, v{va}, v{va} row_ror:{r} row_mask:0xf bank_mask:0xf")
            e(f"{op}_dpp v{vb}, v{vb}, v{vb} row_ror:{r} row_mask:0xf bank_mask:0xf")
        xg_reduce2(op, va, vb, ta, tb)
    def rbf(v):
        e(f"v_cvt_pk_bf16_f32 v{v}, v{v}, v{v}")
        e(f"v_lshlrev_b32 v{v}, 16, v{v}")
    def layernorm(X0, X1, F0, F1, T, OUT):
        S0, S1, T0, T1, Q0, Q1, U0, U1 = range(T, T+8)
        for (X, F) in ((X0, F0), (X1, F1)):
            for k in range(4):
                e(f"v_lshlrev_b32 v{F+2*k}, 16, v{X+k}")
                e(f"v_and_b32 v{F+2*k+1}, 0xffff0000, v{X+k}")
        e(f"v_add_f32 v{S0}, v{F0}, v{F0+1}"); e(f"v_add_f32 v{S1}, v{F1}, v{F1+1}")
        for k in range(2, 8):
            e(f"v_add_f32 v{S0}, v{S0}, v{F0+k}"); e(f"v_add_f32 v{S1}, v{S1}, v{F1+k}")
        wave_red2("v_add_f32", S0, S1, T0, T1)
        e("s_mov_b32 s28, 0x3b000000")
        e(f"v_mul_f32 v{S0}, s28, v{S0}")
        e(f"v_mul_f32 v{S1}, s28, v{S1}")
        for k in range(8):
            e(f"v_sub_f32 v{U0}, v{F0+k}, v{S0}")
            e(f"v_sub_f32 v{U1}, v{F1+k}, v{S1}")
            if k == 0:
                e(f"v_mul_f32 v{Q0}, v{U0}, v{U0}"); e(f"v_mul_f32 v{Q1}, v{U1}, v{U1}")
            else:
                e(f"v_fmac_f32 v{Q0}, v{U0}, v{U0}"); e(f"v_fmac_f32 v{Q1}, v{U1}, v{U1}")
        wave_red2("v_add_f32", Q0, Q1, T0, T1)
        e("s_mov_b32 s29, 0x3727c5ac")
        def both(f): f(Q0, S0); f(Q1, S1)
        both(lambda Q, S: e(f"v_mul_f32 v{Q}, s28, v{Q}"))
        both(lambda Q, S: e(f"v_cvt_pk_bf16_f32 v{Q}, v{Q}, v{Q}"))
        both(lambda Q, S: e(f"v_lshlrev_b32 v{Q}, 16, v{Q}"))
        both(lambda Q, S: e(f"v_add_f32 v{Q}, s29, v{Q}"))
        both(lambda Q, S: e(f"v_cvt_pk_bf16_f32 v{Q}, v{Q}, v{Q}"))
        both(lambda Q, S: e(f"v_lshlrev_b32 v{Q}, 16, v{Q}"))
        both(lambda Q, S: e(f"v_sqrt_f32 v{Q}, v{Q}"))
        both(lambda Q, S: e(f"v_cvt_pk_bf16_f32 v{S}, v{S}, v{S}"))
        both(lambda Q, S: e(f"v_cvt_pk_bf16_f32 v{Q}, v{Q}, v{Q}"))
        both(lambda Q, S: e(f"v_lshlrev_b32 v{S}, 16, v{S}"))
        both(lambda Q, S: e(f"v_lshlrev_b32 v{Q}, 16, v{Q}"))
        both(lambda Q, S: e(f"v_rcp_f32 v{Q}, v{Q}"))
        for (F, S, Q, XB) in ((F0, S0, Q0, 0), (F1, S1, Q1, 1)):
            for k in range(0, 8, 2):
                e(f"v_sub_f32 v{F+k}, v{F+k}, v{S}")
                e(f"v_sub_f32 v{F+k+1}, v{F+k+1}, v{S}")
                e(f"v_cvt_pk_bf16_f32 v{U0}, v{F+k}, v{F+k+1}")
                e(f"v_lshlrev_b32 v{F+k}, 16, v{U0}")
                e(f"v_and_b32 v{F+k+1}, 0xffff0000, v{U0}")
                e(f"v_mul_f32 v{F+k}, v{F+k}, v{Q}")
                e(f"v_mul_f32 v{F+k+1}, v{F+k+1}, v{Q}")
                e(f"v_cvt_pk_bf16_f32 v{OUT+XB*4+k//2}, v{F+k}, v{F+k+1}")
    def layernorm1(X, F, T, OUT):
        S, Q, T0, T1, U, C = range(T, T+6)
        for k in range(4):
            e(f"v_lshlrev_b32 v{F+2*k}, 16, v{X+k}")
            e(f"v_and_b32 v{F+2*k+1}, 0xffff0000, v{X+k}")
        e(f"v_readfirstlane_b32 s28, v{F}")
        nop(2)
        for k in range(8): e(f"v_subrev_f32 v{F+k}, s28, v{F+k}")
        e(f"v_add_f32 v{S}, v{F}, v{F+1}")
        e(f"v_mul_f32 v{Q}, v{F}, v{F}")
        e(f"v_fmac_f32 v{Q}, v{F+1}, v{F+1}")
        for k in range(2, 8):
            e(f"v_add_f32 v{S}, v{S}, v{F+k}")
            e(f"v_fmac_f32 v{Q}, v{F+k}, v{F+k}")
        wave_red2("v_add_f32", S, Q, T0, T1)
        e("s_mov_b32 s29, 0x3b000000")
        e(f"v_mul_f32 v{S}, s29, v{S}")
        e(f"v_mul_f32 v{Q}, s29, v{Q}")
        e(f"v_fma_f32 v{Q}, -v{S}, v{S}, v{Q}")
        e(f"v_add_f32 v{U}, s28, v{S}")
        e(f"v_max_f32 v{Q}, 0, v{Q}")
        e(f"v_cvt_pk_bf16_f32 v{U}, v{U}, v{U}")
        e(f"v_cvt_pk_bf16_f32 v{Q}, v{Q}, v{Q}")
        e(f"v_lshlrev_b32 v{U}, 16, v{U}")
        e(f"v_lshlrev_b32 v{Q}, 16, v{Q}")
        e("s_mov_b32 s29, 0x3727c5ac")
        e(f"v_add_f32 v{Q}, s29, v{Q}")
        e(f"v_subrev_f32 v{U}, s28, v{U}")
        e(f"v_cvt_pk_bf16_f32 v{Q}, v{Q}, v{Q}")
        e(f"v_lshlrev_b32 v{Q}, 16, v{Q}")
        e(f"v_sqrt_f32 v{Q}, v{Q}")
        for k in range(4): e(f"v_sub_f32 v{F+k}, v{F+k}, v{U}")
        e(f"v_cvt_pk_bf16_f32 v{Q}, v{Q}, v{Q}")
        for k in range(4, 8): e(f"v_sub_f32 v{F+k}, v{F+k}, v{U}")
        e(f"v_lshlrev_b32 v{Q}, 16, v{Q}")
        e(f"v_rcp_f32 v{Q}, v{Q}")
        for k in range(0, 8, 2):
            e(f"v_cvt_pk_bf16_f32 v{OUT+k//2}, v{F+k}, v{F+k+1}")
        for k in range(0, 8, 2):
            e(f"v_lshlrev_b32 v{F+k}, 16, v{OUT+k//2}")
            e(f"v_and_b32 v{F+k+1}, 0xffff0000, v{OUT+k//2}")
        for k in range(8): e(f"v_mul_f32 v{F+k}, v{F+k}, v{Q}")
        for k in range(0, 8, 2):
            e(f"v_cvt_pk_bf16_f32 v{OUT+k//2}, v{F+k}, v{F+k+1}")
    def store_stamps():
        if not G.stamps: return
        e("s_getreg_b32 s30, hwreg(HW_REG_XCC_ID)")
        e("v_writelane_b32 v255, s30, 40")
        e(f"s_lshl_b32 s30, s2, 2")
        e(f"s_add_u32 s30, s30, s{S_W}")
        e(f"s_lshl_b32 s30, s30, 8")
        e(f"s_add_u32 s30, s30, {WS_STAMP}")
        e(f"v_lshlrev_b32 v60, 2, v{V_LANE}")
        e(f"buffer_store_dword v255, v60, {sr(SRD_WS,4)}, s30 offen")

    e("s_cmp_ge_u32 s2, 256")
    e("s_cbranch_scc1 L_end")
    if G.stamps:
        e("v_mov_b32 v255, 0")
        e("s_memrealtime s[40:41]")
    e(f"s_load_dwordx16 s[64:79], s[0:1], 0")
    e(f"s_load_dwordx8 s[80:87], s[0:1], 64")
    e(f"s_load_dwordx2 s[88:89], s[0:1], 96")
    e(f"v_and_b32 v{V_LANE}, 63, v0")
    e(f"v_lshrrev_b32 v8, 6, v0")
    e(f"v_and_b32 v{V_L15}, 15, v0")
    e(f"v_readfirstlane_b32 s{S_W}, v8")
    e(f"v_lshrrev_b32 v{V_G}, 4, v{V_LANE}")
    e(f"v_lshlrev_b32 v{V_L16B}, 4, v{V_LANE}")
    e(f"s_mov_b32 s{M_G1}, 0xffff0000"); e(f"s_mov_b32 s{M_G1+1}, 0xffff0000")
    e(f"s_mov_b32 s{M_HI}, 0"); e(f"s_mov_b32 s{M_HI+1}, -1")
    e("s_cmp_ge_u32 s2, 128")
    e("s_cbranch_scc1 L_att")

    V_AVW, V_AVR, V_PUB, VD0, VD1 = 56, 57, 55, 58, 59
    RING8 = [224, 232, 240]
    RING4 = [224, 228, 232]
    PUBQ = 48
    e(f"v_lshlrev_b32 v8, 1, v{V_G}")
    e(f"v_xor_b32 v8, v8, v{V_L15}")
    e(f"v_lshlrev_b32 v{V_SW}, 4, v8")
    e("s_and_b32 s28, s2, 7")
    e("s_lshl_b32 s28, s28, 2")
    e("s_bfe_u32 s29, s2, 0x20003")
    e(f"s_add_u32 s{S_H}, s28, s29")
    e(f"s_lshr_b32 s{S_I}, s2, 5")
    e(f"v_lshl_add_u32 v{VD0}, v{V_G}, 13, v{V_SW}")
    e(f"v_xor_b32 v{VD1}, 128, v{VD0}")
    e(f"s_lshl_b32 s29, s{S_I}, 7")
    e(f"s_lshl_b32 s28, s{S_W}, 5")
    e("s_add_u32 s29, s29, s28")
    e("s_lshl_b32 s29, s29, 13")
    e(f"s_lshl_b32 s28, s{S_H}, 8")
    e("s_add_u32 s29, s29, s28")
    e("s_waitcnt lgkmcnt(0)")
    if G.stamps: e("v_writelane_b32 v255, s40, 0")
    G.srd(SRD_1, P_X, 2048)
    G.srd(SRD_2, P_WQ, 4194304)
    X0, X1 = 8, 12
    e(f"s_lshr_b32 s37, s{S_W}, 1")
    e("s_lshl_b32 s37, s37, 10")
    e(f"buffer_load_dwordx4 {vr(X0,4)}, v{V_L16B}, {sr(SRD_1,4)}, s37 offen")
    dma_tile128(SRD_2, VD0, VD1, lin(4*8192), R0, NTW)
    e(f"s_load_dword s{S_TAG}, {sr(P_WS,2)}, {WS_EPOCH}")
    G.srd(SRD_3, P_WUK, 4194304)
    dma_tile128(SRD_3, VD0, VD1, lin(4*8192), R1, NTW)
    G.srd(SRD_WS, P_WS, 0x10000000)
    e(f"s_lshl_b32 s32, s{S_H}, 2")
    e(f"s_add_u32 s32, s32, s{S_W}")
    e("s_lshl_b32 s32, s32, 11")
    for reg in (WS_QPF,):
        e(f"s_add_u32 s28, s32, {reg}")
        e(f"buffer_load_dwordx4 {vr(232,4)}, v{V_L16B}, {sr(SRD_WS,4)}, s28 offen sc1")
        e(f"buffer_load_dwordx4 {vr(236,4)}, v{V_L16B}, {sr(SRD_WS,4)}, s28 offen offset:1024 sc1")
    e(f"v_bfe_u32 v17, v{V_LANE}, 2, 2")
    e(f"v_and_b32 v18, 3, v{V_LANE}")
    e(f"v_and_b32 v19, 1, v{V_G}")
    e("v_lshl_add_u32 v20, v19, 2, v17")
    e("v_lshlrev_b32 v20, 1, v20")
    e(f"s_lshl_b32 s28, s{S_W}, 2")
    e("v_xor_b32 v20, s28, v20")
    e("v_lshrrev_b32 v21, 1, v18")
    e("v_add_u32 v20, v20, v21")
    e("v_lshlrev_b32 v20, 4, v20")
    e("v_and_b32 v21, 1, v18")
    e("v_lshl_add_u32 v20, v21, 3, v20")
    e(f"v_lshl_add_u32 v21, v{V_G}, 3, v17")
    e(f"v_lshl_add_u32 v{V_TL0}, v21, 8, v20")
    e(f"v_xor_b32 v{V_TL1}, 32, v{V_TL0}")
    e(f"v_lshrrev_b32 v20, 1, v{V_G}")
    e("v_lshlrev_b32 v20, 8, v20")
    e(f"v_lshl_add_u32 v21, v19, 4, v{V_L15}")
    e(f"s_lshl_b32 s28, s{S_W}, 5")
    e("v_add_u32 v21, s28, v21")
    e(f"v_lshl_add_u32 v{V_AVW}, v21, 1, v20")
    e(f"v_and_b32 v20, 1, v{V_LANE}")
    e("v_lshlrev_b32 v20, 8, v20")
    e(f"v_lshl_add_u32 v{V_AVR}, v{V_G}, 4, v20")
    e(f"v_lshlrev_b32 v{V_PUB}, 4, v{V_L15}")
    e(f"v_lshl_add_u32 v{V_PUB}, v{V_G}, 10, v{V_PUB}")
    e(f"s_lshl_b32 s32, s{S_H}, 2")
    e(f"s_add_u32 s32, s32, s{S_W}")
    e("s_lshl_b32 s32, s32, 11")
    e(f"s_lshl_b32 s33, s{S_I}, 8")
    e("s_add_u32 s33, s33, s32")
    e(f"v_and_b32 v52, 1, v{V_LANE}")
    e("v_lshlrev_b32 v52, 10, v52")
    e(f"v_lshl_add_u32 v52, v{V_G}, 4, v52")
    e(f"s_lshl_b32 s28, s{S_I}, 8")
    e(f"s_add_u32 s28, s28, {L_XN}")
    e("v_add_u32 v52, s28, v52")
    e(f"v_and_b32 v22, 3, v{V_LANE}")
    e(f"v_bfe_u32 v23, v{V_LANE}, 3, 1")
    e("v_lshl_add_u32 v22, v23, 2, v22")
    e("v_lshlrev_b32 v22, 1, v22")
    e(f"v_xor_b32 v22, v22, v{V_G}")
    e(f"v_lshlrev_b32 v23, 8, v{V_L15}")
    e(f"s_lshl_b32 s28, s{S_W}, 13")
    e(f"s_add_u32 s28, s28, {R1}")
    e("v_add_u32 v23, s28, v23")
    for ks in range(4):
        e(f"v_xor_b32 v24, {4*ks}, v22")
        e(f"v_lshl_add_u32 v{248+ks}, v24, 4, v23")
    G.stamp(1)
    e("s_waitcnt vmcnt(18)")
    layernorm1(X0, 16, 24, 40)
    e(f"v_add_u32 v30, s37, v{V_L16B}")
    e(f"ds_write_b128 v30, {vr(40,4)} offset:{L_XN}")
    G.stamp(2)
    e("s_waitcnt vmcnt(10) lgkmcnt(0)")
    e("s_barrier")
    G.stamp(3)
    VA, VB, VC, WUK = 96, 112, 144, 64
    gemv_loadA(52, VA)
    gemv_loadB(R0, VB, 21, 22)
    e(f"s_add_u32 s{S_TAG}, s{S_TAG}, 0x9e3779b9")
    e(f"s_add_u32 s34, s33, {WS_QP}")
    e(f"s_add_u32 s35, s33, {WS_QPF}")
    e(f"v_mov_b32 v{PUBQ+1}, s{S_TAG}")
    e(f"v_mov_b32 v{PUBQ+3}, s{S_TAG}")
    e("s_waitcnt lgkmcnt(0)")
    gemv_mma(VA, VB, VC)
    publish_units(VC, V_PUB, 35, PUBQ, fast=True)
    G.stamp(4)
    e("s_mov_b32 s37, s34")
    def consume4(soff, u0, lds_dst, cnt_idx, sfast, spub, voff, q):
        u1 = u0 + 4
        def mk(sreg):
            def ld(b):
                e(f"buffer_load_dwordx4 {vr(b,4)}, v{V_L16B}, {sr(SRD_WS,4)}, s{sreg} offen sc1")
                e(f"buffer_load_dwordx4 {vr(b+4,4)}, v{V_L16B}, {sr(SRD_WS,4)}, s{sreg} offen offset:1024 sc1")
            return ld
        def slow_store():
            lo32()
            e(f"buffer_store_dwordx4 {vr(q,4)}, v{voff}, {sr(SRD_WS,4)}, s{spub} offen sc1")
            e("s_mov_b64 exec, -1")
        dual_poll(mk(sfast), mk(soff), slow_store, u0, 8, [1, 3, 5, 7], RING8, 2, cnt_idx)
        nop(1)
        e(f"v_permlane32_swap_b32 v{u0}, v{u0+2}")
        e(f"v_permlane32_swap_b32 v{u1}, v{u1+2}")
        nop(1)
        e(f"v_add_f32 v{u0}, v{u0}, v{u0+2}")
        e(f"v_add_f32 v{u1}, v{u1}, v{u1+2}")
        nop(2)
        e(f"v_permlane16_swap_b32 v{u0}, v{u1}")
        nop(1)
        e(f"v_add_f32 v{u0}, v{u0}, v{u1}")
        write_av(u0, lds_dst)
    def write_av(vsrc, lds_dst):
        e(f"v_cvt_pk_bf16_f32 v54, v{vsrc}, v{vsrc}")
        e(f"ds_write_b16 v{V_AVW}, v54 offset:{lds_dst}")
    e(f"s_add_u32 s34, s32, {WS_QP}")
    e(f"s_add_u32 s35, s32, {WS_QPF}")
    e("s_waitcnt vmcnt(1)")
    for ct in range(2):
        for ks in range(4):
            e(f"ds_read_b128 {vr(WUK+(ct*4+ks)*4,4)}, v{248+ks} offset:{4096*ct}")
    consume4(34, 40, L_AVQ, 32, 35, 37, V_PUB, PUBQ)
    e("s_waitcnt lgkmcnt(0)")
    e("s_barrier")
    G.stamp(5)
    gemv_loadA(V_AVR, VA, L_AVQ)
    e(f"v_lshlrev_b32 v44, 4, v{V_L15}")
    e(f"v_lshl_add_u32 v44, v{V_G}, 15, v44")
    e(f"s_lshl_b32 s34, s{S_H}, 10")
    e(f"s_lshl_b32 s35, s{S_I}, 8")
    e("s_add_u32 s34, s34, s35")
    e(f"s_add_u32 s34, s34, {WS_QA}")
    e(f"s_lshl_b32 s35, s{S_H}, 2")
    e(f"s_add_u32 s35, s35, s{S_I}")
    e("s_lshl_b32 s35, s35, 4")
    e(f"s_add_u32 s35, s35, {WS_FB}")
    e("s_waitcnt lgkmcnt(0)")
    for ks in range(4):
        for ct in range(2):
            c = "0" if ks == 0 else vr(VC+4*ct, 4)
            e(f"v_mfma_f32_16x16x32_bf16 {vr(VC+4*ct,4)}, {vr(VA+4*ks,4)}, {vr(WUK+(ct*4+ks)*4,4)}, {c}")
    nop(9)
    sel_tb(VC, 40, 41)
    e(f"v_cndmask_b32 v40, v40, v41, {sr(M_HI,2)}")
    e(f"v_mul_f32 v40, {fbits((128 ** -0.5) * math.log2(math.e))}, v40")
    write_av(40, L_QS)
    e("s_waitcnt lgkmcnt(0)")
    e("s_barrier")
    def ldFB(b):
        e(f"buffer_load_dwordx2 {vr(b,2)}, v{V_L16B}, {sr(SRD_WS,4)}, s34 offen sc1")
        e(f"buffer_load_dwordx2 {vr(b+2,2)}, v{V_L16B}, {sr(SRD_WS,4)}, s34 offen offset:1024 sc1")
    def gate_poll():
        e("s_and_b32 s34, s2, 7")
        e("s_lshl_b32 s34, s34, 11")
        e(f"s_add_u32 s34, s34, {WS_FB}")
        poll(ldFB, 40, 4, [0, 1, 2, 3], RING4, 2, 4, 33)
    lskip = G.newlab("nopub")
    e(f"s_cmp_lg_u32 s{S_W}, 0")
    e(f"s_cbranch_scc1 {lskip}")
    e(f"ds_read_b128 {vr(40,4)}, v{V_L16B} offset:{L_QS}")
    e(f"v_mov_b32 v46, s{S_TAG}")
    e(f"v_mov_b32 v47, s{S_TAG}")
    e(f"v_lshlrev_b32 v45, 11, v{V_LANE}")
    e("s_waitcnt lgkmcnt(0)")
    lo32()
    e(f"buffer_store_dwordx4 {vr(40,4)}, v44, {sr(SRD_WS,4)}, s34 offen sc1")
    e("s_mov_b64 exec, 0xff")
    e("s_waitcnt vmcnt(0)")
    e(f"buffer_store_dwordx2 {vr(46,2)}, v45, {sr(SRD_WS,4)}, s35 offen sc1")
    e("s_mov_b64 exec, -1")
    if G.gate == 'B': gate_poll()
    lab(lskip)
    G.stamp(6)
    e("s_barrier")
    G.stamp(7)
    G.srd(SRD_1, P_WUV, 4194304)
    G.srd(SRD_2, P_WO, 4194304)
    e(f"v_lshl_add_u32 v{VD0}, v{V_G}, 17, v{V_SW}")
    e(f"v_xor_b32 v{VD1}, 128, v{VD0}")
    e(f"s_lshl_b32 s29, s{S_I}, 7")
    e(f"s_lshl_b32 s28, s{S_W}, 2")
    e("s_add_u32 s29, s29, s28")
    e("s_lshl_b32 s29, s29, 13")
    e(f"s_lshl_b32 s28, s{S_H}, 8")
    e("s_add_u32 s29, s29, s28")
    def f_uv(n):
        off = (64*(n & 1) + (n >> 1)) * 8192
        if off == 0: e("s_mov_b32 s30, s29")
        else: e(f"s_add_u32 s30, s29, {off}")
    dma_tile128(SRD_1, VD0, VD1, f_uv, R0, NTW)
    e(f"v_lshl_add_u32 v{VD0}, v{V_G}, 10, v{V_SW}")
    e(f"v_xor_b32 v{VD1}, 128, v{VD0}")
    e(f"s_lshl_b32 s29, s{S_H}, 7")
    e(f"s_lshl_b32 s28, s{S_W}, 5")
    e("s_add_u32 s29, s29, s28")
    e("s_lshl_b32 s29, s29, 10")
    e(f"s_lshl_b32 s28, s{S_I}, 8")
    e("s_add_u32 s29, s29, s28")
    dma_tile128(SRD_2, VD0, VD1, lin(4*1024), R2, NTW)
    R3, RW2 = 106496, 139264
    S_FS, S_HF = 50, 51
    lnf1 = G.newlab("noffn1")
    e("s_lshr_b32 s28, s2, 4")
    e("s_and_b32 s29, s2, 7")
    e("s_mul_i32 s29, s29, 6")
    e(f"s_add_u32 s{S_FS}, s28, s29")
    e("s_cmp_ge_u32 s2, 96")
    e(f"s_cselect_b32 s{S_FS}, 63, s{S_FS}")
    e(f"s_bfe_u32 s{S_HF}, s2, 0x10003")
    e(f"s_cmp_ge_u32 s{S_FS}, 43")
    e(f"s_cbranch_scc1 {lnf1}")
    G.srd(SRD_1, P_W1, 1409024)
    G.srd(SRD_2, P_W3, 1409024)
    G.srd(SRD_3, P_W2, 1409024)
    e(f"v_lshrrev_b32 v64, 2, v{V_LANE}")
    e("v_mul_u32_u24 v64, 2752, v64")
    e(f"v_lshrrev_b32 v65, 5, v{V_LANE}")
    e("v_lshlrev_b32 v66, 1, v65")
    e(f"v_and_b32 v67, 3, v{V_LANE}")
    e("v_xor_b32 v67, v66, v67")
    e("v_lshl_add_u32 v64, v67, 4, v64")
    e(f"s_lshl_b32 s29, s{S_HF}, 2")
    e(f"s_add_u32 s29, s29, s{S_W}")
    e(f"s_mul_i32 s29, s29, {64*2752}")
    e(f"s_lshl_b32 s28, s{S_FS}, 6")
    e("s_add_u32 s29, s29, s28")
    e(f"s_lshl_b32 s31, s{S_W}, 12")
    for (srd, base) in ((SRD_1, R3), (SRD_2, R3 + 16384)):
        for n in range(4):
            if n == 0: e("s_mov_b32 s30, s29")
            else: e(f"s_add_u32 s30, s29, {n*16*2752}")
            e(f"s_add_u32 m0, s31, {base + n*1024}")
            nop(1)
            e(f"buffer_load_dwordx4 v64, {sr(srd,4)}, s30 offen lds")
    e(f"v_and_b32 v67, 31, v{V_LANE}")
    e("v_xor_b32 v67, v67, v66")
    e(f"s_and_b32 s28, s{S_W}, 1")
    e("s_lshl_b32 s28, s28, 3")
    e("v_xor_b32 v67, s28, v67")
    e("v_lshlrev_b32 v67, 4, v67")
    e("v_lshl_add_u32 v67, v65, 10, v67")
    e("v_xor_b32 v68, 64, v67")
    e(f"s_lshl_b32 s29, s{S_FS}, 5")
    e(f"s_lshl_b32 s28, s{S_W}, 3")
    e("s_add_u32 s29, s29, s28")
    e("s_lshl_b32 s29, s29, 10")
    e(f"s_lshl_b32 s28, s{S_HF}, 9")
    e("s_add_u32 s29, s29, s28")
    for n in range(4):
        if n == 0: e("s_mov_b32 s30, s29")
        else: e(f"s_add_u32 s30, s29, {n*2048}")
        e(f"s_add_u32 m0, s31, {RW2 + n*1024}")
        nop(1)
        e(f"buffer_load_dwordx4 v{68 if n & 1 else 67}, {sr(SRD_3,4)}, s30 offen{NTW} lds")
    lab(lnf1)
    e(f"s_lshl_b32 s28, s{S_I}, 7")
    e(f"s_lshr_b32 s29, s{S_W}, 1")
    e("s_lshl_b32 s29, s29, 6")
    e("s_add_u32 s28, s28, s29")
    e("s_lshl_b32 s38, s28, 9")
    e(f"s_lshl_b32 s29, s{S_H}, 4")
    e("s_add_u32 s38, s38, s29")
    e(f"s_add_u32 s38, s38, {WS_SU}")
    e(f"v_lshlrev_b32 v52, 9, v{V_LANE}")
    e("s_and_b32 s34, s2, 7")
    e("s_lshl_b32 s34, s34, 13")
    e(f"s_lshl_b32 s28, s{S_I}, 11")
    e("s_add_u32 s34, s34, s28")
    e(f"s_add_u32 s34, s34, {WS_CF}")
    for reg in (WS_CPF,):
        e(f"s_add_u32 s28, s32, {reg}")
        e(f"buffer_load_dwordx4 {vr(232,4)}, v{V_L16B}, {sr(SRD_WS,4)}, s28 offen sc1")
        e(f"buffer_load_dwordx4 {vr(236,4)}, v{V_L16B}, {sr(SRD_WS,4)}, s28 offen offset:1024 sc1")
    lnw = G.newlab("nowarm")
    e("s_cmp_lt_u32 s2, 96")
    e(f"s_cbranch_scc1 {lnw}")
    e("s_sub_u32 s28, s2, 96")
    e("s_lshl_b32 s28, s28, 13")
    e(f"s_add_u32 s28, s28, {WS_EP}")
    e(f"v_lshlrev_b32 v20, 4, v0")
    e("v_add_u32 v24, 4096, v20")
    e(f"buffer_load_dwordx4 {vr(244,4)}, v20, {sr(SRD_WS,4)}, s28 offen sc1")
    e(f"buffer_load_dwordx4 {vr(248,4)}, v24, {sr(SRD_WS,4)}, s28 offen sc1")
    lab(lnw)
    e(f"v_lshl_add_u32 v{VD0}, v{V_G}, 15, v{V_SW}")
    e(f"v_xor_b32 v{VD1}, 128, v{VD0}")
    e(f"s_lshl_b32 s29, s{S_W}, 7")
    e(f"s_add_u32 s29, s29, s{S_I}")
    e("s_lshl_b32 s29, s29, 13")
    e(f"s_lshl_b32 s28, s{S_H}, 8")
    e("s_add_u32 s29, s29, s28")
    e(f"s_add_u32 s29, s29, {WS_OP}")
    e(f"v_lshlrev_b32 v53, 4, v{V_L15}")
    e(f"v_lshl_add_u32 v53, v{V_G}, 13, v53")
    e(f"s_lshl_b32 s28, s{S_I}, 2")
    e(f"s_add_u32 s28, s28, s{S_W}")
    e("s_lshl_b32 s28, s28, 14")
    e(f"s_lshl_b32 s39, s{S_H}, 8")
    e("s_add_u32 s28, s28, s39")
    e(f"s_add_u32 s39, s28, {WS_EP}")
    e(f"v_add_u32 v21, {R1}, v{V_TL0}")
    e(f"v_add_u32 v22, {R1}, v{V_TL1}")
    lw1 = G.newlab("w1"); lw2 = G.newlab("w2")
    e(f"s_cmp_ge_u32 s{S_FS}, 43")
    e(f"s_cbranch_scc1 {lw1}")
    e("s_waitcnt vmcnt(14)")
    e(f"s_branch {lw2}")
    lab(lw1)
    e("s_waitcnt vmcnt(0)")
    lab(lw2)
    e("s_barrier")
    G.stamp(8)
    BUV, BO = 160, 192
    gemv_loadB(R0, BUV, 25, 26)
    gemv_loadB(R2, BO, 25, 26)
    G.stamp(9)
    SAVE_S = [34, 35, 36, 37, 29]
    for k_, r_ in enumerate(SAVE_S): e(f"s_mov_b32 s{56+k_}, s{r_}")
    e("v_mov_b32 v69, v20"); e("v_mov_b32 v70, v21"); e("v_mov_b32 v71, v22"); e("v_mov_b32 v72, v24")
    lnf2 = G.newlab("noffn2")
    e(f"s_cmp_ge_u32 s{S_FS}, 43")
    e(f"s_cbranch_scc1 {lnf2}")
    e(f"v_bfe_u32 v17, v{V_LANE}, 2, 2")
    e(f"v_and_b32 v18, 3, v{V_LANE}")
    e(f"v_and_b32 v19, 1, v{V_G}")
    e(f"s_and_b32 s28, s{S_W}, 1")
    e("s_lshl_b32 s28, s28, 1")
    e("v_lshrrev_b32 v20, 1, v18")
    e("v_add_u32 v20, s28, v20")
    e("v_lshlrev_b32 v21, 1, v19")
    e("v_xor_b32 v20, v20, v21")
    e("v_lshlrev_b32 v20, 4, v20")
    e("v_and_b32 v21, 1, v18")
    e("v_lshl_add_u32 v20, v21, 3, v20")
    e(f"v_lshl_add_u32 v21, v{V_G}, 3, v17")
    e("v_lshl_add_u32 v20, v21, 6, v20")
    e(f"s_lshr_b32 s28, s{S_W}, 1")
    e("s_lshl_b32 s28, s28, 14")
    e(f"s_add_u32 s28, s28, {R3}")
    e("v_add_u32 v20, s28, v20")
    e(f"v_and_b32 v21, 1, v{V_LANE}")
    e("v_lshlrev_b32 v21, 10, v21")
    e(f"v_lshl_add_u32 v21, v{V_G}, 4, v21")
    e(f"s_lshl_b32 s28, s{S_HF}, 9")
    e("v_add_u32 v21, s28, v21")
    FA, FB_, GA = 96, 128, 76
    e("s_lshl_b32 s28, s2, 2")
    e(f"s_add_u32 s28, s28, s{S_W}")
    e("s_lshl_b32 s28, s28, 8")
    e(f"s_add_u32 s34, s28, {WS_F1}")
    e(f"s_add_u32 s35, s28, {WS_F1F}")
    e("s_xor_b32 s28, s2, 8")
    e("s_lshl_b32 s28, s28, 2")
    e(f"s_add_u32 s28, s28, s{S_W}")
    e("s_lshl_b32 s28, s28, 8")
    e(f"s_add_u32 s36, s28, {WS_F1}")
    e(f"s_add_u32 s37, s28, {WS_F1F}")
    e(f"v_lshlrev_b32 v26, 4, v{V_L15}")
    e(f"v_mov_b32 v41, s{S_TAG}")
    e(f"v_mov_b32 v43, s{S_TAG}")
    e(f"buffer_load_dwordx4 {vr(232,4)}, v26, {sr(SRD_WS,4)}, s37 offen sc1")
    e("s_waitcnt vmcnt(%d)" % (5 + 2))
    e("s_barrier")
    for ks in range(8):
        e(f"ds_read_b128 {vr(FA+4*ks,4)}, v21 offset:{L_XN + 64*ks}")
        for u in range(2):
            e(f"ds_read_b64_tr_b16 {vr(FB_+4*ks+2*u,2)}, v20 offset:{2048*ks + 256*u}")
    e("s_waitcnt lgkmcnt(0)")
    for ks in range(8):
        c = "0" if ks == 0 else vr(GA, 4)
        e(f"v_mfma_f32_16x16x32_bf16 {vr(GA,4)}, {vr(FA+4*ks,4)}, {vr(FB_+4*ks,4)}, {c}")
    e("v_lshl_add_u32 v20, v19, 2, v17")
    e("v_lshlrev_b32 v20, 1, v20")
    e(f"s_lshl_b32 s28, s{S_W}, 3")
    e("v_xor_b32 v20, s28, v20")
    e(f"v_lshl_add_u32 v21, v{V_G}, 3, v17")
    e("v_lshlrev_b32 v21, 9, v21")
    e("v_lshrrev_b32 v22, 1, v18")
    e("v_lshl_add_u32 v21, v22, 4, v21")
    e("v_and_b32 v22, 1, v18")
    e("v_lshl_add_u32 v21, v22, 3, v21")
    e(f"v_add_u32 v21, {RW2}, v21")
    for t in range(4):
        e(f"v_xor_b32 v22, {2*t}, v20")
        e(f"v_lshl_add_u32 v{28+t}, v22, 4, v21")
    e(f"v_mov_b32 v40, v{GA}")
    e(f"v_mov_b32 v42, v{GA+1}")
    e("s_mov_b64 exec, 0xffff")
    e(f"buffer_store_dwordx4 {vr(40,4)}, v26, {sr(SRD_WS,4)}, s35 offen")
    e("s_mov_b64 exec, -1")
    G.stamp(17)
    def ldF(sreg):
        return lambda b: e(f"buffer_load_dwordx4 {vr(b,4)}, v26, {sr(SRD_WS,4)}, s{sreg} offen sc1")
    def f1_slow():
        e("s_mov_b64 exec, 0xffff")
        e(f"buffer_store_dwordx4 {vr(40,4)}, v26, {sr(SRD_WS,4)}, s34 offen sc1")
        e("s_mov_b64 exec, -1")
    dual_poll(ldF(37), ldF(36), f1_slow, 44, 4, [1, 3], RING4, 1, 34)
    G.stamp(18)
    e(f"v_add_f32 v{GA}, v{GA}, v44")
    e(f"v_add_f32 v{GA+1}, v{GA+1}, v46")
    e(f"v_and_b32 v23, 1, v{V_G}")
    e("v_lshlrev_b32 v23, 7, v23")
    e(f"v_lshl_add_u32 v23, v{V_L15}, 2, v23")
    e(f"v_cndmask_b32 v22, v{GA}, v{GA+1}, {sr(M_G1,2)}")
    e(f"s_lshr_b32 s28, s{S_W}, 1")
    e("s_lshl_b32 s28, s28, 8")
    e(f"s_and_b32 s29, s{S_W}, 1")
    e("s_lshl_b32 s29, s29, 6")
    e("s_add_u32 s28, s28, s29")
    e("v_add_u32 v23, s28, v23")
    e(f"ds_write_b32 v23, v22 offset:{L_GUW}")
    e("s_waitcnt lgkmcnt(0)")
    e("s_barrier")
    e(f"v_lshlrev_b32 v23, 2, v{V_LANE}")
    e(f"ds_read_b32 v24, v23 offset:{L_GUW}")
    e(f"ds_read_b32 v25, v23 offset:{L_GUW+256}")
    for t in range(4):
        for u in range(2):
            e(f"ds_read_b64_tr_b16 {vr(FB_+4*t+2*u,2)}, v{28+t} offset:{2048*u}")
    e(f"v_mul_u32_u24 v20, {FP_S*256}, v{V_G}")
    e(f"v_lshl_add_u32 v20, v{V_L15}, 4, v20")
    e(f"s_lshl_b32 s28, s{S_HF}, 2")
    e(f"s_add_u32 s28, s28, s{S_W}")
    e(f"s_mul_i32 s28, s28, {4*FP_S*256}")
    e(f"s_lshl_b32 s29, s{S_FS}, 8")
    e("s_add_u32 s28, s28, s29")
    e(f"s_add_u32 s28, s28, {WS_FP}")
    e("s_waitcnt lgkmcnt(8)")
    rbf(24); rbf(25)
    e("v_mul_f32 v26, 0xbfb8aa3b, v24")
    e("v_exp_f32 v26, v26")
    e(f"v_lshlrev_b32 v23, 1, v{V_LANE}")
    e("v_add_f32 v26, 1.0, v26")
    e("v_rcp_f32 v26, v26")
    e(f"v_and_b32 v21, 1, v{V_LANE}")
    e("v_mul_f32 v26, v24, v26")
    rbf(26)
    e("v_mul_f32 v26, v26, v25")
    e("v_cvt_pk_bf16_f32 v26, v26, v26")
    e(f"ds_write_b16 v23, v26 offset:{L_HW}")
    e("v_lshlrev_b32 v21, 6, v21")
    e(f"v_lshl_add_u32 v21, v{V_G}, 4, v21")
    e("s_waitcnt lgkmcnt(0)")
    DA = 100
    e(f"ds_read_b128 {vr(FA,4)}, v21 offset:{L_HW}")
    e(f"v_mov_b32 v37, s{S_TAG}")
    e(f"v_mov_b32 v39, s{S_TAG}")
    e("s_waitcnt lgkmcnt(0)")
    for t in range(4):
        e(f"v_mfma_f32_16x16x32_bf16 {vr(DA+4*t,4)}, {vr(FA,4)}, {vr(FB_+4*t,4)}, 0")
    nop(9)
    for rr in range(2):
        e(f"v_cndmask_b32 v32, v{DA+rr}, v{DA+4+rr}, {sr(M_G1,2)}")
        e(f"v_cndmask_b32 v33, v{DA+8+rr}, v{DA+12+rr}, {sr(M_G1,2)}")
        e(f"v_cndmask_b32 v{36+2*rr}, v32, v33, {sr(M_HI,2)}")
    e(f"buffer_store_dwordx4 {vr(36,4)}, v20, {sr(SRD_WS,4)}, s28 offen sc1")
    G.stamp(20)
    lab(lnf2)
    for k_, r_ in enumerate(SAVE_S): e(f"s_mov_b32 s{r_}, s{56+k_}")
    e("v_mov_b32 v20, v69"); e("v_mov_b32 v21, v70"); e("v_mov_b32 v22, v71"); e("v_mov_b32 v24, v72")

    lodd = G.newlab("codd"); lj = G.newlab("cjoin")
    e(f"s_cmp_lg_u32 s{S_W}, 0")
    e(f"s_cbranch_scc1 {lodd}")
    poll(ldFB, 40, 4, [0, 1, 2, 3], RING4, 2, G.sl_flag, 35)
    lab(lodd)
    e("s_barrier")
    G.stamp(10)
    e(f"buffer_load_dwordx4 {vr(40,4)}, v52, {sr(SRD_WS,4)}, s38 offen sc1")
    dma_tile128(SRD_WS, VD0, VD1, lin(4*32768), R1, " sc1")
    e(f"s_and_b32 s28, s{S_W}, 1")
    e("s_cmp_lg_u32 s28, 0")
    e(f"s_cbranch_scc1 {lj}")
    e("s_waitcnt vmcnt(8)")
    e("v_mov_b32 v44, v40")
    wave_red("v_max_f32", 44, 45)
    e("v_sub_f32 v40, v40, v44")
    e("v_exp_f32 v40, v40")
    nop(1)
    e("v_mul_f32 v44, v40, v42")
    wave_red("v_add_f32", 44, 45)
    e("v_rcp_f32 v44, v44")
    e(f"s_lshr_b32 s29, s{S_W}, 1")
    e("s_mul_i32 s28, s29, 384")
    e(f"v_lshlrev_b32 v45, 1, v{V_LANE}")
    e("v_mul_f32 v40, v40, v44")
    e("v_add_u32 v46, s28, v45")
    e("v_cvt_pk_bf16_f32 v40, v40, v40")
    e("s_lshl_b32 s28, s29, 7")
    e("s_add_u32 s28, s28, 128")
    e(f"ds_write_b16 v46, v40 offset:{L_WGT}")
    e("v_add_u32 v46, s28, v45")
    e("v_mov_b32 v47, 0")
    e(f"ds_write_b16 v46, v47 offset:{L_WGT}")
    lab(lj)
    e(f"s_add_u32 s34, s33, {WS_CP}")
    e(f"s_add_u32 s35, s33, {WS_CPF}")
    e("s_waitcnt vmcnt(0) lgkmcnt(0)")
    e("s_barrier")
    G.stamp(11)
    gemv_loadA(V_AVR, VA, L_WGT)
    for ks in range(4):
        for t in range(2):
            for u in range(2):
                r = VB + (t*4 + ks)*4 + 2*u
                e(f"ds_read_b64_tr_b16 {vr(r,2)}, v{21+t} offset:{8192*ks + 1024*u}")
    e("s_waitcnt lgkmcnt(0)")
    gemv_mma(VA, VB, VC)
    sel_tb(VC, 40, 41)
    e(f"v_cndmask_b32 v40, v40, v41, {sr(M_HI,2)}")
    write_av(40, L_AVO)
    e("s_waitcnt lgkmcnt(0)")
    e("s_barrier")
    gemv_loadA(V_AVR, VA, L_AVO)
    e("s_waitcnt lgkmcnt(0)")
    gemv_mma(VA, BUV, VC)
    publish_units(VC, V_PUB, 35, PUBQ, fast=True)
    G.stamp(12)
    e("s_mov_b32 s37, s34")
    e(f"s_add_u32 s34, s32, {WS_CP}")
    e(f"s_add_u32 s35, s32, {WS_CPF}")
    consume4(34, 40, L_AVC, 36, 35, 37, V_PUB, PUBQ)
    e("s_waitcnt lgkmcnt(0)")
    e("s_barrier")
    G.stamp(13)
    gemv_loadA(V_AVR, VA, L_AVC)
    e("s_waitcnt lgkmcnt(0)")
    gemv_mma(VA, BO, VC)
    publish_units(VC, 53, 39, PUBQ)
    G.stamp(14)
    e("s_cmp_lt_u32 s2, 96")
    e("s_cbranch_scc1 L_wdone")
    e("s_sub_u32 s35, s2, 96")
    e(f"v_lshlrev_b32 v20, 4, v0")
    e("s_lshl_b32 s28, s35, 13")
    e(f"s_add_u32 s36, s28, {WS_EP}")
    e(f"s_mul_i32 s28, s35, {FP_S*256}")
    e(f"s_add_u32 s37, s28, {WS_FP}")
    G.srd(SRD_1, P_X, 2048)
    e(f"v_lshlrev_b32 v21, 10, v{V_G}")
    e(f"v_lshl_add_u32 v21, v{V_L15}, 1, v21")
    e("s_lshl_b32 s28, s35, 5")
    e(f"buffer_load_ushort v22, v21, {sr(SRD_1,4)}, s28 offen")
    e("v_add_u32 v24, 4096, v20")
    e("v_add_u32 v25, 8192, v20")
    e("v_mov_b32 v23, 176")
    e("v_cmp_ge_u32 s[42:43], v0, v23")
    e(f"v_mov_b32 v26, s{S_TAG}")
    e("v_mov_b32 v27, 0")
    def ldFP(b):
        e(f"buffer_load_dwordx4 {vr(b,4)}, v20, {sr(SRD_WS,4)}, s37 offen sc1")
        e(f"buffer_load_dwordx4 {vr(b+4,4)}, v24, {sr(SRD_WS,4)}, s37 offen sc1")
        e(f"buffer_load_dwordx4 {vr(b+8,4)}, v25, {sr(SRD_WS,4)}, s37 offen sc1")
    def ldE(b):
        e(f"buffer_load_dwordx4 {vr(b,4)}, v20, {sr(SRD_WS,4)}, s36 offen sc1")
        e(f"buffer_load_dwordx4 {vr(b+4,4)}, v24, {sr(SRD_WS,4)}, s36 offen sc1")
    ldFP(108)
    poll(ldE, 100, 8, [1, 3, 5, 7], RING8, 2, G.sl_unit, 37)
    G.stamp(19)
    lp, done, skip = G.newlab("pollfp"), G.newlab("pfpdone"), G.newlab("pfpskip")
    e(f"s_mov_b32 s48, {G.spin}")
    e(f"s_branch {skip}")
    lab(lp)
    ldFP(108)
    e("s_waitcnt vmcnt(0)")
    lab(skip)
    e("v_cndmask_b32 v117, v117, v26, s[42:43]")
    e("v_cndmask_b32 v119, v119, v26, s[42:43]")
    check_tags([109, 111, 113, 115, 117, 119])
    e(f"s_cbranch_vccz {done}")
    e("s_sub_u32 s48, s48, 1")
    e(f"s_cbranch_scc0 {lp}")
    lab(done)
    G.stampval(38, 48)
    e("v_cndmask_b32 v116, v116, v27, s[42:43]")
    e("v_cndmask_b32 v118, v118, v27, s[42:43]")
    G.stamp(15)
    for rr in (0, 2):
        e(f"v_add_f32 v{100+rr}, v{100+rr}, v{104+rr}")
        e(f"v_add_f32 v{108+rr}, v{108+rr}, v{112+rr}")
    for rr in (0, 2):
        e(f"v_add_f32 v{100+rr}, v{100+rr}, v{116+rr}")
    for rr in (0, 2):
        e(f"v_add_f32 v{100+rr}, v{100+rr}, v{108+rr}")
    nop(2)
    e("v_permlane32_swap_b32 v100, v102")
    nop(1)
    e("v_add_f32 v100, v100, v102")
    e("v_mov_b32 v101, v100")
    nop(2)
    e("v_permlane16_swap_b32 v100, v101")
    e(f"v_lshrrev_b32 v27, 5, v{V_LANE}")
    e("v_add_f32 v100, v100, v101")
    e("v_lshlrev_b32 v27, 6, v27")
    e(f"v_lshl_add_u32 v27, v{V_L15}, 2, v27")
    e(f"s_lshl_b32 s28, s{S_W}, 7")
    e("v_add_u32 v28, s28, v27")
    e(f"ds_write_b32 v28, v100 offset:{L_FIN}")
    G.srd(SRD_2, P_OUT, 2048)
    e("s_waitcnt lgkmcnt(0)")
    e("s_barrier")
    e(f"s_cmp_lg_u32 s{S_W}, 0")
    e("s_cbranch_scc1 L_wdone")
    e(f"v_lshlrev_b32 v27, 2, v{V_LANE}")
    for w in range(4):
        e(f"ds_read_b32 v{104+w}, v27 offset:{L_FIN + 128*w}")
    e("s_lshl_b32 s28, s35, 5")
    e("v_lshlrev_b32 v22, 16, v22")
    e("s_waitcnt lgkmcnt(0)")
    e("v_add_f32 v104, v104, v105")
    e("v_add_f32 v106, v106, v107")
    e("v_add_f32 v104, v104, v22")
    e("v_add_f32 v104, v104, v106")
    e("v_cvt_pk_bf16_f32 v104, v104, v104")
    lo32()
    e(f"buffer_store_short v104, v21, {sr(SRD_2,4)}, s28 offen")
    e("s_cmp_lg_u32 s35, 0")
    e("s_cbranch_scc1 L_wdone0")
    e("s_mov_b64 exec, 1")
    e(f"v_mov_b32 v30, s{S_TAG}")
    e("v_mov_b32 v31, 0")
    e(f"buffer_store_dword v30, v31, {sr(SRD_WS,4)}, 0 offen offset:{WS_EPOCH}")
    lab("L_wdone0")
    e("s_mov_b64 exec, -1")
    lab("L_wdone")
    G.stamp(16)
    store_stamps()
    e("s_endpgm")

    lab("L_att")
    S_A, S_FS, S_HF = 38, 37, 39
    e(f"s_sub_u32 s{S_A}, s2, 128")
    e(f"s_lshr_b32 s{S_H}, s{S_A}, 6")
    VCK = 8
    for idx in range(8):
        x = 32*(idx & 3) + 128*(idx >> 2)
        if x == 0: e(f"v_mov_b32 v{VCK+idx}, v{V_L16B}")
        else: e(f"v_xor_b32 v{VCK+idx}, {x}, v{V_L16B}")
    e(f"s_lshl_b32 s29, s{S_A}, 7")
    e(f"s_lshl_b32 s30, s{S_W}, 5")
    e("s_add_u32 s29, s29, s30")
    e("s_lshl_b32 s29, s29, 10")
    e(f"s_lshl_b32 s31, s{S_W}, 15")
    e("s_waitcnt lgkmcnt(0)")
    if G.stamps: e("v_writelane_b32 v255, s40, 0")
    G.srd(SRD_1, P_CKV, 16777216)
    e(f"s_load_dword s{S_TAG}, {sr(P_WS,2)}, {WS_EPOCH}")
    G.srd(SRD_WS, P_WS, 0x10000000)
    setup = []
    su = setup.append
    AA, AB, TB, TB2 = 16, 20, 24, 48
    su(f"v_and_b32 v32, 3, v{V_LANE}")
    su(f"v_bfe_u32 v33, v{V_LANE}, 3, 1")
    su("v_lshl_add_u32 v32, v33, 2, v32")
    su("v_lshlrev_b32 v32, 1, v32")
    su(f"v_xor_b32 v33, v32, v{V_G}")
    su(f"v_lshlrev_b32 v34, 10, v{V_L15}")
    su(f"s_add_u32 s37, s31, {L_CKV}")
    for j in range(4):
        su(f"v_xor_b32 v35, {4*j}, v33")
        su(f"v_lshl_add_u32 v{AB+j}, v35, 4, v34")
        su(f"v_add_u32 v{AA+j}, s37, v{AB+j}")
        if L_QAL: su(f"v_add_u32 v{AB+j}, {L_QAL}, v{AB+j}")
    su(f"v_bfe_u32 v32, v{V_LANE}, 2, 2")
    su(f"v_and_b32 v33, 3, v{V_LANE}")
    su(f"v_and_b32 v34, 1, v{V_G}")
    su("v_lshl_add_u32 v35, v34, 2, v32")
    su("v_lshlrev_b32 v35, 1, v35")
    su(f"v_lshl_add_u32 v36, v{V_G}, 3, v32")
    su("v_lshlrev_b32 v36, 10, v36")
    su("v_lshrrev_b32 v37, 1, v33")
    su("v_lshl_add_u32 v36, v37, 4, v36")
    su("v_and_b32 v37, 1, v33")
    su("v_lshl_add_u32 v36, v37, 3, v36")
    su(f"s_lshl_b32 s28, s{S_W}, 8")
    su(f"s_add_u32 s28, s28, {L_CKV}")
    su("v_add_u32 v36, s28, v36")
    for t in range(8):
        su(f"v_xor_b32 v37, {2*t}, v35")
        su(f"v_lshl_add_u32 v{TB+t}, v37, 4, v36")
        su(f"v_add_u32 v{TB2+t}, 65536, v{TB+t}")
    su(f"v_and_b32 v57, 31, v{V_LANE}")
    su("v_lshlrev_b32 v57, 2, v57")
    su(f"s_lshl_b32 s28, s{S_W}, 7")
    su("v_add_u32 v56, s28, v57")
    su(f"v_lshlrev_b32 v58, 2, v{V_L15}")
    su(f"v_lshrrev_b32 v32, 1, v{V_G}")
    su(f"s_lshl_b32 s28, s{S_W}, 2")
    su("v_add_u32 v32, s28, v32")
    su(f"v_and_b32 v33, 1, v{V_G}")
    su("v_lshlrev_b32 v33, 3, v33")
    su(f"v_lshl_add_u32 v33, v{V_L15}, 8, v33")
    su(f"v_xor_b32 v34, v32, v{V_L15}")
    su("v_lshl_add_u32 v59, v34, 4, v33")
    su("v_xor_b32 v63, 32, v59")
    for ks in range(4):
        su(f"v_add_u32 v34, {4*ks}, v{V_G}")
        su(f"v_xor_b32 v34, v34, v{V_L15}")
        su("v_lshlrev_b32 v34, 4, v34")
        su(f"v_lshl_add_u32 v{120+ks}, v{V_L15}, 8, v34")
    su(f"v_lshlrev_b32 v126, 4, v{V_L15}")
    su(f"v_lshl_add_u32 v124, v{V_G}, 10, v126")
    su(f"v_lshlrev_b32 v125, 4, v{V_LANE}")
    su(f"v_and_b32 v126, 31, v{V_LANE}")
    su("v_lshlrev_b32 v126, 7, v126")
    su(f"s_and_b32 s28, s{S_W}, 1")
    su("s_lshl_b32 s28, s28, 7")
    su(f"v_xor_b32 v127, s28, v{V_L16B}")
    for j in range(32):
        idx = (j & 3) + 4*((j >> 3) & 1)
        if j == 0: e("s_mov_b32 s30, s29")
        else: e(f"s_add_u32 s30, s29, {j*1024}")
        e(f"s_add_u32 m0, s31, {L_CKV + j*1024}")
        nop(1)
        e(f"buffer_load_dwordx4 v{VCK+idx}, {sr(SRD_1,4)}, s30 offen{NTC} lds")
        if j == 1:
            for s_ in setup: e(s_)
        w_now = G.thr_w if j < G.thr_n else G.thr2_w
        if w_now and j >= w_now - 1 and j < 31:
            e(f"s_waitcnt vmcnt({w_now - 1})")
    G.stamp(1)
    e("s_and_b32 s34, s2, 7")
    e("s_lshl_b32 s34, s34, 11")
    e(f"s_add_u32 s34, s34, {WS_FB}")
    e("s_waitcnt lgkmcnt(0)")
    e(f"s_add_u32 s{S_TAG}, s{S_TAG}, 0x9e3779b9")
    e(f"s_lshl_b32 s29, s{S_H}, 15")
    e(f"s_lshl_b32 s30, s{S_W}, 13")
    e("s_add_u32 s29, s29, s30")
    e(f"s_add_u32 s29, s29, {WS_QA}")
    e(f"s_lshl_b32 s31, s{S_W}, 13")
    lbp0 = G.newlab("nobp0")
    e(f"s_cmp_lg_u32 s{S_W}, 0")
    e(f"s_cbranch_scc1 {lbp0}")
    ldFB(236)
    lab(lbp0)
    e("s_waitcnt vmcnt(0)")
    G.stamp(2)
    lbp = G.newlab("nobpoll")
    e(f"s_cmp_lg_u32 s{S_W}, 0")
    e(f"s_cbranch_scc1 {lbp}")
    check_tags([236, 237, 238, 239])
    e(f"s_cbranch_vccz {lbp}")
    poll(ldFB, 40, 4, [0, 1, 2, 3], [240, 244, 248], 2, G.sl_flag, 32)
    lab(lbp)
    e("s_barrier")
    G.stamp(3)
    for j in range(8):
        if j & 3: e(f"v_xor_b32 v44, {32*(j&3)}, v127")
        else: e("v_mov_b32 v44, v127")
        if j == 0: e("s_mov_b32 s30, s29")
        else: e(f"s_add_u32 s30, s29, {j*1024}")
        e(f"s_add_u32 m0, s31, {L_QAL + j*1024}")
        nop(1)
        e(f"buffer_load_dwordx4 v44, {sr(SRD_WS,4)}, s30 offen sc1 lds")
    for ks in range(16):
        for kt in range(2):
            e(f"ds_read_b128 {ar((kt*16+ks)*4,4)}, v{AA+(ks&3)} offset:{16384*kt + 256*(ks>>2)}")
    for n in range(32):
        ks_, t = n >> 3, n & 7
        base = (TB2 if ks_ >= 2 else TB) + t
        for u in range(2):
            e(f"ds_read_b64_tr_b16 {ar(128+n*4+2*u,2)}, v{base} offset:{(ks_&1)*32768 + 4096*u}")
    e(f"s_lshl_b32 s28, s{S_A}, 2")
    e(f"s_add_u32 s28, s28, s{S_W}")
    e("s_lshl_b32 s28, s28, 13")
    e(f"s_add_u32 s34, s28, {WS_OP}")
    e("s_add_u32 s35, s34, 4096")
    e(f"s_lshl_b32 s28, s{S_W}, 7")
    e(f"s_add_u32 s28, s28, s{S_A}")
    e("s_lshl_b32 s28, s28, 9")
    e(f"s_add_u32 s36, s28, {WS_SU}")
    e(f"s_lshl_b32 s28, s{S_W}, 7")
    e(f"s_add_u32 s28, s28, s{S_A}")
    e("s_lshl_b32 s28, s28, 4")
    e(f"s_add_u32 s37, s28, {WS_CF}")
    e(f"v_lshlrev_b32 v126, 13, v{V_LANE}")
    e(f"v_mov_b32 v252, s{S_TAG}")
    e(f"v_mov_b32 v253, s{S_TAG}")
    e("s_waitcnt vmcnt(0) lgkmcnt(0)")
    e("s_barrier")
    G.stamp(4)
    QB, SC = 64, 192
    def rdB(ks):
        st = ks % 3
        for ht in range(2):
            e(f"ds_read_b128 {vr(QB+(st*2+ht)*4,4)}, v{AB+(ks&3)} offset:{16384*ht + 256*(ks>>2)}")
    def pslot(n): return 32 + n
    rdB(0); rdB(1)
    for ks in range(16):
        if ks + 2 < 16:
            rdB(ks + 2); e("s_waitcnt lgkmcnt(4)")
        elif ks + 1 < 16: e("s_waitcnt lgkmcnt(2)")
        else: e("s_waitcnt lgkmcnt(0)")
        st = ks % 3
        for kt in range(2):
            for ht in range(2):
                d = SC + (kt*2+ht)*4
                c = "0" if ks == 0 else vr(d, 4)
                e(f"v_mfma_f32_16x16x32_bf16 {vr(d,4)}, {ar((kt*16+ks)*4,4)}, {vr(QB+(st*2+ht)*4,4)}, {c}")
    nop(9)
    G.stamp(5)
    MXR = 32
    for step in range(4):
        for ht in range(2):
            a = SC + ht*4; b = SC + (2+ht)*4
            if step == 0: e(f"v_max3_f32 v{MXR+ht}, v{a}, v{a+1}, v{a+2}")
            elif step == 1: e(f"v_max3_f32 v{MXR+ht}, v{MXR+ht}, v{a+3}, v{b}")
            elif step == 2: e(f"v_max3_f32 v{MXR+ht}, v{MXR+ht}, v{b+1}, v{b+2}")
            else: e(f"v_max_f32 v{MXR+ht}, v{MXR+ht}, v{b+3}")
    xg_reduce2("v_max_f32", MXR, MXR+1, MXR+2, MXR+3)
    e(f"v_cndmask_b32 v36, v{MXR}, v{MXR+1}, {sr(M_G1,2)}")
    e("s_barrier")
    e(f"ds_write_b32 v56, v36 offset:{L_MX}")
    e("s_waitcnt lgkmcnt(0)")
    e("s_barrier")
    for ht in range(2):
        for w in range(4):
            e(f"ds_read_b32 v{40+ht*4+w}, v58 offset:{L_MX + 128*w + 64*ht}")
    e("s_waitcnt lgkmcnt(0)")
    sm = []
    a_ = sm.append
    for ht in range(2):
        a_(f"v_max3_f32 v{MXR+ht}, v{40+ht*4}, v{41+ht*4}, v{42+ht*4}")
    for ht in range(2):
        a_(f"v_max_f32 v{MXR+ht}, v{MXR+ht}, v{43+ht*4}")
    LS = 34
    for kt in range(2):
        for ht in range(2):
            d = SC + (kt*2+ht)*4
            for r in range(4): a_(f"v_sub_f32 v{d+r}, v{d+r}, v{MXR+ht}")
    for kt in range(2):
        for ht in range(2):
            d = SC + (kt*2+ht)*4
            for r in range(4): a_(f"v_exp_f32 v{d+r}, v{d+r}")
    for kt in range(2):
        for ht in range(2):
            d = SC + (kt*2+ht)*4
            q = 88 + (kt*2+ht)*2
            a_(f"v_cvt_pk_bf16_f32 v{q}, v{d}, v{d+1}")
            a_(f"v_cvt_pk_bf16_f32 v{q+1}, v{d+2}, v{d+3}")
            a_(f"ds_write_b64 v{63 if kt else 59}, {vr(q,2)} offset:{L_P + 4096*ht}")
    for ht in range(2):
        a = SC + ht*4
        a_(f"v_add_f32 v{LS+ht}, v{a}, v{a+1}")
    for x in (2, 3, 8, 9, 10, 11):
        for ht in range(2):
            a_(f"v_add_f32 v{LS+ht}, v{LS+ht}, v{SC+ht*4+x}")
    xg_reduce2("v_add_f32", LS, LS+1, 46, 47, emit=a_)
    a_(f"v_cndmask_b32 v36, v{LS}, v{LS+1}, {sr(M_G1,2)}")
    a_(f"ds_write_b32 v56, v36 offset:{L_LP}")
    for ins in sm: e(ins)
    e("s_waitcnt lgkmcnt(0)")
    e("s_barrier")
    G.stamp(6)
    PA, OC = 208, 128
    for ks in range(4):
        for ht in range(2):
            e(f"ds_read_b128 {vr(PA+(ht*4+ks)*4,4)}, v{120+ks} offset:{L_P + 4096*ht}")
    for w in range(4):
        e(f"ds_read_b32 v{240+w}, v57 offset:{L_LP + 128*w}")
    def mm(ks, t, ht):
        d = OC + (ht*8+t)*4
        c = "0" if ks == 0 else vr(d, 4)
        e(f"v_mfma_f32_16x16x32_bf16 {vr(d,4)}, {vr(PA+(ht*4+ks)*4,4)}, {ar(pslot(ks*8+t)*4,4)}, {c}")
    for ks in range(3):
        e(f"s_waitcnt lgkmcnt({4 + 2*(3-ks)})")
        for t in range(8):
            for ht in range(2): mm(ks, t, ht)
    e("s_waitcnt lgkmcnt(0)")
    for t in range(8): mm(3, t, 0)
    ST0 = 88
    cv = []
    for tp in range(4):
        for r in range(4):
            cv.append(f"v_cvt_pk_bf16_f32 v{ST0+4*r+tp}, v{OC+(2*tp)*4+r}, v{OC+(2*tp+1)*4+r}")
    for t in range(8):
        mm(3, t, 1)
        if t >= 1:
            e(cv[2*(t-1)]); e(cv[2*(t-1)+1])
    e(cv[14]); e(cv[15])
    G.stamp(7)
    for r in range(4):
        e(f"buffer_store_dwordx4 {vr(ST0+4*r,4)}, v124, {sr(SRD_WS,4)}, s34 offen offset:{r*256} sc1")
    e("v_add_f32 v240, v240, v241")
    e("v_add_f32 v242, v242, v243")
    e(f"v_cndmask_b32 v44, v{MXR}, v{MXR+1}, {sr(M_G1,2)}")
    e("v_mov_b32 v45, 0")
    e("v_add_f32 v46, v240, v242")
    e("v_mov_b32 v47, 0")
    nop(2)
    for r in range(4):
        for tp in range(4):
            e(f"v_cvt_pk_bf16_f32 v{ST0+16+4*r+tp}, v{OC+(8+2*tp)*4+r}, v{OC+(8+2*tp+1)*4+r}")
        e(f"buffer_store_dwordx4 {vr(ST0+16+4*r,4)}, v124, {sr(SRD_WS,4)}, s35 offen offset:{r*256} sc1")
    lo32()
    e(f"buffer_store_dwordx4 {vr(44,4)}, v125, {sr(SRD_WS,4)}, s36 offen sc1")
    e("s_mov_b64 exec, 0xff")
    e("s_waitcnt vmcnt(0)")
    G.stamp(8)
    e(f"buffer_store_dwordx2 {vr(252,2)}, v126, {sr(SRD_WS,4)}, s37 offen sc1")
    e("s_mov_b64 exec, -1")
    G.stamp(9)
    lab("L_adone")
    store_stamps()
    lab("L_end")
    e("s_endpgm")

    tail = []
    if prepost:
        for nm, off, spin in (("pre_kernel", 0x900000, 400), ("post_kernel", 0x900100, 0)):
            tail += [f".globl {nm}", ".p2align 8", f".type {nm},@function", f"{nm}:",
                     "  s_memrealtime s[10:11]",
                     "  s_cmp_ge_u32 s2, 1", f"  s_cbranch_scc1 L_{nm}_end",
                     "  s_load_dwordx2 s[4:5], s[0:1], 96"]
            if spin:
                tail += [f"  s_mov_b32 s6, {spin}", f"L_{nm}_sp:", "  s_sleep 8", "  s_sub_u32 s6, s6, 1", "  s_cmp_lg_u32 s6, 0", f"  s_cbranch_scc1 L_{nm}_sp",
                         "  s_memrealtime s[10:11]"]
            tail += ["  s_waitcnt lgkmcnt(0)", "  s_mov_b32 s12, s4", "  s_and_b32 s13, s5, 0xffff", "  s_mov_b32 s14, 0x10000000", "  s_mov_b32 s15, 0x20000",
                     "  v_mov_b32 v1, s10", f"  v_mov_b32 v2, {off}", "  s_mov_b64 exec, 1",
                     "  buffer_store_dword v1, v2, s[12:15], 0 offen", "  s_waitcnt vmcnt(0)", f"L_{nm}_end:", "  s_endpgm"]
        tail.append('.section .rodata,"a"')
        for nm in ("pre_kernel", "post_kernel"):
            tail += [".p2align 6", f".amdhsa_kernel {nm}", "  .amdhsa_next_free_vgpr 32",
                 "  .amdhsa_next_free_sgpr 24", "  .amdhsa_accum_offset 32", "  .amdhsa_group_segment_fixed_size 0",
                 "  .amdhsa_kernarg_size 104", "  .amdhsa_user_sgpr_count 2", "  .amdhsa_user_sgpr_kernarg_segment_ptr 1",
                 "  .amdhsa_system_sgpr_workgroup_id_x 1", ".end_amdhsa_kernel"]
    if extra_empty:
        tail += [".globl empty_kernel", ".p2align 8", ".type empty_kernel,@function", "empty_kernel:", "  s_endpgm"]
        tail += ['.section .rodata,"a"', ".p2align 6", ".amdhsa_kernel empty_kernel", "  .amdhsa_next_free_vgpr 32",
                 "  .amdhsa_next_free_sgpr 16", "  .amdhsa_accum_offset 32", "  .amdhsa_group_segment_fixed_size 0",
                 "  .amdhsa_kernarg_size 104", "  .amdhsa_user_sgpr_count 2", "  .amdhsa_user_sgpr_kernarg_segment_ptr 1",
                 "  .amdhsa_system_sgpr_workgroup_id_x 1", ".end_amdhsa_kernel"]
    tail.append('.section .rodata,"a"')
    tail.append(".p2align 6")
    tail.append(f".amdhsa_kernel {NAME}_kernel")
    tail.append("  .amdhsa_next_free_vgpr 512")
    tail.append("  .amdhsa_next_free_sgpr 102")
    tail.append("  .amdhsa_accum_offset 256")
    tail.append("  .amdhsa_group_segment_fixed_size 0")
    tail.append("  .amdhsa_kernarg_size 104")
    tail.append("  .amdhsa_user_sgpr_count 2")
    tail.append("  .amdhsa_user_sgpr_kernarg_segment_ptr 1")
    tail.append("  .amdhsa_system_sgpr_workgroup_id_x 1")
    tail.append(".end_amdhsa_kernel")
    for ln in G.L:
        if "buffer_" in ln:
            m = re.search(r"offset:(\d+)", ln)
            assert not m or int(m.group(1)) <= 4095, ln
    return "\n".join(hdr + G.L + tail) + "\n"

if __name__ == "__main__":
    import argparse
    ap = argparse.ArgumentParser()
    ap.add_argument("-o", default=f"cdna_kernels/{NAME}.s")
    ap.add_argument("--stamps", action="store_true")
    ap.add_argument("--extra-empty", type=int, default=0)
    ap.add_argument("--prepost", action="store_true")
    ap.add_argument("--set", action="append", default=[], help="key=value generator option")
    a = ap.parse_args()
    kw = {}
    for s_ in a.set:
        k, v = s_.split("=")
        kw[k] = int(v) if re.fullmatch(r"-?\d+", v) else v
    s = build(stamps=a.stamps, extra_empty=a.extra_empty, prepost=a.prepost, **kw)
    open(a.o, "w").write(s)
    print("wrote", a.o, len(s), "bytes")
```

```python
import sys, math, struct, re
NAME = "parallel_sum__compressed_kv_cla__glu_gated_swiglu__decode"

WS_EPOCH = 0x0
WS_FB    = 0x1000
WS_F1    = 0x8000
WS_F1F   = 0x640000
WS_QP    = 0x20000
WS_QA    = 0x60000
WS_CP    = 0x70000
WS_EP    = 0xB0000
WS_FP    = 0xF0000
WS_SU    = 0x150000
WS_QPF   = 0x190000
WS_CPF   = 0x600000
WS_CF    = 0x1D0000
WS_OP    = 0x200000
WS_STAMP = 0x800000
FP_S = 48
NFFN = 86

R0, R1, R2 = 8192, 40960, 73728
L_XN  = 0
L_AVQ = 2048
L_AVO = L_AVQ + 512
L_AVC = L_AVO + 512
L_WGT = L_AVC + 512
L_QS  = L_WGT + 512
L_FIN = L_QS + 512
L_GUW = L_FIN + 512
L_HW = L_GUW + 512
L_CKV = 32768
L_QAL = 0
L_MX  = 0
L_LP  = 512
L_P   = 4096
L_GU  = 16384
L_H   = 16384 + 512
LDS_BYTES = 163840

P_X, P_CKV, P_WQ, P_WUK, P_WUV, P_WO, P_BX, P_W1, P_W3, P_W2, P_OUT, P_DBG, P_WS = 64, 66, 68, 70, 72, 74, 76, 78, 80, 82, 84, 86, 88
S_W, S_H, S_I, S_TAG = 3, 4, 5, 6
SRD_WS, SRD_1, SRD_2, SRD_3, SRD_4 = 8, 12, 16, 20, 24
M_G1, M_HI = 44, 46
V_LANE, V_L15, V_G, V_L16B, V_SW, V_TL0, V_TL1 = 1, 2, 3, 4, 5, 6, 7

def vr(a, n): return f"v[{a}:{a+n-1}]"
def ar(a, n): return f"a[{a}:{a+n-1}]"
def sr(a, n): return f"s[{a}:{a+n-1}]"
def fbits(x): return hex(struct.unpack("<I", struct.pack("<f", x))[0])

class Gen:
    def __init__(self, **kw):
        d = dict(stamps=False, nt_ckv=True, nt_w=True, spin=200000, thr_n=4, thr_w=3, thr2_w=0,
                 gate='N', depth=3, sl_unit=1, sl_flag=2, uk_late=1, fast_k=24, pf_uk=0, prew=0, order='A', touch=0)
        d.update(kw)
        self.__dict__.update(d)
        self.L = []
        self.nlab = 0
    def e(self, s): self.L.append("  " + s)
    def lab(self, s): self.L.append(s + ":")
    def newlab(self, p):
        self.nlab += 1
        return f"L_{p}_{self.nlab}"
    def nop(self, n):
        while n > 0:
            k = min(n, 16)
            self.e(f"s_nop {k-1}")
            n -= k
    def stamp(self, idx):
        if not self.stamps: return
        self.e("s_memrealtime s[40:41]")
        self.e("s_waitcnt lgkmcnt(0)")
        self.e(f"v_writelane_b32 v255, s40, {idx}")
    def stampval(self, idx, sreg):
        if not self.stamps: return
        self.e(f"v_writelane_b32 v255, s{sreg}, {idx}")
    def srd(self, dst, ptr, size):
        self.e(f"s_mov_b32 s{dst}, s{ptr}")
        self.e(f"s_and_b32 s{dst+1}, s{ptr+1}, 0xffff")
        self.e(f"s_mov_b32 s{dst+2}, {size}")
        self.e(f"s_mov_b32 s{dst+3}, 0x20000")

def build(extra_empty=0, prepost=False, **kw):
    G = Gen(**kw)
    e, lab, nop = G.e, G.lab, G.nop
    NTW = " nt" if G.nt_w else ""
    NTC = " nt" if G.nt_ckv else ""
    hdr = []
    if prepost:
        hdr.append(f"; @launch kernel=pre_kernel grid=(256,1,1) block=(64,1,1) lds=0")
        hdr.append(f"; @launch kernel={NAME}_kernel grid=(256,1,1) block=(256,1,1) lds={LDS_BYTES}")
        hdr.append(f"; @launch kernel=post_kernel grid=(256,1,1) block=(64,1,1) lds=0")
    elif extra_empty:
        hdr.append(f"; @launch kernel={NAME}_kernel grid=(256,1,1) block=(256,1,1) lds={LDS_BYTES}")
        for _ in range(extra_empty):
            hdr.append(f"; @launch kernel=empty_kernel grid=(256,1,1) block=(256,1,1) lds=0")
    else:
        hdr.append(f"; @launch grid=(256,1,1) block=(256,1,1) lds={LDS_BYTES}")
    hdr.append('.amdgcn_target "amdgcn-amd-amdhsa--gfx950"')
    hdr.append(".text")
    hdr.append(f".globl {NAME}_kernel")
    hdr.append(".p2align 8")
    hdr.append(f".type {NAME}_kernel,@function")
    hdr.append(f"{NAME}_kernel:")

    def lo32():
        e("s_mov_b32 exec_lo, -1"); e("s_mov_b32 exec_hi, 0")
    def check_tags(tagregs):
        first = True
        for k in range(0, len(tagregs), 2):
            a = tagregs[k]; b = tagregs[k+1] if k + 1 < len(tagregs) else tagregs[k]
            e(f"v_xor_b32 v61, s{S_TAG}, v{a}")
            e(f"v_xor_b32 v62, s{S_TAG}, v{b}")
            if first:
                e("v_or_b32 v60, v61, v62"); first = False
            else:
                e("v_or3_b32 v60, v60, v61, v62")
        e("v_cmp_ne_u32 vcc, 0, v60")
    def poll(mk_loads, base, nregs, tagoffs, ring, nld, sleep, cnt_idx=None):
        ring = ring[:G.depth]
        D = len(ring)
        lp, done = G.newlab("poll"), G.newlab("pdone")
        e(f"s_mov_b32 s48, {G.spin}")
        mk = mk_loads if isinstance(mk_loads, (list, tuple)) else [mk_loads] * D
        for k in range(D - 1):
            mk[k](ring[k])
            if sleep: e(f"s_sleep {sleep}")
        exits = [G.newlab("pexit") for _ in range(D)]
        lab(lp)
        for k in range(D):
            mk[(k + D - 1) % D](ring[(k + D - 1) % D])
            e(f"s_waitcnt vmcnt({(D-1)*nld})")
            check_tags([ring[k] + o for o in tagoffs])
            e(f"s_cbranch_vccz {exits[k]}")
            if sleep: e(f"s_sleep {sleep}")
        e("s_sub_u32 s48, s48, 1")
        e(f"s_cbranch_scc0 {lp}")
        for k in range(D):
            lab(exits[k])
            for r in range(nregs): e(f"v_mov_b32 v{base+r}, v{ring[k]+r}")
            if k < D - 1: e(f"s_branch {done}")
        lab(done)
        if cnt_idx is not None: G.stampval(cnt_idx, 48)
    def dual_poll(ld_fast, ld_slow, slow_store, base, nregs, tagoffs, ring, nld, cnt_idx):
        lp, x0, x1, done = G.newlab("fp"), G.newlab("fx0"), G.newlab("fx1"), G.newlab("fdone")
        r0, r1 = ring[0], ring[1]
        e(f"s_mov_b32 s49, {G.fast_k}")
        ld_fast(r0)
        lab(lp)
        for (a, b, x) in ((r0, r1, x0), (r1, r0, x1)):
            ld_fast(b)
            e(f"s_waitcnt vmcnt({nld})")
            check_tags([a + o for o in tagoffs])
            e(f"s_cbranch_vccz {x}")
        e("s_sub_u32 s49, s49, 1")
        e(f"s_cbranch_scc0 {lp}")
        slow_store()
        poll([ld_fast, ld_slow, ld_fast], base, nregs, tagoffs, ring, nld, G.sl_unit, cnt_idx)
        e(f"s_branch {done}")
        for (a, x) in ((r0, x0), (r1, x1)):
            lab(x)
            for r in range(nregs): e(f"v_mov_b32 v{base+r}, v{a+r}")
            slow_store()
            if x == x0: e(f"s_branch {done}")
        lab(done)
        G.stampval(cnt_idx + 10, 49)
    def dma_tile128(srd, v0, v1, soff_fn, lds_base, flags):
        e(f"s_lshl_b32 s31, s{S_W}, 13")
        for n in range(8):
            soff_fn(n)
            e(f"s_add_u32 m0, s31, {lds_base + n*1024}")
            v = v1 if (n >> 1) & 1 else v0
            nop(1)
            e(f"buffer_load_dwordx4 v{v}, {sr(srd,4)}, s30 offen{flags} lds")
    def lin(step):
        def f(n):
            if n == 0: e("s_mov_b32 s30, s29")
            else: e(f"s_add_u32 s30, s29, {n*step}")
        return f
    def gemv_loadB(base, vB, tmp0, tmp1):
        if base + 3*8192 + 1024 <= 65535:
            a0, a1, off = V_TL0, V_TL1, base
        else:
            e(f"v_add_u32 v{tmp0}, {base}, v{V_TL0}")
            e(f"v_add_u32 v{tmp1}, {base}, v{V_TL1}")
            a0, a1, off = tmp0, tmp1, 0
        for ks in range(4):
            for t in range(2):
                for u in range(2):
                    r = vB + (t*4 + ks)*4 + 2*u
                    e(f"ds_read_b64_tr_b16 {vr(r,2)}, v{a1 if t else a0} offset:{off + 8192*ks + 1024*u}")
    def gemv_loadA(vaddr, vA, off=0):
        for ks in range(4):
            e(f"ds_read_b128 {vr(vA+4*ks,4)}, v{vaddr} offset:{off + 64*ks}")
    def gemv_mma(vA, vB, vC):
        for ks in range(4):
            for t in range(2):
                c = "0" if ks == 0 else vr(vC+4*t, 4)
                e(f"v_mfma_f32_16x16x32_bf16 {vr(vC+4*t,4)}, {vr(vA+4*ks,4)}, {vr(vB+(t*4+ks)*4,4)}, {c}")
        nop(9)
    def sel_tb(vC, d0, d1):
        e(f"v_cndmask_b32 v{d0}, v{vC}, v{vC+4}, {sr(M_G1,2)}")
        e(f"v_cndmask_b32 v{d1}, v{vC+1}, v{vC+5}, {sr(M_G1,2)}")
    def publish_units(vC, voff, soff, q, fast=False):
        sel_tb(vC, q, q+2)
        lo32()
        e(f"buffer_store_dwordx4 {vr(q,4)}, v{voff}, {sr(SRD_WS,4)}, s{soff} offen" + ("" if fast else " sc1"))
        e("s_mov_b64 exec, -1")
    def wave_red(op, v, tmp):
        for r in (8, 4, 2, 1):
            nop(2)
            e(f"{op}_dpp v{v}, v{v}, v{v} row_ror:{r} row_mask:0xf bank_mask:0xf")
        e(f"v_mov_b32 v{tmp}, v{v}")
        nop(2)
        e(f"v_permlane16_swap_b32 v{v}, v{tmp}")
        nop(1)
        e(f"{op} v{v}, v{v}, v{tmp}")
        e(f"v_mov_b32 v{tmp}, v{v}")
        nop(2)
        e(f"v_permlane32_swap_b32 v{v}, v{tmp}")
        nop(1)
        e(f"{op} v{v}, v{v}, v{tmp}")
    def xg_reduce2(op, va, vb, ta, tb, emit=None):
        em = emit or e
        for perm in ("v_permlane16_swap_b32", "v_permlane32_swap_b32"):
            em(f"v_mov_b32 v{ta}, v{va}")
            em(f"v_mov_b32 v{tb}, v{vb}")
            em("s_nop 0")
            em(f"{perm} v{va}, v{ta}")
            em(f"{perm} v{vb}, v{tb}")
            em("s_nop 0")
            em(f"{op} v{va}, v{va}, v{ta}")
            em(f"{op} v{vb}, v{vb}, v{tb}")
    def wave_red2(op, va, vb, ta, tb):
        for r in (8, 4, 2, 1):
            nop(1)
            e(f"{op}_dpp v{va}, v{va}, v{va} row_ror:{r} row_mask:0xf bank_mask:0xf")
            e(f"{op}_dpp v{vb}, v{vb}, v{vb} row_ror:{r} row_mask:0xf bank_mask:0xf")
        xg_reduce2(op, va, vb, ta, tb)
    def rbf(v):
        e(f"v_cvt_pk_bf16_f32 v{v}, v{v}, v{v}")
        e(f"v_lshlrev_b32 v{v}, 16, v{v}")
    def layernorm(X0, X1, F0, F1, T, OUT):
        S0, S1, T0, T1, Q0, Q1, U0, U1 = range(T, T+8)
        for (X, F) in ((X0, F0), (X1, F1)):
            for k in range(4):
                e(f"v_lshlrev_b32 v{F+2*k}, 16, v{X+k}")
                e(f"v_and_b32 v{F+2*k+1}, 0xffff0000, v{X+k}")
        e(f"v_add_f32 v{S0}, v{F0}, v{F0+1}"); e(f"v_add_f32 v{S1}, v{F1}, v{F1+1}")
        for k in range(2, 8):
            e(f"v_add_f32 v{S0}, v{S0}, v{F0+k}"); e(f"v_add_f32 v{S1}, v{S1}, v{F1+k}")
        wave_red2("v_add_f32", S0, S1, T0, T1)
        e("s_mov_b32 s28, 0x3b000000")
        e(f"v_mul_f32 v{S0}, s28, v{S0}")
        e(f"v_mul_f32 v{S1}, s28, v{S1}")
        for k in range(8):
            e(f"v_sub_f32 v{U0}, v{F0+k}, v{S0}")
            e(f"v_sub_f32 v{U1}, v{F1+k}, v{S1}")
            if k == 0:
                e(f"v_mul_f32 v{Q0}, v{U0}, v{U0}"); e(f"v_mul_f32 v{Q1}, v{U1}, v{U1}")
            else:
                e(f"v_fmac_f32 v{Q0}, v{U0}, v{U0}"); e(f"v_fmac_f32 v{Q1}, v{U1}, v{U1}")
        wave_red2("v_add_f32", Q0, Q1, T0, T1)
        e("s_mov_b32 s29, 0x3727c5ac")
        def both(f): f(Q0, S0); f(Q1, S1)
        both(lambda Q, S: e(f"v_mul_f32 v{Q}, s28, v{Q}"))
        both(lambda Q, S: e(f"v_cvt_pk_bf16_f32 v{Q}, v{Q}, v{Q}"))
        both(lambda Q, S: e(f"v_lshlrev_b32 v{Q}, 16, v{Q}"))
        both(lambda Q, S: e(f"v_add_f32 v{Q}, s29, v{Q}"))
        both(lambda Q, S: e(f"v_cvt_pk_bf16_f32 v{Q}, v{Q}, v{Q}"))
        both(lambda Q, S: e(f"v_lshlrev_b32 v{Q}, 16, v{Q}"))
        both(lambda Q, S: e(f"v_sqrt_f32 v{Q}, v{Q}"))
        both(lambda Q, S: e(f"v_cvt_pk_bf16_f32 v{S}, v{S}, v{S}"))
        both(lambda Q, S: e(f"v_cvt_pk_bf16_f32 v{Q}, v{Q}, v{Q}"))
        both(lambda Q, S: e(f"v_lshlrev_b32 v{S}, 16, v{S}"))
        both(lambda Q, S: e(f"v_lshlrev_b32 v{Q}, 16, v{Q}"))
        both(lambda Q, S: e(f"v_rcp_f32 v{Q}, v{Q}"))
        for (F, S, Q, XB) in ((F0, S0, Q0, 0), (F1, S1, Q1, 1)):
            for k in range(0, 8, 2):
                e(f"v_sub_f32 v{F+k}, v{F+k}, v{S}")
                e(f"v_sub_f32 v{F+k+1}, v{F+k+1}, v{S}")
                e(f"v_cvt_pk_bf16_f32 v{U0}, v{F+k}, v{F+k+1}")
                e(f"v_lshlrev_b32 v{F+k}, 16, v{U0}")
                e(f"v_and_b32 v{F+k+1}, 0xffff0000, v{U0}")
                e(f"v_mul_f32 v{F+k}, v{F+k}, v{Q}")
                e(f"v_mul_f32 v{F+k+1}, v{F+k+1}, v{Q}")
                e(f"v_cvt_pk_bf16_f32 v{OUT+XB*4+k//2}, v{F+k}, v{F+k+1}")
    def layernorm1(X, F, T, OUT):
        S, Q, T0, T1, U, C = range(T, T+6)
        for k in range(4):
            e(f"v_lshlrev_b32 v{F+2*k}, 16, v{X+k}")
            e(f"v_and_b32 v{F+2*k+1}, 0xffff0000, v{X+k}")
        e(f"v_readfirstlane_b32 s28, v{F}")
        nop(2)
        for k in range(8): e(f"v_subrev_f32 v{F+k}, s28, v{F+k}")
        e(f"v_add_f32 v{S}, v{F}, v{F+1}")
        e(f"v_mul_f32 v{Q}, v{F}, v{F}")
        e(f"v_fmac_f32 v{Q}, v{F+1}, v{F+1}")
        for k in range(2, 8):
            e(f"v_add_f32 v{S}, v{S}, v{F+k}")
            e(f"v_fmac_f32 v{Q}, v{F+k}, v{F+k}")
        wave_red2("v_add_f32", S, Q, T0, T1)
        e("s_mov_b32 s29, 0x3b000000")
        e(f"v_mul_f32 v{S}, s29, v{S}")
        e(f"v_mul_f32 v{Q}, s29, v{Q}")
        e(f"v_fma_f32 v{Q}, -v{S}, v{S}, v{Q}")
        e(f"v_add_f32 v{U}, s28, v{S}")
        e(f"v_max_f32 v{Q}, 0, v{Q}")
        e(f"v_cvt_pk_bf16_f32 v{U}, v{U}, v{U}")
        e(f"v_cvt_pk_bf16_f32 v{Q}, v{Q}, v{Q}")
        e(f"v_lshlrev_b32 v{U}, 16, v{U}")
        e(f"v_lshlrev_b32 v{Q}, 16, v{Q}")
        e("s_mov_b32 s29, 0x3727c5ac")
        e(f"v_add_f32 v{Q}, s29, v{Q}")
        e(f"v_subrev_f32 v{U}, s28, v{U}")
        e(f"v_cvt_pk_bf16_f32 v{Q}, v{Q}, v{Q}")
        e(f"v_lshlrev_b32 v{Q}, 16, v{Q}")
        e(f"v_sqrt_f32 v{Q}, v{Q}")
        for k in range(4): e(f"v_sub_f32 v{F+k}, v{F+k}, v{U}")
        e(f"v_cvt_pk_bf16_f32 v{Q}, v{Q}, v{Q}")
        for k in range(4, 8): e(f"v_sub_f32 v{F+k}, v{F+k}, v{U}")
        e(f"v_lshlrev_b32 v{Q}, 16, v{Q}")
        e(f"v_rcp_f32 v{Q}, v{Q}")
        for k in range(0, 8, 2):
            e(f"v_cvt_pk_bf16_f32 v{OUT+k//2}, v{F+k}, v{F+k+1}")
        for k in range(0, 8, 2):
            e(f"v_lshlrev_b32 v{F+k}, 16, v{OUT+k//2}")
            e(f"v_and_b32 v{F+k+1}, 0xffff0000, v{OUT+k//2}")
        for k in range(8): e(f"v_mul_f32 v{F+k}, v{F+k}, v{Q}")
        for k in range(0, 8, 2):
            e(f"v_cvt_pk_bf16_f32 v{OUT+k//2}, v{F+k}, v{F+k+1}")
    def store_stamps():
        if not G.stamps: return
        e("s_getreg_b32 s30, hwreg(HW_REG_XCC_ID)")
        e("v_writelane_b32 v255, s30, 40")
        e(f"s_lshl_b32 s30, s2, 2")
        e(f"s_add_u32 s30, s30, s{S_W}")
        e(f"s_lshl_b32 s30, s30, 8")
        e(f"s_add_u32 s30, s30, {WS_STAMP}")
        e(f"v_lshlrev_b32 v60, 2, v{V_LANE}")
        e(f"buffer_store_dword v255, v60, {sr(SRD_WS,4)}, s30 offen")

    e("s_cmp_ge_u32 s2, 256")
    e("s_cbranch_scc1 L_end")
    if G.stamps:
        e("v_mov_b32 v255, 0")
        e("s_memrealtime s[40:41]")
    e(f"s_load_dwordx16 s[64:79], s[0:1], 0")
    e(f"s_load_dwordx8 s[80:87], s[0:1], 64")
    e(f"s_load_dwordx2 s[88:89], s[0:1], 96")
    e(f"v_and_b32 v{V_LANE}, 63, v0")
    e(f"v_lshrrev_b32 v8, 6, v0")
    e(f"v_and_b32 v{V_L15}, 15, v0")
    e(f"v_readfirstlane_b32 s{S_W}, v8")
    e(f"v_lshrrev_b32 v{V_G}, 4, v{V_LANE}")
    e(f"v_lshlrev_b32 v{V_L16B}, 4, v{V_LANE}")
    e(f"s_mov_b32 s{M_G1}, 0xffff0000"); e(f"s_mov_b32 s{M_G1+1}, 0xffff0000")
    e(f"s_mov_b32 s{M_HI}, 0"); e(f"s_mov_b32 s{M_HI+1}, -1")
    e("s_cmp_ge_u32 s2, 128")
    e("s_cbranch_scc1 L_att")

    V_AVW, V_AVR, V_PUB, VD0, VD1 = 56, 57, 55, 58, 59
    RING8 = [224, 232, 240]
    RING4 = [224, 228, 232]
    PUBQ = 48
    e(f"v_lshlrev_b32 v8, 1, v{V_G}")
    e(f"v_xor_b32 v8, v8, v{V_L15}")
    e(f"v_lshlrev_b32 v{V_SW}, 4, v8")
    e("s_and_b32 s28, s2, 7")
    e("s_lshl_b32 s28, s28, 2")
    e("s_bfe_u32 s29, s2, 0x20003")
    e(f"s_add_u32 s{S_H}, s28, s29")
    e(f"s_lshr_b32 s{S_I}, s2, 5")
    e(f"v_lshl_add_u32 v{VD0}, v{V_G}, 13, v{V_SW}")
    e(f"v_xor_b32 v{VD1}, 128, v{VD0}")
    e(f"s_lshl_b32 s29, s{S_I}, 7")
    e(f"s_lshl_b32 s28, s{S_W}, 5")
    e("s_add_u32 s29, s29, s28")
    e("s_lshl_b32 s29, s29, 13")
    e(f"s_lshl_b32 s28, s{S_H}, 8")
    e("s_add_u32 s29, s29, s28")
    e("s_waitcnt lgkmcnt(0)")
    if G.stamps: e("v_writelane_b32 v255, s40, 0")
    G.srd(SRD_1, P_X, 2048)
    G.srd(SRD_2, P_WQ, 4194304)
    X0, X1 = 8, 12
    e(f"s_lshr_b32 s37, s{S_W}, 1")
    e("s_lshl_b32 s37, s37, 10")
    e(f"buffer_load_dwordx4 {vr(X0,4)}, v{V_L16B}, {sr(SRD_1,4)}, s37 offen")
    dma_tile128(SRD_2, VD0, VD1, lin(4*8192), R0, NTW)
    e(f"s_load_dword s{S_TAG}, {sr(P_WS,2)}, {WS_EPOCH}")
    G.srd(SRD_3, P_WUK, 4194304)
    dma_tile128(SRD_3, VD0, VD1, lin(4*8192), R1, "" if G.pf_uk else NTW)
    G.srd(SRD_WS, P_WS, 0x10000000)
    e(f"s_lshl_b32 s32, s{S_H}, 2")
    e(f"s_add_u32 s32, s32, s{S_W}")
    e("s_lshl_b32 s32, s32, 11")
    if G.prew:
        e(f"v_lshlrev_b32 v232, 4, v{V_L15}")
        e(f"v_lshl_add_u32 v232, v{V_G}, 10, v232")
        for r_ in range(4): e(f"v_mov_b32 v{236+r_}, 0")
        e(f"s_lshl_b32 s28, s{S_I}, 8")
        e("s_add_u32 s28, s28, s32")
        lo32()
        for reg in (WS_QPF, WS_CPF):
            e(f"s_add_u32 s30, s28, {reg}")
            e(f"buffer_store_dwordx4 {vr(236,4)}, v232, {sr(SRD_WS,4)}, s30 offen")
        e("s_mov_b64 exec, -1")
    else:
        for reg in (WS_QPF,):
            e(f"s_add_u32 s28, s32, {reg}")
            e(f"buffer_load_dwordx4 {vr(232,4)}, v{V_L16B}, {sr(SRD_WS,4)}, s28 offen sc1")
            e(f"buffer_load_dwordx4 {vr(236,4)}, v{V_L16B}, {sr(SRD_WS,4)}, s28 offen offset:1024 sc1")
    e(f"v_bfe_u32 v17, v{V_LANE}, 2, 2")
    e(f"v_and_b32 v18, 3, v{V_LANE}")
    e(f"v_and_b32 v19, 1, v{V_G}")
    e("v_lshl_add_u32 v20, v19, 2, v17")
    e("v_lshlrev_b32 v20, 1, v20")
    e(f"s_lshl_b32 s28, s{S_W}, 2")
    e("v_xor_b32 v20, s28, v20")
    e("v_lshrrev_b32 v21, 1, v18")
    e("v_add_u32 v20, v20, v21")
    e("v_lshlrev_b32 v20, 4, v20")
    e("v_and_b32 v21, 1, v18")
    e("v_lshl_add_u32 v20, v21, 3, v20")
    e(f"v_lshl_add_u32 v21, v{V_G}, 3, v17")
    e(f"v_lshl_add_u32 v{V_TL0}, v21, 8, v20")
    e(f"v_xor_b32 v{V_TL1}, 32, v{V_TL0}")
    e(f"v_lshrrev_b32 v20, 1, v{V_G}")
    e("v_lshlrev_b32 v20, 8, v20")
    e(f"v_lshl_add_u32 v21, v19, 4, v{V_L15}")
    e(f"s_lshl_b32 s28, s{S_W}, 5")
    e("v_add_u32 v21, s28, v21")
    e(f"v_lshl_add_u32 v{V_AVW}, v21, 1, v20")
    e(f"v_and_b32 v20, 1, v{V_LANE}")
    e("v_lshlrev_b32 v20, 8, v20")
    e(f"v_lshl_add_u32 v{V_AVR}, v{V_G}, 4, v20")
    e(f"v_lshlrev_b32 v{V_PUB}, 4, v{V_L15}")
    e(f"v_lshl_add_u32 v{V_PUB}, v{V_G}, 10, v{V_PUB}")
    e(f"s_lshl_b32 s32, s{S_H}, 2")
    e(f"s_add_u32 s32, s32, s{S_W}")
    e("s_lshl_b32 s32, s32, 11")
    e(f"s_lshl_b32 s33, s{S_I}, 8")
    e("s_add_u32 s33, s33, s32")
    e(f"v_and_b32 v52, 1, v{V_LANE}")
    e("v_lshlrev_b32 v52, 10, v52")
    e(f"v_lshl_add_u32 v52, v{V_G}, 4, v52")
    e(f"s_lshl_b32 s28, s{S_I}, 8")
    e(f"s_add_u32 s28, s28, {L_XN}")
    e("v_add_u32 v52, s28, v52")
    e(f"v_and_b32 v22, 3, v{V_LANE}")
    e(f"v_bfe_u32 v23, v{V_LANE}, 3, 1")
    e("v_lshl_add_u32 v22, v23, 2, v22")
    e("v_lshlrev_b32 v22, 1, v22")
    e(f"v_xor_b32 v22, v22, v{V_G}")
    e(f"v_lshlrev_b32 v23, 8, v{V_L15}")
    e(f"s_lshl_b32 s28, s{S_W}, 13")
    e(f"s_add_u32 s28, s28, {R1}")
    e("v_add_u32 v23, s28, v23")
    for ks in range(4):
        e(f"v_xor_b32 v24, {4*ks}, v22")
        e(f"v_lshl_add_u32 v{248+ks}, v24, 4, v23")
    G.stamp(1)
    e("s_waitcnt vmcnt(18)")
    layernorm1(X0, 16, 24, 40)
    e(f"v_add_u32 v30, s37, v{V_L16B}")
    e(f"ds_write_b128 v30, {vr(40,4)} offset:{L_XN}")
    G.stamp(2)
    e("s_waitcnt vmcnt(10) lgkmcnt(0)")
    e("s_barrier")
    G.stamp(3)
    VA, VB, VC, WUK = 96, 112, 144, 64
    gemv_loadA(52, VA)
    gemv_loadB(R0, VB, 21, 22)
    e(f"s_add_u32 s{S_TAG}, s{S_TAG}, 0x9e3779b9")
    e(f"s_add_u32 s34, s33, {WS_QP}")
    e(f"s_add_u32 s35, s33, {WS_QPF}")
    e(f"v_mov_b32 v{PUBQ+1}, s{S_TAG}")
    e(f"v_mov_b32 v{PUBQ+3}, s{S_TAG}")
    e("s_waitcnt lgkmcnt(0)")
    gemv_mma(VA, VB, VC)
    publish_units(VC, V_PUB, 35, PUBQ, fast=True)
    G.stamp(4)
    e("s_mov_b32 s37, s34")
    def consume4(soff, u0, lds_dst, cnt_idx, sfast, spub, voff, q):
        u1 = u0 + 4
        def mk(sreg):
            def ld(b):
                e(f"buffer_load_dwordx4 {vr(b,4)}, v{V_L16B}, {sr(SRD_WS,4)}, s{sreg} offen sc1")
                e(f"buffer_load_dwordx4 {vr(b+4,4)}, v{V_L16B}, {sr(SRD_WS,4)}, s{sreg} offen offset:1024 sc1")
            return ld
        def slow_store():
            lo32()
            e(f"buffer_store_dwordx4 {vr(q,4)}, v{voff}, {sr(SRD_WS,4)}, s{spub} offen sc1")
            e("s_mov_b64 exec, -1")
        dual_poll(mk(sfast), mk(soff), slow_store, u0, 8, [1, 3, 5, 7], RING8, 2, cnt_idx)
        nop(1)
        e(f"v_permlane32_swap_b32 v{u0}, v{u0+2}")
        e(f"v_permlane32_swap_b32 v{u1}, v{u1+2}")
        nop(1)
        e(f"v_add_f32 v{u0}, v{u0}, v{u0+2}")
        e(f"v_add_f32 v{u1}, v{u1}, v{u1+2}")
        nop(2)
        e(f"v_permlane16_swap_b32 v{u0}, v{u1}")
        nop(1)
        e(f"v_add_f32 v{u0}, v{u0}, v{u1}")
        write_av(u0, lds_dst)
    def write_av(vsrc, lds_dst):
        e(f"v_cvt_pk_bf16_f32 v54, v{vsrc}, v{vsrc}")
        e(f"ds_write_b16 v{V_AVW}, v54 offset:{lds_dst}")
    e(f"s_add_u32 s34, s32, {WS_QP}")
    e(f"s_add_u32 s35, s32, {WS_QPF}")
    e("s_waitcnt vmcnt(1)")
    for ct in range(2):
        for ks in range(4):
            e(f"ds_read_b128 {vr(WUK+(ct*4+ks)*4,4)}, v{248+ks} offset:{4096*ct}")
    consume4(34, 40, L_AVQ, 32, 35, 37, V_PUB, PUBQ)
    e("s_waitcnt lgkmcnt(0)")
    e("s_barrier")
    G.stamp(5)
    gemv_loadA(V_AVR, VA, L_AVQ)
    e(f"v_lshlrev_b32 v44, 4, v{V_L15}")
    e(f"v_lshl_add_u32 v44, v{V_G}, 15, v44")
    e(f"s_lshl_b32 s34, s{S_H}, 10")
    e(f"s_lshl_b32 s35, s{S_I}, 8")
    e("s_add_u32 s34, s34, s35")
    e(f"s_add_u32 s34, s34, {WS_QA}")
    e(f"s_lshl_b32 s35, s{S_H}, 2")
    e(f"s_add_u32 s35, s35, s{S_I}")
    e("s_lshl_b32 s35, s35, 4")
    e(f"s_add_u32 s35, s35, {WS_FB}")
    e("s_waitcnt lgkmcnt(0)")
    for ks in range(4):
        for ct in range(2):
            c = "0" if ks == 0 else vr(VC+4*ct, 4)
            e(f"v_mfma_f32_16x16x32_bf16 {vr(VC+4*ct,4)}, {vr(VA+4*ks,4)}, {vr(WUK+(ct*4+ks)*4,4)}, {c}")
    nop(9)
    sel_tb(VC, 40, 41)
    e(f"v_cndmask_b32 v40, v40, v41, {sr(M_HI,2)}")
    e(f"v_mul_f32 v40, {fbits((128 ** -0.5) * math.log2(math.e))}, v40")
    write_av(40, L_QS)
    e("s_waitcnt lgkmcnt(0)")
    e("s_barrier")
    def ldFB(b):
        e(f"buffer_load_dwordx2 {vr(b,2)}, v{V_L16B}, {sr(SRD_WS,4)}, s34 offen sc1")
        e(f"buffer_load_dwordx2 {vr(b+2,2)}, v{V_L16B}, {sr(SRD_WS,4)}, s34 offen offset:1024 sc1")
    def gate_poll():
        e("s_and_b32 s34, s2, 7")
        e("s_lshl_b32 s34, s34, 11")
        e(f"s_add_u32 s34, s34, {WS_FB}")
        poll(ldFB, 40, 4, [0, 1, 2, 3], RING4, 2, 4, 33)
    lskip = G.newlab("nopub")
    e(f"s_cmp_lg_u32 s{S_W}, 0")
    e(f"s_cbranch_scc1 {lskip}")
    e(f"ds_read_b128 {vr(40,4)}, v{V_L16B} offset:{L_QS}")
    e(f"v_mov_b32 v46, s{S_TAG}")
    e(f"v_mov_b32 v47, s{S_TAG}")
    e(f"v_lshlrev_b32 v45, 11, v{V_LANE}")
    e("s_waitcnt lgkmcnt(0)")
    lo32()
    e(f"buffer_store_dwordx4 {vr(40,4)}, v44, {sr(SRD_WS,4)}, s34 offen sc1")
    e("s_mov_b64 exec, 0xff")
    e("s_waitcnt vmcnt(0)")
    e(f"buffer_store_dwordx2 {vr(46,2)}, v45, {sr(SRD_WS,4)}, s35 offen sc1")
    e("s_mov_b64 exec, -1")
    if G.gate == 'B' and G.order != 'B2': gate_poll()
    lab(lskip)
    G.stamp(6)
    e("s_barrier")
    G.stamp(7)
    FFN_EARLY = (G.order == 'B2')
    R3, RW2 = 106496, 139264
    S_FS, S_HF = 50, 51
    BUV, BO = 160, 192
    def blk_late():
        G.srd(SRD_1, P_WUV, 4194304)
        G.srd(SRD_2, P_WO, 4194304)
        e(f"v_lshl_add_u32 v{VD0}, v{V_G}, 17, v{V_SW}")
        e(f"v_xor_b32 v{VD1}, 128, v{VD0}")
        e(f"s_lshl_b32 s29, s{S_I}, 7")
        e(f"s_lshl_b32 s28, s{S_W}, 2")
        e("s_add_u32 s29, s29, s28")
        e("s_lshl_b32 s29, s29, 13")
        e(f"s_lshl_b32 s28, s{S_H}, 8")
        e("s_add_u32 s29, s29, s28")
        def f_uv(n):
            off = (64*(n & 1) + (n >> 1)) * 8192
            if off == 0: e("s_mov_b32 s30, s29")
            else: e(f"s_add_u32 s30, s29, {off}")
        dma_tile128(SRD_1, VD0, VD1, f_uv, R0, NTW)
        e(f"v_lshl_add_u32 v{VD0}, v{V_G}, 10, v{V_SW}")
        e(f"v_xor_b32 v{VD1}, 128, v{VD0}")
        e(f"s_lshl_b32 s29, s{S_H}, 7")
        e(f"s_lshl_b32 s28, s{S_W}, 5")
        e("s_add_u32 s29, s29, s28")
        e("s_lshl_b32 s29, s29, 10")
        e(f"s_lshl_b32 s28, s{S_I}, 8")
        e("s_add_u32 s29, s29, s28")
        dma_tile128(SRD_2, VD0, VD1, lin(4*1024), R2, NTW)
    def blk_ffn_loads():
        lnf1 = G.newlab("noffn1")
        e("s_lshr_b32 s28, s2, 4")
        e("s_and_b32 s29, s2, 7")
        e("s_mul_i32 s29, s29, 6")
        e(f"s_add_u32 s{S_FS}, s28, s29")
        e("s_cmp_ge_u32 s2, 96")
        e(f"s_cselect_b32 s{S_FS}, 63, s{S_FS}")
        e(f"s_bfe_u32 s{S_HF}, s2, 0x10003")
        e(f"s_cmp_ge_u32 s{S_FS}, 43")
        e(f"s_cbranch_scc1 {lnf1}")
        G.srd(SRD_1, P_W1, 1409024)
        G.srd(SRD_2, P_W3, 1409024)
        G.srd(SRD_3, P_W2, 1409024)
        e(f"v_lshrrev_b32 v64, 2, v{V_LANE}")
        e("v_mul_u32_u24 v64, 2752, v64")
        e(f"v_lshrrev_b32 v65, 5, v{V_LANE}")
        e("v_lshlrev_b32 v66, 1, v65")
        e(f"v_and_b32 v67, 3, v{V_LANE}")
        e("v_xor_b32 v67, v66, v67")
        e("v_lshl_add_u32 v64, v67, 4, v64")
        e(f"s_lshl_b32 s29, s{S_HF}, 2")
        e(f"s_add_u32 s29, s29, s{S_W}")
        e(f"s_mul_i32 s29, s29, {64*2752}")
        e(f"s_lshl_b32 s28, s{S_FS}, 6")
        e("s_add_u32 s29, s29, s28")
        e(f"s_lshl_b32 s31, s{S_W}, 12")
        for (srd, base) in ((SRD_1, R3), (SRD_2, R3 + 16384)):
            for n in range(4):
                if n == 0: e("s_mov_b32 s30, s29")
                else: e(f"s_add_u32 s30, s29, {n*16*2752}")
                e(f"s_add_u32 m0, s31, {base + n*1024}")
                nop(1)
                e(f"buffer_load_dwordx4 v64, {sr(srd,4)}, s30 offen lds")
        e(f"v_and_b32 v67, 31, v{V_LANE}")
        e("v_xor_b32 v67, v67, v66")
        e(f"s_and_b32 s28, s{S_W}, 1")
        e("s_lshl_b32 s28, s28, 3")
        e("v_xor_b32 v67, s28, v67")
        e("v_lshlrev_b32 v67, 4, v67")
        e("v_lshl_add_u32 v67, v65, 10, v67")
        e("v_xor_b32 v68, 64, v67")
        e(f"s_lshl_b32 s29, s{S_FS}, 5")
        e(f"s_lshl_b32 s28, s{S_W}, 3")
        e("s_add_u32 s29, s29, s28")
        e("s_lshl_b32 s29, s29, 10")
        e(f"s_lshl_b32 s28, s{S_HF}, 9")
        e("s_add_u32 s29, s29, s28")
        for n in range(4):
            if n == 0: e("s_mov_b32 s30, s29")
            else: e(f"s_add_u32 s30, s29, {n*2048}")
            e(f"s_add_u32 m0, s31, {RW2 + n*1024}")
            nop(1)
            e(f"buffer_load_dwordx4 v{68 if n & 1 else 67}, {sr(SRD_3,4)}, s30 offen{NTW} lds")
        lab(lnf1)
    def blk_ffn_comp():
        lnf2 = G.newlab("noffn2")
        e(f"s_cmp_ge_u32 s{S_FS}, 43")
        e(f"s_cbranch_scc1 {lnf2}")
        e(f"v_bfe_u32 v17, v{V_LANE}, 2, 2")
        e(f"v_and_b32 v18, 3, v{V_LANE}")
        e(f"v_and_b32 v19, 1, v{V_G}")
        e(f"s_and_b32 s28, s{S_W}, 1")
        e("s_lshl_b32 s28, s28, 1")
        e("v_lshrrev_b32 v20, 1, v18")
        e("v_add_u32 v20, s28, v20")
        e("v_lshlrev_b32 v21, 1, v19")
        e("v_xor_b32 v20, v20, v21")
        e("v_lshlrev_b32 v20, 4, v20")
        e("v_and_b32 v21, 1, v18")
        e("v_lshl_add_u32 v20, v21, 3, v20")
        e(f"v_lshl_add_u32 v21, v{V_G}, 3, v17")
        e("v_lshl_add_u32 v20, v21, 6, v20")
        e(f"s_lshr_b32 s28, s{S_W}, 1")
        e("s_lshl_b32 s28, s28, 14")
        e(f"s_add_u32 s28, s28, {R3}")
        e("v_add_u32 v20, s28, v20")
        e(f"v_and_b32 v21, 1, v{V_LANE}")
        e("v_lshlrev_b32 v21, 10, v21")
        e(f"v_lshl_add_u32 v21, v{V_G}, 4, v21")
        e(f"s_lshl_b32 s28, s{S_HF}, 9")
        e("v_add_u32 v21, s28, v21")
        FA, FB_, GA = 96, 128, 76
        e("s_lshl_b32 s28, s2, 2")
        e(f"s_add_u32 s28, s28, s{S_W}")
        e("s_lshl_b32 s28, s28, 8")
        e(f"s_add_u32 s34, s28, {WS_F1}")
        e(f"s_add_u32 s35, s28, {WS_F1F}")
        e("s_xor_b32 s28, s2, 8")
        e("s_lshl_b32 s28, s28, 2")
        e(f"s_add_u32 s28, s28, s{S_W}")
        e("s_lshl_b32 s28, s28, 8")
        e(f"s_add_u32 s36, s28, {WS_F1}")
        e(f"s_add_u32 s37, s28, {WS_F1F}")
        e(f"v_lshlrev_b32 v26, 4, v{V_L15}")
        e(f"v_mov_b32 v41, s{S_TAG}")
        e(f"v_mov_b32 v43, s{S_TAG}")
        e(f"buffer_load_dwordx4 {vr(232,4)}, v26, {sr(SRD_WS,4)}, s37 offen sc1")
        e("s_waitcnt vmcnt(%d)" % (5 if FFN_EARLY else 5 + (0 if G.prew else 2) + (1 if G.touch else 0)))
        e("s_barrier")
        for ks in range(8):
            e(f"ds_read_b128 {vr(FA+4*ks,4)}, v21 offset:{L_XN + 64*ks}")
            for u in range(2):
                e(f"ds_read_b64_tr_b16 {vr(FB_+4*ks+2*u,2)}, v20 offset:{2048*ks + 256*u}")
        e("s_waitcnt lgkmcnt(0)")
        for ks in range(8):
            c = "0" if ks == 0 else vr(GA, 4)
            e(f"v_mfma_f32_16x16x32_bf16 {vr(GA,4)}, {vr(FA+4*ks,4)}, {vr(FB_+4*ks,4)}, {c}")
        e("v_lshl_add_u32 v20, v19, 2, v17")
        e("v_lshlrev_b32 v20, 1, v20")
        e(f"s_lshl_b32 s28, s{S_W}, 3")
        e("v_xor_b32 v20, s28, v20")
        e(f"v_lshl_add_u32 v21, v{V_G}, 3, v17")
        e("v_lshlrev_b32 v21, 9, v21")
        e("v_lshrrev_b32 v22, 1, v18")
        e("v_lshl_add_u32 v21, v22, 4, v21")
        e("v_and_b32 v22, 1, v18")
        e("v_lshl_add_u32 v21, v22, 3, v21")
        e(f"v_add_u32 v21, {RW2}, v21")
        for t in range(4):
            e(f"v_xor_b32 v22, {2*t}, v20")
            e(f"v_lshl_add_u32 v{28+t}, v22, 4, v21")
        e(f"v_mov_b32 v40, v{GA}")
        e(f"v_mov_b32 v42, v{GA+1}")
        e("s_mov_b64 exec, 0xffff")
        e(f"buffer_store_dwordx4 {vr(40,4)}, v26, {sr(SRD_WS,4)}, s35 offen")
        e("s_mov_b64 exec, -1")
        G.stamp(17)
        def ldF(sreg):
            return lambda b: e(f"buffer_load_dwordx4 {vr(b,4)}, v26, {sr(SRD_WS,4)}, s{sreg} offen sc1")
        def f1_slow():
            e("s_mov_b64 exec, 0xffff")
            e(f"buffer_store_dwordx4 {vr(40,4)}, v26, {sr(SRD_WS,4)}, s34 offen sc1")
            e("s_mov_b64 exec, -1")
        dual_poll(ldF(37), ldF(36), f1_slow, 44, 4, [1, 3], RING4, 1, 34)
        G.stamp(18)
        e(f"v_add_f32 v{GA}, v{GA}, v44")
        e(f"v_add_f32 v{GA+1}, v{GA+1}, v46")
        e(f"v_and_b32 v23, 1, v{V_G}")
        e("v_lshlrev_b32 v23, 7, v23")
        e(f"v_lshl_add_u32 v23, v{V_L15}, 2, v23")
        e(f"v_cndmask_b32 v22, v{GA}, v{GA+1}, {sr(M_G1,2)}")
        e(f"s_lshr_b32 s28, s{S_W}, 1")
        e("s_lshl_b32 s28, s28, 8")
        e(f"s_and_b32 s29, s{S_W}, 1")
        e("s_lshl_b32 s29, s29, 6")
        e("s_add_u32 s28, s28, s29")
        e("v_add_u32 v23, s28, v23")
        e(f"ds_write_b32 v23, v22 offset:{L_GUW}")
        e("s_waitcnt lgkmcnt(0)")
        e("s_barrier")
        e(f"v_lshlrev_b32 v23, 2, v{V_LANE}")
        e(f"ds_read_b32 v24, v23 offset:{L_GUW}")
        e(f"ds_read_b32 v25, v23 offset:{L_GUW+256}")
        for t in range(4):
            for u in range(2):
                e(f"ds_read_b64_tr_b16 {vr(FB_+4*t+2*u,2)}, v{28+t} offset:{2048*u}")
        e(f"v_mul_u32_u24 v20, {FP_S*256}, v{V_G}")
        e(f"v_lshl_add_u32 v20, v{V_L15}, 4, v20")
        e(f"s_lshl_b32 s28, s{S_HF}, 2")
        e(f"s_add_u32 s28, s28, s{S_W}")
        e(f"s_mul_i32 s28, s28, {4*FP_S*256}")
        e(f"s_lshl_b32 s29, s{S_FS}, 8")
        e("s_add_u32 s28, s28, s29")
        e(f"s_add_u32 s28, s28, {WS_FP}")
        e("s_waitcnt lgkmcnt(8)")
        rbf(24); rbf(25)
        e("v_mul_f32 v26, 0xbfb8aa3b, v24")
        e("v_exp_f32 v26, v26")
        e(f"v_lshlrev_b32 v23, 1, v{V_LANE}")
        e("v_add_f32 v26, 1.0, v26")
        e("v_rcp_f32 v26, v26")
        e(f"v_and_b32 v21, 1, v{V_LANE}")
        e("v_mul_f32 v26, v24, v26")
        rbf(26)
        e("v_mul_f32 v26, v26, v25")
        e("v_cvt_pk_bf16_f32 v26, v26, v26")
        e(f"ds_write_b16 v23, v26 offset:{L_HW}")
        e("v_lshlrev_b32 v21, 6, v21")
        e(f"v_lshl_add_u32 v21, v{V_G}, 4, v21")
        e("s_waitcnt lgkmcnt(0)")
        DA = 100
        e(f"ds_read_b128 {vr(FA,4)}, v21 offset:{L_HW}")
        e(f"v_mov_b32 v37, s{S_TAG}")
        e(f"v_mov_b32 v39, s{S_TAG}")
        e("s_waitcnt lgkmcnt(0)")
        for t in range(4):
            e(f"v_mfma_f32_16x16x32_bf16 {vr(DA+4*t,4)}, {vr(FA,4)}, {vr(FB_+4*t,4)}, 0")
        nop(9)
        for rr in range(2):
            e(f"v_cndmask_b32 v32, v{DA+rr}, v{DA+4+rr}, {sr(M_G1,2)}")
            e(f"v_cndmask_b32 v33, v{DA+8+rr}, v{DA+12+rr}, {sr(M_G1,2)}")
            e(f"v_cndmask_b32 v{36+2*rr}, v32, v33, {sr(M_HI,2)}")
        e(f"buffer_store_dwordx4 {vr(36,4)}, v20, {sr(SRD_WS,4)}, s28 offen sc1")
        G.stamp(20)
        lab(lnf2)
    def blk_csetup():
        e(f"s_lshl_b32 s28, s{S_I}, 7")
        e(f"s_lshr_b32 s29, s{S_W}, 1")
        e("s_lshl_b32 s29, s29, 6")
        e("s_add_u32 s28, s28, s29")
        e("s_lshl_b32 s38, s28, 9")
        e(f"s_lshl_b32 s29, s{S_H}, 4")
        e("s_add_u32 s38, s38, s29")
        e(f"s_add_u32 s38, s38, {WS_SU}")
        e(f"v_lshlrev_b32 v52, 9, v{V_LANE}")
        e("s_and_b32 s34, s2, 7")
        e("s_lshl_b32 s34, s34, 13")
        e(f"s_lshl_b32 s28, s{S_I}, 11")
        e("s_add_u32 s34, s34, s28")
        e(f"s_add_u32 s34, s34, {WS_CF}")
        if G.touch:
            e(f"v_lshlrev_b32 v45, 16, v{V_LANE}")
            e(f"s_mov_b32 s28, {WS_OP}")
            e(f"buffer_load_dword v46, v45, {sr(SRD_WS,4)}, s28 offen sc1")
        for reg in (() if G.prew else (WS_CPF,)):
            e(f"s_add_u32 s28, s32, {reg}")
            e(f"buffer_load_dwordx4 {vr(232,4)}, v{V_L16B}, {sr(SRD_WS,4)}, s28 offen sc1")
            e(f"buffer_load_dwordx4 {vr(236,4)}, v{V_L16B}, {sr(SRD_WS,4)}, s28 offen offset:1024 sc1")
        lnw = G.newlab("nowarm")
        e("s_cmp_lt_u32 s2, 96")
        e(f"s_cbranch_scc1 {lnw}")
        e("s_sub_u32 s28, s2, 96")
        e("s_lshl_b32 s28, s28, 13")
        e(f"s_add_u32 s28, s28, {WS_EP}")
        e(f"v_lshlrev_b32 v20, 4, v0")
        e("v_add_u32 v24, 4096, v20")
        e(f"buffer_load_dwordx4 {vr(244,4)}, v20, {sr(SRD_WS,4)}, s28 offen sc1")
        e(f"buffer_load_dwordx4 {vr(248,4)}, v24, {sr(SRD_WS,4)}, s28 offen sc1")
        lab(lnw)
        e(f"v_lshl_add_u32 v{VD0}, v{V_G}, 15, v{V_SW}")
        e(f"v_xor_b32 v{VD1}, 128, v{VD0}")
        e(f"s_lshl_b32 s29, s{S_W}, 7")
        e(f"s_add_u32 s29, s29, s{S_I}")
        e("s_lshl_b32 s29, s29, 13")
        e(f"s_lshl_b32 s28, s{S_H}, 8")
        e("s_add_u32 s29, s29, s28")
        e(f"s_add_u32 s29, s29, {WS_OP}")
        e(f"v_lshlrev_b32 v53, 4, v{V_L15}")
        e(f"v_lshl_add_u32 v53, v{V_G}, 13, v53")
        e(f"s_lshl_b32 s28, s{S_I}, 2")
        e(f"s_add_u32 s28, s28, s{S_W}")
        e("s_lshl_b32 s28, s28, 14")
        e(f"s_lshl_b32 s39, s{S_H}, 8")
        e("s_add_u32 s28, s28, s39")
        e(f"s_add_u32 s39, s28, {WS_EP}")
        e(f"v_add_u32 v21, {R1}, v{V_TL0}")
        e(f"v_add_u32 v22, {R1}, v{V_TL1}")
    def blk_waitpre():
        lw1 = G.newlab("w1"); lw2 = G.newlab("w2")
        e(f"s_cmp_ge_u32 s{S_FS}, 43")
        e(f"s_cbranch_scc1 {lw1}")
        e(f"s_waitcnt vmcnt({0 if FFN_EARLY else (12 if G.prew else 14) + (1 if G.touch else 0)})")
        e(f"s_branch {lw2}")
        lab(lw1)
        e("s_waitcnt vmcnt(0)")
        lab(lw2)
        e("s_barrier")
        G.stamp(8)
        gemv_loadB(R0, BUV, 25, 26)
        gemv_loadB(R2, BO, 25, 26)
        G.stamp(9)
    R3, RW2 = 106496, 139264
    S_FS, S_HF = 50, 51
    BUV, BO = 160, 192
    if FFN_EARLY:
        blk_ffn_loads()
        blk_ffn_comp()
        lg = G.newlab("gate2")
        e(f"s_cmp_lg_u32 s{S_W}, 0")
        e(f"s_cbranch_scc1 {lg}")
        gate_poll()
        lab(lg)
        e("s_barrier")
        blk_late()
        blk_csetup()
        blk_waitpre()
    else:
        blk_late()
        blk_ffn_loads()
        blk_csetup()
        blk_waitpre()
    if not FFN_EARLY:
        SAVE_S = [34, 35, 36, 37, 29]
        for k_, r_ in enumerate(SAVE_S): e(f"s_mov_b32 s{56+k_}, s{r_}")
        e("v_mov_b32 v69, v20"); e("v_mov_b32 v70, v21"); e("v_mov_b32 v71, v22"); e("v_mov_b32 v72, v24")
        blk_ffn_comp()
        for k_, r_ in enumerate(SAVE_S): e(f"s_mov_b32 s{r_}, s{56+k_}")
        e("v_mov_b32 v20, v69"); e("v_mov_b32 v21, v70"); e("v_mov_b32 v22, v71"); e("v_mov_b32 v24, v72")

    lodd = G.newlab("codd"); lj = G.newlab("cjoin")
    e(f"s_cmp_lg_u32 s{S_W}, 0")
    e(f"s_cbranch_scc1 {lodd}")
    poll(ldFB, 40, 4, [0, 1, 2, 3], RING4, 2, G.sl_flag, 35)
    lab(lodd)
    e("s_barrier")
    G.stamp(10)
    e(f"buffer_load_dwordx4 {vr(40,4)}, v52, {sr(SRD_WS,4)}, s38 offen sc1")
    dma_tile128(SRD_WS, VD0, VD1, lin(4*32768), R1, " sc1")
    e(f"s_and_b32 s28, s{S_W}, 1")
    e("s_cmp_lg_u32 s28, 0")
    e(f"s_cbranch_scc1 {lj}")
    e("s_waitcnt vmcnt(8)")
    e("v_mov_b32 v44, v40")
    wave_red("v_max_f32", 44, 45)
    e("v_sub_f32 v40, v40, v44")
    e("v_exp_f32 v40, v40")
    nop(1)
    e("v_mul_f32 v44, v40, v42")
    wave_red("v_add_f32", 44, 45)
    e("v_rcp_f32 v44, v44")
    e(f"s_lshr_b32 s29, s{S_W}, 1")
    e("s_mul_i32 s28, s29, 384")
    e(f"v_lshlrev_b32 v45, 1, v{V_LANE}")
    e("v_mul_f32 v40, v40, v44")
    e("v_add_u32 v46, s28, v45")
    e("v_cvt_pk_bf16_f32 v40, v40, v40")
    e("s_lshl_b32 s28, s29, 7")
    e("s_add_u32 s28, s28, 128")
    e(f"ds_write_b16 v46, v40 offset:{L_WGT}")
    e("v_add_u32 v46, s28, v45")
    e("v_mov_b32 v47, 0")
    e(f"ds_write_b16 v46, v47 offset:{L_WGT}")
    lab(lj)
    e(f"s_add_u32 s34, s33, {WS_CP}")
    e(f"s_add_u32 s35, s33, {WS_CPF}")
    e("s_waitcnt vmcnt(0) lgkmcnt(0)")
    e("s_barrier")
    G.stamp(11)
    gemv_loadA(V_AVR, VA, L_WGT)
    for ks in range(4):
        for t in range(2):
            for u in range(2):
                r = VB + (t*4 + ks)*4 + 2*u
                e(f"ds_read_b64_tr_b16 {vr(r,2)}, v{21+t} offset:{8192*ks + 1024*u}")
    e("s_waitcnt lgkmcnt(0)")
    gemv_mma(VA, VB, VC)
    sel_tb(VC, 40, 41)
    e(f"v_cndmask_b32 v40, v40, v41, {sr(M_HI,2)}")
    write_av(40, L_AVO)
    e("s_waitcnt lgkmcnt(0)")
    e("s_barrier")
    gemv_loadA(V_AVR, VA, L_AVO)
    e("s_waitcnt lgkmcnt(0)")
    gemv_mma(VA, BUV, VC)
    publish_units(VC, V_PUB, 35, PUBQ, fast=True)
    G.stamp(12)
    e("s_mov_b32 s37, s34")
    e(f"s_add_u32 s34, s32, {WS_CP}")
    e(f"s_add_u32 s35, s32, {WS_CPF}")
    consume4(34, 40, L_AVC, 36, 35, 37, V_PUB, PUBQ)
    e("s_waitcnt lgkmcnt(0)")
    e("s_barrier")
    G.stamp(13)
    gemv_loadA(V_AVR, VA, L_AVC)
    e("s_waitcnt lgkmcnt(0)")
    gemv_mma(VA, BO, VC)
    publish_units(VC, 53, 39, PUBQ)
    G.stamp(14)
    e("s_cmp_lt_u32 s2, 96")
    e("s_cbranch_scc1 L_wdone")
    e("s_sub_u32 s35, s2, 96")
    e(f"v_lshlrev_b32 v20, 4, v0")
    e("s_lshl_b32 s28, s35, 13")
    e(f"s_add_u32 s36, s28, {WS_EP}")
    e(f"s_mul_i32 s28, s35, {FP_S*256}")
    e(f"s_add_u32 s37, s28, {WS_FP}")
    G.srd(SRD_1, P_X, 2048)
    e(f"v_lshlrev_b32 v21, 10, v{V_G}")
    e(f"v_lshl_add_u32 v21, v{V_L15}, 1, v21")
    e("s_lshl_b32 s28, s35, 5")
    e(f"buffer_load_ushort v22, v21, {sr(SRD_1,4)}, s28 offen")
    e("v_add_u32 v24, 4096, v20")
    e("v_add_u32 v25, 8192, v20")
    e("v_mov_b32 v23, 176")
    e("v_cmp_ge_u32 s[42:43], v0, v23")
    e(f"v_mov_b32 v26, s{S_TAG}")
    e("v_mov_b32 v27, 0")
    def ldFP(b):
        e(f"buffer_load_dwordx4 {vr(b,4)}, v20, {sr(SRD_WS,4)}, s37 offen sc1")
        e(f"buffer_load_dwordx4 {vr(b+4,4)}, v24, {sr(SRD_WS,4)}, s37 offen sc1")
        e(f"buffer_load_dwordx4 {vr(b+8,4)}, v25, {sr(SRD_WS,4)}, s37 offen sc1")
    def ldE(b):
        e(f"buffer_load_dwordx4 {vr(b,4)}, v20, {sr(SRD_WS,4)}, s36 offen sc1")
        e(f"buffer_load_dwordx4 {vr(b+4,4)}, v24, {sr(SRD_WS,4)}, s36 offen sc1")
    ldFP(108)
    poll(ldE, 100, 8, [1, 3, 5, 7], RING8, 2, G.sl_unit, 37)
    G.stamp(19)
    lp, done, skip = G.newlab("pollfp"), G.newlab("pfpdone"), G.newlab("pfpskip")
    e(f"s_mov_b32 s48, {G.spin}")
    e(f"s_branch {skip}")
    lab(lp)
    ldFP(108)
    e("s_waitcnt vmcnt(0)")
    lab(skip)
    e("v_cndmask_b32 v117, v117, v26, s[42:43]")
    e("v_cndmask_b32 v119, v119, v26, s[42:43]")
    check_tags([109, 111, 113, 115, 117, 119])
    e(f"s_cbranch_vccz {done}")
    e("s_sub_u32 s48, s48, 1")
    e(f"s_cbranch_scc0 {lp}")
    lab(done)
    G.stampval(38, 48)
    e("v_cndmask_b32 v116, v116, v27, s[42:43]")
    e("v_cndmask_b32 v118, v118, v27, s[42:43]")
    G.stamp(15)
    for rr in (0, 2):
        e(f"v_add_f32 v{100+rr}, v{100+rr}, v{104+rr}")
        e(f"v_add_f32 v{108+rr}, v{108+rr}, v{112+rr}")
    for rr in (0, 2):
        e(f"v_add_f32 v{100+rr}, v{100+rr}, v{116+rr}")
    for rr in (0, 2):
        e(f"v_add_f32 v{100+rr}, v{100+rr}, v{108+rr}")
    nop(2)
    e("v_permlane32_swap_b32 v100, v102")
    nop(1)
    e("v_add_f32 v100, v100, v102")
    e("v_mov_b32 v101, v100")
    nop(2)
    e("v_permlane16_swap_b32 v100, v101")
    e(f"v_lshrrev_b32 v27, 5, v{V_LANE}")
    e("v_add_f32 v100, v100, v101")
    e("v_lshlrev_b32 v27, 6, v27")
    e(f"v_lshl_add_u32 v27, v{V_L15}, 2, v27")
    e(f"s_lshl_b32 s28, s{S_W}, 7")
    e("v_add_u32 v28, s28, v27")
    e(f"ds_write_b32 v28, v100 offset:{L_FIN}")
    G.srd(SRD_2, P_OUT, 2048)
    e("s_waitcnt lgkmcnt(0)")
    e("s_barrier")
    e(f"s_cmp_lg_u32 s{S_W}, 0")
    e("s_cbranch_scc1 L_wdone")
    e(f"v_lshlrev_b32 v27, 2, v{V_LANE}")
    for w in range(4):
        e(f"ds_read_b32 v{104+w}, v27 offset:{L_FIN + 128*w}")
    e("s_lshl_b32 s28, s35, 5")
    e("v_lshlrev_b32 v22, 16, v22")
    e("s_waitcnt lgkmcnt(0)")
    e("v_add_f32 v104, v104, v105")
    e("v_add_f32 v106, v106, v107")
    e("v_add_f32 v104, v104, v22")
    e("v_add_f32 v104, v104, v106")
    e("v_cvt_pk_bf16_f32 v104, v104, v104")
    lo32()
    e(f"buffer_store_short v104, v21, {sr(SRD_2,4)}, s28 offen")
    e("s_cmp_lg_u32 s35, 0")
    e("s_cbranch_scc1 L_wdone0")
    e("s_mov_b64 exec, 1")
    e(f"v_mov_b32 v30, s{S_TAG}")
    e("v_mov_b32 v31, 0")
    e(f"buffer_store_dword v30, v31, {sr(SRD_WS,4)}, 0 offen offset:{WS_EPOCH}")
    lab("L_wdone0")
    e("s_mov_b64 exec, -1")
    lab("L_wdone")
    G.stamp(16)
    store_stamps()
    e("s_endpgm")

    lab("L_att")
    S_A, S_FS, S_HF = 38, 37, 39
    e(f"s_sub_u32 s{S_A}, s2, 128")
    e(f"s_lshr_b32 s{S_H}, s{S_A}, 6")
    VCK = 8
    for idx in range(8):
        x = 32*(idx & 3) + 128*(idx >> 2)
        if x == 0: e(f"v_mov_b32 v{VCK+idx}, v{V_L16B}")
        else: e(f"v_xor_b32 v{VCK+idx}, {x}, v{V_L16B}")
    e(f"s_lshl_b32 s29, s{S_A}, 7")
    e(f"s_lshl_b32 s30, s{S_W}, 5")
    e("s_add_u32 s29, s29, s30")
    e("s_lshl_b32 s29, s29, 10")
    e(f"s_lshl_b32 s31, s{S_W}, 15")
    e("s_waitcnt lgkmcnt(0)")
    if G.stamps: e("v_writelane_b32 v255, s40, 0")
    G.srd(SRD_1, P_CKV, 16777216)
    if G.pf_uk:
        G.srd(SRD_2, P_WUK, 4194304)
        e(f"s_and_b32 s28, s{S_A}, 7")
        e("s_lshl_b32 s28, s28, 2")
        e(f"s_bfe_u32 s30, s{S_A}, 0x20003")
        e("s_add_u32 s28, s28, s30")
        e("s_lshl_b32 s28, s28, 8")
        e(f"s_lshr_b32 s30, s{S_A}, 5")
        e("s_lshl_b32 s30, s30, 20")
        e("s_add_u32 s28, s28, s30")
        e(f"s_lshl_b32 s30, s{S_W}, 18")
        e("s_add_u32 s35, s28, s30")
        e(f"v_lshlrev_b32 v40, 13, v{V_G}")
        e(f"v_lshl_add_u32 v40, v{V_L15}, 4, v40")
        e(f"s_lshl_b32 s36, s{S_W}, 13")
        for n in range(8):
            e(f"s_add_u32 s30, s35, {n*4*8192}")
            e(f"s_add_u32 m0, s36, {L_QAL + n*1024}")
            nop(1)
            e(f"buffer_load_dwordx4 v40, {sr(SRD_2,4)}, s30 offen lds")
    e(f"s_load_dword s{S_TAG}, {sr(P_WS,2)}, {WS_EPOCH}")
    G.srd(SRD_WS, P_WS, 0x10000000)
    setup = []
    su = setup.append
    AA, AB, TB, TB2 = 16, 20, 24, 48
    su(f"v_and_b32 v32, 3, v{V_LANE}")
    su(f"v_bfe_u32 v33, v{V_LANE}, 3, 1")
    su("v_lshl_add_u32 v32, v33, 2, v32")
    su("v_lshlrev_b32 v32, 1, v32")
    su(f"v_xor_b32 v33, v32, v{V_G}")
    su(f"v_lshlrev_b32 v34, 10, v{V_L15}")
    su(f"s_add_u32 s37, s31, {L_CKV}")
    for j in range(4):
        su(f"v_xor_b32 v35, {4*j}, v33")
        su(f"v_lshl_add_u32 v{AB+j}, v35, 4, v34")
        su(f"v_add_u32 v{AA+j}, s37, v{AB+j}")
        if L_QAL: su(f"v_add_u32 v{AB+j}, {L_QAL}, v{AB+j}")
    su(f"v_bfe_u32 v32, v{V_LANE}, 2, 2")
    su(f"v_and_b32 v33, 3, v{V_LANE}")
    su(f"v_and_b32 v34, 1, v{V_G}")
    su("v_lshl_add_u32 v35, v34, 2, v32")
    su("v_lshlrev_b32 v35, 1, v35")
    su(f"v_lshl_add_u32 v36, v{V_G}, 3, v32")
    su("v_lshlrev_b32 v36, 10, v36")
    su("v_lshrrev_b32 v37, 1, v33")
    su("v_lshl_add_u32 v36, v37, 4, v36")
    su("v_and_b32 v37, 1, v33")
    su("v_lshl_add_u32 v36, v37, 3, v36")
    su(f"s_lshl_b32 s28, s{S_W}, 8")
    su(f"s_add_u32 s28, s28, {L_CKV}")
    su("v_add_u32 v36, s28, v36")
    for t in range(8):
        su(f"v_xor_b32 v37, {2*t}, v35")
        su(f"v_lshl_add_u32 v{TB+t}, v37, 4, v36")
        su(f"v_add_u32 v{TB2+t}, 65536, v{TB+t}")
    su(f"v_and_b32 v57, 31, v{V_LANE}")
    su("v_lshlrev_b32 v57, 2, v57")
    su(f"s_lshl_b32 s28, s{S_W}, 7")
    su("v_add_u32 v56, s28, v57")
    su(f"v_lshlrev_b32 v58, 2, v{V_L15}")
    su(f"v_lshrrev_b32 v32, 1, v{V_G}")
    su(f"s_lshl_b32 s28, s{S_W}, 2")
    su("v_add_u32 v32, s28, v32")
    su(f"v_and_b32 v33, 1, v{V_G}")
    su("v_lshlrev_b32 v33, 3, v33")
    su(f"v_lshl_add_u32 v33, v{V_L15}, 8, v33")
    su(f"v_xor_b32 v34, v32, v{V_L15}")
    su("v_lshl_add_u32 v59, v34, 4, v33")
    su("v_xor_b32 v63, 32, v59")
    for ks in range(4):
        su(f"v_add_u32 v34, {4*ks}, v{V_G}")
        su(f"v_xor_b32 v34, v34, v{V_L15}")
        su("v_lshlrev_b32 v34, 4, v34")
        su(f"v_lshl_add_u32 v{120+ks}, v{V_L15}, 8, v34")
    su(f"v_lshlrev_b32 v126, 4, v{V_L15}")
    su(f"v_lshl_add_u32 v124, v{V_G}, 10, v126")
    su(f"v_lshlrev_b32 v125, 4, v{V_LANE}")
    su(f"v_and_b32 v126, 31, v{V_LANE}")
    su("v_lshlrev_b32 v126, 7, v126")
    su(f"s_and_b32 s28, s{S_W}, 1")
    su("s_lshl_b32 s28, s28, 7")
    su(f"v_xor_b32 v127, s28, v{V_L16B}")
    for j in range(32):
        idx = (j & 3) + 4*((j >> 3) & 1)
        if j == 0: e("s_mov_b32 s30, s29")
        else: e(f"s_add_u32 s30, s29, {j*1024}")
        e(f"s_add_u32 m0, s31, {L_CKV + j*1024}")
        nop(1)
        e(f"buffer_load_dwordx4 v{VCK+idx}, {sr(SRD_1,4)}, s30 offen{NTC} lds")
        if j == 1:
            for s_ in setup: e(s_)
        w_now = G.thr_w if j < G.thr_n else G.thr2_w
        if w_now and j >= w_now - 1 and j < 31:
            e(f"s_waitcnt vmcnt({w_now - 1})")
    G.stamp(1)
    e("s_and_b32 s34, s2, 7")
    e("s_lshl_b32 s34, s34, 11")
    e(f"s_add_u32 s34, s34, {WS_FB}")
    e("s_waitcnt lgkmcnt(0)")
    e(f"s_add_u32 s{S_TAG}, s{S_TAG}, 0x9e3779b9")
    e(f"s_lshl_b32 s29, s{S_H}, 15")
    e(f"s_lshl_b32 s30, s{S_W}, 13")
    e("s_add_u32 s29, s29, s30")
    e(f"s_add_u32 s29, s29, {WS_QA}")
    e(f"s_lshl_b32 s31, s{S_W}, 13")
    if G.touch:
        e(f"s_lshl_b32 s28, s{S_A}, 2")
        e(f"s_add_u32 s28, s28, s{S_W}")
        e("s_lshl_b32 s28, s28, 13")
        e(f"s_add_u32 s28, s28, {WS_OP}")
        e("v_mov_b32 v45, 0")
        e("s_mov_b64 exec, 1")
        e(f"buffer_load_dword v46, v45, {sr(SRD_WS,4)}, s28 offen sc1")
        e(f"s_mov_b32 s28, {WS_SU}")
        e(f"buffer_load_dword v47, v45, {sr(SRD_WS,4)}, s28 offen sc1")
        e("s_mov_b64 exec, -1")
    lbp0 = G.newlab("nobp0")
    e(f"s_cmp_lg_u32 s{S_W}, 0")
    e(f"s_cbranch_scc1 {lbp0}")
    ldFB(236)
    lab(lbp0)
    e("s_waitcnt vmcnt(0)")
    G.stamp(2)
    lbp = G.newlab("nobpoll")
    e(f"s_cmp_lg_u32 s{S_W}, 0")
    e(f"s_cbranch_scc1 {lbp}")
    check_tags([236, 237, 238, 239])
    e(f"s_cbranch_vccz {lbp}")
    poll(ldFB, 40, 4, [0, 1, 2, 3], [240, 244, 248], 2, G.sl_flag, 32)
    lab(lbp)
    e("s_barrier")
    G.stamp(3)
    for j in range(8):
        if j & 3: e(f"v_xor_b32 v44, {32*(j&3)}, v127")
        else: e("v_mov_b32 v44, v127")
        if j == 0: e("s_mov_b32 s30, s29")
        else: e(f"s_add_u32 s30, s29, {j*1024}")
        e(f"s_add_u32 m0, s31, {L_QAL + j*1024}")
        nop(1)
        e(f"buffer_load_dwordx4 v44, {sr(SRD_WS,4)}, s30 offen sc1 lds")
    for ks in range(16):
        for kt in range(2):
            e(f"ds_read_b128 {ar((kt*16+ks)*4,4)}, v{AA+(ks&3)} offset:{16384*kt + 256*(ks>>2)}")
    for n in range(32):
        ks_, t = n >> 3, n & 7
        base = (TB2 if ks_ >= 2 else TB) + t
        for u in range(2):
            e(f"ds_read_b64_tr_b16 {ar(128+n*4+2*u,2)}, v{base} offset:{(ks_&1)*32768 + 4096*u}")
    e(f"s_lshl_b32 s28, s{S_A}, 2")
    e(f"s_add_u32 s28, s28, s{S_W}")
    e("s_lshl_b32 s28, s28, 13")
    e(f"s_add_u32 s34, s28, {WS_OP}")
    e("s_add_u32 s35, s34, 4096")
    e(f"s_lshl_b32 s28, s{S_W}, 7")
    e(f"s_add_u32 s28, s28, s{S_A}")
    e("s_lshl_b32 s28, s28, 9")
    e(f"s_add_u32 s36, s28, {WS_SU}")
    e(f"s_lshl_b32 s28, s{S_W}, 7")
    e(f"s_add_u32 s28, s28, s{S_A}")
    e("s_lshl_b32 s28, s28, 4")
    e(f"s_add_u32 s37, s28, {WS_CF}")
    e(f"v_lshlrev_b32 v126, 13, v{V_LANE}")
    e(f"v_mov_b32 v252, s{S_TAG}")
    e(f"v_mov_b32 v253, s{S_TAG}")
    e("s_waitcnt vmcnt(0) lgkmcnt(0)")
    e("s_barrier")
    G.stamp(4)
    QB, SC = 64, 192
    def rdB(ks):
        st = ks % 3
        for ht in range(2):
            e(f"ds_read_b128 {vr(QB+(st*2+ht)*4,4)}, v{AB+(ks&3)} offset:{16384*ht + 256*(ks>>2)}")
    def pslot(n): return 32 + n
    rdB(0); rdB(1)
    for ks in range(16):
        if ks + 2 < 16:
            rdB(ks + 2); e("s_waitcnt lgkmcnt(4)")
        elif ks + 1 < 16: e("s_waitcnt lgkmcnt(2)")
        else: e("s_waitcnt lgkmcnt(0)")
        st = ks % 3
        for kt in range(2):
            for ht in range(2):
                d = SC + (kt*2+ht)*4
                c = "0" if ks == 0 else vr(d, 4)
                e(f"v_mfma_f32_16x16x32_bf16 {vr(d,4)}, {ar((kt*16+ks)*4,4)}, {vr(QB+(st*2+ht)*4,4)}, {c}")
    nop(9)
    G.stamp(5)
    MXR = 32
    for step in range(4):
        for ht in range(2):
            a = SC + ht*4; b = SC + (2+ht)*4
            if step == 0: e(f"v_max3_f32 v{MXR+ht}, v{a}, v{a+1}, v{a+2}")
            elif step == 1: e(f"v_max3_f32 v{MXR+ht}, v{MXR+ht}, v{a+3}, v{b}")
            elif step == 2: e(f"v_max3_f32 v{MXR+ht}, v{MXR+ht}, v{b+1}, v{b+2}")
            else: e(f"v_max_f32 v{MXR+ht}, v{MXR+ht}, v{b+3}")
    xg_reduce2("v_max_f32", MXR, MXR+1, MXR+2, MXR+3)
    e(f"v_cndmask_b32 v36, v{MXR}, v{MXR+1}, {sr(M_G1,2)}")
    e("s_barrier")
    e(f"ds_write_b32 v56, v36 offset:{L_MX}")
    e("s_waitcnt lgkmcnt(0)")
    e("s_barrier")
    for ht in range(2):
        for w in range(4):
            e(f"ds_read_b32 v{40+ht*4+w}, v58 offset:{L_MX + 128*w + 64*ht}")
    e("s_waitcnt lgkmcnt(0)")
    sm = []
    a_ = sm.append
    for ht in range(2):
        a_(f"v_max3_f32 v{MXR+ht}, v{40+ht*4}, v{41+ht*4}, v{42+ht*4}")
    for ht in range(2):
        a_(f"v_max_f32 v{MXR+ht}, v{MXR+ht}, v{43+ht*4}")
    LS = 34
    for kt in range(2):
        for ht in range(2):
            d = SC + (kt*2+ht)*4
            for r in range(4): a_(f"v_sub_f32 v{d+r}, v{d+r}, v{MXR+ht}")
    for kt in range(2):
        for ht in range(2):
            d = SC + (kt*2+ht)*4
            for r in range(4): a_(f"v_exp_f32 v{d+r}, v{d+r}")
    for kt in range(2):
        for ht in range(2):
            d = SC + (kt*2+ht)*4
            q = 88 + (kt*2+ht)*2
            a_(f"v_cvt_pk_bf16_f32 v{q}, v{d}, v{d+1}")
            a_(f"v_cvt_pk_bf16_f32 v{q+1}, v{d+2}, v{d+3}")
            a_(f"ds_write_b64 v{63 if kt else 59}, {vr(q,2)} offset:{L_P + 4096*ht}")
    for ht in range(2):
        a = SC + ht*4
        a_(f"v_add_f32 v{LS+ht}, v{a}, v{a+1}")
    for x in (2, 3, 8, 9, 10, 11):
        for ht in range(2):
            a_(f"v_add_f32 v{LS+ht}, v{LS+ht}, v{SC+ht*4+x}")
    xg_reduce2("v_add_f32", LS, LS+1, 46, 47, emit=a_)
    a_(f"v_cndmask_b32 v36, v{LS}, v{LS+1}, {sr(M_G1,2)}")
    a_(f"ds_write_b32 v56, v36 offset:{L_LP}")
    for ins in sm: e(ins)
    e("s_waitcnt lgkmcnt(0)")
    e("s_barrier")
    G.stamp(6)
    PA, OC = 208, 128
    for ht in range(2):
        for ks in range(4):
            e(f"ds_read_b128 {vr(PA+(ht*4+ks)*4,4)}, v{120+ks} offset:{L_P + 4096*ht}")
    for w in range(4):
        e(f"ds_read_b32 v{240+w}, v57 offset:{L_LP + 128*w}")
    def mm(ks, t, ht):
        d = OC + (ht*8+t)*4
        c = "0" if ks == 0 else vr(d, 4)
        e(f"v_mfma_f32_16x16x32_bf16 {vr(d,4)}, {vr(PA+(ht*4+ks)*4,4)}, {ar(pslot(ks*8+t)*4,4)}, {c}")
    ST0 = 88
    for ks in range(4):
        e(f"s_waitcnt lgkmcnt({11 - ks})")
        for t in range(8): mm(ks, t, 0)
    e("s_waitcnt lgkmcnt(0)")
    cv = []
    for tp in range(4):
        for r in range(4):
            cv.append(f"v_cvt_pk_bf16_f32 v{ST0+4*r+tp}, v{OC+(2*tp)*4+r}, v{OC+(2*tp+1)*4+r}")
    seq = [(ks, t) for ks in range(4) for t in range(8)]
    for idx, (ks, t) in enumerate(seq):
        mm(ks, t, 1)
        if 8 <= idx < 24: e(cv[idx - 8])
        if idx == 24:
            for r in range(4):
                e(f"buffer_store_dwordx4 {vr(ST0+4*r,4)}, v124, {sr(SRD_WS,4)}, s34 offen offset:{r*256} sc1")
    G.stamp(7)
    e("v_add_f32 v240, v240, v241")
    e("v_add_f32 v242, v242, v243")
    e(f"v_cndmask_b32 v44, v{MXR}, v{MXR+1}, {sr(M_G1,2)}")
    e("v_mov_b32 v45, 0")
    e("v_add_f32 v46, v240, v242")
    e("v_mov_b32 v47, 0")
    nop(4)
    for r in range(4):
        for tp in range(4):
            e(f"v_cvt_pk_bf16_f32 v{ST0+16+4*r+tp}, v{OC+(8+2*tp)*4+r}, v{OC+(8+2*tp+1)*4+r}")
        e(f"buffer_store_dwordx4 {vr(ST0+16+4*r,4)}, v124, {sr(SRD_WS,4)}, s35 offen offset:{r*256} sc1")
    lo32()
    e(f"buffer_store_dwordx4 {vr(44,4)}, v125, {sr(SRD_WS,4)}, s36 offen sc1")
    e("s_mov_b64 exec, 0xff")
    e("s_waitcnt vmcnt(0)")
    G.stamp(8)
    e(f"buffer_store_dwordx2 {vr(252,2)}, v126, {sr(SRD_WS,4)}, s37 offen sc1")
    e("s_mov_b64 exec, -1")
    G.stamp(9)
    lab("L_adone")
    store_stamps()
    lab("L_end")
    e("s_endpgm")

    tail = []
    if prepost:
        for nm, off, spin in (("pre_kernel", 0x900000, 400), ("post_kernel", 0x900100, 0)):
            tail += [f".globl {nm}", ".p2align 8", f".type {nm},@function", f"{nm}:",
                     "  s_memrealtime s[10:11]",
                     "  s_cmp_ge_u32 s2, 1", f"  s_cbranch_scc1 L_{nm}_end",
                     "  s_load_dwordx2 s[4:5], s[0:1], 96"]
            if spin:
                tail += [f"  s_mov_b32 s6, {spin}", f"L_{nm}_sp:", "  s_sleep 8", "  s_sub_u32 s6, s6, 1", "  s_cmp_lg_u32 s6, 0", f"  s_cbranch_scc1 L_{nm}_sp",
                         "  s_memrealtime s[10:11]"]
            tail += ["  s_waitcnt lgkmcnt(0)", "  s_mov_b32 s12, s4", "  s_and_b32 s13, s5, 0xffff", "  s_mov_b32 s14, 0x10000000", "  s_mov_b32 s15, 0x20000",
                     "  v_mov_b32 v1, s10", f"  v_mov_b32 v2, {off}", "  s_mov_b64 exec, 1",
                     "  buffer_store_dword v1, v2, s[12:15], 0 offen", "  s_waitcnt vmcnt(0)", f"L_{nm}_end:", "  s_endpgm"]
        tail.append('.section .rodata,"a"')
        for nm in ("pre_kernel", "post_kernel"):
            tail += [".p2align 6", f".amdhsa_kernel {nm}", "  .amdhsa_next_free_vgpr 32",
                 "  .amdhsa_next_free_sgpr 24", "  .amdhsa_accum_offset 32", "  .amdhsa_group_segment_fixed_size 0",
                 "  .amdhsa_kernarg_size 104", "  .amdhsa_user_sgpr_count 2", "  .amdhsa_user_sgpr_kernarg_segment_ptr 1",
                 "  .amdhsa_system_sgpr_workgroup_id_x 1", ".end_amdhsa_kernel"]
    if extra_empty:
        tail += [".globl empty_kernel", ".p2align 8", ".type empty_kernel,@function", "empty_kernel:", "  s_endpgm"]
        tail += ['.section .rodata,"a"', ".p2align 6", ".amdhsa_kernel empty_kernel", "  .amdhsa_next_free_vgpr 32",
                 "  .amdhsa_next_free_sgpr 16", "  .amdhsa_accum_offset 32", "  .amdhsa_group_segment_fixed_size 0",
                 "  .amdhsa_kernarg_size 104", "  .amdhsa_user_sgpr_count 2", "  .amdhsa_user_sgpr_kernarg_segment_ptr 1",
                 "  .amdhsa_system_sgpr_workgroup_id_x 1", ".end_amdhsa_kernel"]
    tail.append('.section .rodata,"a"')
    tail.append(".p2align 6")
    tail.append(f".amdhsa_kernel {NAME}_kernel")
    tail.append("  .amdhsa_next_free_vgpr 512")
    tail.append("  .amdhsa_next_free_sgpr 102")
    tail.append("  .amdhsa_accum_offset 256")
    tail.append("  .amdhsa_group_segment_fixed_size 0")
    tail.append("  .amdhsa_kernarg_size 104")
    tail.append("  .amdhsa_user_sgpr_count 2")
    tail.append("  .amdhsa_user_sgpr_kernarg_segment_ptr 1")
    tail.append("  .amdhsa_system_sgpr_workgroup_id_x 1")
    tail.append(".end_amdhsa_kernel")
    for ln in G.L:
        if "buffer_" in ln:
            m = re.search(r"offset:(\d+)", ln)
            assert not m or int(m.group(1)) <= 4095, ln
    return "\n".join(hdr + G.L + tail) + "\n"

if __name__ == "__main__":
    import argparse
    ap = argparse.ArgumentParser()
    ap.add_argument("-o", default=f"cdna_kernels/{NAME}.s")
    ap.add_argument("--stamps", action="store_true")
    ap.add_argument("--extra-empty", type=int, default=0)
    ap.add_argument("--prepost", action="store_true")
    ap.add_argument("--set", action="append", default=[], help="key=value generator option")
    a = ap.parse_args()
    kw = {}
    for s_ in a.set:
        k, v = s_.split("=")
        kw[k] = int(v) if re.fullmatch(r"-?\d+", v) else v
    s = build(stamps=a.stamps, extra_empty=a.extra_empty, prepost=a.prepost, **kw)
    open(a.o, "w").write(s)
    print("wrote", a.o, len(s), "bytes")
```

```python
import sys, math, struct, re
NAME = "parallel_sum__compressed_kv_cla__glu_gated_swiglu__decode"

WS_EPOCH = 0x0
WS_FB    = 0x1000
WS_F1    = 0x8000
WS_F1F   = 0x640000
WS_QP    = 0x20000
WS_QA    = 0x60000
WS_CP    = 0x70000
WS_EP    = 0xB0000
WS_FP    = 0xF0000
WS_SU    = 0x150000
WS_QPF   = 0x190000
WS_CPF   = 0x600000
WS_CF    = 0x1D0000
WS_OP    = 0x200000
WS_STAMP = 0x800000
FP_S = 48
NFFN = 86

R0, R1, R2 = 8192, 40960, 73728
L_XN  = 0
L_AVQ = 2048
L_AVO = L_AVQ + 512
L_AVC = L_AVO + 512
L_WGT = L_AVC + 512
L_QS  = L_WGT + 512
L_FIN = L_QS + 512
L_GUW = L_FIN + 512
L_HW = L_GUW + 512
L_CKV = 32768
L_QAL = 0
L_MX  = 0
L_LP  = 512
L_P   = 4096
L_GU  = 16384
L_H   = 16384 + 512
LDS_BYTES = 163840

P_X, P_CKV, P_WQ, P_WUK, P_WUV, P_WO, P_BX, P_W1, P_W3, P_W2, P_OUT, P_DBG, P_WS = 64, 66, 68, 70, 72, 74, 76, 78, 80, 82, 84, 86, 88
S_W, S_H, S_I, S_TAG = 3, 4, 5, 6
SRD_WS, SRD_1, SRD_2, SRD_3, SRD_4 = 8, 12, 16, 20, 24
M_G1, M_HI = 44, 46
V_LANE, V_L15, V_G, V_L16B, V_SW, V_TL0, V_TL1 = 1, 2, 3, 4, 5, 6, 7

def vr(a, n): return f"v[{a}:{a+n-1}]"
def ar(a, n): return f"a[{a}:{a+n-1}]"
def sr(a, n): return f"s[{a}:{a+n-1}]"
def fbits(x): return hex(struct.unpack("<I", struct.pack("<f", x))[0])

class Gen:
    def __init__(self, **kw):
        d = dict(stamps=False, nt_ckv=True, nt_w=True, spin=200000, thr_n=4, thr_w=3, thr2_w=0,
                 gate='N', depth=3, sl_unit=1, sl_flag=2, uk_late=1, fast_k=24, pf_uk=0, prew=0, order='A', touch=0, pf_kv=0, adapt=0, adapt_thr=64, adapt_max=5)
        d.update(kw)
        self.__dict__.update(d)
        self.L = []
        self.nlab = 0
    def e(self, s): self.L.append("  " + s)
    def lab(self, s): self.L.append(s + ":")
    def newlab(self, p):
        self.nlab += 1
        return f"L_{p}_{self.nlab}"
    def nop(self, n):
        while n > 0:
            k = min(n, 16)
            self.e(f"s_nop {k-1}")
            n -= k
    def stamp(self, idx):
        if not self.stamps: return
        self.e("s_memrealtime s[40:41]")
        self.e("s_waitcnt lgkmcnt(0)")
        self.e(f"v_writelane_b32 v255, s40, {idx}")
    def stampval(self, idx, sreg):
        if not self.stamps: return
        self.e(f"v_writelane_b32 v255, s{sreg}, {idx}")
    def srd(self, dst, ptr, size):
        self.e(f"s_mov_b32 s{dst}, s{ptr}")
        self.e(f"s_and_b32 s{dst+1}, s{ptr+1}, 0xffff")
        self.e(f"s_mov_b32 s{dst+2}, {size}")
        self.e(f"s_mov_b32 s{dst+3}, 0x20000")

def build(extra_empty=0, prepost=False, **kw):
    G = Gen(**kw)
    e, lab, nop = G.e, G.lab, G.nop
    NTW = " nt" if G.nt_w else ""
    NTC = " nt" if G.nt_ckv else ""
    hdr = []
    if prepost:
        hdr.append(f"; @launch kernel=pre_kernel grid=(256,1,1) block=(64,1,1) lds=0")
        hdr.append(f"; @launch kernel={NAME}_kernel grid=(256,1,1) block=(256,1,1) lds={LDS_BYTES}")
        hdr.append(f"; @launch kernel=post_kernel grid=(256,1,1) block=(64,1,1) lds=0")
    elif extra_empty:
        hdr.append(f"; @launch kernel={NAME}_kernel grid=(256,1,1) block=(256,1,1) lds={LDS_BYTES}")
        for _ in range(extra_empty):
            hdr.append(f"; @launch kernel=empty_kernel grid=(256,1,1) block=(256,1,1) lds=0")
    else:
        hdr.append(f"; @launch grid=(256,1,1) block=(256,1,1) lds={LDS_BYTES}")
    hdr.append('.amdgcn_target "amdgcn-amd-amdhsa--gfx950"')
    hdr.append(".text")
    hdr.append(f".globl {NAME}_kernel")
    hdr.append(".p2align 8")
    hdr.append(f".type {NAME}_kernel,@function")
    hdr.append(f"{NAME}_kernel:")

    def lo32():
        e("s_mov_b32 exec_lo, -1"); e("s_mov_b32 exec_hi, 0")
    def check_tags(tagregs):
        first = True
        for k in range(0, len(tagregs), 2):
            a = tagregs[k]; b = tagregs[k+1] if k + 1 < len(tagregs) else tagregs[k]
            e(f"v_xor_b32 v61, s{S_TAG}, v{a}")
            e(f"v_xor_b32 v62, s{S_TAG}, v{b}")
            if first:
                e("v_or_b32 v60, v61, v62"); first = False
            else:
                e("v_or3_b32 v60, v60, v61, v62")
        e("v_cmp_ne_u32 vcc, 0, v60")
    def poll(mk_loads, base, nregs, tagoffs, ring, nld, sleep, cnt_idx=None):
        ring = ring[:G.depth]
        D = len(ring)
        lp, done = G.newlab("poll"), G.newlab("pdone")
        e(f"s_mov_b32 s48, {G.spin}")
        mk = mk_loads if isinstance(mk_loads, (list, tuple)) else [mk_loads] * D
        for k in range(D - 1):
            mk[k](ring[k])
            if sleep: e(f"s_sleep {sleep}")
        exits = [G.newlab("pexit") for _ in range(D)]
        lab(lp)
        for k in range(D):
            mk[(k + D - 1) % D](ring[(k + D - 1) % D])
            e(f"s_waitcnt vmcnt({(D-1)*nld})")
            check_tags([ring[k] + o for o in tagoffs])
            e(f"s_cbranch_vccz {exits[k]}")
            if sleep: e(f"s_sleep {sleep}")
        e("s_sub_u32 s48, s48, 1")
        e(f"s_cbranch_scc0 {lp}")
        for k in range(D):
            lab(exits[k])
            for r in range(nregs): e(f"v_mov_b32 v{base+r}, v{ring[k]+r}")
            if k < D - 1: e(f"s_branch {done}")
        lab(done)
        if cnt_idx is not None: G.stampval(cnt_idx, 48)
    def dual_poll(ld_fast, ld_slow, slow_store, base, nregs, tagoffs, ring, nld, cnt_idx):
        lp, x0, x1, done = G.newlab("fp"), G.newlab("fx0"), G.newlab("fx1"), G.newlab("fdone")
        r0, r1 = ring[0], ring[1]
        e(f"s_mov_b32 s49, {G.fast_k}")
        ld_fast(r0)
        lab(lp)
        for (a, b, x) in ((r0, r1, x0), (r1, r0, x1)):
            ld_fast(b)
            e(f"s_waitcnt vmcnt({nld})")
            check_tags([a + o for o in tagoffs])
            e(f"s_cbranch_vccz {x}")
        e("s_sub_u32 s49, s49, 1")
        e(f"s_cbranch_scc0 {lp}")
        slow_store()
        poll([ld_fast, ld_slow, ld_fast], base, nregs, tagoffs, ring, nld, G.sl_unit, cnt_idx)
        e(f"s_branch {done}")
        for (a, x) in ((r0, x0), (r1, x1)):
            lab(x)
            for r in range(nregs): e(f"v_mov_b32 v{base+r}, v{a+r}")
            slow_store()
            if x == x0: e(f"s_branch {done}")
        lab(done)
        G.stampval(cnt_idx + 10, 49)
    def dma_tile128(srd, v0, v1, soff_fn, lds_base, flags):
        e(f"s_lshl_b32 s31, s{S_W}, 13")
        for n in range(8):
            soff_fn(n)
            e(f"s_add_u32 m0, s31, {lds_base + n*1024}")
            v = v1 if (n >> 1) & 1 else v0
            nop(1)
            e(f"buffer_load_dwordx4 v{v}, {sr(srd,4)}, s30 offen{flags} lds")
    def lin(step):
        def f(n):
            if n == 0: e("s_mov_b32 s30, s29")
            else: e(f"s_add_u32 s30, s29, {n*step}")
        return f
    def gemv_loadB(base, vB, tmp0, tmp1):
        if base + 3*8192 + 1024 <= 65535:
            a0, a1, off = V_TL0, V_TL1, base
        else:
            e(f"v_add_u32 v{tmp0}, {base}, v{V_TL0}")
            e(f"v_add_u32 v{tmp1}, {base}, v{V_TL1}")
            a0, a1, off = tmp0, tmp1, 0
        for ks in range(4):
            for t in range(2):
                for u in range(2):
                    r = vB + (t*4 + ks)*4 + 2*u
                    e(f"ds_read_b64_tr_b16 {vr(r,2)}, v{a1 if t else a0} offset:{off + 8192*ks + 1024*u}")
    def gemv_loadA(vaddr, vA, off=0):
        for ks in range(4):
            e(f"ds_read_b128 {vr(vA+4*ks,4)}, v{vaddr} offset:{off + 64*ks}")
    def gemv_mma(vA, vB, vC):
        for ks in range(4):
            for t in range(2):
                c = "0" if ks == 0 else vr(vC+4*t, 4)
                e(f"v_mfma_f32_16x16x32_bf16 {vr(vC+4*t,4)}, {vr(vA+4*ks,4)}, {vr(vB+(t*4+ks)*4,4)}, {c}")
        nop(9)
    def sel_tb(vC, d0, d1):
        e(f"v_cndmask_b32 v{d0}, v{vC}, v{vC+4}, {sr(M_G1,2)}")
        e(f"v_cndmask_b32 v{d1}, v{vC+1}, v{vC+5}, {sr(M_G1,2)}")
    def publish_units(vC, voff, soff, q, fast=False):
        sel_tb(vC, q, q+2)
        lo32()
        e(f"buffer_store_dwordx4 {vr(q,4)}, v{voff}, {sr(SRD_WS,4)}, s{soff} offen" + ("" if fast else " sc1"))
        e("s_mov_b64 exec, -1")
    def wave_red(op, v, tmp):
        for r in (8, 4, 2, 1):
            nop(2)
            e(f"{op}_dpp v{v}, v{v}, v{v} row_ror:{r} row_mask:0xf bank_mask:0xf")
        e(f"v_mov_b32 v{tmp}, v{v}")
        nop(2)
        e(f"v_permlane16_swap_b32 v{v}, v{tmp}")
        nop(1)
        e(f"{op} v{v}, v{v}, v{tmp}")
        e(f"v_mov_b32 v{tmp}, v{v}")
        nop(2)
        e(f"v_permlane32_swap_b32 v{v}, v{tmp}")
        nop(1)
        e(f"{op} v{v}, v{v}, v{tmp}")
    def xg_reduce2(op, va, vb, ta, tb, emit=None):
        em = emit or e
        for perm in ("v_permlane16_swap_b32", "v_permlane32_swap_b32"):
            em(f"v_mov_b32 v{ta}, v{va}")
            em(f"v_mov_b32 v{tb}, v{vb}")
            em("s_nop 0")
            em(f"{perm} v{va}, v{ta}")
            em(f"{perm} v{vb}, v{tb}")
            em("s_nop 0")
            em(f"{op} v{va}, v{va}, v{ta}")
            em(f"{op} v{vb}, v{vb}, v{tb}")
    def wave_red2(op, va, vb, ta, tb):
        for r in (8, 4, 2, 1):
            nop(1)
            e(f"{op}_dpp v{va}, v{va}, v{va} row_ror:{r} row_mask:0xf bank_mask:0xf")
            e(f"{op}_dpp v{vb}, v{vb}, v{vb} row_ror:{r} row_mask:0xf bank_mask:0xf")
        xg_reduce2(op, va, vb, ta, tb)
    def rbf(v):
        e(f"v_cvt_pk_bf16_f32 v{v}, v{v}, v{v}")
        e(f"v_lshlrev_b32 v{v}, 16, v{v}")
    def layernorm(X0, X1, F0, F1, T, OUT):
        S0, S1, T0, T1, Q0, Q1, U0, U1 = range(T, T+8)
        for (X, F) in ((X0, F0), (X1, F1)):
            for k in range(4):
                e(f"v_lshlrev_b32 v{F+2*k}, 16, v{X+k}")
                e(f"v_and_b32 v{F+2*k+1}, 0xffff0000, v{X+k}")
        e(f"v_add_f32 v{S0}, v{F0}, v{F0+1}"); e(f"v_add_f32 v{S1}, v{F1}, v{F1+1}")
        for k in range(2, 8):
            e(f"v_add_f32 v{S0}, v{S0}, v{F0+k}"); e(f"v_add_f32 v{S1}, v{S1}, v{F1+k}")
        wave_red2("v_add_f32", S0, S1, T0, T1)
        e("s_mov_b32 s28, 0x3b000000")
        e(f"v_mul_f32 v{S0}, s28, v{S0}")
        e(f"v_mul_f32 v{S1}, s28, v{S1}")
        for k in range(8):
            e(f"v_sub_f32 v{U0}, v{F0+k}, v{S0}")
            e(f"v_sub_f32 v{U1}, v{F1+k}, v{S1}")
            if k == 0:
                e(f"v_mul_f32 v{Q0}, v{U0}, v{U0}"); e(f"v_mul_f32 v{Q1}, v{U1}, v{U1}")
            else:
                e(f"v_fmac_f32 v{Q0}, v{U0}, v{U0}"); e(f"v_fmac_f32 v{Q1}, v{U1}, v{U1}")
        wave_red2("v_add_f32", Q0, Q1, T0, T1)
        e("s_mov_b32 s29, 0x3727c5ac")
        def both(f): f(Q0, S0); f(Q1, S1)
        both(lambda Q, S: e(f"v_mul_f32 v{Q}, s28, v{Q}"))
        both(lambda Q, S: e(f"v_cvt_pk_bf16_f32 v{Q}, v{Q}, v{Q}"))
        both(lambda Q, S: e(f"v_lshlrev_b32 v{Q}, 16, v{Q}"))
        both(lambda Q, S: e(f"v_add_f32 v{Q}, s29, v{Q}"))
        both(lambda Q, S: e(f"v_cvt_pk_bf16_f32 v{Q}, v{Q}, v{Q}"))
        both(lambda Q, S: e(f"v_lshlrev_b32 v{Q}, 16, v{Q}"))
        both(lambda Q, S: e(f"v_sqrt_f32 v{Q}, v{Q}"))
        both(lambda Q, S: e(f"v_cvt_pk_bf16_f32 v{S}, v{S}, v{S}"))
        both(lambda Q, S: e(f"v_cvt_pk_bf16_f32 v{Q}, v{Q}, v{Q}"))
        both(lambda Q, S: e(f"v_lshlrev_b32 v{S}, 16, v{S}"))
        both(lambda Q, S: e(f"v_lshlrev_b32 v{Q}, 16, v{Q}"))
        both(lambda Q, S: e(f"v_rcp_f32 v{Q}, v{Q}"))
        for (F, S, Q, XB) in ((F0, S0, Q0, 0), (F1, S1, Q1, 1)):
            for k in range(0, 8, 2):
                e(f"v_sub_f32 v{F+k}, v{F+k}, v{S}")
                e(f"v_sub_f32 v{F+k+1}, v{F+k+1}, v{S}")
                e(f"v_cvt_pk_bf16_f32 v{U0}, v{F+k}, v{F+k+1}")
                e(f"v_lshlrev_b32 v{F+k}, 16, v{U0}")
                e(f"v_and_b32 v{F+k+1}, 0xffff0000, v{U0}")
                e(f"v_mul_f32 v{F+k}, v{F+k}, v{Q}")
                e(f"v_mul_f32 v{F+k+1}, v{F+k+1}, v{Q}")
                e(f"v_cvt_pk_bf16_f32 v{OUT+XB*4+k//2}, v{F+k}, v{F+k+1}")
    def layernorm1(X, F, T, OUT):
        S, Q, T0, T1, U, C = range(T, T+6)
        for k in range(4):
            e(f"v_lshlrev_b32 v{F+2*k}, 16, v{X+k}")
            e(f"v_and_b32 v{F+2*k+1}, 0xffff0000, v{X+k}")
        e(f"v_readfirstlane_b32 s28, v{F}")
        nop(2)
        for k in range(8): e(f"v_subrev_f32 v{F+k}, s28, v{F+k}")
        e(f"v_add_f32 v{S}, v{F}, v{F+1}")
        e(f"v_mul_f32 v{Q}, v{F}, v{F}")
        e(f"v_fmac_f32 v{Q}, v{F+1}, v{F+1}")
        for k in range(2, 8):
            e(f"v_add_f32 v{S}, v{S}, v{F+k}")
            e(f"v_fmac_f32 v{Q}, v{F+k}, v{F+k}")
        wave_red2("v_add_f32", S, Q, T0, T1)
        e("s_mov_b32 s29, 0x3b000000")
        e(f"v_mul_f32 v{S}, s29, v{S}")
        e(f"v_mul_f32 v{Q}, s29, v{Q}")
        e(f"v_fma_f32 v{Q}, -v{S}, v{S}, v{Q}")
        e(f"v_add_f32 v{U}, s28, v{S}")
        e(f"v_max_f32 v{Q}, 0, v{Q}")
        e(f"v_cvt_pk_bf16_f32 v{U}, v{U}, v{U}")
        e(f"v_cvt_pk_bf16_f32 v{Q}, v{Q}, v{Q}")
        e(f"v_lshlrev_b32 v{U}, 16, v{U}")
        e(f"v_lshlrev_b32 v{Q}, 16, v{Q}")
        e("s_mov_b32 s29, 0x3727c5ac")
        e(f"v_add_f32 v{Q}, s29, v{Q}")
        e(f"v_subrev_f32 v{U}, s28, v{U}")
        e(f"v_cvt_pk_bf16_f32 v{Q}, v{Q}, v{Q}")
        e(f"v_lshlrev_b32 v{Q}, 16, v{Q}")
        e(f"v_sqrt_f32 v{Q}, v{Q}")
        for k in range(4): e(f"v_sub_f32 v{F+k}, v{F+k}, v{U}")
        e(f"v_cvt_pk_bf16_f32 v{Q}, v{Q}, v{Q}")
        for k in range(4, 8): e(f"v_sub_f32 v{F+k}, v{F+k}, v{U}")
        e(f"v_lshlrev_b32 v{Q}, 16, v{Q}")
        e(f"v_rcp_f32 v{Q}, v{Q}")
        for k in range(0, 8, 2):
            e(f"v_cvt_pk_bf16_f32 v{OUT+k//2}, v{F+k}, v{F+k+1}")
        for k in range(0, 8, 2):
            e(f"v_lshlrev_b32 v{F+k}, 16, v{OUT+k//2}")
            e(f"v_and_b32 v{F+k+1}, 0xffff0000, v{OUT+k//2}")
        for k in range(8): e(f"v_mul_f32 v{F+k}, v{F+k}, v{Q}")
        for k in range(0, 8, 2):
            e(f"v_cvt_pk_bf16_f32 v{OUT+k//2}, v{F+k}, v{F+k+1}")
    def store_stamps():
        if not G.stamps: return
        e("s_getreg_b32 s30, hwreg(HW_REG_XCC_ID)")
        e("v_writelane_b32 v255, s30, 40")
        e(f"s_lshl_b32 s30, s2, 2")
        e(f"s_add_u32 s30, s30, s{S_W}")
        e(f"s_lshl_b32 s30, s30, 8")
        e(f"s_add_u32 s30, s30, {WS_STAMP}")
        e(f"v_lshlrev_b32 v60, 2, v{V_LANE}")
        e(f"buffer_store_dword v255, v60, {sr(SRD_WS,4)}, s30 offen")

    e("s_cmp_ge_u32 s2, 256")
    e("s_cbranch_scc1 L_end")
    if G.stamps:
        e("v_mov_b32 v255, 0")
        e("s_memrealtime s[40:41]")
    e(f"s_load_dwordx16 s[64:79], s[0:1], 0")
    e(f"s_load_dwordx8 s[80:87], s[0:1], 64")
    e(f"s_load_dwordx2 s[88:89], s[0:1], 96")
    e(f"v_and_b32 v{V_LANE}, 63, v0")
    e(f"v_lshrrev_b32 v8, 6, v0")
    e(f"v_and_b32 v{V_L15}, 15, v0")
    e(f"v_readfirstlane_b32 s{S_W}, v8")
    e(f"v_lshrrev_b32 v{V_G}, 4, v{V_LANE}")
    e(f"v_lshlrev_b32 v{V_L16B}, 4, v{V_LANE}")
    e(f"s_mov_b32 s{M_G1}, 0xffff0000"); e(f"s_mov_b32 s{M_G1+1}, 0xffff0000")
    e(f"s_mov_b32 s{M_HI}, 0"); e(f"s_mov_b32 s{M_HI+1}, -1")
    e("s_cmp_ge_u32 s2, 128")
    e("s_cbranch_scc1 L_att")

    V_AVW, V_AVR, V_PUB, VD0, VD1 = 56, 57, 55, 58, 59
    RING8 = [224, 232, 240]
    RING4 = [224, 228, 232]
    PUBQ = 48
    e(f"v_lshlrev_b32 v8, 1, v{V_G}")
    e(f"v_xor_b32 v8, v8, v{V_L15}")
    e(f"v_lshlrev_b32 v{V_SW}, 4, v8")
    e("s_and_b32 s28, s2, 7")
    e("s_lshl_b32 s28, s28, 2")
    e("s_bfe_u32 s29, s2, 0x20003")
    e(f"s_add_u32 s{S_H}, s28, s29")
    e(f"s_lshr_b32 s{S_I}, s2, 5")
    e(f"v_lshl_add_u32 v{VD0}, v{V_G}, 13, v{V_SW}")
    e(f"v_xor_b32 v{VD1}, 128, v{VD0}")
    e(f"s_lshl_b32 s29, s{S_I}, 7")
    e(f"s_lshl_b32 s28, s{S_W}, 5")
    e("s_add_u32 s29, s29, s28")
    e("s_lshl_b32 s29, s29, 13")
    e(f"s_lshl_b32 s28, s{S_H}, 8")
    e("s_add_u32 s29, s29, s28")
    e("s_waitcnt lgkmcnt(0)")
    if G.stamps: e("v_writelane_b32 v255, s40, 0")
    G.srd(SRD_1, P_X, 2048)
    G.srd(SRD_2, P_WQ, 4194304)
    X0, X1 = 8, 12
    e(f"s_lshr_b32 s37, s{S_W}, 1")
    e("s_lshl_b32 s37, s37, 10")
    e(f"buffer_load_dwordx4 {vr(X0,4)}, v{V_L16B}, {sr(SRD_1,4)}, s37 offen")
    dma_tile128(SRD_2, VD0, VD1, lin(4*8192), R0, NTW)
    e(f"s_load_dword s{S_TAG}, {sr(P_WS,2)}, {WS_EPOCH}")
    G.srd(SRD_3, P_WUK, 4194304)
    dma_tile128(SRD_3, VD0, VD1, lin(4*8192), R1, "" if G.pf_uk else NTW)
    G.srd(SRD_WS, P_WS, 0x10000000)
    e(f"s_lshl_b32 s32, s{S_H}, 2")
    e(f"s_add_u32 s32, s32, s{S_W}")
    e("s_lshl_b32 s32, s32, 11")
    if G.prew:
        e(f"v_lshlrev_b32 v232, 4, v{V_L15}")
        e(f"v_lshl_add_u32 v232, v{V_G}, 10, v232")
        for r_ in range(4): e(f"v_mov_b32 v{236+r_}, 0")
        e(f"s_lshl_b32 s28, s{S_I}, 8")
        e("s_add_u32 s28, s28, s32")
        lo32()
        for reg in (WS_QPF, WS_CPF):
            e(f"s_add_u32 s30, s28, {reg}")
            e(f"buffer_store_dwordx4 {vr(236,4)}, v232, {sr(SRD_WS,4)}, s30 offen")
        e("s_mov_b64 exec, -1")
    else:
        for reg in (WS_QPF,):
            e(f"s_add_u32 s28, s32, {reg}")
            e(f"buffer_load_dwordx4 {vr(232,4)}, v{V_L16B}, {sr(SRD_WS,4)}, s28 offen sc1")
            e(f"buffer_load_dwordx4 {vr(236,4)}, v{V_L16B}, {sr(SRD_WS,4)}, s28 offen offset:1024 sc1")
    e(f"v_bfe_u32 v17, v{V_LANE}, 2, 2")
    e(f"v_and_b32 v18, 3, v{V_LANE}")
    e(f"v_and_b32 v19, 1, v{V_G}")
    e("v_lshl_add_u32 v20, v19, 2, v17")
    e("v_lshlrev_b32 v20, 1, v20")
    e(f"s_lshl_b32 s28, s{S_W}, 2")
    e("v_xor_b32 v20, s28, v20")
    e("v_lshrrev_b32 v21, 1, v18")
    e("v_add_u32 v20, v20, v21")
    e("v_lshlrev_b32 v20, 4, v20")
    e("v_and_b32 v21, 1, v18")
    e("v_lshl_add_u32 v20, v21, 3, v20")
    e(f"v_lshl_add_u32 v21, v{V_G}, 3, v17")
    e(f"v_lshl_add_u32 v{V_TL0}, v21, 8, v20")
    e(f"v_xor_b32 v{V_TL1}, 32, v{V_TL0}")
    e(f"v_lshrrev_b32 v20, 1, v{V_G}")
    e("v_lshlrev_b32 v20, 8, v20")
    e(f"v_lshl_add_u32 v21, v19, 4, v{V_L15}")
    e(f"s_lshl_b32 s28, s{S_W}, 5")
    e("v_add_u32 v21, s28, v21")
    e(f"v_lshl_add_u32 v{V_AVW}, v21, 1, v20")
    e(f"v_and_b32 v20, 1, v{V_LANE}")
    e("v_lshlrev_b32 v20, 8, v20")
    e(f"v_lshl_add_u32 v{V_AVR}, v{V_G}, 4, v20")
    e(f"v_lshlrev_b32 v{V_PUB}, 4, v{V_L15}")
    e(f"v_lshl_add_u32 v{V_PUB}, v{V_G}, 10, v{V_PUB}")
    e(f"s_lshl_b32 s32, s{S_H}, 2")
    e(f"s_add_u32 s32, s32, s{S_W}")
    e("s_lshl_b32 s32, s32, 11")
    e(f"s_lshl_b32 s33, s{S_I}, 8")
    e("s_add_u32 s33, s33, s32")
    e(f"v_and_b32 v52, 1, v{V_LANE}")
    e("v_lshlrev_b32 v52, 10, v52")
    e(f"v_lshl_add_u32 v52, v{V_G}, 4, v52")
    e(f"s_lshl_b32 s28, s{S_I}, 8")
    e(f"s_add_u32 s28, s28, {L_XN}")
    e("v_add_u32 v52, s28, v52")
    e(f"v_and_b32 v22, 3, v{V_LANE}")
    e(f"v_bfe_u32 v23, v{V_LANE}, 3, 1")
    e("v_lshl_add_u32 v22, v23, 2, v22")
    e("v_lshlrev_b32 v22, 1, v22")
    e(f"v_xor_b32 v22, v22, v{V_G}")
    e(f"v_lshlrev_b32 v23, 8, v{V_L15}")
    e(f"s_lshl_b32 s28, s{S_W}, 13")
    e(f"s_add_u32 s28, s28, {R1}")
    e("v_add_u32 v23, s28, v23")
    for ks in range(4):
        e(f"v_xor_b32 v24, {4*ks}, v22")
        e(f"v_lshl_add_u32 v{248+ks}, v24, 4, v23")
    G.stamp(1)
    e("s_waitcnt vmcnt(18)")
    layernorm1(X0, 16, 24, 40)
    e(f"v_add_u32 v30, s37, v{V_L16B}")
    e(f"ds_write_b128 v30, {vr(40,4)} offset:{L_XN}")
    if G.adapt:
        G.srd(SRD_4, P_DBG, 256)
        lna = G.newlab("noadd")
        e(f"s_cmp_lg_u32 s{S_W}, 0")
        e(f"s_cbranch_scc1 {lna}")
        e("v_mov_b32 v31, 1")
        e("v_mov_b32 v30, 0")
        e("s_mov_b64 exec, 1")
        e(f"buffer_atomic_add v31, v30, {sr(SRD_4,4)}, 0 offen sc1")
        e("s_mov_b64 exec, -1")
        lab(lna)
    G.stamp(2)
    e("s_waitcnt vmcnt(10) lgkmcnt(0)")
    e("s_barrier")
    G.stamp(3)
    VA, VB, VC, WUK = 96, 112, 144, 64
    gemv_loadA(52, VA)
    gemv_loadB(R0, VB, 21, 22)
    e(f"s_add_u32 s{S_TAG}, s{S_TAG}, 0x9e3779b9")
    e(f"s_add_u32 s34, s33, {WS_QP}")
    e(f"s_add_u32 s35, s33, {WS_QPF}")
    e(f"v_mov_b32 v{PUBQ+1}, s{S_TAG}")
    e(f"v_mov_b32 v{PUBQ+3}, s{S_TAG}")
    e("s_waitcnt lgkmcnt(0)")
    gemv_mma(VA, VB, VC)
    publish_units(VC, V_PUB, 35, PUBQ, fast=True)
    G.stamp(4)
    e("s_mov_b32 s37, s34")
    def consume4(soff, u0, lds_dst, cnt_idx, sfast, spub, voff, q):
        u1 = u0 + 4
        def mk(sreg):
            def ld(b):
                e(f"buffer_load_dwordx4 {vr(b,4)}, v{V_L16B}, {sr(SRD_WS,4)}, s{sreg} offen sc1")
                e(f"buffer_load_dwordx4 {vr(b+4,4)}, v{V_L16B}, {sr(SRD_WS,4)}, s{sreg} offen offset:1024 sc1")
            return ld
        def slow_store():
            lo32()
            e(f"buffer_store_dwordx4 {vr(q,4)}, v{voff}, {sr(SRD_WS,4)}, s{spub} offen sc1")
            e("s_mov_b64 exec, -1")
        dual_poll(mk(sfast), mk(soff), slow_store, u0, 8, [1, 3, 5, 7], RING8, 2, cnt_idx)
        nop(1)
        e(f"v_permlane32_swap_b32 v{u0}, v{u0+2}")
        e(f"v_permlane32_swap_b32 v{u1}, v{u1+2}")
        nop(1)
        e(f"v_add_f32 v{u0}, v{u0}, v{u0+2}")
        e(f"v_add_f32 v{u1}, v{u1}, v{u1+2}")
        nop(2)
        e(f"v_permlane16_swap_b32 v{u0}, v{u1}")
        nop(1)
        e(f"v_add_f32 v{u0}, v{u0}, v{u1}")
        write_av(u0, lds_dst)
    def write_av(vsrc, lds_dst):
        e(f"v_cvt_pk_bf16_f32 v54, v{vsrc}, v{vsrc}")
        e(f"ds_write_b16 v{V_AVW}, v54 offset:{lds_dst}")
    e(f"s_add_u32 s34, s32, {WS_QP}")
    e(f"s_add_u32 s35, s32, {WS_QPF}")
    e("s_waitcnt vmcnt(1)")
    for ct in range(2):
        for ks in range(4):
            e(f"ds_read_b128 {vr(WUK+(ct*4+ks)*4,4)}, v{248+ks} offset:{4096*ct}")
    consume4(34, 40, L_AVQ, 32, 35, 37, V_PUB, PUBQ)
    e("s_waitcnt lgkmcnt(0)")
    e("s_barrier")
    G.stamp(5)
    gemv_loadA(V_AVR, VA, L_AVQ)
    e(f"v_lshlrev_b32 v44, 4, v{V_L15}")
    e(f"v_lshl_add_u32 v44, v{V_G}, 15, v44")
    e(f"s_lshl_b32 s34, s{S_H}, 10")
    e(f"s_lshl_b32 s35, s{S_I}, 8")
    e("s_add_u32 s34, s34, s35")
    e(f"s_add_u32 s34, s34, {WS_QA}")
    e(f"s_lshl_b32 s35, s{S_H}, 2")
    e(f"s_add_u32 s35, s35, s{S_I}")
    e("s_lshl_b32 s35, s35, 4")
    e(f"s_add_u32 s35, s35, {WS_FB}")
    e("s_waitcnt lgkmcnt(0)")
    for ks in range(4):
        for ct in range(2):
            c = "0" if ks == 0 else vr(VC+4*ct, 4)
            e(f"v_mfma_f32_16x16x32_bf16 {vr(VC+4*ct,4)}, {vr(VA+4*ks,4)}, {vr(WUK+(ct*4+ks)*4,4)}, {c}")
    nop(9)
    sel_tb(VC, 40, 41)
    e(f"v_cndmask_b32 v40, v40, v41, {sr(M_HI,2)}")
    e(f"v_mul_f32 v40, {fbits((128 ** -0.5) * math.log2(math.e))}, v40")
    write_av(40, L_QS)
    e("s_waitcnt lgkmcnt(0)")
    e("s_barrier")
    def ldFB(b):
        e(f"buffer_load_dwordx2 {vr(b,2)}, v{V_L16B}, {sr(SRD_WS,4)}, s34 offen sc1")
        e(f"buffer_load_dwordx2 {vr(b+2,2)}, v{V_L16B}, {sr(SRD_WS,4)}, s34 offen offset:1024 sc1")
    def gate_poll():
        e("s_and_b32 s34, s2, 7")
        e("s_lshl_b32 s34, s34, 11")
        e(f"s_add_u32 s34, s34, {WS_FB}")
        poll(ldFB, 40, 4, [0, 1, 2, 3], RING4, 2, 4, 33)
    lskip = G.newlab("nopub")
    e(f"s_cmp_lg_u32 s{S_W}, 0")
    e(f"s_cbranch_scc1 {lskip}")
    e(f"ds_read_b128 {vr(40,4)}, v{V_L16B} offset:{L_QS}")
    e(f"v_mov_b32 v46, s{S_TAG}")
    e(f"v_mov_b32 v47, s{S_TAG}")
    e(f"v_lshlrev_b32 v45, 11, v{V_LANE}")
    e("s_waitcnt lgkmcnt(0)")
    lo32()
    e(f"buffer_store_dwordx4 {vr(40,4)}, v44, {sr(SRD_WS,4)}, s34 offen sc1")
    e("s_mov_b64 exec, 0xff")
    e("s_waitcnt vmcnt(0)")
    e(f"buffer_store_dwordx2 {vr(46,2)}, v45, {sr(SRD_WS,4)}, s35 offen sc1")
    e("s_mov_b64 exec, -1")
    if G.gate == 'B' and G.order != 'B2' and not G.pf_kv: gate_poll()
    lab(lskip)
    G.stamp(6)
    e("s_barrier")
    G.stamp(7)
    if G.pf_kv:
        G.srd(SRD_4, P_CKV, 16777216)
        e("s_lshl_b32 s29, s2, 7")
        e(f"s_lshl_b32 s30, s{S_W}, 5")
        e("s_add_u32 s29, s29, s30")
        e("s_lshl_b32 s29, s29, 10")
        e(f"s_lshl_b32 s31, s{S_W}, 10")
        e("s_add_u32 m0, s31, 155648")
        for n in range(G.pf_kv):
            e(f"s_add_u32 s30, s29, {(31 - n)*1024}")
            e(f"buffer_load_dwordx4 v{V_L16B}, {sr(SRD_4,4)}, s30 offen lds")
        if G.order != 'B2' and G.gate == 'B':
            lg = G.newlab("gate2")
            e(f"s_cmp_lg_u32 s{S_W}, 0")
            e(f"s_cbranch_scc1 {lg}")
            gate_poll()
            lab(lg)
            e("s_barrier")
    FFN_EARLY = (G.order == 'B2')
    R3, RW2 = 106496, 139264
    S_FS, S_HF = 50, 51
    BUV, BO = 160, 192
    def blk_late():
        G.srd(SRD_1, P_WUV, 4194304)
        G.srd(SRD_2, P_WO, 4194304)
        e(f"v_lshl_add_u32 v{VD0}, v{V_G}, 17, v{V_SW}")
        e(f"v_xor_b32 v{VD1}, 128, v{VD0}")
        e(f"s_lshl_b32 s29, s{S_I}, 7")
        e(f"s_lshl_b32 s28, s{S_W}, 2")
        e("s_add_u32 s29, s29, s28")
        e("s_lshl_b32 s29, s29, 13")
        e(f"s_lshl_b32 s28, s{S_H}, 8")
        e("s_add_u32 s29, s29, s28")
        def f_uv(n):
            off = (64*(n & 1) + (n >> 1)) * 8192
            if off == 0: e("s_mov_b32 s30, s29")
            else: e(f"s_add_u32 s30, s29, {off}")
        dma_tile128(SRD_1, VD0, VD1, f_uv, R0, NTW)
        e(f"v_lshl_add_u32 v{VD0}, v{V_G}, 10, v{V_SW}")
        e(f"v_xor_b32 v{VD1}, 128, v{VD0}")
        e(f"s_lshl_b32 s29, s{S_H}, 7")
        e(f"s_lshl_b32 s28, s{S_W}, 5")
        e("s_add_u32 s29, s29, s28")
        e("s_lshl_b32 s29, s29, 10")
        e(f"s_lshl_b32 s28, s{S_I}, 8")
        e("s_add_u32 s29, s29, s28")
        dma_tile128(SRD_2, VD0, VD1, lin(4*1024), R2, NTW)
    def blk_ffn_loads():
        lnf1 = G.newlab("noffn1")
        e("s_lshr_b32 s28, s2, 4")
        e("s_and_b32 s29, s2, 7")
        e("s_mul_i32 s29, s29, 6")
        e(f"s_add_u32 s{S_FS}, s28, s29")
        e("s_cmp_ge_u32 s2, 96")
        e(f"s_cselect_b32 s{S_FS}, 63, s{S_FS}")
        e(f"s_bfe_u32 s{S_HF}, s2, 0x10003")
        e(f"s_cmp_ge_u32 s{S_FS}, 43")
        e(f"s_cbranch_scc1 {lnf1}")
        G.srd(SRD_1, P_W1, 1409024)
        G.srd(SRD_2, P_W3, 1409024)
        G.srd(SRD_3, P_W2, 1409024)
        e(f"v_lshrrev_b32 v64, 2, v{V_LANE}")
        e("v_mul_u32_u24 v64, 2752, v64")
        e(f"v_lshrrev_b32 v65, 5, v{V_LANE}")
        e("v_lshlrev_b32 v66, 1, v65")
        e(f"v_and_b32 v67, 3, v{V_LANE}")
        e("v_xor_b32 v67, v66, v67")
        e("v_lshl_add_u32 v64, v67, 4, v64")
        e(f"s_lshl_b32 s29, s{S_HF}, 2")
        e(f"s_add_u32 s29, s29, s{S_W}")
        e(f"s_mul_i32 s29, s29, {64*2752}")
        e(f"s_lshl_b32 s28, s{S_FS}, 6")
        e("s_add_u32 s29, s29, s28")
        e(f"s_lshl_b32 s31, s{S_W}, 12")
        for (srd, base) in ((SRD_1, R3), (SRD_2, R3 + 16384)):
            for n in range(4):
                if n == 0: e("s_mov_b32 s30, s29")
                else: e(f"s_add_u32 s30, s29, {n*16*2752}")
                e(f"s_add_u32 m0, s31, {base + n*1024}")
                nop(1)
                e(f"buffer_load_dwordx4 v64, {sr(srd,4)}, s30 offen lds")
        e(f"v_and_b32 v67, 31, v{V_LANE}")
        e("v_xor_b32 v67, v67, v66")
        e(f"s_and_b32 s28, s{S_W}, 1")
        e("s_lshl_b32 s28, s28, 3")
        e("v_xor_b32 v67, s28, v67")
        e("v_lshlrev_b32 v67, 4, v67")
        e("v_lshl_add_u32 v67, v65, 10, v67")
        e("v_xor_b32 v68, 64, v67")
        e(f"s_lshl_b32 s29, s{S_FS}, 5")
        e(f"s_lshl_b32 s28, s{S_W}, 3")
        e("s_add_u32 s29, s29, s28")
        e("s_lshl_b32 s29, s29, 10")
        e(f"s_lshl_b32 s28, s{S_HF}, 9")
        e("s_add_u32 s29, s29, s28")
        for n in range(4):
            if n == 0: e("s_mov_b32 s30, s29")
            else: e(f"s_add_u32 s30, s29, {n*2048}")
            e(f"s_add_u32 m0, s31, {RW2 + n*1024}")
            nop(1)
            e(f"buffer_load_dwordx4 v{68 if n & 1 else 67}, {sr(SRD_3,4)}, s30 offen{NTW} lds")
        lab(lnf1)
    def blk_ffn_comp():
        lnf2 = G.newlab("noffn2")
        e(f"s_cmp_ge_u32 s{S_FS}, 43")
        e(f"s_cbranch_scc1 {lnf2}")
        e(f"v_bfe_u32 v17, v{V_LANE}, 2, 2")
        e(f"v_and_b32 v18, 3, v{V_LANE}")
        e(f"v_and_b32 v19, 1, v{V_G}")
        e(f"s_and_b32 s28, s{S_W}, 1")
        e("s_lshl_b32 s28, s28, 1")
        e("v_lshrrev_b32 v20, 1, v18")
        e("v_add_u32 v20, s28, v20")
        e("v_lshlrev_b32 v21, 1, v19")
        e("v_xor_b32 v20, v20, v21")
        e("v_lshlrev_b32 v20, 4, v20")
        e("v_and_b32 v21, 1, v18")
        e("v_lshl_add_u32 v20, v21, 3, v20")
        e(f"v_lshl_add_u32 v21, v{V_G}, 3, v17")
        e("v_lshl_add_u32 v20, v21, 6, v20")
        e(f"s_lshr_b32 s28, s{S_W}, 1")
        e("s_lshl_b32 s28, s28, 14")
        e(f"s_add_u32 s28, s28, {R3}")
        e("v_add_u32 v20, s28, v20")
        e(f"v_and_b32 v21, 1, v{V_LANE}")
        e("v_lshlrev_b32 v21, 10, v21")
        e(f"v_lshl_add_u32 v21, v{V_G}, 4, v21")
        e(f"s_lshl_b32 s28, s{S_HF}, 9")
        e("v_add_u32 v21, s28, v21")
        FA, FB_, GA = 96, 128, 76
        e("s_lshl_b32 s28, s2, 2")
        e(f"s_add_u32 s28, s28, s{S_W}")
        e("s_lshl_b32 s28, s28, 8")
        e(f"s_add_u32 s34, s28, {WS_F1}")
        e(f"s_add_u32 s35, s28, {WS_F1F}")
        e("s_xor_b32 s28, s2, 8")
        e("s_lshl_b32 s28, s28, 2")
        e(f"s_add_u32 s28, s28, s{S_W}")
        e("s_lshl_b32 s28, s28, 8")
        e(f"s_add_u32 s36, s28, {WS_F1}")
        e(f"s_add_u32 s37, s28, {WS_F1F}")
        e(f"v_lshlrev_b32 v26, 4, v{V_L15}")
        e(f"v_mov_b32 v41, s{S_TAG}")
        e(f"v_mov_b32 v43, s{S_TAG}")
        e(f"buffer_load_dwordx4 {vr(232,4)}, v26, {sr(SRD_WS,4)}, s37 offen sc1")
        e("s_waitcnt vmcnt(%d)" % (5 if FFN_EARLY else 5 + (0 if G.prew else 2) + (1 if G.touch else 0)))
        e("s_barrier")
        for ks in range(8):
            e(f"ds_read_b128 {vr(FA+4*ks,4)}, v21 offset:{L_XN + 64*ks}")
            for u in range(2):
                e(f"ds_read_b64_tr_b16 {vr(FB_+4*ks+2*u,2)}, v20 offset:{2048*ks + 256*u}")
        e("s_waitcnt lgkmcnt(0)")
        for ks in range(8):
            c = "0" if ks == 0 else vr(GA, 4)
            e(f"v_mfma_f32_16x16x32_bf16 {vr(GA,4)}, {vr(FA+4*ks,4)}, {vr(FB_+4*ks,4)}, {c}")
        e("v_lshl_add_u32 v20, v19, 2, v17")
        e("v_lshlrev_b32 v20, 1, v20")
        e(f"s_lshl_b32 s28, s{S_W}, 3")
        e("v_xor_b32 v20, s28, v20")
        e(f"v_lshl_add_u32 v21, v{V_G}, 3, v17")
        e("v_lshlrev_b32 v21, 9, v21")
        e("v_lshrrev_b32 v22, 1, v18")
        e("v_lshl_add_u32 v21, v22, 4, v21")
        e("v_and_b32 v22, 1, v18")
        e("v_lshl_add_u32 v21, v22, 3, v21")
        e(f"v_add_u32 v21, {RW2}, v21")
        for t in range(4):
            e(f"v_xor_b32 v22, {2*t}, v20")
            e(f"v_lshl_add_u32 v{28+t}, v22, 4, v21")
        e(f"v_mov_b32 v40, v{GA}")
        e(f"v_mov_b32 v42, v{GA+1}")
        e("s_mov_b64 exec, 0xffff")
        e(f"buffer_store_dwordx4 {vr(40,4)}, v26, {sr(SRD_WS,4)}, s35 offen")
        e("s_mov_b64 exec, -1")
        G.stamp(17)
        def ldF(sreg):
            return lambda b: e(f"buffer_load_dwordx4 {vr(b,4)}, v26, {sr(SRD_WS,4)}, s{sreg} offen sc1")
        def f1_slow():
            e("s_mov_b64 exec, 0xffff")
            e(f"buffer_store_dwordx4 {vr(40,4)}, v26, {sr(SRD_WS,4)}, s34 offen sc1")
            e("s_mov_b64 exec, -1")
        dual_poll(ldF(37), ldF(36), f1_slow, 44, 4, [1, 3], RING4, 1, 34)
        G.stamp(18)
        e(f"v_add_f32 v{GA}, v{GA}, v44")
        e(f"v_add_f32 v{GA+1}, v{GA+1}, v46")
        e(f"v_and_b32 v23, 1, v{V_G}")
        e("v_lshlrev_b32 v23, 7, v23")
        e(f"v_lshl_add_u32 v23, v{V_L15}, 2, v23")
        e(f"v_cndmask_b32 v22, v{GA}, v{GA+1}, {sr(M_G1,2)}")
        e(f"s_lshr_b32 s28, s{S_W}, 1")
        e("s_lshl_b32 s28, s28, 8")
        e(f"s_and_b32 s29, s{S_W}, 1")
        e("s_lshl_b32 s29, s29, 6")
        e("s_add_u32 s28, s28, s29")
        e("v_add_u32 v23, s28, v23")
        e(f"ds_write_b32 v23, v22 offset:{L_GUW}")
        e("s_waitcnt lgkmcnt(0)")
        e("s_barrier")
        e(f"v_lshlrev_b32 v23, 2, v{V_LANE}")
        e(f"ds_read_b32 v24, v23 offset:{L_GUW}")
        e(f"ds_read_b32 v25, v23 offset:{L_GUW+256}")
        for t in range(4):
            for u in range(2):
                e(f"ds_read_b64_tr_b16 {vr(FB_+4*t+2*u,2)}, v{28+t} offset:{2048*u}")
        e(f"v_mul_u32_u24 v20, {FP_S*256}, v{V_G}")
        e(f"v_lshl_add_u32 v20, v{V_L15}, 4, v20")
        e(f"s_lshl_b32 s28, s{S_HF}, 2")
        e(f"s_add_u32 s28, s28, s{S_W}")
        e(f"s_mul_i32 s28, s28, {4*FP_S*256}")
        e(f"s_lshl_b32 s29, s{S_FS}, 8")
        e("s_add_u32 s28, s28, s29")
        e(f"s_add_u32 s28, s28, {WS_FP}")
        e("s_waitcnt lgkmcnt(8)")
        rbf(24); rbf(25)
        e("v_mul_f32 v26, 0xbfb8aa3b, v24")
        e("v_exp_f32 v26, v26")
        e(f"v_lshlrev_b32 v23, 1, v{V_LANE}")
        e("v_add_f32 v26, 1.0, v26")
        e("v_rcp_f32 v26, v26")
        e(f"v_and_b32 v21, 1, v{V_LANE}")
        e("v_mul_f32 v26, v24, v26")
        rbf(26)
        e("v_mul_f32 v26, v26, v25")
        e("v_cvt_pk_bf16_f32 v26, v26, v26")
        e(f"ds_write_b16 v23, v26 offset:{L_HW}")
        e("v_lshlrev_b32 v21, 6, v21")
        e(f"v_lshl_add_u32 v21, v{V_G}, 4, v21")
        e("s_waitcnt lgkmcnt(0)")
        DA = 100
        e(f"ds_read_b128 {vr(FA,4)}, v21 offset:{L_HW}")
        e(f"v_mov_b32 v37, s{S_TAG}")
        e(f"v_mov_b32 v39, s{S_TAG}")
        e("s_waitcnt lgkmcnt(0)")
        for t in range(4):
            e(f"v_mfma_f32_16x16x32_bf16 {vr(DA+4*t,4)}, {vr(FA,4)}, {vr(FB_+4*t,4)}, 0")
        nop(9)
        for rr in range(2):
            e(f"v_cndmask_b32 v32, v{DA+rr}, v{DA+4+rr}, {sr(M_G1,2)}")
            e(f"v_cndmask_b32 v33, v{DA+8+rr}, v{DA+12+rr}, {sr(M_G1,2)}")
            e(f"v_cndmask_b32 v{36+2*rr}, v32, v33, {sr(M_HI,2)}")
        e(f"buffer_store_dwordx4 {vr(36,4)}, v20, {sr(SRD_WS,4)}, s28 offen sc1")
        G.stamp(20)
        lab(lnf2)
    def blk_csetup():
        e(f"s_lshl_b32 s28, s{S_I}, 7")
        e(f"s_lshr_b32 s29, s{S_W}, 1")
        e("s_lshl_b32 s29, s29, 6")
        e("s_add_u32 s28, s28, s29")
        e("s_lshl_b32 s38, s28, 9")
        e(f"s_lshl_b32 s29, s{S_H}, 4")
        e("s_add_u32 s38, s38, s29")
        e(f"s_add_u32 s38, s38, {WS_SU}")
        e(f"v_lshlrev_b32 v52, 9, v{V_LANE}")
        e("s_and_b32 s34, s2, 7")
        e("s_lshl_b32 s34, s34, 13")
        e(f"s_lshl_b32 s28, s{S_I}, 11")
        e("s_add_u32 s34, s34, s28")
        e(f"s_add_u32 s34, s34, {WS_CF}")
        if G.touch:
            e(f"v_lshlrev_b32 v45, 16, v{V_LANE}")
            e(f"s_mov_b32 s28, {WS_OP}")
            e(f"buffer_load_dword v46, v45, {sr(SRD_WS,4)}, s28 offen sc1")
        for reg in (() if G.prew else (WS_CPF,)):
            e(f"s_add_u32 s28, s32, {reg}")
            e(f"buffer_load_dwordx4 {vr(232,4)}, v{V_L16B}, {sr(SRD_WS,4)}, s28 offen sc1")
            e(f"buffer_load_dwordx4 {vr(236,4)}, v{V_L16B}, {sr(SRD_WS,4)}, s28 offen offset:1024 sc1")
        lnw = G.newlab("nowarm")
        e("s_cmp_lt_u32 s2, 96")
        e(f"s_cbranch_scc1 {lnw}")
        e("s_sub_u32 s28, s2, 96")
        e("s_lshl_b32 s28, s28, 13")
        e(f"s_add_u32 s28, s28, {WS_EP}")
        e(f"v_lshlrev_b32 v20, 4, v0")
        e("v_add_u32 v24, 4096, v20")
        e(f"buffer_load_dwordx4 {vr(244,4)}, v20, {sr(SRD_WS,4)}, s28 offen sc1")
        e(f"buffer_load_dwordx4 {vr(248,4)}, v24, {sr(SRD_WS,4)}, s28 offen sc1")
        lab(lnw)
        e(f"v_lshl_add_u32 v{VD0}, v{V_G}, 15, v{V_SW}")
        e(f"v_xor_b32 v{VD1}, 128, v{VD0}")
        e(f"s_lshl_b32 s29, s{S_W}, 7")
        e(f"s_add_u32 s29, s29, s{S_I}")
        e("s_lshl_b32 s29, s29, 13")
        e(f"s_lshl_b32 s28, s{S_H}, 8")
        e("s_add_u32 s29, s29, s28")
        e(f"s_add_u32 s29, s29, {WS_OP}")
        e(f"v_lshlrev_b32 v53, 4, v{V_L15}")
        e(f"v_lshl_add_u32 v53, v{V_G}, 13, v53")
        e(f"s_lshl_b32 s28, s{S_I}, 2")
        e(f"s_add_u32 s28, s28, s{S_W}")
        e("s_lshl_b32 s28, s28, 14")
        e(f"s_lshl_b32 s39, s{S_H}, 8")
        e("s_add_u32 s28, s28, s39")
        e(f"s_add_u32 s39, s28, {WS_EP}")
        e(f"v_add_u32 v21, {R1}, v{V_TL0}")
        e(f"v_add_u32 v22, {R1}, v{V_TL1}")
    def blk_waitpre():
        lw1 = G.newlab("w1"); lw2 = G.newlab("w2")
        e(f"s_cmp_ge_u32 s{S_FS}, 43")
        e(f"s_cbranch_scc1 {lw1}")
        e(f"s_waitcnt vmcnt({0 if FFN_EARLY else (12 if G.prew else 14) + (1 if G.touch else 0)})")
        e(f"s_branch {lw2}")
        lab(lw1)
        e("s_waitcnt vmcnt(0)")
        lab(lw2)
        e("s_barrier")
        G.stamp(8)
        gemv_loadB(R0, BUV, 25, 26)
        gemv_loadB(R2, BO, 25, 26)
        G.stamp(9)
    R3, RW2 = 106496, 139264
    S_FS, S_HF = 50, 51
    BUV, BO = 160, 192
    if FFN_EARLY:
        blk_ffn_loads()
        blk_ffn_comp()
        if G.gate == 'B':
            lg = G.newlab("gate2")
            e(f"s_cmp_lg_u32 s{S_W}, 0")
            e(f"s_cbranch_scc1 {lg}")
            gate_poll()
            lab(lg)
            e("s_barrier")
        elif G.gate == 'F':
            lg = G.newlab("gate2"); lg2 = G.newlab("gate3")
            e(f"s_cmp_lt_u32 s{S_FS}, 43")
            e(f"s_cbranch_scc1 {lg2}")
            e(f"s_cmp_lg_u32 s{S_W}, 0")
            e(f"s_cbranch_scc1 {lg}")
            gate_poll()
            lab(lg)
            e("s_barrier")
            lab(lg2)
        blk_late()
        blk_csetup()
        blk_waitpre()
    else:
        blk_late()
        blk_ffn_loads()
        blk_csetup()
        blk_waitpre()
    if not FFN_EARLY:
        SAVE_S = [34, 35, 36, 37, 29]
        for k_, r_ in enumerate(SAVE_S): e(f"s_mov_b32 s{56+k_}, s{r_}")
        e("v_mov_b32 v69, v20"); e("v_mov_b32 v70, v21"); e("v_mov_b32 v71, v22"); e("v_mov_b32 v72, v24")
        blk_ffn_comp()
        for k_, r_ in enumerate(SAVE_S): e(f"s_mov_b32 s{r_}, s{56+k_}")
        e("v_mov_b32 v20, v69"); e("v_mov_b32 v21, v70"); e("v_mov_b32 v22, v71"); e("v_mov_b32 v24, v72")

    lodd = G.newlab("codd"); lj = G.newlab("cjoin")
    e(f"s_cmp_lg_u32 s{S_W}, 0")
    e(f"s_cbranch_scc1 {lodd}")
    poll(ldFB, 40, 4, [0, 1, 2, 3], RING4, 2, G.sl_flag, 35)
    lab(lodd)
    e("s_barrier")
    G.stamp(10)
    e(f"buffer_load_dwordx4 {vr(40,4)}, v52, {sr(SRD_WS,4)}, s38 offen sc1")
    dma_tile128(SRD_WS, VD0, VD1, lin(4*32768), R1, " sc1")
    e(f"s_and_b32 s28, s{S_W}, 1")
    e("s_cmp_lg_u32 s28, 0")
    e(f"s_cbranch_scc1 {lj}")
    e("s_waitcnt vmcnt(8)")
    e("v_mov_b32 v44, v40")
    wave_red("v_max_f32", 44, 45)
    e("v_sub_f32 v40, v40, v44")
    e("v_exp_f32 v40, v40")
    nop(1)
    e("v_mul_f32 v44, v40, v42")
    wave_red("v_add_f32", 44, 45)
    e("v_rcp_f32 v44, v44")
    e(f"s_lshr_b32 s29, s{S_W}, 1")
    e("s_mul_i32 s28, s29, 384")
    e(f"v_lshlrev_b32 v45, 1, v{V_LANE}")
    e("v_mul_f32 v40, v40, v44")
    e("v_add_u32 v46, s28, v45")
    e("v_cvt_pk_bf16_f32 v40, v40, v40")
    e("s_lshl_b32 s28, s29, 7")
    e("s_add_u32 s28, s28, 128")
    e(f"ds_write_b16 v46, v40 offset:{L_WGT}")
    e("v_add_u32 v46, s28, v45")
    e("v_mov_b32 v47, 0")
    e(f"ds_write_b16 v46, v47 offset:{L_WGT}")
    lab(lj)
    e(f"s_add_u32 s34, s33, {WS_CP}")
    e(f"s_add_u32 s35, s33, {WS_CPF}")
    e("s_waitcnt vmcnt(0) lgkmcnt(0)")
    e("s_barrier")
    G.stamp(11)
    gemv_loadA(V_AVR, VA, L_WGT)
    for ks in range(4):
        for t in range(2):
            for u in range(2):
                r = VB + (t*4 + ks)*4 + 2*u
                e(f"ds_read_b64_tr_b16 {vr(r,2)}, v{21+t} offset:{8192*ks + 1024*u}")
    e("s_waitcnt lgkmcnt(0)")
    gemv_mma(VA, VB, VC)
    sel_tb(VC, 40, 41)
    e(f"v_cndmask_b32 v40, v40, v41, {sr(M_HI,2)}")
    write_av(40, L_AVO)
    e("s_waitcnt lgkmcnt(0)")
    e("s_barrier")
    gemv_loadA(V_AVR, VA, L_AVO)
    e("s_waitcnt lgkmcnt(0)")
    gemv_mma(VA, BUV, VC)
    publish_units(VC, V_PUB, 35, PUBQ, fast=True)
    G.stamp(12)
    e("s_mov_b32 s37, s34")
    e(f"s_add_u32 s34, s32, {WS_CP}")
    e(f"s_add_u32 s35, s32, {WS_CPF}")
    consume4(34, 40, L_AVC, 36, 35, 37, V_PUB, PUBQ)
    e("s_waitcnt lgkmcnt(0)")
    e("s_barrier")
    G.stamp(13)
    gemv_loadA(V_AVR, VA, L_AVC)
    e("s_waitcnt lgkmcnt(0)")
    gemv_mma(VA, BO, VC)
    publish_units(VC, 53, 39, PUBQ)
    G.stamp(14)
    e("s_cmp_lt_u32 s2, 96")
    e("s_cbranch_scc1 L_wdone")
    e("s_sub_u32 s35, s2, 96")
    e(f"v_lshlrev_b32 v20, 4, v0")
    e("s_lshl_b32 s28, s35, 13")
    e(f"s_add_u32 s36, s28, {WS_EP}")
    e(f"s_mul_i32 s28, s35, {FP_S*256}")
    e(f"s_add_u32 s37, s28, {WS_FP}")
    G.srd(SRD_1, P_X, 2048)
    e(f"v_lshlrev_b32 v21, 10, v{V_G}")
    e(f"v_lshl_add_u32 v21, v{V_L15}, 1, v21")
    e("s_lshl_b32 s28, s35, 5")
    e(f"buffer_load_ushort v22, v21, {sr(SRD_1,4)}, s28 offen")
    e("v_add_u32 v24, 4096, v20")
    e("v_add_u32 v25, 8192, v20")
    e("v_mov_b32 v23, 176")
    e("v_cmp_ge_u32 s[42:43], v0, v23")
    e(f"v_mov_b32 v26, s{S_TAG}")
    e("v_mov_b32 v27, 0")
    def ldFP(b):
        e(f"buffer_load_dwordx4 {vr(b,4)}, v20, {sr(SRD_WS,4)}, s37 offen sc1")
        e(f"buffer_load_dwordx4 {vr(b+4,4)}, v24, {sr(SRD_WS,4)}, s37 offen sc1")
        e(f"buffer_load_dwordx4 {vr(b+8,4)}, v25, {sr(SRD_WS,4)}, s37 offen sc1")
    def ldE(b):
        e(f"buffer_load_dwordx4 {vr(b,4)}, v20, {sr(SRD_WS,4)}, s36 offen sc1")
        e(f"buffer_load_dwordx4 {vr(b+4,4)}, v24, {sr(SRD_WS,4)}, s36 offen sc1")
    ldFP(108)
    poll(ldE, 100, 8, [1, 3, 5, 7], RING8, 2, G.sl_unit, 37)
    G.stamp(19)
    lp, done, skip = G.newlab("pollfp"), G.newlab("pfpdone"), G.newlab("pfpskip")
    e(f"s_mov_b32 s48, {G.spin}")
    e(f"s_branch {skip}")
    lab(lp)
    ldFP(108)
    e("s_waitcnt vmcnt(0)")
    lab(skip)
    e("v_cndmask_b32 v117, v117, v26, s[42:43]")
    e("v_cndmask_b32 v119, v119, v26, s[42:43]")
    check_tags([109, 111, 113, 115, 117, 119])
    e(f"s_cbranch_vccz {done}")
    e("s_sub_u32 s48, s48, 1")
    e(f"s_cbranch_scc0 {lp}")
    lab(done)
    G.stampval(38, 48)
    e("v_cndmask_b32 v116, v116, v27, s[42:43]")
    e("v_cndmask_b32 v118, v118, v27, s[42:43]")
    G.stamp(15)
    for rr in (0, 2):
        e(f"v_add_f32 v{100+rr}, v{100+rr}, v{104+rr}")
        e(f"v_add_f32 v{108+rr}, v{108+rr}, v{112+rr}")
    for rr in (0, 2):
        e(f"v_add_f32 v{100+rr}, v{100+rr}, v{116+rr}")
    for rr in (0, 2):
        e(f"v_add_f32 v{100+rr}, v{100+rr}, v{108+rr}")
    nop(2)
    e("v_permlane32_swap_b32 v100, v102")
    nop(1)
    e("v_add_f32 v100, v100, v102")
    e("v_mov_b32 v101, v100")
    nop(2)
    e("v_permlane16_swap_b32 v100, v101")
    e(f"v_lshrrev_b32 v27, 5, v{V_LANE}")
    e("v_add_f32 v100, v100, v101")
    e("v_lshlrev_b32 v27, 6, v27")
    e(f"v_lshl_add_u32 v27, v{V_L15}, 2, v27")
    e(f"s_lshl_b32 s28, s{S_W}, 7")
    e("v_add_u32 v28, s28, v27")
    e(f"ds_write_b32 v28, v100 offset:{L_FIN}")
    G.srd(SRD_2, P_OUT, 2048)
    e("s_waitcnt lgkmcnt(0)")
    e("s_barrier")
    e(f"s_cmp_lg_u32 s{S_W}, 0")
    e("s_cbranch_scc1 L_wdone")
    e(f"v_lshlrev_b32 v27, 2, v{V_LANE}")
    for w in range(4):
        e(f"ds_read_b32 v{104+w}, v27 offset:{L_FIN + 128*w}")
    e("s_lshl_b32 s28, s35, 5")
    e("v_lshlrev_b32 v22, 16, v22")
    e("s_waitcnt lgkmcnt(0)")
    e("v_add_f32 v104, v104, v105")
    e("v_add_f32 v106, v106, v107")
    e("v_add_f32 v104, v104, v22")
    e("v_add_f32 v104, v104, v106")
    e("v_cvt_pk_bf16_f32 v104, v104, v104")
    lo32()
    e(f"buffer_store_short v104, v21, {sr(SRD_2,4)}, s28 offen")
    e("s_cmp_lg_u32 s35, 0")
    e("s_cbranch_scc1 L_wdone0")
    e("s_mov_b64 exec, 1")
    e(f"v_mov_b32 v30, s{S_TAG}")
    e("v_mov_b32 v31, 0")
    e(f"buffer_store_dword v30, v31, {sr(SRD_WS,4)}, 0 offen offset:{WS_EPOCH}")
    lab("L_wdone0")
    e("s_mov_b64 exec, -1")
    lab("L_wdone")
    G.stamp(16)
    store_stamps()
    e("s_endpgm")

    lab("L_att")
    S_A, S_FS, S_HF = 38, 37, 39
    e(f"s_sub_u32 s{S_A}, s2, 128")
    e(f"s_lshr_b32 s{S_H}, s{S_A}, 6")
    VCK = 8
    for idx in range(8):
        x = 32*(idx & 3) + 128*(idx >> 2)
        if x == 0: e(f"v_mov_b32 v{VCK+idx}, v{V_L16B}")
        else: e(f"v_xor_b32 v{VCK+idx}, {x}, v{V_L16B}")
    e(f"s_lshl_b32 s29, s{S_A}, 7")
    e(f"s_lshl_b32 s30, s{S_W}, 5")
    e("s_add_u32 s29, s29, s30")
    e("s_lshl_b32 s29, s29, 10")
    e(f"s_lshl_b32 s31, s{S_W}, 15")
    e("s_waitcnt lgkmcnt(0)")
    if G.stamps: e("v_writelane_b32 v255, s40, 0")
    G.srd(SRD_1, P_CKV, 16777216)
    if G.pf_uk:
        G.srd(SRD_2, P_WUK, 4194304)
        e(f"s_and_b32 s28, s{S_A}, 7")
        e("s_lshl_b32 s28, s28, 2")
        e(f"s_bfe_u32 s30, s{S_A}, 0x20003")
        e("s_add_u32 s28, s28, s30")
        e("s_lshl_b32 s28, s28, 8")
        e(f"s_lshr_b32 s30, s{S_A}, 5")
        e("s_lshl_b32 s30, s30, 20")
        e("s_add_u32 s28, s28, s30")
        e(f"s_lshl_b32 s30, s{S_W}, 18")
        e("s_add_u32 s35, s28, s30")
        e(f"v_lshlrev_b32 v40, 13, v{V_G}")
        e(f"v_lshl_add_u32 v40, v{V_L15}, 4, v40")
        e(f"s_lshl_b32 s36, s{S_W}, 13")
        for n in range(8):
            e(f"s_add_u32 s30, s35, {n*4*8192}")
            e(f"s_add_u32 m0, s36, {L_QAL + n*1024}")
            nop(1)
            e(f"buffer_load_dwordx4 v40, {sr(SRD_2,4)}, s30 offen lds")
    e(f"s_load_dword s{S_TAG}, {sr(P_WS,2)}, {WS_EPOCH}")
    G.srd(SRD_WS, P_WS, 0x10000000)
    if G.adapt:
        G.srd(SRD_4, P_DBG, 256)
        e("v_mov_b32 v46, 0")
        e("s_mov_b32 s39, 0")
    setup = []
    su = setup.append
    AA, AB, TB, TB2 = 16, 20, 24, 48
    su(f"v_and_b32 v32, 3, v{V_LANE}")
    su(f"v_bfe_u32 v33, v{V_LANE}, 3, 1")
    su("v_lshl_add_u32 v32, v33, 2, v32")
    su("v_lshlrev_b32 v32, 1, v32")
    su(f"v_xor_b32 v33, v32, v{V_G}")
    su(f"v_lshlrev_b32 v34, 10, v{V_L15}")
    su(f"s_add_u32 s37, s31, {L_CKV}")
    for j in range(4):
        su(f"v_xor_b32 v35, {4*j}, v33")
        su(f"v_lshl_add_u32 v{AB+j}, v35, 4, v34")
        su(f"v_add_u32 v{AA+j}, s37, v{AB+j}")
        if L_QAL: su(f"v_add_u32 v{AB+j}, {L_QAL}, v{AB+j}")
    su(f"v_bfe_u32 v32, v{V_LANE}, 2, 2")
    su(f"v_and_b32 v33, 3, v{V_LANE}")
    su(f"v_and_b32 v34, 1, v{V_G}")
    su("v_lshl_add_u32 v35, v34, 2, v32")
    su("v_lshlrev_b32 v35, 1, v35")
    su(f"v_lshl_add_u32 v36, v{V_G}, 3, v32")
    su("v_lshlrev_b32 v36, 10, v36")
    su("v_lshrrev_b32 v37, 1, v33")
    su("v_lshl_add_u32 v36, v37, 4, v36")
    su("v_and_b32 v37, 1, v33")
    su("v_lshl_add_u32 v36, v37, 3, v36")
    su(f"s_lshl_b32 s28, s{S_W}, 8")
    su(f"s_add_u32 s28, s28, {L_CKV}")
    su("v_add_u32 v36, s28, v36")
    for t in range(8):
        su(f"v_xor_b32 v37, {2*t}, v35")
        su(f"v_lshl_add_u32 v{TB+t}, v37, 4, v36")
        su(f"v_add_u32 v{TB2+t}, 65536, v{TB+t}")
    su(f"v_and_b32 v57, 31, v{V_LANE}")
    su("v_lshlrev_b32 v57, 2, v57")
    su(f"s_lshl_b32 s28, s{S_W}, 7")
    su("v_add_u32 v56, s28, v57")
    su(f"v_lshlrev_b32 v58, 2, v{V_L15}")
    su(f"v_lshrrev_b32 v32, 1, v{V_G}")
    su(f"s_lshl_b32 s28, s{S_W}, 2")
    su("v_add_u32 v32, s28, v32")
    su(f"v_and_b32 v33, 1, v{V_G}")
    su("v_lshlrev_b32 v33, 3, v33")
    su(f"v_lshl_add_u32 v33, v{V_L15}, 8, v33")
    su(f"v_xor_b32 v34, v32, v{V_L15}")
    su("v_lshl_add_u32 v59, v34, 4, v33")
    su("v_xor_b32 v63, 32, v59")
    for ks in range(4):
        su(f"v_add_u32 v34, {4*ks}, v{V_G}")
        su(f"v_xor_b32 v34, v34, v{V_L15}")
        su("v_lshlrev_b32 v34, 4, v34")
        su(f"v_lshl_add_u32 v{120+ks}, v{V_L15}, 8, v34")
    su(f"v_lshlrev_b32 v126, 4, v{V_L15}")
    su(f"v_lshl_add_u32 v124, v{V_G}, 10, v126")
    su(f"v_lshlrev_b32 v125, 4, v{V_LANE}")
    su(f"v_and_b32 v126, 31, v{V_LANE}")
    su("v_lshlrev_b32 v126, 7, v126")
    su(f"s_and_b32 s28, s{S_W}, 1")
    su("s_lshl_b32 s28, s28, 7")
    su(f"v_xor_b32 v127, s28, v{V_L16B}")
    for j in range(32):
        idx = (j & 3) + 4*((j >> 3) & 1)
        if j == 0: e("s_mov_b32 s30, s29")
        else: e(f"s_add_u32 s30, s29, {j*1024}")
        e(f"s_add_u32 m0, s31, {L_CKV + j*1024}")
        nop(1)
        e(f"buffer_load_dwordx4 v{VCK+idx}, {sr(SRD_1,4)}, s30 offen{NTC} lds")
        if j == 1:
            for s_ in setup: e(s_)
        if G.adapt:
            if j < G.adapt_max:
                lsk = G.newlab("unthr")
                e("s_cmp_lg_u32 s39, 0")
                e(f"s_cbranch_scc1 {lsk}")
                e(f"buffer_load_dword v47, v46, {sr(SRD_4,4)}, 0 offen sc1")
                e("s_waitcnt vmcnt(0)")
                e("v_readfirstlane_b32 s28, v47")
                e(f"s_cmp_ge_u32 s28, {G.adapt_thr}")
                e("s_cselect_b32 s39, 1, 0")
                lab(lsk)
        else:
            w_now = G.thr_w if j < G.thr_n else G.thr2_w
            if w_now and j >= w_now - 1 and j < 31:
                e(f"s_waitcnt vmcnt({w_now - 1})")
    G.stamp(1)
    e("s_and_b32 s34, s2, 7")
    e("s_lshl_b32 s34, s34, 11")
    e(f"s_add_u32 s34, s34, {WS_FB}")
    e("s_waitcnt lgkmcnt(0)")
    e(f"s_add_u32 s{S_TAG}, s{S_TAG}, 0x9e3779b9")
    e(f"s_lshl_b32 s29, s{S_H}, 15")
    e(f"s_lshl_b32 s30, s{S_W}, 13")
    e("s_add_u32 s29, s29, s30")
    e(f"s_add_u32 s29, s29, {WS_QA}")
    e(f"s_lshl_b32 s31, s{S_W}, 13")
    if G.touch:
        e(f"s_lshl_b32 s28, s{S_A}, 2")
        e(f"s_add_u32 s28, s28, s{S_W}")
        e("s_lshl_b32 s28, s28, 13")
        e(f"s_add_u32 s28, s28, {WS_OP}")
        e("v_mov_b32 v45, 0")
        e("s_mov_b64 exec, 1")
        e(f"buffer_load_dword v46, v45, {sr(SRD_WS,4)}, s28 offen sc1")
        e(f"s_mov_b32 s28, {WS_SU}")
        e(f"buffer_load_dword v47, v45, {sr(SRD_WS,4)}, s28 offen sc1")
        e("s_mov_b64 exec, -1")
    lbp0 = G.newlab("nobp0")
    e(f"s_cmp_lg_u32 s{S_W}, 0")
    e(f"s_cbranch_scc1 {lbp0}")
    ldFB(236)
    lab(lbp0)
    e("s_waitcnt vmcnt(0)")
    G.stamp(2)
    lbp = G.newlab("nobpoll")
    e(f"s_cmp_lg_u32 s{S_W}, 0")
    e(f"s_cbranch_scc1 {lbp}")
    check_tags([236, 237, 238, 239])
    e(f"s_cbranch_vccz {lbp}")
    poll(ldFB, 40, 4, [0, 1, 2, 3], [240, 244, 248], 2, G.sl_flag, 32)
    lab(lbp)
    e("s_barrier")
    G.stamp(3)
    for j in range(8):
        if j & 3: e(f"v_xor_b32 v44, {32*(j&3)}, v127")
        else: e("v_mov_b32 v44, v127")
        if j == 0: e("s_mov_b32 s30, s29")
        else: e(f"s_add_u32 s30, s29, {j*1024}")
        e(f"s_add_u32 m0, s31, {L_QAL + j*1024}")
        nop(1)
        e(f"buffer_load_dwordx4 v44, {sr(SRD_WS,4)}, s30 offen sc1 lds")
    for ks in range(16):
        for kt in range(2):
            e(f"ds_read_b128 {ar((kt*16+ks)*4,4)}, v{AA+(ks&3)} offset:{16384*kt + 256*(ks>>2)}")
    for n in range(32):
        ks_, t = n >> 3, n & 7
        base = (TB2 if ks_ >= 2 else TB) + t
        for u in range(2):
            e(f"ds_read_b64_tr_b16 {ar(128+n*4+2*u,2)}, v{base} offset:{(ks_&1)*32768 + 4096*u}")
    e(f"s_lshl_b32 s28, s{S_A}, 2")
    e(f"s_add_u32 s28, s28, s{S_W}")
    e("s_lshl_b32 s28, s28, 13")
    e(f"s_add_u32 s34, s28, {WS_OP}")
    e("s_add_u32 s35, s34, 4096")
    e(f"s_lshl_b32 s28, s{S_W}, 7")
    e(f"s_add_u32 s28, s28, s{S_A}")
    e("s_lshl_b32 s28, s28, 9")
    e(f"s_add_u32 s36, s28, {WS_SU}")
    e(f"s_lshl_b32 s28, s{S_W}, 7")
    e(f"s_add_u32 s28, s28, s{S_A}")
    e("s_lshl_b32 s28, s28, 4")
    e(f"s_add_u32 s37, s28, {WS_CF}")
    e(f"v_lshlrev_b32 v126, 13, v{V_LANE}")
    e(f"v_mov_b32 v252, s{S_TAG}")
    e(f"v_mov_b32 v253, s{S_TAG}")
    e("s_waitcnt vmcnt(0) lgkmcnt(0)")
    e("s_barrier")
    G.stamp(4)
    QB, SC = 64, 192
    def rdB(ks):
        st = ks % 3
        for ht in range(2):
            e(f"ds_read_b128 {vr(QB+(st*2+ht)*4,4)}, v{AB+(ks&3)} offset:{16384*ht + 256*(ks>>2)}")
    def pslot(n): return 32 + n
    rdB(0); rdB(1)
    for ks in range(16):
        if ks + 2 < 16:
            rdB(ks + 2); e("s_waitcnt lgkmcnt(4)")
        elif ks + 1 < 16: e("s_waitcnt lgkmcnt(2)")
        else: e("s_waitcnt lgkmcnt(0)")
        st = ks % 3
        for kt in range(2):
            for ht in range(2):
                d = SC + (kt*2+ht)*4
                c = "0" if ks == 0 else vr(d, 4)
                e(f"v_mfma_f32_16x16x32_bf16 {vr(d,4)}, {ar((kt*16+ks)*4,4)}, {vr(QB+(st*2+ht)*4,4)}, {c}")
    nop(9)
    G.stamp(5)
    MXR = 32
    for step in range(4):
        for ht in range(2):
            a = SC + ht*4; b = SC + (2+ht)*4
            if step == 0: e(f"v_max3_f32 v{MXR+ht}, v{a}, v{a+1}, v{a+2}")
            elif step == 1: e(f"v_max3_f32 v{MXR+ht}, v{MXR+ht}, v{a+3}, v{b}")
            elif step == 2: e(f"v_max3_f32 v{MXR+ht}, v{MXR+ht}, v{b+1}, v{b+2}")
            else: e(f"v_max_f32 v{MXR+ht}, v{MXR+ht}, v{b+3}")
    xg_reduce2("v_max_f32", MXR, MXR+1, MXR+2, MXR+3)
    e(f"v_cndmask_b32 v36, v{MXR}, v{MXR+1}, {sr(M_G1,2)}")
    e("s_barrier")
    e(f"ds_write_b32 v56, v36 offset:{L_MX}")
    e("s_waitcnt lgkmcnt(0)")
    e("s_barrier")
    for ht in range(2):
        for w in range(4):
            e(f"ds_read_b32 v{40+ht*4+w}, v58 offset:{L_MX + 128*w + 64*ht}")
    e("s_waitcnt lgkmcnt(0)")
    sm = []
    a_ = sm.append
    for ht in range(2):
        a_(f"v_max3_f32 v{MXR+ht}, v{40+ht*4}, v{41+ht*4}, v{42+ht*4}")
    for ht in range(2):
        a_(f"v_max_f32 v{MXR+ht}, v{MXR+ht}, v{43+ht*4}")
    LS = 34
    for kt in range(2):
        for ht in range(2):
            d = SC + (kt*2+ht)*4
            for r in range(4): a_(f"v_sub_f32 v{d+r}, v{d+r}, v{MXR+ht}")
    for kt in range(2):
        for ht in range(2):
            d = SC + (kt*2+ht)*4
            for r in range(4): a_(f"v_exp_f32 v{d+r}, v{d+r}")
    for kt in range(2):
        for ht in range(2):
            d = SC + (kt*2+ht)*4
            q = 88 + (kt*2+ht)*2
            a_(f"v_cvt_pk_bf16_f32 v{q}, v{d}, v{d+1}")
            a_(f"v_cvt_pk_bf16_f32 v{q+1}, v{d+2}, v{d+3}")
            a_(f"ds_write_b64 v{63 if kt else 59}, {vr(q,2)} offset:{L_P + 4096*ht}")
    for ht in range(2):
        a = SC + ht*4
        a_(f"v_add_f32 v{LS+ht}, v{a}, v{a+1}")
    for x in (2, 3, 8, 9, 10, 11):
        for ht in range(2):
            a_(f"v_add_f32 v{LS+ht}, v{LS+ht}, v{SC+ht*4+x}")
    xg_reduce2("v_add_f32", LS, LS+1, 46, 47, emit=a_)
    a_(f"v_cndmask_b32 v36, v{LS}, v{LS+1}, {sr(M_G1,2)}")
    a_(f"ds_write_b32 v56, v36 offset:{L_LP}")
    for ins in sm: e(ins)
    e("s_waitcnt lgkmcnt(0)")
    e("s_barrier")
    G.stamp(6)
    PA, OC = 208, 128
    for ht in range(2):
        for ks in range(4):
            e(f"ds_read_b128 {vr(PA+(ht*4+ks)*4,4)}, v{120+ks} offset:{L_P + 4096*ht}")
    for w in range(4):
        e(f"ds_read_b32 v{240+w}, v57 offset:{L_LP + 128*w}")
    def mm(ks, t, ht):
        d = OC + (ht*8+t)*4
        c = "0" if ks == 0 else vr(d, 4)
        e(f"v_mfma_f32_16x16x32_bf16 {vr(d,4)}, {vr(PA+(ht*4+ks)*4,4)}, {ar(pslot(ks*8+t)*4,4)}, {c}")
    ST0 = 88
    for ks in range(4):
        e(f"s_waitcnt lgkmcnt({11 - ks})")
        for t in range(8): mm(ks, t, 0)
    e("s_waitcnt lgkmcnt(0)")
    cv = []
    for tp in range(4):
        for r in range(4):
            cv.append(f"v_cvt_pk_bf16_f32 v{ST0+4*r+tp}, v{OC+(2*tp)*4+r}, v{OC+(2*tp+1)*4+r}")
    seq = [(ks, t) for ks in range(4) for t in range(8)]
    for idx, (ks, t) in enumerate(seq):
        mm(ks, t, 1)
        if 8 <= idx < 24: e(cv[idx - 8])
        if idx == 24:
            for r in range(4):
                e(f"buffer_store_dwordx4 {vr(ST0+4*r,4)}, v124, {sr(SRD_WS,4)}, s34 offen offset:{r*256} sc1")
    G.stamp(7)
    e("v_add_f32 v240, v240, v241")
    e("v_add_f32 v242, v242, v243")
    e(f"v_cndmask_b32 v44, v{MXR}, v{MXR+1}, {sr(M_G1,2)}")
    e("v_mov_b32 v45, 0")
    e("v_add_f32 v46, v240, v242")
    e("v_mov_b32 v47, 0")
    nop(4)
    for r in range(4):
        for tp in range(4):
            e(f"v_cvt_pk_bf16_f32 v{ST0+16+4*r+tp}, v{OC+(8+2*tp)*4+r}, v{OC+(8+2*tp+1)*4+r}")
        e(f"buffer_store_dwordx4 {vr(ST0+16+4*r,4)}, v124, {sr(SRD_WS,4)}, s35 offen offset:{r*256} sc1")
    lo32()
    e(f"buffer_store_dwordx4 {vr(44,4)}, v125, {sr(SRD_WS,4)}, s36 offen sc1")
    e("s_mov_b64 exec, 0xff")
    e("s_waitcnt vmcnt(0)")
    G.stamp(8)
    e(f"buffer_store_dwordx2 {vr(252,2)}, v126, {sr(SRD_WS,4)}, s37 offen sc1")
    e("s_mov_b64 exec, -1")
    G.stamp(9)
    lab("L_adone")
    store_stamps()
    lab("L_end")
    e("s_endpgm")

    tail = []
    if prepost:
        for nm, off, spin in (("pre_kernel", 0x900000, 400), ("post_kernel", 0x900100, 0)):
            tail += [f".globl {nm}", ".p2align 8", f".type {nm},@function", f"{nm}:",
                     "  s_memrealtime s[10:11]",
                     "  s_cmp_ge_u32 s2, 1", f"  s_cbranch_scc1 L_{nm}_end",
                     "  s_load_dwordx2 s[4:5], s[0:1], 96"]
            if spin:
                tail += [f"  s_mov_b32 s6, {spin}", f"L_{nm}_sp:", "  s_sleep 8", "  s_sub_u32 s6, s6, 1", "  s_cmp_lg_u32 s6, 0", f"  s_cbranch_scc1 L_{nm}_sp",
                         "  s_memrealtime s[10:11]"]
            tail += ["  s_waitcnt lgkmcnt(0)", "  s_mov_b32 s12, s4", "  s_and_b32 s13, s5, 0xffff", "  s_mov_b32 s14, 0x10000000", "  s_mov_b32 s15, 0x20000",
                     "  v_mov_b32 v1, s10", f"  v_mov_b32 v2, {off}", "  s_mov_b64 exec, 1",
                     "  buffer_store_dword v1, v2, s[12:15], 0 offen", "  s_waitcnt vmcnt(0)", f"L_{nm}_end:", "  s_endpgm"]
        tail.append('.section .rodata,"a"')
        for nm in ("pre_kernel", "post_kernel"):
            tail += [".p2align 6", f".amdhsa_kernel {nm}", "  .amdhsa_next_free_vgpr 32",
                 "  .amdhsa_next_free_sgpr 24", "  .amdhsa_accum_offset 32", "  .amdhsa_group_segment_fixed_size 0",
                 "  .amdhsa_kernarg_size 104", "  .amdhsa_user_sgpr_count 2", "  .amdhsa_user_sgpr_kernarg_segment_ptr 1",
                 "  .amdhsa_system_sgpr_workgroup_id_x 1", ".end_amdhsa_kernel"]
    if extra_empty:
        tail += [".globl empty_kernel", ".p2align 8", ".type empty_kernel,@function", "empty_kernel:", "  s_endpgm"]
        tail += ['.section .rodata,"a"', ".p2align 6", ".amdhsa_kernel empty_kernel", "  .amdhsa_next_free_vgpr 32",
                 "  .amdhsa_next_free_sgpr 16", "  .amdhsa_accum_offset 32", "  .amdhsa_group_segment_fixed_size 0",
                 "  .amdhsa_kernarg_size 104", "  .amdhsa_user_sgpr_count 2", "  .amdhsa_user_sgpr_kernarg_segment_ptr 1",
                 "  .amdhsa_system_sgpr_workgroup_id_x 1", ".end_amdhsa_kernel"]
    tail.append('.section .rodata,"a"')
    tail.append(".p2align 6")
    tail.append(f".amdhsa_kernel {NAME}_kernel")
    tail.append("  .amdhsa_next_free_vgpr 512")
    tail.append("  .amdhsa_next_free_sgpr 102")
    tail.append("  .amdhsa_accum_offset 256")
    tail.append("  .amdhsa_group_segment_fixed_size 0")
    tail.append("  .amdhsa_kernarg_size 104")
    tail.append("  .amdhsa_user_sgpr_count 2")
    tail.append("  .amdhsa_user_sgpr_kernarg_segment_ptr 1")
    tail.append("  .amdhsa_system_sgpr_workgroup_id_x 1")
    tail.append(".end_amdhsa_kernel")
    for ln in G.L:
        if "buffer_" in ln:
            m = re.search(r"offset:(\d+)", ln)
            assert not m or int(m.group(1)) <= 4095, ln
    return "\n".join(hdr + G.L + tail) + "\n"

if __name__ == "__main__":
    import argparse
    ap = argparse.ArgumentParser()
    ap.add_argument("-o", default=f"cdna_kernels/{NAME}.s")
    ap.add_argument("--stamps", action="store_true")
    ap.add_argument("--extra-empty", type=int, default=0)
    ap.add_argument("--prepost", action="store_true")
    ap.add_argument("--set", action="append", default=[], help="key=value generator option")
    a = ap.parse_args()
    kw = {}
    for s_ in a.set:
        k, v = s_.split("=")
        kw[k] = int(v) if re.fullmatch(r"-?\d+", v) else v
    s = build(stamps=a.stamps, extra_empty=a.extra_empty, prepost=a.prepost, **kw)
    open(a.o, "w").write(s)
    print("wrote", a.o, len(s), "bytes")
```

```python
import sys, math, struct, re
NAME = "parallel_sum__compressed_kv_cla__glu_gated_swiglu__decode"

WS_EPOCH = 0x0
WS_FB    = 0x1000
WS_F1    = 0x660000
WS_F1F   = 0x640000
WS_QP    = 0x20000
WS_QA    = 0x60000
WS_CP    = 0x70000
WS_EP    = 0xB0000
WS_FP    = 0xF0000
WS_SU    = 0x150000
WS_QPF   = 0x190000
WS_CPF   = 0x600000
WS_CF    = 0x1D0000
WS_OP    = 0x200000
WS_STAMP = 0x800000
FP_S = 48
NFFN = 86

R0, R1, R2 = 8192, 40960, 73728
L_XN  = 0
L_AVQ = 2048
L_AVO = L_AVQ + 512
L_AVC = L_AVO + 512
L_WGT = L_AVC + 512
L_QS  = L_WGT + 512
L_FIN = L_QS + 512
L_GUW = L_FIN + 512
L_HW = L_GUW + 512
L_CKV = 32768
L_QAL = 0
L_MX  = 0
L_LP  = 512
L_P   = 4096
L_GU  = 16384
L_H   = 16384 + 512
LDS_BYTES = 163840

P_X, P_CKV, P_WQ, P_WUK, P_WUV, P_WO, P_BX, P_W1, P_W3, P_W2, P_OUT, P_DBG, P_WS = 64, 66, 68, 70, 72, 74, 76, 78, 80, 82, 84, 86, 88
S_W, S_H, S_I, S_TAG = 3, 4, 5, 6
SRD_WS, SRD_1, SRD_2, SRD_3, SRD_4 = 8, 12, 16, 20, 24
M_G1, M_HI = 44, 46
V_LANE, V_L15, V_G, V_L16B, V_SW, V_TL0, V_TL1 = 1, 2, 3, 4, 5, 6, 7

def vr(a, n): return f"v[{a}:{a+n-1}]"
def ar(a, n): return f"a[{a}:{a+n-1}]"
def sr(a, n): return f"s[{a}:{a+n-1}]"
def fbits(x): return hex(struct.unpack("<I", struct.pack("<f", x))[0])

class Gen:
    def __init__(self, **kw):
        d = dict(stamps=False, nt_ckv=True, nt_w=True, spin=200000, thr_n=4, thr_w=3, thr2_w=0,
                 gate='N', depth=3, sl_unit=1, sl_flag=2, uk_late=1, fast_k=24, pf_uk=0, prew=0, order='A', touch=0, pf_kv=0, split=0, fmap=0, bwave=0, skew=0, skew_a=3, skew_b=4, adapt=0, adapt_thr=64, adapt_max=5)
        d.update(kw)
        self.__dict__.update(d)
        self.L = []
        self.nlab = 0
    def e(self, s): self.L.append("  " + s)
    def lab(self, s): self.L.append(s + ":")
    def newlab(self, p):
        self.nlab += 1
        return f"L_{p}_{self.nlab}"
    def nop(self, n):
        while n > 0:
            k = min(n, 16)
            self.e(f"s_nop {k-1}")
            n -= k
    def stamp(self, idx):
        if not self.stamps: return
        self.e("s_memrealtime s[40:41]")
        self.e("s_waitcnt lgkmcnt(0)")
        self.e(f"v_writelane_b32 v255, s40, {idx}")
    def stampval(self, idx, sreg):
        if not self.stamps: return
        self.e(f"v_writelane_b32 v255, s{sreg}, {idx}")
    def srd(self, dst, ptr, size):
        self.e(f"s_mov_b32 s{dst}, s{ptr}")
        self.e(f"s_and_b32 s{dst+1}, s{ptr+1}, 0xffff")
        self.e(f"s_mov_b32 s{dst+2}, {size}")
        self.e(f"s_mov_b32 s{dst+3}, 0x20000")

def build(extra_empty=0, prepost=False, **kw):
    G = Gen(**kw)
    RM = 3 if G.split else 7
    REX = 0xf if G.split else 0xff
    e, lab, nop = G.e, G.lab, G.nop
    NTW = " nt" if G.nt_w else ""
    NTC = " nt" if G.nt_ckv else ""
    hdr = []
    if prepost:
        hdr.append(f"; @launch kernel=pre_kernel grid=(256,1,1) block=(64,1,1) lds=0")
        hdr.append(f"; @launch kernel={NAME}_kernel grid=(256,1,1) block=(256,1,1) lds={LDS_BYTES}")
        hdr.append(f"; @launch kernel=post_kernel grid=(256,1,1) block=(64,1,1) lds=0")
    elif extra_empty:
        hdr.append(f"; @launch kernel={NAME}_kernel grid=(256,1,1) block=(256,1,1) lds={LDS_BYTES}")
        for _ in range(extra_empty):
            hdr.append(f"; @launch kernel=empty_kernel grid=(256,1,1) block=(256,1,1) lds=0")
    else:
        hdr.append(f"; @launch grid=(256,1,1) block=(256,1,1) lds={LDS_BYTES}")
    hdr.append('.amdgcn_target "amdgcn-amd-amdhsa--gfx950"')
    hdr.append(".text")
    hdr.append(f".globl {NAME}_kernel")
    hdr.append(".p2align 8")
    hdr.append(f".type {NAME}_kernel,@function")
    hdr.append(f"{NAME}_kernel:")

    def lo32():
        e("s_mov_b32 exec_lo, -1"); e("s_mov_b32 exec_hi, 0")
    def check_tags(tagregs):
        first = True
        for k in range(0, len(tagregs), 2):
            a = tagregs[k]; b = tagregs[k+1] if k + 1 < len(tagregs) else tagregs[k]
            e(f"v_xor_b32 v61, s{S_TAG}, v{a}")
            e(f"v_xor_b32 v62, s{S_TAG}, v{b}")
            if first:
                e("v_or_b32 v60, v61, v62"); first = False
            else:
                e("v_or3_b32 v60, v60, v61, v62")
        e("v_cmp_ne_u32 vcc, 0, v60")
    def poll(mk_loads, base, nregs, tagoffs, ring, nld, sleep, cnt_idx=None):
        ring = ring[:G.depth]
        D = len(ring)
        lp, done = G.newlab("poll"), G.newlab("pdone")
        e(f"s_mov_b32 s48, {G.spin}")
        mk = mk_loads if isinstance(mk_loads, (list, tuple)) else [mk_loads] * D
        for k in range(D - 1):
            mk[k](ring[k])
            if sleep: e(f"s_sleep {sleep}")
        exits = [G.newlab("pexit") for _ in range(D)]
        lab(lp)
        for k in range(D):
            mk[(k + D - 1) % D](ring[(k + D - 1) % D])
            e(f"s_waitcnt vmcnt({(D-1)*nld})")
            check_tags([ring[k] + o for o in tagoffs])
            e(f"s_cbranch_vccz {exits[k]}")
            if sleep: e(f"s_sleep {sleep}")
        e("s_sub_u32 s48, s48, 1")
        e(f"s_cbranch_scc0 {lp}")
        for k in range(D):
            lab(exits[k])
            for r in range(nregs): e(f"v_mov_b32 v{base+r}, v{ring[k]+r}")
            if k < D - 1: e(f"s_branch {done}")
        lab(done)
        if cnt_idx is not None: G.stampval(cnt_idx, 48)
    def dual_poll(ld_fast, ld_slow, slow_store, base, nregs, tagoffs, ring, nld, cnt_idx):
        lp, x0, x1, done = G.newlab("fp"), G.newlab("fx0"), G.newlab("fx1"), G.newlab("fdone")
        r0, r1 = ring[0], ring[1]
        e(f"s_mov_b32 s49, {G.fast_k}")
        ld_fast(r0)
        lab(lp)
        for (a, b, x) in ((r0, r1, x0), (r1, r0, x1)):
            ld_fast(b)
            e(f"s_waitcnt vmcnt({nld})")
            check_tags([a + o for o in tagoffs])
            e(f"s_cbranch_vccz {x}")
        e("s_sub_u32 s49, s49, 1")
        e(f"s_cbranch_scc0 {lp}")
        slow_store()
        poll([ld_fast, ld_slow, ld_fast], base, nregs, tagoffs, ring, nld, G.sl_unit, cnt_idx)
        e(f"s_branch {done}")
        for (a, x) in ((r0, x0), (r1, x1)):
            lab(x)
            for r in range(nregs): e(f"v_mov_b32 v{base+r}, v{a+r}")
            slow_store()
            if x == x0: e(f"s_branch {done}")
        lab(done)
        G.stampval(cnt_idx + 10, 49)
    def dma_tile128(srd, v0, v1, soff_fn, lds_base, flags):
        e(f"s_lshl_b32 s31, s{S_W}, 13")
        for n in range(8):
            soff_fn(n)
            e(f"s_add_u32 m0, s31, {lds_base + n*1024}")
            v = v1 if (n >> 1) & 1 else v0
            nop(1)
            e(f"buffer_load_dwordx4 v{v}, {sr(srd,4)}, s30 offen{flags} lds")
    def lin(step):
        def f(n):
            if n == 0: e("s_mov_b32 s30, s29")
            else: e(f"s_add_u32 s30, s29, {n*step}")
        return f
    def gemv_loadB(base, vB, tmp0, tmp1):
        if base + 3*8192 + 1024 <= 65535:
            a0, a1, off = V_TL0, V_TL1, base
        else:
            e(f"v_add_u32 v{tmp0}, {base}, v{V_TL0}")
            e(f"v_add_u32 v{tmp1}, {base}, v{V_TL1}")
            a0, a1, off = tmp0, tmp1, 0
        for ks in range(4):
            for t in range(2):
                for u in range(2):
                    r = vB + (t*4 + ks)*4 + 2*u
                    e(f"ds_read_b64_tr_b16 {vr(r,2)}, v{a1 if t else a0} offset:{off + 8192*ks + 1024*u}")
    def gemv_loadA(vaddr, vA, off=0):
        for ks in range(4):
            e(f"ds_read_b128 {vr(vA+4*ks,4)}, v{vaddr} offset:{off + 64*ks}")
    def gemv_mma(vA, vB, vC):
        for ks in range(4):
            for t in range(2):
                c = "0" if ks == 0 else vr(vC+4*t, 4)
                e(f"v_mfma_f32_16x16x32_bf16 {vr(vC+4*t,4)}, {vr(vA+4*ks,4)}, {vr(vB+(t*4+ks)*4,4)}, {c}")
        nop(9)
    def sel_tb(vC, d0, d1):
        e(f"v_cndmask_b32 v{d0}, v{vC}, v{vC+4}, {sr(M_G1,2)}")
        e(f"v_cndmask_b32 v{d1}, v{vC+1}, v{vC+5}, {sr(M_G1,2)}")
    def publish_units(vC, voff, soff, q, fast=False):
        sel_tb(vC, q, q+2)
        lo32()
        e(f"buffer_store_dwordx4 {vr(q,4)}, v{voff}, {sr(SRD_WS,4)}, s{soff} offen" + ("" if fast else " sc1"))
        e("s_mov_b64 exec, -1")
    def wave_red(op, v, tmp):
        for r in (8, 4, 2, 1):
            nop(2)
            e(f"{op}_dpp v{v}, v{v}, v{v} row_ror:{r} row_mask:0xf bank_mask:0xf")
        e(f"v_mov_b32 v{tmp}, v{v}")
        nop(2)
        e(f"v_permlane16_swap_b32 v{v}, v{tmp}")
        nop(1)
        e(f"{op} v{v}, v{v}, v{tmp}")
        e(f"v_mov_b32 v{tmp}, v{v}")
        nop(2)
        e(f"v_permlane32_swap_b32 v{v}, v{tmp}")
        nop(1)
        e(f"{op} v{v}, v{v}, v{tmp}")
    def xg_reduce2(op, va, vb, ta, tb, emit=None):
        em = emit or e
        for perm in ("v_permlane16_swap_b32", "v_permlane32_swap_b32"):
            em(f"v_mov_b32 v{ta}, v{va}")
            em(f"v_mov_b32 v{tb}, v{vb}")
            em("s_nop 0")
            em(f"{perm} v{va}, v{ta}")
            em(f"{perm} v{vb}, v{tb}")
            em("s_nop 0")
            em(f"{op} v{va}, v{va}, v{ta}")
            em(f"{op} v{vb}, v{vb}, v{tb}")
    def wave_red2(op, va, vb, ta, tb):
        for r in (8, 4, 2, 1):
            nop(1)
            e(f"{op}_dpp v{va}, v{va}, v{va} row_ror:{r} row_mask:0xf bank_mask:0xf")
            e(f"{op}_dpp v{vb}, v{vb}, v{vb} row_ror:{r} row_mask:0xf bank_mask:0xf")
        xg_reduce2(op, va, vb, ta, tb)
    def rbf(v):
        e(f"v_cvt_pk_bf16_f32 v{v}, v{v}, v{v}")
        e(f"v_lshlrev_b32 v{v}, 16, v{v}")
    def layernorm(X0, X1, F0, F1, T, OUT):
        S0, S1, T0, T1, Q0, Q1, U0, U1 = range(T, T+8)
        for (X, F) in ((X0, F0), (X1, F1)):
            for k in range(4):
                e(f"v_lshlrev_b32 v{F+2*k}, 16, v{X+k}")
                e(f"v_and_b32 v{F+2*k+1}, 0xffff0000, v{X+k}")
        e(f"v_add_f32 v{S0}, v{F0}, v{F0+1}"); e(f"v_add_f32 v{S1}, v{F1}, v{F1+1}")
        for k in range(2, 8):
            e(f"v_add_f32 v{S0}, v{S0}, v{F0+k}"); e(f"v_add_f32 v{S1}, v{S1}, v{F1+k}")
        wave_red2("v_add_f32", S0, S1, T0, T1)
        e("s_mov_b32 s28, 0x3b000000")
        e(f"v_mul_f32 v{S0}, s28, v{S0}")
        e(f"v_mul_f32 v{S1}, s28, v{S1}")
        for k in range(8):
            e(f"v_sub_f32 v{U0}, v{F0+k}, v{S0}")
            e(f"v_sub_f32 v{U1}, v{F1+k}, v{S1}")
            if k == 0:
                e(f"v_mul_f32 v{Q0}, v{U0}, v{U0}"); e(f"v_mul_f32 v{Q1}, v{U1}, v{U1}")
            else:
                e(f"v_fmac_f32 v{Q0}, v{U0}, v{U0}"); e(f"v_fmac_f32 v{Q1}, v{U1}, v{U1}")
        wave_red2("v_add_f32", Q0, Q1, T0, T1)
        e("s_mov_b32 s29, 0x3727c5ac")
        def both(f): f(Q0, S0); f(Q1, S1)
        both(lambda Q, S: e(f"v_mul_f32 v{Q}, s28, v{Q}"))
        both(lambda Q, S: e(f"v_cvt_pk_bf16_f32 v{Q}, v{Q}, v{Q}"))
        both(lambda Q, S: e(f"v_lshlrev_b32 v{Q}, 16, v{Q}"))
        both(lambda Q, S: e(f"v_add_f32 v{Q}, s29, v{Q}"))
        both(lambda Q, S: e(f"v_cvt_pk_bf16_f32 v{Q}, v{Q}, v{Q}"))
        both(lambda Q, S: e(f"v_lshlrev_b32 v{Q}, 16, v{Q}"))
        both(lambda Q, S: e(f"v_sqrt_f32 v{Q}, v{Q}"))
        both(lambda Q, S: e(f"v_cvt_pk_bf16_f32 v{S}, v{S}, v{S}"))
        both(lambda Q, S: e(f"v_cvt_pk_bf16_f32 v{Q}, v{Q}, v{Q}"))
        both(lambda Q, S: e(f"v_lshlrev_b32 v{S}, 16, v{S}"))
        both(lambda Q, S: e(f"v_lshlrev_b32 v{Q}, 16, v{Q}"))
        both(lambda Q, S: e(f"v_rcp_f32 v{Q}, v{Q}"))
        for (F, S, Q, XB) in ((F0, S0, Q0, 0), (F1, S1, Q1, 1)):
            for k in range(0, 8, 2):
                e(f"v_sub_f32 v{F+k}, v{F+k}, v{S}")
                e(f"v_sub_f32 v{F+k+1}, v{F+k+1}, v{S}")
                e(f"v_cvt_pk_bf16_f32 v{U0}, v{F+k}, v{F+k+1}")
                e(f"v_lshlrev_b32 v{F+k}, 16, v{U0}")
                e(f"v_and_b32 v{F+k+1}, 0xffff0000, v{U0}")
                e(f"v_mul_f32 v{F+k}, v{F+k}, v{Q}")
                e(f"v_mul_f32 v{F+k+1}, v{F+k+1}, v{Q}")
                e(f"v_cvt_pk_bf16_f32 v{OUT+XB*4+k//2}, v{F+k}, v{F+k+1}")
    def layernorm1(X, F, T, OUT):
        S, Q, T0, T1, U, C = range(T, T+6)
        for k in range(4):
            e(f"v_lshlrev_b32 v{F+2*k}, 16, v{X+k}")
            e(f"v_and_b32 v{F+2*k+1}, 0xffff0000, v{X+k}")
        e(f"v_readfirstlane_b32 s28, v{F}")
        nop(2)
        for k in range(8): e(f"v_subrev_f32 v{F+k}, s28, v{F+k}")
        e(f"v_add_f32 v{S}, v{F}, v{F+1}")
        e(f"v_mul_f32 v{Q}, v{F}, v{F}")
        e(f"v_fmac_f32 v{Q}, v{F+1}, v{F+1}")
        for k in range(2, 8):
            e(f"v_add_f32 v{S}, v{S}, v{F+k}")
            e(f"v_fmac_f32 v{Q}, v{F+k}, v{F+k}")
        wave_red2("v_add_f32", S, Q, T0, T1)
        e("s_mov_b32 s29, 0x3b000000")
        e(f"v_mul_f32 v{S}, s29, v{S}")
        e(f"v_mul_f32 v{Q}, s29, v{Q}")
        e(f"v_fma_f32 v{Q}, -v{S}, v{S}, v{Q}")
        e(f"v_add_f32 v{U}, s28, v{S}")
        e(f"v_max_f32 v{Q}, 0, v{Q}")
        e(f"v_cvt_pk_bf16_f32 v{U}, v{U}, v{U}")
        e(f"v_cvt_pk_bf16_f32 v{Q}, v{Q}, v{Q}")
        e(f"v_lshlrev_b32 v{U}, 16, v{U}")
        e(f"v_lshlrev_b32 v{Q}, 16, v{Q}")
        e("s_mov_b32 s29, 0x3727c5ac")
        e(f"v_add_f32 v{Q}, s29, v{Q}")
        e(f"v_subrev_f32 v{U}, s28, v{U}")
        e(f"v_cvt_pk_bf16_f32 v{Q}, v{Q}, v{Q}")
        e(f"v_lshlrev_b32 v{Q}, 16, v{Q}")
        e(f"v_sqrt_f32 v{Q}, v{Q}")
        for k in range(4): e(f"v_sub_f32 v{F+k}, v{F+k}, v{U}")
        e(f"v_cvt_pk_bf16_f32 v{Q}, v{Q}, v{Q}")
        for k in range(4, 8): e(f"v_sub_f32 v{F+k}, v{F+k}, v{U}")
        e(f"v_lshlrev_b32 v{Q}, 16, v{Q}")
        e(f"v_rcp_f32 v{Q}, v{Q}")
        for k in range(0, 8, 2):
            e(f"v_cvt_pk_bf16_f32 v{OUT+k//2}, v{F+k}, v{F+k+1}")
        for k in range(0, 8, 2):
            e(f"v_lshlrev_b32 v{F+k}, 16, v{OUT+k//2}")
            e(f"v_and_b32 v{F+k+1}, 0xffff0000, v{OUT+k//2}")
        for k in range(8): e(f"v_mul_f32 v{F+k}, v{F+k}, v{Q}")
        for k in range(0, 8, 2):
            e(f"v_cvt_pk_bf16_f32 v{OUT+k//2}, v{F+k}, v{F+k+1}")
    def store_stamps():
        if not G.stamps: return
        e("s_getreg_b32 s30, hwreg(HW_REG_XCC_ID)")
        e("v_writelane_b32 v255, s30, 40")
        e(f"s_lshl_b32 s30, s2, 2")
        e(f"s_add_u32 s30, s30, s{S_W}")
        e(f"s_lshl_b32 s30, s30, 8")
        e(f"s_add_u32 s30, s30, {WS_STAMP}")
        e(f"v_lshlrev_b32 v60, 2, v{V_LANE}")
        e(f"buffer_store_dword v255, v60, {sr(SRD_WS,4)}, s30 offen")

    e("s_cmp_ge_u32 s2, 256")
    e("s_cbranch_scc1 L_end")
    if G.stamps:
        e("v_mov_b32 v255, 0")
        e("s_memrealtime s[40:41]")
    e(f"s_load_dwordx16 s[64:79], s[0:1], 0")
    e(f"s_load_dwordx8 s[80:87], s[0:1], 64")
    e(f"s_load_dwordx2 s[88:89], s[0:1], 96")
    e(f"v_and_b32 v{V_LANE}, 63, v0")
    e(f"v_lshrrev_b32 v8, 6, v0")
    e(f"v_and_b32 v{V_L15}, 15, v0")
    e(f"v_readfirstlane_b32 s{S_W}, v8")
    e(f"v_lshrrev_b32 v{V_G}, 4, v{V_LANE}")
    e(f"v_lshlrev_b32 v{V_L16B}, 4, v{V_LANE}")
    e(f"s_mov_b32 s{M_G1}, 0xffff0000"); e(f"s_mov_b32 s{M_G1+1}, 0xffff0000")
    e(f"s_mov_b32 s{M_HI}, 0"); e(f"s_mov_b32 s{M_HI+1}, -1")
    e("s_mov_b32 s63, s2")
    if G.split:
        e("s_and_b32 s28, s2, 3")
        e("s_lshr_b32 s29, s2, 3")
        e("s_bitcmp1_b32 s2, 2")
        e("s_cbranch_scc1 L_att_id")
        e("s_lshl_b32 s28, s28, 1")
        e("s_and_b32 s30, s29, 1")
        e("s_or_b32 s28, s28, s30")
        e("s_lshr_b32 s29, s29, 1")
        e("s_lshl_b32 s29, s29, 3")
        e("s_or_b32 s2, s28, s29")
        e("s_branch L_wgt")
        lab("L_att_id")
        e("s_lshl_b32 s29, s29, 2")
        e("s_add_u32 s2, s28, s29")
        e("s_add_u32 s2, s2, 128")
        e("s_branch L_att")
        lab("L_wgt")
    else:
        e("s_cmp_ge_u32 s2, 128")
        e("s_cbranch_scc1 L_att")

    V_AVW, V_AVR, V_PUB, VD0, VD1 = 56, 57, 55, 58, 59
    RING8 = [224, 232, 240]
    RING4 = [224, 228, 232]
    PUBQ = 48
    e(f"v_lshlrev_b32 v8, 1, v{V_G}")
    e(f"v_xor_b32 v8, v8, v{V_L15}")
    e(f"v_lshlrev_b32 v{V_SW}, 4, v8")
    e("s_and_b32 s28, s2, 7")
    e("s_lshl_b32 s28, s28, 2")
    e("s_bfe_u32 s29, s2, 0x20003")
    e(f"s_add_u32 s{S_H}, s28, s29")
    e(f"s_lshr_b32 s{S_I}, s2, 5")
    if G.fmap:
        e("s_and_b32 s28, s2, 7")
        e("s_sub_u32 s28, s28, 4")
        e("s_lshl_b32 s62, s28, 4")
        e("s_lshr_b32 s29, s2, 3")
        e("s_add_u32 s62, s62, s29")
        e("s_cmp_lt_u32 s28, 2")
        e("s_cselect_b32 s62, s62, 255")
    else:
        e("s_sub_u32 s62, s2, 96")
        e("s_cmp_ge_u32 s2, 96")
        e("s_cselect_b32 s62, s62, 255")
    e(f"v_lshl_add_u32 v{VD0}, v{V_G}, 13, v{V_SW}")
    e(f"v_xor_b32 v{VD1}, 128, v{VD0}")
    e(f"s_lshl_b32 s29, s{S_I}, 7")
    e(f"s_lshl_b32 s28, s{S_W}, 5")
    e("s_add_u32 s29, s29, s28")
    e("s_lshl_b32 s29, s29, 13")
    e(f"s_lshl_b32 s28, s{S_H}, 8")
    e("s_add_u32 s29, s29, s28")
    e("s_waitcnt lgkmcnt(0)")
    if G.stamps: e("v_writelane_b32 v255, s40, 0")
    if G.skew:
        lsk0 = G.newlab("noann")
        e("s_cmp_ge_u32 s2, 8")
        e(f"s_cbranch_scc1 {lsk0}")
        e(f"s_cmp_lg_u32 s{S_W}, 3")
        e(f"s_cbranch_scc1 {lsk0}")
        G.srd(SRD_4, P_DBG, 256)
        e("v_mov_b32 v30, 1")
        e("s_lshl_b32 s28, s2, 2")
        e("v_mov_b32 v31, s28")
        e("s_mov_b64 exec, 1")
        e(f"buffer_store_dword v30, v31, {sr(SRD_4,4)}, 0 offen sc1")
        e("s_mov_b64 exec, -1")
        lab(lsk0)
    G.srd(SRD_1, P_X, 2048)
    G.srd(SRD_2, P_WQ, 4194304)
    X0, X1 = 8, 12
    e(f"s_lshr_b32 s37, s{S_W}, 1")
    e("s_lshl_b32 s37, s37, 10")
    e(f"buffer_load_dwordx4 {vr(X0,4)}, v{V_L16B}, {sr(SRD_1,4)}, s37 offen")
    dma_tile128(SRD_2, VD0, VD1, lin(4*8192), R0, NTW)
    e(f"s_load_dword s{S_TAG}, {sr(P_WS,2)}, {WS_EPOCH}")
    G.srd(SRD_3, P_WUK, 4194304)
    dma_tile128(SRD_3, VD0, VD1, lin(4*8192), R1, "" if G.pf_uk else NTW)
    G.srd(SRD_WS, P_WS, 0x10000000)
    e(f"s_lshl_b32 s32, s{S_H}, 2")
    e(f"s_add_u32 s32, s32, s{S_W}")
    e("s_lshl_b32 s32, s32, 11")
    if G.prew:
        e(f"v_lshlrev_b32 v232, 4, v{V_L15}")
        e(f"v_lshl_add_u32 v232, v{V_G}, 10, v232")
        for r_ in range(4): e(f"v_mov_b32 v{236+r_}, 0")
        e(f"s_lshl_b32 s28, s{S_I}, 8")
        e("s_add_u32 s28, s28, s32")
        lo32()
        for reg in (WS_QPF, WS_CPF):
            e(f"s_add_u32 s30, s28, {reg}")
            e(f"buffer_store_dwordx4 {vr(236,4)}, v232, {sr(SRD_WS,4)}, s30 offen")
        e("s_mov_b64 exec, -1")
    else:
        for reg in (WS_QPF,):
            e(f"s_add_u32 s28, s32, {reg}")
            e(f"buffer_load_dwordx4 {vr(232,4)}, v{V_L16B}, {sr(SRD_WS,4)}, s28 offen sc1")
            e(f"buffer_load_dwordx4 {vr(236,4)}, v{V_L16B}, {sr(SRD_WS,4)}, s28 offen offset:1024 sc1")
    e(f"v_bfe_u32 v17, v{V_LANE}, 2, 2")
    e(f"v_and_b32 v18, 3, v{V_LANE}")
    e(f"v_and_b32 v19, 1, v{V_G}")
    e("v_lshl_add_u32 v20, v19, 2, v17")
    e("v_lshlrev_b32 v20, 1, v20")
    e(f"s_lshl_b32 s28, s{S_W}, 2")
    e("v_xor_b32 v20, s28, v20")
    e("v_lshrrev_b32 v21, 1, v18")
    e("v_add_u32 v20, v20, v21")
    e("v_lshlrev_b32 v20, 4, v20")
    e("v_and_b32 v21, 1, v18")
    e("v_lshl_add_u32 v20, v21, 3, v20")
    e(f"v_lshl_add_u32 v21, v{V_G}, 3, v17")
    e(f"v_lshl_add_u32 v{V_TL0}, v21, 8, v20")
    e(f"v_xor_b32 v{V_TL1}, 32, v{V_TL0}")
    e(f"v_lshrrev_b32 v20, 1, v{V_G}")
    e("v_lshlrev_b32 v20, 8, v20")
    e(f"v_lshl_add_u32 v21, v19, 4, v{V_L15}")
    e(f"s_lshl_b32 s28, s{S_W}, 5")
    e("v_add_u32 v21, s28, v21")
    e(f"v_lshl_add_u32 v{V_AVW}, v21, 1, v20")
    e(f"v_and_b32 v20, 1, v{V_LANE}")
    e("v_lshlrev_b32 v20, 8, v20")
    e(f"v_lshl_add_u32 v{V_AVR}, v{V_G}, 4, v20")
    e(f"v_lshlrev_b32 v{V_PUB}, 4, v{V_L15}")
    e(f"v_lshl_add_u32 v{V_PUB}, v{V_G}, 10, v{V_PUB}")
    e(f"s_lshl_b32 s32, s{S_H}, 2")
    e(f"s_add_u32 s32, s32, s{S_W}")
    e("s_lshl_b32 s32, s32, 11")
    e(f"s_lshl_b32 s33, s{S_I}, 8")
    e("s_add_u32 s33, s33, s32")
    e(f"v_and_b32 v52, 1, v{V_LANE}")
    e("v_lshlrev_b32 v52, 10, v52")
    e(f"v_lshl_add_u32 v52, v{V_G}, 4, v52")
    e(f"s_lshl_b32 s28, s{S_I}, 8")
    e(f"s_add_u32 s28, s28, {L_XN}")
    e("v_add_u32 v52, s28, v52")
    e(f"v_and_b32 v22, 3, v{V_LANE}")
    e(f"v_bfe_u32 v23, v{V_LANE}, 3, 1")
    e("v_lshl_add_u32 v22, v23, 2, v22")
    e("v_lshlrev_b32 v22, 1, v22")
    e(f"v_xor_b32 v22, v22, v{V_G}")
    e(f"v_lshlrev_b32 v23, 8, v{V_L15}")
    e(f"s_lshl_b32 s28, s{S_W}, 13")
    e(f"s_add_u32 s28, s28, {R1}")
    e("v_add_u32 v23, s28, v23")
    for ks in range(4):
        e(f"v_xor_b32 v24, {4*ks}, v22")
        e(f"v_lshl_add_u32 v{248+ks}, v24, 4, v23")
    G.stamp(1)
    e("s_waitcnt vmcnt(18)")
    layernorm1(X0, 16, 24, 40)
    e(f"v_add_u32 v30, s37, v{V_L16B}")
    e(f"ds_write_b128 v30, {vr(40,4)} offset:{L_XN}")
    if G.adapt:
        G.srd(SRD_4, P_DBG, 256)
        lna = G.newlab("noadd")
        e(f"s_cmp_lg_u32 s{S_W}, 0")
        e(f"s_cbranch_scc1 {lna}")
        e("v_mov_b32 v31, 1")
        e("v_mov_b32 v30, 0")
        e("s_mov_b64 exec, 1")
        e(f"buffer_atomic_add v31, v30, {sr(SRD_4,4)}, 0 offen sc1")
        e("s_mov_b64 exec, -1")
        lab(lna)
    G.stamp(2)
    e("s_waitcnt vmcnt(10) lgkmcnt(0)")
    e("s_barrier")
    G.stamp(3)
    VA, VB, VC, WUK = 96, 112, 144, 64
    gemv_loadA(52, VA)
    gemv_loadB(R0, VB, 21, 22)
    e(f"s_add_u32 s{S_TAG}, s{S_TAG}, 0x9e3779b9")
    e(f"s_add_u32 s34, s33, {WS_QP}")
    e(f"s_add_u32 s35, s33, {WS_QPF}")
    e(f"v_mov_b32 v{PUBQ+1}, s{S_TAG}")
    e(f"v_mov_b32 v{PUBQ+3}, s{S_TAG}")
    e("s_waitcnt lgkmcnt(0)")
    gemv_mma(VA, VB, VC)
    publish_units(VC, V_PUB, 35, PUBQ, fast=True)
    G.stamp(4)
    e("s_mov_b32 s37, s34")
    def consume4(soff, u0, lds_dst, cnt_idx, sfast, spub, voff, q):
        u1 = u0 + 4
        def mk(sreg):
            def ld(b):
                e(f"buffer_load_dwordx4 {vr(b,4)}, v{V_L16B}, {sr(SRD_WS,4)}, s{sreg} offen sc1")
                e(f"buffer_load_dwordx4 {vr(b+4,4)}, v{V_L16B}, {sr(SRD_WS,4)}, s{sreg} offen offset:1024 sc1")
            return ld
        def slow_store():
            lo32()
            e(f"buffer_store_dwordx4 {vr(q,4)}, v{voff}, {sr(SRD_WS,4)}, s{spub} offen sc1")
            e("s_mov_b64 exec, -1")
        dual_poll(mk(sfast), mk(soff), slow_store, u0, 8, [1, 3, 5, 7], RING8, 2, cnt_idx)
        nop(1)
        e(f"v_permlane32_swap_b32 v{u0}, v{u0+2}")
        e(f"v_permlane32_swap_b32 v{u1}, v{u1+2}")
        nop(1)
        e(f"v_add_f32 v{u0}, v{u0}, v{u0+2}")
        e(f"v_add_f32 v{u1}, v{u1}, v{u1+2}")
        nop(2)
        e(f"v_permlane16_swap_b32 v{u0}, v{u1}")
        nop(1)
        e(f"v_add_f32 v{u0}, v{u0}, v{u1}")
        write_av(u0, lds_dst)
    def write_av(vsrc, lds_dst):
        e(f"v_cvt_pk_bf16_f32 v54, v{vsrc}, v{vsrc}")
        e(f"ds_write_b16 v{V_AVW}, v54 offset:{lds_dst}")
    e(f"s_add_u32 s34, s32, {WS_QP}")
    e(f"s_add_u32 s35, s32, {WS_QPF}")
    e("s_waitcnt vmcnt(1)")
    for ct in range(2):
        for ks in range(4):
            e(f"ds_read_b128 {vr(WUK+(ct*4+ks)*4,4)}, v{248+ks} offset:{4096*ct}")
    consume4(34, 40, L_AVQ, 32, 35, 37, V_PUB, PUBQ)
    e("s_waitcnt lgkmcnt(0)")
    e("s_barrier")
    G.stamp(5)
    gemv_loadA(V_AVR, VA, L_AVQ)
    e(f"v_lshlrev_b32 v44, 4, v{V_L15}")
    e(f"v_lshl_add_u32 v44, v{V_G}, 15, v44")
    e(f"s_lshl_b32 s34, s{S_H}, 10")
    e(f"s_lshl_b32 s35, s{S_I}, 8")
    e("s_add_u32 s34, s34, s35")
    e(f"s_add_u32 s34, s34, {WS_QA}")
    e(f"s_lshl_b32 s35, s{S_H}, 2")
    e(f"s_add_u32 s35, s35, s{S_I}")
    e("s_lshl_b32 s35, s35, 4")
    e(f"s_add_u32 s35, s35, {WS_FB}")
    e("s_waitcnt lgkmcnt(0)")
    for ks in range(4):
        for ct in range(2):
            c = "0" if ks == 0 else vr(VC+4*ct, 4)
            e(f"v_mfma_f32_16x16x32_bf16 {vr(VC+4*ct,4)}, {vr(VA+4*ks,4)}, {vr(WUK+(ct*4+ks)*4,4)}, {c}")
    nop(9)
    sel_tb(VC, 40, 41)
    e(f"v_cndmask_b32 v40, v40, v41, {sr(M_HI,2)}")
    e(f"v_mul_f32 v40, {fbits((128 ** -0.5) * math.log2(math.e))}, v40")
    write_av(40, L_QS)
    e("s_waitcnt lgkmcnt(0)")
    e("s_barrier")
    def ldFB(b):
        e(f"buffer_load_dwordx2 {vr(b,2)}, v{V_L16B}, {sr(SRD_WS,4)}, s34 offen sc1")
        e(f"buffer_load_dwordx2 {vr(b+2,2)}, v{V_L16B}, {sr(SRD_WS,4)}, s34 offen offset:1024 sc1")
    def gate_poll():
        e(f"s_and_b32 s34, s63, {RM}")
        e("s_lshl_b32 s34, s34, 11")
        e(f"s_add_u32 s34, s34, {WS_FB}")
        poll(ldFB, 40, 4, [0, 1, 2, 3], RING4, 2, 4, 33)
    lskip = G.newlab("nopub")
    e(f"s_cmp_lg_u32 s{S_W}, 0")
    e(f"s_cbranch_scc1 {lskip}")
    e(f"ds_read_b128 {vr(40,4)}, v{V_L16B} offset:{L_QS}")
    e(f"v_mov_b32 v46, s{S_TAG}")
    e(f"v_mov_b32 v47, s{S_TAG}")
    e(f"v_lshlrev_b32 v45, 11, v{V_LANE}")
    e("s_waitcnt lgkmcnt(0)")
    lo32()
    e(f"buffer_store_dwordx4 {vr(40,4)}, v44, {sr(SRD_WS,4)}, s34 offen sc1")
    e(f"s_mov_b64 exec, {hex(REX)}")
    e("s_waitcnt vmcnt(0)")
    e(f"buffer_store_dwordx2 {vr(46,2)}, v45, {sr(SRD_WS,4)}, s35 offen sc1")
    e("s_mov_b64 exec, -1")
    if G.gate == 'B' and G.order != 'B2' and not G.pf_kv: gate_poll()
    lab(lskip)
    G.stamp(6)
    e("s_barrier")
    G.stamp(7)
    if G.pf_kv:
        G.srd(SRD_4, P_CKV, 16777216)
        e("s_lshl_b32 s29, s2, 7")
        e(f"s_lshl_b32 s30, s{S_W}, 5")
        e("s_add_u32 s29, s29, s30")
        e("s_lshl_b32 s29, s29, 10")
        e(f"s_lshl_b32 s31, s{S_W}, 10")
        e("s_add_u32 m0, s31, 155648")
        for n in range(G.pf_kv):
            e(f"s_add_u32 s30, s29, {(31 - n)*1024}")
            e(f"buffer_load_dwordx4 v{V_L16B}, {sr(SRD_4,4)}, s30 offen lds")
        if G.order != 'B2' and G.gate == 'B':
            lg = G.newlab("gate2")
            e(f"s_cmp_lg_u32 s{S_W}, 0")
            e(f"s_cbranch_scc1 {lg}")
            gate_poll()
            lab(lg)
            e("s_barrier")
    FFN_EARLY = (G.order == 'B2')
    R3, RW2 = 106496, 139264
    S_FS, S_HF = 50, 51
    BUV, BO = 160, 192
    def blk_late():
        G.srd(SRD_1, P_WUV, 4194304)
        G.srd(SRD_2, P_WO, 4194304)
        e(f"v_lshl_add_u32 v{VD0}, v{V_G}, 17, v{V_SW}")
        e(f"v_xor_b32 v{VD1}, 128, v{VD0}")
        e(f"s_lshl_b32 s29, s{S_I}, 7")
        e(f"s_lshl_b32 s28, s{S_W}, 2")
        e("s_add_u32 s29, s29, s28")
        e("s_lshl_b32 s29, s29, 13")
        e(f"s_lshl_b32 s28, s{S_H}, 8")
        e("s_add_u32 s29, s29, s28")
        def f_uv(n):
            off = (64*(n & 1) + (n >> 1)) * 8192
            if off == 0: e("s_mov_b32 s30, s29")
            else: e(f"s_add_u32 s30, s29, {off}")
        dma_tile128(SRD_1, VD0, VD1, f_uv, R0, NTW)
        e(f"v_lshl_add_u32 v{VD0}, v{V_G}, 10, v{V_SW}")
        e(f"v_xor_b32 v{VD1}, 128, v{VD0}")
        e(f"s_lshl_b32 s29, s{S_H}, 7")
        e(f"s_lshl_b32 s28, s{S_W}, 5")
        e("s_add_u32 s29, s29, s28")
        e("s_lshl_b32 s29, s29, 10")
        e(f"s_lshl_b32 s28, s{S_I}, 8")
        e("s_add_u32 s29, s29, s28")
        dma_tile128(SRD_2, VD0, VD1, lin(4*1024), R2, NTW)
    def blk_ffn_loads():
        lnf1 = G.newlab("noffn1")
        if G.fmap:
            e("s_lshr_b32 s28, s2, 4")
            e("s_and_b32 s29, s2, 7")
            e("s_lshl_b32 s30, s29, 3")
            e("s_add_u32 s30, s30, s28")
            e(f"s_mov_b32 s{S_FS}, 63")
            e("s_cmp_lt_u32 s29, 4")
            e(f"s_cselect_b32 s{S_FS}, s30, s{S_FS}")
            e("s_add_u32 s30, s28, 32")
            e("s_cmp_lt_u32 s28, 6")
            e("s_cselect_b32 s30, s30, 63")
            e("s_cmp_eq_u32 s29, 6")
            e(f"s_cselect_b32 s{S_FS}, s30, s{S_FS}")
            e("s_add_u32 s30, s28, 38")
            e("s_cmp_eq_u32 s29, 7")
            e(f"s_cselect_b32 s{S_FS}, s30, s{S_FS}")
        else:
            e("s_lshr_b32 s28, s2, 4")
            e("s_and_b32 s29, s2, 7")
            e("s_mul_i32 s29, s29, 6")
            e(f"s_add_u32 s{S_FS}, s28, s29")
            e("s_cmp_ge_u32 s2, 96")
            e(f"s_cselect_b32 s{S_FS}, 63, s{S_FS}")
        e(f"s_bfe_u32 s{S_HF}, s2, 0x10003")
        e(f"s_cmp_ge_u32 s{S_FS}, 43")
        e(f"s_cbranch_scc1 {lnf1}")
        G.srd(SRD_1, P_W1, 1409024)
        G.srd(SRD_2, P_W3, 1409024)
        G.srd(SRD_3, P_W2, 1409024)
        e(f"v_lshrrev_b32 v64, 2, v{V_LANE}")
        e("v_mul_u32_u24 v64, 2752, v64")
        e(f"v_lshrrev_b32 v65, 5, v{V_LANE}")
        e("v_lshlrev_b32 v66, 1, v65")
        e(f"v_and_b32 v67, 3, v{V_LANE}")
        e("v_xor_b32 v67, v66, v67")
        e("v_lshl_add_u32 v64, v67, 4, v64")
        e(f"s_lshl_b32 s29, s{S_HF}, 2")
        e(f"s_add_u32 s29, s29, s{S_W}")
        e(f"s_mul_i32 s29, s29, {64*2752}")
        e(f"s_lshl_b32 s28, s{S_FS}, 6")
        e("s_add_u32 s29, s29, s28")
        e(f"s_lshl_b32 s31, s{S_W}, 12")
        for (srd, base) in ((SRD_1, R3), (SRD_2, R3 + 16384)):
            for n in range(4):
                if n == 0: e("s_mov_b32 s30, s29")
                else: e(f"s_add_u32 s30, s29, {n*16*2752}")
                e(f"s_add_u32 m0, s31, {base + n*1024}")
                nop(1)
                e(f"buffer_load_dwordx4 v64, {sr(srd,4)}, s30 offen lds")
        e(f"v_and_b32 v67, 31, v{V_LANE}")
        e("v_xor_b32 v67, v67, v66")
        e(f"s_and_b32 s28, s{S_W}, 1")
        e("s_lshl_b32 s28, s28, 3")
        e("v_xor_b32 v67, s28, v67")
        e("v_lshlrev_b32 v67, 4, v67")
        e("v_lshl_add_u32 v67, v65, 10, v67")
        e("v_xor_b32 v68, 64, v67")
        e(f"s_lshl_b32 s29, s{S_FS}, 5")
        e(f"s_lshl_b32 s28, s{S_W}, 3")
        e("s_add_u32 s29, s29, s28")
        e("s_lshl_b32 s29, s29, 10")
        e(f"s_lshl_b32 s28, s{S_HF}, 9")
        e("s_add_u32 s29, s29, s28")
        for n in range(4):
            if n == 0: e("s_mov_b32 s30, s29")
            else: e(f"s_add_u32 s30, s29, {n*2048}")
            e(f"s_add_u32 m0, s31, {RW2 + n*1024}")
            nop(1)
            e(f"buffer_load_dwordx4 v{68 if n & 1 else 67}, {sr(SRD_3,4)}, s30 offen{NTW} lds")
        lab(lnf1)
    def blk_ffn_comp():
        lnf2 = G.newlab("noffn2")
        e(f"s_cmp_ge_u32 s{S_FS}, 43")
        e(f"s_cbranch_scc1 {lnf2}")
        e(f"v_bfe_u32 v17, v{V_LANE}, 2, 2")
        e(f"v_and_b32 v18, 3, v{V_LANE}")
        e(f"v_and_b32 v19, 1, v{V_G}")
        e(f"s_and_b32 s28, s{S_W}, 1")
        e("s_lshl_b32 s28, s28, 1")
        e("v_lshrrev_b32 v20, 1, v18")
        e("v_add_u32 v20, s28, v20")
        e("v_lshlrev_b32 v21, 1, v19")
        e("v_xor_b32 v20, v20, v21")
        e("v_lshlrev_b32 v20, 4, v20")
        e("v_and_b32 v21, 1, v18")
        e("v_lshl_add_u32 v20, v21, 3, v20")
        e(f"v_lshl_add_u32 v21, v{V_G}, 3, v17")
        e("v_lshl_add_u32 v20, v21, 6, v20")
        e(f"s_lshr_b32 s28, s{S_W}, 1")
        e("s_lshl_b32 s28, s28, 14")
        e(f"s_add_u32 s28, s28, {R3}")
        e("v_add_u32 v20, s28, v20")
        e(f"v_and_b32 v21, 1, v{V_LANE}")
        e("v_lshlrev_b32 v21, 10, v21")
        e(f"v_lshl_add_u32 v21, v{V_G}, 4, v21")
        e(f"s_lshl_b32 s28, s{S_HF}, 9")
        e("v_add_u32 v21, s28, v21")
        FA, FB_, GA = 96, 128, 76
        e("s_lshl_b32 s28, s2, 2")
        e(f"s_add_u32 s28, s28, s{S_W}")
        e("s_lshl_b32 s28, s28, 8")
        e(f"s_add_u32 s34, s28, {WS_F1}")
        e(f"s_add_u32 s35, s28, {WS_F1F}")
        e("s_xor_b32 s28, s2, 8")
        e("s_lshl_b32 s28, s28, 2")
        e(f"s_add_u32 s28, s28, s{S_W}")
        e("s_lshl_b32 s28, s28, 8")
        e(f"s_add_u32 s36, s28, {WS_F1}")
        e(f"s_add_u32 s37, s28, {WS_F1F}")
        e(f"v_lshlrev_b32 v26, 4, v{V_L15}")
        e(f"v_mov_b32 v41, s{S_TAG}")
        e(f"v_mov_b32 v43, s{S_TAG}")
        e(f"buffer_load_dwordx4 {vr(232,4)}, v26, {sr(SRD_WS,4)}, s37 offen sc1")
        e("s_waitcnt vmcnt(%d)" % (5 if FFN_EARLY else 5 + (0 if G.prew else 2) + (1 if G.touch else 0)))
        e("s_barrier")
        for ks in range(8):
            e(f"ds_read_b128 {vr(FA+4*ks,4)}, v21 offset:{L_XN + 64*ks}")
            for u in range(2):
                e(f"ds_read_b64_tr_b16 {vr(FB_+4*ks+2*u,2)}, v20 offset:{2048*ks + 256*u}")
        e("s_waitcnt lgkmcnt(0)")
        for ks in range(8):
            c = "0" if ks == 0 else vr(GA, 4)
            e(f"v_mfma_f32_16x16x32_bf16 {vr(GA,4)}, {vr(FA+4*ks,4)}, {vr(FB_+4*ks,4)}, {c}")
        e("v_lshl_add_u32 v20, v19, 2, v17")
        e("v_lshlrev_b32 v20, 1, v20")
        e(f"s_lshl_b32 s28, s{S_W}, 3")
        e("v_xor_b32 v20, s28, v20")
        e(f"v_lshl_add_u32 v21, v{V_G}, 3, v17")
        e("v_lshlrev_b32 v21, 9, v21")
        e("v_lshrrev_b32 v22, 1, v18")
        e("v_lshl_add_u32 v21, v22, 4, v21")
        e("v_and_b32 v22, 1, v18")
        e("v_lshl_add_u32 v21, v22, 3, v21")
        e(f"v_add_u32 v21, {RW2}, v21")
        for t in range(4):
            e(f"v_xor_b32 v22, {2*t}, v20")
            e(f"v_lshl_add_u32 v{28+t}, v22, 4, v21")
        e(f"v_mov_b32 v40, v{GA}")
        e(f"v_mov_b32 v42, v{GA+1}")
        e("s_mov_b64 exec, 0xffff")
        e(f"buffer_store_dwordx4 {vr(40,4)}, v26, {sr(SRD_WS,4)}, s35 offen")
        e("s_mov_b64 exec, -1")
        G.stamp(17)
        def ldF(sreg):
            return lambda b: e(f"buffer_load_dwordx4 {vr(b,4)}, v26, {sr(SRD_WS,4)}, s{sreg} offen sc1")
        def f1_slow():
            e("s_mov_b64 exec, 0xffff")
            e(f"buffer_store_dwordx4 {vr(40,4)}, v26, {sr(SRD_WS,4)}, s34 offen sc1")
            e("s_mov_b64 exec, -1")
        dual_poll(ldF(37), ldF(36), f1_slow, 44, 4, [1, 3], RING4, 1, 34)
        G.stamp(18)
        e(f"v_add_f32 v{GA}, v{GA}, v44")
        e(f"v_add_f32 v{GA+1}, v{GA+1}, v46")
        e(f"v_and_b32 v23, 1, v{V_G}")
        e("v_lshlrev_b32 v23, 7, v23")
        e(f"v_lshl_add_u32 v23, v{V_L15}, 2, v23")
        e(f"v_cndmask_b32 v22, v{GA}, v{GA+1}, {sr(M_G1,2)}")
        e(f"s_lshr_b32 s28, s{S_W}, 1")
        e("s_lshl_b32 s28, s28, 8")
        e(f"s_and_b32 s29, s{S_W}, 1")
        e("s_lshl_b32 s29, s29, 6")
        e("s_add_u32 s28, s28, s29")
        e("v_add_u32 v23, s28, v23")
        e(f"ds_write_b32 v23, v22 offset:{L_GUW}")
        e("s_waitcnt lgkmcnt(0)")
        e("s_barrier")
        e(f"v_lshlrev_b32 v23, 2, v{V_LANE}")
        e(f"ds_read_b32 v24, v23 offset:{L_GUW}")
        e(f"ds_read_b32 v25, v23 offset:{L_GUW+256}")
        for t in range(4):
            for u in range(2):
                e(f"ds_read_b64_tr_b16 {vr(FB_+4*t+2*u,2)}, v{28+t} offset:{2048*u}")
        e(f"v_mul_u32_u24 v20, {FP_S*256}, v{V_G}")
        e(f"v_lshl_add_u32 v20, v{V_L15}, 4, v20")
        e(f"s_lshl_b32 s28, s{S_HF}, 2")
        e(f"s_add_u32 s28, s28, s{S_W}")
        e(f"s_mul_i32 s28, s28, {4*FP_S*256}")
        e(f"s_lshl_b32 s29, s{S_FS}, 8")
        e("s_add_u32 s28, s28, s29")
        e(f"s_add_u32 s28, s28, {WS_FP}")
        e("s_waitcnt lgkmcnt(8)")
        rbf(24); rbf(25)
        e("v_mul_f32 v26, 0xbfb8aa3b, v24")
        e("v_exp_f32 v26, v26")
        e(f"v_lshlrev_b32 v23, 1, v{V_LANE}")
        e("v_add_f32 v26, 1.0, v26")
        e("v_rcp_f32 v26, v26")
        e(f"v_and_b32 v21, 1, v{V_LANE}")
        e("v_mul_f32 v26, v24, v26")
        rbf(26)
        e("v_mul_f32 v26, v26, v25")
        e("v_cvt_pk_bf16_f32 v26, v26, v26")
        e(f"ds_write_b16 v23, v26 offset:{L_HW}")
        e("v_lshlrev_b32 v21, 6, v21")
        e(f"v_lshl_add_u32 v21, v{V_G}, 4, v21")
        e("s_waitcnt lgkmcnt(0)")
        DA = 100
        e(f"ds_read_b128 {vr(FA,4)}, v21 offset:{L_HW}")
        e(f"v_mov_b32 v37, s{S_TAG}")
        e(f"v_mov_b32 v39, s{S_TAG}")
        e("s_waitcnt lgkmcnt(0)")
        for t in range(4):
            e(f"v_mfma_f32_16x16x32_bf16 {vr(DA+4*t,4)}, {vr(FA,4)}, {vr(FB_+4*t,4)}, 0")
        nop(9)
        for rr in range(2):
            e(f"v_cndmask_b32 v32, v{DA+rr}, v{DA+4+rr}, {sr(M_G1,2)}")
            e(f"v_cndmask_b32 v33, v{DA+8+rr}, v{DA+12+rr}, {sr(M_G1,2)}")
            e(f"v_cndmask_b32 v{36+2*rr}, v32, v33, {sr(M_HI,2)}")
        e(f"buffer_store_dwordx4 {vr(36,4)}, v20, {sr(SRD_WS,4)}, s28 offen sc1")
        G.stamp(20)
        lab(lnf2)
    def blk_csetup():
        e(f"s_lshl_b32 s28, s{S_I}, 7")
        e(f"s_lshr_b32 s29, s{S_W}, 1")
        e("s_lshl_b32 s29, s29, 6")
        e("s_add_u32 s28, s28, s29")
        e("s_lshl_b32 s38, s28, 9")
        e(f"s_lshl_b32 s29, s{S_H}, 4")
        e("s_add_u32 s38, s38, s29")
        e(f"s_add_u32 s38, s38, {WS_SU}")
        e(f"v_lshlrev_b32 v52, 9, v{V_LANE}")
        e(f"s_and_b32 s34, s63, {RM}")
        e("s_lshl_b32 s34, s34, 13")
        e(f"s_lshl_b32 s28, s{S_I}, 11")
        e("s_add_u32 s34, s34, s28")
        e(f"s_add_u32 s34, s34, {WS_CF}")
        if G.touch:
            e(f"v_lshlrev_b32 v45, 16, v{V_LANE}")
            e(f"s_mov_b32 s28, {WS_OP}")
            e(f"buffer_load_dword v46, v45, {sr(SRD_WS,4)}, s28 offen sc1")
        for reg in (() if G.prew else (WS_CPF,)):
            e(f"s_add_u32 s28, s32, {reg}")
            e(f"buffer_load_dwordx4 {vr(232,4)}, v{V_L16B}, {sr(SRD_WS,4)}, s28 offen sc1")
            e(f"buffer_load_dwordx4 {vr(236,4)}, v{V_L16B}, {sr(SRD_WS,4)}, s28 offen offset:1024 sc1")
        lnw = G.newlab("nowarm")
        e("s_cmp_ge_u32 s62, 32")
        e(f"s_cbranch_scc1 {lnw}")
        e("s_mov_b32 s28, s62")
        e("s_lshl_b32 s28, s28, 13")
        e(f"s_add_u32 s28, s28, {WS_EP}")
        e(f"v_lshlrev_b32 v20, 4, v0")
        e("v_add_u32 v24, 4096, v20")
        e(f"buffer_load_dwordx4 {vr(244,4)}, v20, {sr(SRD_WS,4)}, s28 offen sc1")
        e(f"buffer_load_dwordx4 {vr(248,4)}, v24, {sr(SRD_WS,4)}, s28 offen sc1")
        lab(lnw)
        e(f"v_lshl_add_u32 v{VD0}, v{V_G}, 15, v{V_SW}")
        e(f"v_xor_b32 v{VD1}, 128, v{VD0}")
        e(f"s_lshl_b32 s29, s{S_W}, 7")
        e(f"s_add_u32 s29, s29, s{S_I}")
        e("s_lshl_b32 s29, s29, 13")
        e(f"s_lshl_b32 s28, s{S_H}, 8")
        e("s_add_u32 s29, s29, s28")
        e(f"s_add_u32 s29, s29, {WS_OP}")
        e(f"v_lshlrev_b32 v53, 4, v{V_L15}")
        e(f"v_lshl_add_u32 v53, v{V_G}, 13, v53")
        e(f"s_lshl_b32 s28, s{S_I}, 2")
        e(f"s_add_u32 s28, s28, s{S_W}")
        e("s_lshl_b32 s28, s28, 14")
        e(f"s_lshl_b32 s39, s{S_H}, 8")
        e("s_add_u32 s28, s28, s39")
        e(f"s_add_u32 s39, s28, {WS_EP}")
        e(f"v_add_u32 v21, {R1}, v{V_TL0}")
        e(f"v_add_u32 v22, {R1}, v{V_TL1}")
    def blk_waitpre():
        lw1 = G.newlab("w1"); lw2 = G.newlab("w2")
        e(f"s_cmp_ge_u32 s{S_FS}, 43")
        e(f"s_cbranch_scc1 {lw1}")
        e(f"s_waitcnt vmcnt({0 if FFN_EARLY else (12 if G.prew else 14) + (1 if G.touch else 0)})")
        e(f"s_branch {lw2}")
        lab(lw1)
        e("s_waitcnt vmcnt(0)")
        lab(lw2)
        e("s_barrier")
        G.stamp(8)
        gemv_loadB(R0, BUV, 25, 26)
        gemv_loadB(R2, BO, 25, 26)
        G.stamp(9)
    R3, RW2 = 106496, 139264
    S_FS, S_HF = 50, 51
    BUV, BO = 160, 192
    if FFN_EARLY:
        blk_ffn_loads()
        blk_ffn_comp()
        if G.gate == 'B':
            lg = G.newlab("gate2")
            e(f"s_cmp_lg_u32 s{S_W}, 0")
            e(f"s_cbranch_scc1 {lg}")
            gate_poll()
            lab(lg)
            e("s_barrier")
        elif G.gate == 'F':
            lg = G.newlab("gate2"); lg2 = G.newlab("gate3")
            e(f"s_cmp_lt_u32 s{S_FS}, 43")
            e(f"s_cbranch_scc1 {lg2}")
            e(f"s_cmp_lg_u32 s{S_W}, 0")
            e(f"s_cbranch_scc1 {lg}")
            gate_poll()
            lab(lg)
            e("s_barrier")
            lab(lg2)
        blk_late()
        blk_csetup()
        blk_waitpre()
    else:
        blk_late()
        blk_ffn_loads()
        blk_csetup()
        blk_waitpre()
    if not FFN_EARLY:
        SAVE_S = [34, 35, 36, 37, 29]
        for k_, r_ in enumerate(SAVE_S): e(f"s_mov_b32 s{56+k_}, s{r_}")
        e("v_mov_b32 v69, v20"); e("v_mov_b32 v70, v21"); e("v_mov_b32 v71, v22"); e("v_mov_b32 v72, v24")
        blk_ffn_comp()
        for k_, r_ in enumerate(SAVE_S): e(f"s_mov_b32 s{r_}, s{56+k_}")
        e("v_mov_b32 v20, v69"); e("v_mov_b32 v21, v70"); e("v_mov_b32 v22, v71"); e("v_mov_b32 v24, v72")

    lodd = G.newlab("codd"); lj = G.newlab("cjoin")
    e(f"s_cmp_lg_u32 s{S_W}, 0")
    e(f"s_cbranch_scc1 {lodd}")
    poll(ldFB, 40, 4, [0, 1, 2, 3], RING4, 2, G.sl_flag, 35)
    lab(lodd)
    e("s_barrier")
    G.stamp(10)
    e(f"buffer_load_dwordx4 {vr(40,4)}, v52, {sr(SRD_WS,4)}, s38 offen sc1")
    dma_tile128(SRD_WS, VD0, VD1, lin(4*32768), R1, " sc1")
    e(f"s_and_b32 s28, s{S_W}, 1")
    e("s_cmp_lg_u32 s28, 0")
    e(f"s_cbranch_scc1 {lj}")
    e("s_waitcnt vmcnt(8)")
    e("v_mov_b32 v44, v40")
    wave_red("v_max_f32", 44, 45)
    e("v_sub_f32 v40, v40, v44")
    e("v_exp_f32 v40, v40")
    nop(1)
    e("v_mul_f32 v44, v40, v42")
    wave_red("v_add_f32", 44, 45)
    e("v_rcp_f32 v44, v44")
    e(f"s_lshr_b32 s29, s{S_W}, 1")
    e("s_mul_i32 s28, s29, 384")
    e(f"v_lshlrev_b32 v45, 1, v{V_LANE}")
    e("v_mul_f32 v40, v40, v44")
    e("v_add_u32 v46, s28, v45")
    e("v_cvt_pk_bf16_f32 v40, v40, v40")
    e("s_lshl_b32 s28, s29, 7")
    e("s_add_u32 s28, s28, 128")
    e(f"ds_write_b16 v46, v40 offset:{L_WGT}")
    e("v_add_u32 v46, s28, v45")
    e("v_mov_b32 v47, 0")
    e(f"ds_write_b16 v46, v47 offset:{L_WGT}")
    lab(lj)
    e(f"s_add_u32 s34, s33, {WS_CP}")
    e(f"s_add_u32 s35, s33, {WS_CPF}")
    e("s_waitcnt vmcnt(0) lgkmcnt(0)")
    e("s_barrier")
    G.stamp(11)
    gemv_loadA(V_AVR, VA, L_WGT)
    for ks in range(4):
        for t in range(2):
            for u in range(2):
                r = VB + (t*4 + ks)*4 + 2*u
                e(f"ds_read_b64_tr_b16 {vr(r,2)}, v{21+t} offset:{8192*ks + 1024*u}")
    e("s_waitcnt lgkmcnt(0)")
    gemv_mma(VA, VB, VC)
    sel_tb(VC, 40, 41)
    e(f"v_cndmask_b32 v40, v40, v41, {sr(M_HI,2)}")
    write_av(40, L_AVO)
    e("s_waitcnt lgkmcnt(0)")
    e("s_barrier")
    gemv_loadA(V_AVR, VA, L_AVO)
    e("s_waitcnt lgkmcnt(0)")
    gemv_mma(VA, BUV, VC)
    publish_units(VC, V_PUB, 35, PUBQ, fast=True)
    G.stamp(12)
    e("s_mov_b32 s37, s34")
    e(f"s_add_u32 s34, s32, {WS_CP}")
    e(f"s_add_u32 s35, s32, {WS_CPF}")
    consume4(34, 40, L_AVC, 36, 35, 37, V_PUB, PUBQ)
    e("s_waitcnt lgkmcnt(0)")
    e("s_barrier")
    G.stamp(13)
    gemv_loadA(V_AVR, VA, L_AVC)
    e("s_waitcnt lgkmcnt(0)")
    gemv_mma(VA, BO, VC)
    publish_units(VC, 53, 39, PUBQ)
    G.stamp(14)
    e("s_cmp_ge_u32 s62, 32")
    e("s_cbranch_scc1 L_wdone")
    e("s_mov_b32 s35, s62")
    e(f"v_lshlrev_b32 v20, 4, v0")
    e("s_lshl_b32 s28, s35, 13")
    e(f"s_add_u32 s36, s28, {WS_EP}")
    e(f"s_mul_i32 s28, s35, {FP_S*256}")
    e(f"s_add_u32 s37, s28, {WS_FP}")
    G.srd(SRD_1, P_X, 2048)
    e(f"v_lshlrev_b32 v21, 10, v{V_G}")
    e(f"v_lshl_add_u32 v21, v{V_L15}, 1, v21")
    e("s_lshl_b32 s28, s35, 5")
    e(f"buffer_load_ushort v22, v21, {sr(SRD_1,4)}, s28 offen")
    e("v_add_u32 v24, 4096, v20")
    e("v_add_u32 v25, 8192, v20")
    e("v_mov_b32 v23, 176")
    e("v_cmp_ge_u32 s[42:43], v0, v23")
    e(f"v_mov_b32 v26, s{S_TAG}")
    e("v_mov_b32 v27, 0")
    def ldFP(b):
        e(f"buffer_load_dwordx4 {vr(b,4)}, v20, {sr(SRD_WS,4)}, s37 offen sc1")
        e(f"buffer_load_dwordx4 {vr(b+4,4)}, v24, {sr(SRD_WS,4)}, s37 offen sc1")
        e(f"buffer_load_dwordx4 {vr(b+8,4)}, v25, {sr(SRD_WS,4)}, s37 offen sc1")
    def ldE(b):
        e(f"buffer_load_dwordx4 {vr(b,4)}, v20, {sr(SRD_WS,4)}, s36 offen sc1")
        e(f"buffer_load_dwordx4 {vr(b+4,4)}, v24, {sr(SRD_WS,4)}, s36 offen sc1")
    ldFP(108)
    poll(ldE, 100, 8, [1, 3, 5, 7], RING8, 2, G.sl_unit, 37)
    G.stamp(19)
    lp, done, skip = G.newlab("pollfp"), G.newlab("pfpdone"), G.newlab("pfpskip")
    e(f"s_mov_b32 s48, {G.spin}")
    e(f"s_branch {skip}")
    lab(lp)
    ldFP(108)
    e("s_waitcnt vmcnt(0)")
    lab(skip)
    e("v_cndmask_b32 v117, v117, v26, s[42:43]")
    e("v_cndmask_b32 v119, v119, v26, s[42:43]")
    check_tags([109, 111, 113, 115, 117, 119])
    e(f"s_cbranch_vccz {done}")
    e("s_sub_u32 s48, s48, 1")
    e(f"s_cbranch_scc0 {lp}")
    lab(done)
    G.stampval(38, 48)
    e("v_cndmask_b32 v116, v116, v27, s[42:43]")
    e("v_cndmask_b32 v118, v118, v27, s[42:43]")
    G.stamp(15)
    for rr in (0, 2):
        e(f"v_add_f32 v{100+rr}, v{100+rr}, v{104+rr}")
        e(f"v_add_f32 v{108+rr}, v{108+rr}, v{112+rr}")
    for rr in (0, 2):
        e(f"v_add_f32 v{100+rr}, v{100+rr}, v{116+rr}")
    for rr in (0, 2):
        e(f"v_add_f32 v{100+rr}, v{100+rr}, v{108+rr}")
    nop(2)
    e("v_permlane32_swap_b32 v100, v102")
    nop(1)
    e("v_add_f32 v100, v100, v102")
    e("v_mov_b32 v101, v100")
    nop(2)
    e("v_permlane16_swap_b32 v100, v101")
    e(f"v_lshrrev_b32 v27, 5, v{V_LANE}")
    e("v_add_f32 v100, v100, v101")
    e("v_lshlrev_b32 v27, 6, v27")
    e(f"v_lshl_add_u32 v27, v{V_L15}, 2, v27")
    e(f"s_lshl_b32 s28, s{S_W}, 7")
    e("v_add_u32 v28, s28, v27")
    e(f"ds_write_b32 v28, v100 offset:{L_FIN}")
    G.srd(SRD_2, P_OUT, 2048)
    e("s_waitcnt lgkmcnt(0)")
    e("s_barrier")
    e(f"s_cmp_lg_u32 s{S_W}, 0")
    e("s_cbranch_scc1 L_wdone")
    e(f"v_lshlrev_b32 v27, 2, v{V_LANE}")
    for w in range(4):
        e(f"ds_read_b32 v{104+w}, v27 offset:{L_FIN + 128*w}")
    e("s_lshl_b32 s28, s35, 5")
    e("v_lshlrev_b32 v22, 16, v22")
    e("s_waitcnt lgkmcnt(0)")
    e("v_add_f32 v104, v104, v105")
    e("v_add_f32 v106, v106, v107")
    e("v_add_f32 v104, v104, v22")
    e("v_add_f32 v104, v104, v106")
    e("v_cvt_pk_bf16_f32 v104, v104, v104")
    lo32()
    e(f"buffer_store_short v104, v21, {sr(SRD_2,4)}, s28 offen")
    e("s_cmp_lg_u32 s35, 0")
    e("s_cbranch_scc1 L_wdone0")
    e("s_mov_b64 exec, 1")
    e(f"v_mov_b32 v30, s{S_TAG}")
    e("v_mov_b32 v31, 0")
    e(f"buffer_store_dword v30, v31, {sr(SRD_WS,4)}, 0 offen offset:{WS_EPOCH}")
    lab("L_wdone0")
    e("s_mov_b64 exec, -1")
    lab("L_wdone")
    G.stamp(16)
    store_stamps()
    e("s_endpgm")

    lab("L_att")
    S_A, S_FS, S_HF = 38, 37, 39
    e(f"s_sub_u32 s{S_A}, s2, 128")
    e(f"s_lshr_b32 s{S_H}, s{S_A}, 6")
    VCK = 8
    for idx in range(8):
        x = 32*(idx & 3) + 128*(idx >> 2)
        if x == 0: e(f"v_mov_b32 v{VCK+idx}, v{V_L16B}")
        else: e(f"v_xor_b32 v{VCK+idx}, {x}, v{V_L16B}")
    e(f"s_lshl_b32 s29, s{S_A}, 7")
    e(f"s_lshl_b32 s30, s{S_W}, 5")
    e("s_add_u32 s29, s29, s30")
    e("s_lshl_b32 s29, s29, 10")
    e(f"s_lshl_b32 s31, s{S_W}, 15")
    e("s_waitcnt lgkmcnt(0)")
    if G.stamps: e("v_writelane_b32 v255, s40, 0")
    G.srd(SRD_1, P_CKV, 16777216)
    if G.pf_uk:
        G.srd(SRD_2, P_WUK, 4194304)
        e(f"s_and_b32 s28, s{S_A}, 7")
        e("s_lshl_b32 s28, s28, 2")
        e(f"s_bfe_u32 s30, s{S_A}, 0x20003")
        e("s_add_u32 s28, s28, s30")
        e("s_lshl_b32 s28, s28, 8")
        e(f"s_lshr_b32 s30, s{S_A}, 5")
        e("s_lshl_b32 s30, s30, 20")
        e("s_add_u32 s28, s28, s30")
        e(f"s_lshl_b32 s30, s{S_W}, 18")
        e("s_add_u32 s35, s28, s30")
        e(f"v_lshlrev_b32 v40, 13, v{V_G}")
        e(f"v_lshl_add_u32 v40, v{V_L15}, 4, v40")
        e(f"s_lshl_b32 s36, s{S_W}, 13")
        for n in range(8):
            e(f"s_add_u32 s30, s35, {n*4*8192}")
            e(f"s_add_u32 m0, s36, {L_QAL + n*1024}")
            nop(1)
            e(f"buffer_load_dwordx4 v40, {sr(SRD_2,4)}, s30 offen lds")
    e(f"s_load_dword s{S_TAG}, {sr(P_WS,2)}, {WS_EPOCH}")
    G.srd(SRD_WS, P_WS, 0x10000000)
    if G.skew:
        G.srd(SRD_4, P_DBG, 256)
        e(f"v_and_b32 v46, 7, v{V_LANE}")
        e("v_lshlrev_b32 v46, 2, v46")
        e(f"buffer_load_dword v47, v46, {sr(SRD_4,4)}, 0 offen sc1")
    if G.adapt:
        G.srd(SRD_4, P_DBG, 256)
        e("v_mov_b32 v46, 0")
        e("s_mov_b32 s39, 0")
    setup = []
    su = setup.append
    AA, AB, TB, TB2 = 16, 20, 24, 48
    su(f"v_and_b32 v32, 3, v{V_LANE}")
    su(f"v_bfe_u32 v33, v{V_LANE}, 3, 1")
    su("v_lshl_add_u32 v32, v33, 2, v32")
    su("v_lshlrev_b32 v32, 1, v32")
    su(f"v_xor_b32 v33, v32, v{V_G}")
    su(f"v_lshlrev_b32 v34, 10, v{V_L15}")
    su(f"s_add_u32 s37, s31, {L_CKV}")
    for j in range(4):
        su(f"v_xor_b32 v35, {4*j}, v33")
        su(f"v_lshl_add_u32 v{AB+j}, v35, 4, v34")
        su(f"v_add_u32 v{AA+j}, s37, v{AB+j}")
        if L_QAL: su(f"v_add_u32 v{AB+j}, {L_QAL}, v{AB+j}")
    su(f"v_bfe_u32 v32, v{V_LANE}, 2, 2")
    su(f"v_and_b32 v33, 3, v{V_LANE}")
    su(f"v_and_b32 v34, 1, v{V_G}")
    su("v_lshl_add_u32 v35, v34, 2, v32")
    su("v_lshlrev_b32 v35, 1, v35")
    su(f"v_lshl_add_u32 v36, v{V_G}, 3, v32")
    su("v_lshlrev_b32 v36, 10, v36")
    su("v_lshrrev_b32 v37, 1, v33")
    su("v_lshl_add_u32 v36, v37, 4, v36")
    su("v_and_b32 v37, 1, v33")
    su("v_lshl_add_u32 v36, v37, 3, v36")
    su(f"s_lshl_b32 s28, s{S_W}, 8")
    su(f"s_add_u32 s28, s28, {L_CKV}")
    su("v_add_u32 v36, s28, v36")
    for t in range(8):
        su(f"v_xor_b32 v37, {2*t}, v35")
        su(f"v_lshl_add_u32 v{TB+t}, v37, 4, v36")
        su(f"v_add_u32 v{TB2+t}, 65536, v{TB+t}")
    su(f"v_and_b32 v57, 31, v{V_LANE}")
    su("v_lshlrev_b32 v57, 2, v57")
    su(f"s_lshl_b32 s28, s{S_W}, 7")
    su("v_add_u32 v56, s28, v57")
    su(f"v_lshlrev_b32 v58, 2, v{V_L15}")
    su(f"v_lshrrev_b32 v32, 1, v{V_G}")
    su(f"s_lshl_b32 s28, s{S_W}, 2")
    su("v_add_u32 v32, s28, v32")
    su(f"v_and_b32 v33, 1, v{V_G}")
    su("v_lshlrev_b32 v33, 3, v33")
    su(f"v_lshl_add_u32 v33, v{V_L15}, 8, v33")
    su(f"v_xor_b32 v34, v32, v{V_L15}")
    su("v_lshl_add_u32 v59, v34, 4, v33")
    su("v_xor_b32 v63, 32, v59")
    for ks in range(4):
        su(f"v_add_u32 v34, {4*ks}, v{V_G}")
        su(f"v_xor_b32 v34, v34, v{V_L15}")
        su("v_lshlrev_b32 v34, 4, v34")
        su(f"v_lshl_add_u32 v{120+ks}, v{V_L15}, 8, v34")
    su(f"v_lshlrev_b32 v126, 4, v{V_L15}")
    su(f"v_lshl_add_u32 v124, v{V_G}, 10, v126")
    su(f"v_lshlrev_b32 v125, 4, v{V_LANE}")
    su(f"v_and_b32 v126, 31, v{V_LANE}")
    su("v_lshlrev_b32 v126, 7, v126")
    su(f"s_and_b32 s28, s{S_W}, 1")
    su("s_lshl_b32 s28, s28, 7")
    su(f"v_xor_b32 v127, s28, v{V_L16B}")
    for j in range(32):
        idx = (j & 3) + 4*((j >> 3) & 1)
        if j == 0: e("s_mov_b32 s30, s29")
        else: e(f"s_add_u32 s30, s29, {j*1024}")
        e(f"s_add_u32 m0, s31, {L_CKV + j*1024}")
        nop(1)
        e(f"buffer_load_dwordx4 v{VCK+idx}, {sr(SRD_1,4)}, s30 offen{NTC} lds")
        if j == 1:
            for s_ in setup: e(s_)
        if G.adapt:
            if j < G.adapt_max:
                lsk = G.newlab("unthr")
                e("s_cmp_lg_u32 s39, 0")
                e(f"s_cbranch_scc1 {lsk}")
                e(f"buffer_load_dword v47, v46, {sr(SRD_4,4)}, 0 offen sc1")
                e("s_waitcnt vmcnt(0)")
                e("v_readfirstlane_b32 s28, v47")
                e(f"s_cmp_ge_u32 s28, {G.adapt_thr}")
                e("s_cselect_b32 s39, 1, 0")
                lab(lsk)
        elif G.skew and j < 3:
            if j == 0:
                e("s_waitcnt vmcnt(0)")
                e("v_cmp_ne_u32 vcc, 0, v47")
                e("s_and_b32 s28, vcc_lo, 0xff")
                e("s_bcnt1_i32_b32 s39, s28")
            else:
                lsk = G.newlab("unthr")
                e(f"s_cmp_ge_u32 s39, {G.skew_b if j == 1 else G.skew_a}")
                e(f"s_cbranch_scc1 {lsk}")
                e("s_waitcnt vmcnt(0)")
                lab(lsk)
        else:
            w_now = G.thr_w if j < G.thr_n else G.thr2_w
            if w_now and j >= w_now - 1 and j < 31:
                e(f"s_waitcnt vmcnt({w_now - 1})")
    G.stamp(1)
    e(f"s_and_b32 s34, s63, {RM}")
    e("s_lshl_b32 s34, s34, 11")
    e(f"s_add_u32 s34, s34, {WS_FB}")
    e("s_waitcnt lgkmcnt(0)")
    e(f"s_add_u32 s{S_TAG}, s{S_TAG}, 0x9e3779b9")
    e(f"s_lshl_b32 s29, s{S_H}, 15")
    e(f"s_lshl_b32 s30, s{S_W}, 13")
    e("s_add_u32 s29, s29, s30")
    e(f"s_add_u32 s29, s29, {WS_QA}")
    e(f"s_lshl_b32 s31, s{S_W}, 13")
    if G.touch:
        e(f"s_lshl_b32 s28, s{S_A}, 2")
        e(f"s_add_u32 s28, s28, s{S_W}")
        e("s_lshl_b32 s28, s28, 13")
        e(f"s_add_u32 s28, s28, {WS_OP}")
        e("v_mov_b32 v45, 0")
        e("s_mov_b64 exec, 1")
        e(f"buffer_load_dword v46, v45, {sr(SRD_WS,4)}, s28 offen sc1")
        e(f"s_mov_b32 s28, {WS_SU}")
        e(f"buffer_load_dword v47, v45, {sr(SRD_WS,4)}, s28 offen sc1")
        e("s_mov_b64 exec, -1")
    if G.bwave:
        ldFB(236)
        e("s_waitcnt vmcnt(0)")
        G.stamp(2)
        lbp = G.newlab("nobpoll")
        check_tags([236, 237, 238, 239])
        e(f"s_cbranch_vccz {lbp}")
        poll(ldFB, 40, 4, [0, 1, 2, 3], [240, 244, 248], 2, G.sl_flag, 32)
        lab(lbp)
        G.stamp(3)
        for j in range(8):
            if j & 3: e(f"v_xor_b32 v44, {32*(j&3)}, v127")
            else: e("v_mov_b32 v44, v127")
            if j == 0: e("s_mov_b32 s30, s29")
            else: e(f"s_add_u32 s30, s29, {j*1024}")
            e(f"s_add_u32 m0, s31, {L_QAL + j*1024}")
            nop(1)
            e(f"buffer_load_dwordx4 v44, {sr(SRD_WS,4)}, s30 offen sc1 lds")
        for ks in range(16):
            for kt in range(2):
                e(f"ds_read_b128 {ar((kt*16+ks)*4,4)}, v{AA+(ks&3)} offset:{16384*kt + 256*(ks>>2)}")
        e("s_barrier")
    else:
        lbp0 = G.newlab("nobp0")
        e(f"s_cmp_lg_u32 s{S_W}, 0")
        e(f"s_cbranch_scc1 {lbp0}")
        ldFB(236)
        lab(lbp0)
        e("s_waitcnt vmcnt(0)")
        G.stamp(2)
        lbp = G.newlab("nobpoll")
        e(f"s_cmp_lg_u32 s{S_W}, 0")
        e(f"s_cbranch_scc1 {lbp}")
        check_tags([236, 237, 238, 239])
        e(f"s_cbranch_vccz {lbp}")
        poll(ldFB, 40, 4, [0, 1, 2, 3], [240, 244, 248], 2, G.sl_flag, 32)
        lab(lbp)
        e("s_barrier")
        G.stamp(3)
        for j in range(8):
            if j & 3: e(f"v_xor_b32 v44, {32*(j&3)}, v127")
            else: e("v_mov_b32 v44, v127")
            if j == 0: e("s_mov_b32 s30, s29")
            else: e(f"s_add_u32 s30, s29, {j*1024}")
            e(f"s_add_u32 m0, s31, {L_QAL + j*1024}")
            nop(1)
            e(f"buffer_load_dwordx4 v44, {sr(SRD_WS,4)}, s30 offen sc1 lds")
        for ks in range(16):
            for kt in range(2):
                e(f"ds_read_b128 {ar((kt*16+ks)*4,4)}, v{AA+(ks&3)} offset:{16384*kt + 256*(ks>>2)}")
    for n in range(32):
        ks_, t = n >> 3, n & 7
        base = (TB2 if ks_ >= 2 else TB) + t
        for u in range(2):
            e(f"ds_read_b64_tr_b16 {ar(128+n*4+2*u,2)}, v{base} offset:{(ks_&1)*32768 + 4096*u}")
    e(f"s_lshl_b32 s28, s{S_A}, 2")
    e(f"s_add_u32 s28, s28, s{S_W}")
    e("s_lshl_b32 s28, s28, 13")
    e(f"s_add_u32 s34, s28, {WS_OP}")
    e("s_add_u32 s35, s34, 4096")
    e(f"s_lshl_b32 s28, s{S_W}, 7")
    e(f"s_add_u32 s28, s28, s{S_A}")
    e("s_lshl_b32 s28, s28, 9")
    e(f"s_add_u32 s36, s28, {WS_SU}")
    e(f"s_lshl_b32 s28, s{S_W}, 7")
    e(f"s_add_u32 s28, s28, s{S_A}")
    e("s_lshl_b32 s28, s28, 4")
    e(f"s_add_u32 s37, s28, {WS_CF}")
    e(f"v_lshlrev_b32 v126, 13, v{V_LANE}")
    e(f"v_mov_b32 v252, s{S_TAG}")
    e(f"v_mov_b32 v253, s{S_TAG}")
    e("s_waitcnt vmcnt(0) lgkmcnt(0)")
    e("s_barrier")
    G.stamp(4)
    QB, SC = 64, 192
    def rdB(ks):
        st = ks % 3
        for ht in range(2):
            e(f"ds_read_b128 {vr(QB+(st*2+ht)*4,4)}, v{AB+(ks&3)} offset:{16384*ht + 256*(ks>>2)}")
    def pslot(n): return 32 + n
    rdB(0); rdB(1)
    for ks in range(16):
        if ks + 2 < 16:
            rdB(ks + 2); e("s_waitcnt lgkmcnt(4)")
        elif ks + 1 < 16: e("s_waitcnt lgkmcnt(2)")
        else: e("s_waitcnt lgkmcnt(0)")
        st = ks % 3
        for kt in range(2):
            for ht in range(2):
                d = SC + (kt*2+ht)*4
                c = "0" if ks == 0 else vr(d, 4)
                e(f"v_mfma_f32_16x16x32_bf16 {vr(d,4)}, {ar((kt*16+ks)*4,4)}, {vr(QB+(st*2+ht)*4,4)}, {c}")
    nop(9)
    G.stamp(5)
    MXR = 32
    for step in range(4):
        for ht in range(2):
            a = SC + ht*4; b = SC + (2+ht)*4
            if step == 0: e(f"v_max3_f32 v{MXR+ht}, v{a}, v{a+1}, v{a+2}")
            elif step == 1: e(f"v_max3_f32 v{MXR+ht}, v{MXR+ht}, v{a+3}, v{b}")
            elif step == 2: e(f"v_max3_f32 v{MXR+ht}, v{MXR+ht}, v{b+1}, v{b+2}")
            else: e(f"v_max_f32 v{MXR+ht}, v{MXR+ht}, v{b+3}")
    xg_reduce2("v_max_f32", MXR, MXR+1, MXR+2, MXR+3)
    e(f"v_cndmask_b32 v36, v{MXR}, v{MXR+1}, {sr(M_G1,2)}")
    e("s_barrier")
    e(f"ds_write_b32 v56, v36 offset:{L_MX}")
    e("s_waitcnt lgkmcnt(0)")
    e("s_barrier")
    for ht in range(2):
        for w in range(4):
            e(f"ds_read_b32 v{40+ht*4+w}, v58 offset:{L_MX + 128*w + 64*ht}")
    e("s_waitcnt lgkmcnt(0)")
    sm = []
    a_ = sm.append
    for ht in range(2):
        a_(f"v_max3_f32 v{MXR+ht}, v{40+ht*4}, v{41+ht*4}, v{42+ht*4}")
    for ht in range(2):
        a_(f"v_max_f32 v{MXR+ht}, v{MXR+ht}, v{43+ht*4}")
    LS = 34
    for kt in range(2):
        for ht in range(2):
            d = SC + (kt*2+ht)*4
            for r in range(4): a_(f"v_sub_f32 v{d+r}, v{d+r}, v{MXR+ht}")
    for kt in range(2):
        for ht in range(2):
            d = SC + (kt*2+ht)*4
            for r in range(4): a_(f"v_exp_f32 v{d+r}, v{d+r}")
    for kt in range(2):
        for ht in range(2):
            d = SC + (kt*2+ht)*4
            q = 88 + (kt*2+ht)*2
            a_(f"v_cvt_pk_bf16_f32 v{q}, v{d}, v{d+1}")
            a_(f"v_cvt_pk_bf16_f32 v{q+1}, v{d+2}, v{d+3}")
            a_(f"ds_write_b64 v{63 if kt else 59}, {vr(q,2)} offset:{L_P + 4096*ht}")
    for ht in range(2):
        a = SC + ht*4
        a_(f"v_add_f32 v{LS+ht}, v{a}, v{a+1}")
    for x in (2, 3, 8, 9, 10, 11):
        for ht in range(2):
            a_(f"v_add_f32 v{LS+ht}, v{LS+ht}, v{SC+ht*4+x}")
    xg_reduce2("v_add_f32", LS, LS+1, 46, 47, emit=a_)
    a_(f"v_cndmask_b32 v36, v{LS}, v{LS+1}, {sr(M_G1,2)}")
    a_(f"ds_write_b32 v56, v36 offset:{L_LP}")
    for ins in sm: e(ins)
    e("s_waitcnt lgkmcnt(0)")
    e("s_barrier")
    G.stamp(6)
    PA, OC = 208, 128
    for ht in range(2):
        for ks in range(4):
            e(f"ds_read_b128 {vr(PA+(ht*4+ks)*4,4)}, v{120+ks} offset:{L_P + 4096*ht}")
    for w in range(4):
        e(f"ds_read_b32 v{240+w}, v57 offset:{L_LP + 128*w}")
    def mm(ks, t, ht):
        d = OC + (ht*8+t)*4
        c = "0" if ks == 0 else vr(d, 4)
        e(f"v_mfma_f32_16x16x32_bf16 {vr(d,4)}, {vr(PA+(ht*4+ks)*4,4)}, {ar(pslot(ks*8+t)*4,4)}, {c}")
    ST0 = 88
    for ks in range(4):
        e(f"s_waitcnt lgkmcnt({11 - ks})")
        for t in range(8): mm(ks, t, 0)
    e("s_waitcnt lgkmcnt(0)")
    cv = []
    for tp in range(4):
        for r in range(4):
            cv.append(f"v_cvt_pk_bf16_f32 v{ST0+4*r+tp}, v{OC+(2*tp)*4+r}, v{OC+(2*tp+1)*4+r}")
    seq = [(ks, t) for ks in range(4) for t in range(8)]
    for idx, (ks, t) in enumerate(seq):
        mm(ks, t, 1)
        if 8 <= idx < 24: e(cv[idx - 8])
        if idx == 24:
            for r in range(4):
                e(f"buffer_store_dwordx4 {vr(ST0+4*r,4)}, v124, {sr(SRD_WS,4)}, s34 offen offset:{r*256} sc1")
    G.stamp(7)
    e("v_add_f32 v240, v240, v241")
    e("v_add_f32 v242, v242, v243")
    e(f"v_cndmask_b32 v44, v{MXR}, v{MXR+1}, {sr(M_G1,2)}")
    e("v_mov_b32 v45, 0")
    e("v_add_f32 v46, v240, v242")
    e("v_mov_b32 v47, 0")
    nop(4)
    for r in range(4):
        for tp in range(4):
            e(f"v_cvt_pk_bf16_f32 v{ST0+16+4*r+tp}, v{OC+(8+2*tp)*4+r}, v{OC+(8+2*tp+1)*4+r}")
        e(f"buffer_store_dwordx4 {vr(ST0+16+4*r,4)}, v124, {sr(SRD_WS,4)}, s35 offen offset:{r*256} sc1")
    lo32()
    e(f"buffer_store_dwordx4 {vr(44,4)}, v125, {sr(SRD_WS,4)}, s36 offen sc1")
    e(f"s_mov_b64 exec, {hex(REX)}")
    e("s_waitcnt vmcnt(0)")
    G.stamp(8)
    e(f"buffer_store_dwordx2 {vr(252,2)}, v126, {sr(SRD_WS,4)}, s37 offen sc1")
    e("s_mov_b64 exec, -1")
    G.stamp(9)
    lab("L_adone")
    store_stamps()
    lab("L_end")
    e("s_endpgm")

    tail = []
    if prepost:
        for nm, off, spin in (("pre_kernel", 0x900000, 400), ("post_kernel", 0x900100, 0)):
            tail += [f".globl {nm}", ".p2align 8", f".type {nm},@function", f"{nm}:",
                     "  s_memrealtime s[10:11]",
                     "  s_cmp_ge_u32 s2, 1", f"  s_cbranch_scc1 L_{nm}_end",
                     "  s_load_dwordx2 s[4:5], s[0:1], 96"]
            if spin:
                tail += [f"  s_mov_b32 s6, {spin}", f"L_{nm}_sp:", "  s_sleep 8", "  s_sub_u32 s6, s6, 1", "  s_cmp_lg_u32 s6, 0", f"  s_cbranch_scc1 L_{nm}_sp",
                         "  s_memrealtime s[10:11]"]
            tail += ["  s_waitcnt lgkmcnt(0)", "  s_mov_b32 s12, s4", "  s_and_b32 s13, s5, 0xffff", "  s_mov_b32 s14, 0x10000000", "  s_mov_b32 s15, 0x20000",
                     "  v_mov_b32 v1, s10", f"  v_mov_b32 v2, {off}", "  s_mov_b64 exec, 1",
                     "  buffer_store_dword v1, v2, s[12:15], 0 offen", "  s_waitcnt vmcnt(0)", f"L_{nm}_end:", "  s_endpgm"]
        tail.append('.section .rodata,"a"')
        for nm in ("pre_kernel", "post_kernel"):
            tail += [".p2align 6", f".amdhsa_kernel {nm}", "  .amdhsa_next_free_vgpr 32",
                 "  .amdhsa_next_free_sgpr 24", "  .amdhsa_accum_offset 32", "  .amdhsa_group_segment_fixed_size 0",
                 "  .amdhsa_kernarg_size 104", "  .amdhsa_user_sgpr_count 2", "  .amdhsa_user_sgpr_kernarg_segment_ptr 1",
                 "  .amdhsa_system_sgpr_workgroup_id_x 1", ".end_amdhsa_kernel"]
    if extra_empty:
        tail += [".globl empty_kernel", ".p2align 8", ".type empty_kernel,@function", "empty_kernel:", "  s_endpgm"]
        tail += ['.section .rodata,"a"', ".p2align 6", ".amdhsa_kernel empty_kernel", "  .amdhsa_next_free_vgpr 32",
                 "  .amdhsa_next_free_sgpr 16", "  .amdhsa_accum_offset 32", "  .amdhsa_group_segment_fixed_size 0",
                 "  .amdhsa_kernarg_size 104", "  .amdhsa_user_sgpr_count 2", "  .amdhsa_user_sgpr_kernarg_segment_ptr 1",
                 "  .amdhsa_system_sgpr_workgroup_id_x 1", ".end_amdhsa_kernel"]
    tail.append('.section .rodata,"a"')
    tail.append(".p2align 6")
    tail.append(f".amdhsa_kernel {NAME}_kernel")
    tail.append("  .amdhsa_next_free_vgpr 512")
    tail.append("  .amdhsa_next_free_sgpr 102")
    tail.append("  .amdhsa_accum_offset 256")
    tail.append("  .amdhsa_group_segment_fixed_size 0")
    tail.append("  .amdhsa_kernarg_size 104")
    tail.append("  .amdhsa_user_sgpr_count 2")
    tail.append("  .amdhsa_user_sgpr_kernarg_segment_ptr 1")
    tail.append("  .amdhsa_system_sgpr_workgroup_id_x 1")
    tail.append(".end_amdhsa_kernel")
    for ln in G.L:
        if "buffer_" in ln:
            m = re.search(r"offset:(\d+)", ln)
            assert not m or int(m.group(1)) <= 4095, ln
    return "\n".join(hdr + G.L + tail) + "\n"

if __name__ == "__main__":
    import argparse
    ap = argparse.ArgumentParser()
    ap.add_argument("-o", default=f"cdna_kernels/{NAME}.s")
    ap.add_argument("--stamps", action="store_true")
    ap.add_argument("--extra-empty", type=int, default=0)
    ap.add_argument("--prepost", action="store_true")
    ap.add_argument("--set", action="append", default=[], help="key=value generator option")
    a = ap.parse_args()
    kw = {}
    for s_ in a.set:
        k, v = s_.split("=")
        kw[k] = int(v) if re.fullmatch(r"-?\d+", v) else v
    s = build(stamps=a.stamps, extra_empty=a.extra_empty, prepost=a.prepost, **kw)
    open(a.o, "w").write(s)
    print("wrote", a.o, len(s), "bytes")
```

```python
import sys, math, struct, re
NAME = "parallel_sum__compressed_kv_cla__glu_gated_swiglu__decode"

WS_EPOCH = 0x0
WS_FB    = 0x1000
WS_F1    = 0x660000
WS_F1F   = 0x640000
WS_QP    = 0x20000
WS_QA    = 0x60000
WS_CP    = 0x70000
WS_EP    = 0xB0000
WS_FP    = 0xF0000
WS_SU    = 0x150000
WS_QPF   = 0x190000
WS_CPF   = 0x600000
WS_CF    = 0x1D0000
WS_OP    = 0x200000
WS_STAMP = 0x800000
FP_S = 48
NFFN = 86

R0, R1, R2 = 8192, 40960, 73728
L_XN  = 0
L_AVQ = 2048
L_AVO = L_AVQ + 512
L_AVC = L_AVO + 512
L_WGT = L_AVC + 512
L_QS  = L_WGT + 512
L_FIN = L_QS + 512
L_GUW = L_FIN + 512
L_HW = L_GUW + 512
L_CKV = 32768
L_QAL = 0
L_MX  = 32768
L_LP  = 32768 + 512
L_P   = 32768 + 4096
L_GU  = 16384
L_H   = 16384 + 512
LDS_BYTES = 163840

P_X, P_CKV, P_WQ, P_WUK, P_WUV, P_WO, P_BX, P_W1, P_W3, P_W2, P_OUT, P_DBG, P_WS = 64, 66, 68, 70, 72, 74, 76, 78, 80, 82, 84, 86, 88
S_W, S_H, S_I, S_TAG = 3, 4, 5, 6
SRD_WS, SRD_1, SRD_2, SRD_3, SRD_4 = 8, 12, 16, 20, 24
M_G1, M_HI = 44, 46
V_LANE, V_L15, V_G, V_L16B, V_SW, V_TL0, V_TL1 = 1, 2, 3, 4, 5, 6, 7

def vr(a, n): return f"v[{a}:{a+n-1}]"
def ar(a, n): return f"a[{a}:{a+n-1}]"
def sr(a, n): return f"s[{a}:{a+n-1}]"
def fbits(x): return hex(struct.unpack("<I", struct.pack("<f", x))[0])

class Gen:
    def __init__(self, **kw):
        d = dict(stamps=False, nt_ckv=True, nt_w=True, spin=200000, thr_n=4, thr_w=3, thr2_w=0,
                 gate='N', depth=3, sl_unit=1, sl_flag=2, uk_late=1, fast_k=24, pf_uk=0, prew=0, order='A', touch=0, pf_kv=0, split=0, fmap=0, bwave=0, ukl=0, tout=0, skew=0, skew_a=3, skew_b=4, adapt=0, adapt_thr=64, adapt_max=5)
        d.update(kw)
        self.__dict__.update(d)
        self.L = []
        self.nlab = 0
    def e(self, s): self.L.append("  " + s)
    def lab(self, s): self.L.append(s + ":")
    def newlab(self, p):
        self.nlab += 1
        return f"L_{p}_{self.nlab}"
    def nop(self, n):
        while n > 0:
            k = min(n, 16)
            self.e(f"s_nop {k-1}")
            n -= k
    def stamp(self, idx):
        if not self.stamps: return
        self.e("s_memrealtime s[40:41]")
        self.e("s_waitcnt lgkmcnt(0)")
        self.e(f"v_writelane_b32 v255, s40, {idx}")
    def stampval(self, idx, sreg):
        if not self.stamps: return
        self.e(f"v_writelane_b32 v255, s{sreg}, {idx}")
    def srd(self, dst, ptr, size):
        self.e(f"s_mov_b32 s{dst}, s{ptr}")
        self.e(f"s_and_b32 s{dst+1}, s{ptr+1}, 0xffff")
        self.e(f"s_mov_b32 s{dst+2}, {size}")
        self.e(f"s_mov_b32 s{dst+3}, 0x20000")

def build(extra_empty=0, prepost=False, **kw):
    G = Gen(**kw)
    RM = 3 if G.split else 7
    REX = 0xf if G.split else 0xff
    e, lab, nop = G.e, G.lab, G.nop
    NTW = " nt" if G.nt_w else ""
    NTC = " nt" if G.nt_ckv else ""
    hdr = []
    if prepost:
        hdr.append(f"; @launch kernel=pre_kernel grid=(256,1,1) block=(64,1,1) lds=0")
        hdr.append(f"; @launch kernel={NAME}_kernel grid=(256,1,1) block=(256,1,1) lds={LDS_BYTES}")
        hdr.append(f"; @launch kernel=post_kernel grid=(256,1,1) block=(64,1,1) lds=0")
    elif extra_empty:
        hdr.append(f"; @launch kernel={NAME}_kernel grid=(256,1,1) block=(256,1,1) lds={LDS_BYTES}")
        for _ in range(extra_empty):
            hdr.append(f"; @launch kernel=empty_kernel grid=(256,1,1) block=(256,1,1) lds=0")
    else:
        hdr.append(f"; @launch grid=(256,1,1) block=(256,1,1) lds={LDS_BYTES}")
    hdr.append('.amdgcn_target "amdgcn-amd-amdhsa--gfx950"')
    hdr.append(".text")
    hdr.append(f".globl {NAME}_kernel")
    hdr.append(".p2align 8")
    hdr.append(f".type {NAME}_kernel,@function")
    hdr.append(f"{NAME}_kernel:")

    def lo32():
        e("s_mov_b32 exec_lo, -1"); e("s_mov_b32 exec_hi, 0")
    def check_tags(tagregs):
        first = True
        for k in range(0, len(tagregs), 2):
            a = tagregs[k]; b = tagregs[k+1] if k + 1 < len(tagregs) else tagregs[k]
            e(f"v_xor_b32 v61, s{S_TAG}, v{a}")
            e(f"v_xor_b32 v62, s{S_TAG}, v{b}")
            if first:
                e("v_or_b32 v60, v61, v62"); first = False
            else:
                e("v_or3_b32 v60, v60, v61, v62")
        e("v_cmp_ne_u32 vcc, 0, v60")
    def poll(mk_loads, base, nregs, tagoffs, ring, nld, sleep, cnt_idx=None):
        ring = ring[:G.depth]
        D = len(ring)
        lp, done = G.newlab("poll"), G.newlab("pdone")
        e(f"s_mov_b32 s48, {G.spin}")
        mk = mk_loads if isinstance(mk_loads, (list, tuple)) else [mk_loads] * D
        for k in range(D - 1):
            mk[k](ring[k])
            if sleep: e(f"s_sleep {sleep}")
        exits = [G.newlab("pexit") for _ in range(D)]
        lab(lp)
        for k in range(D):
            mk[(k + D - 1) % D](ring[(k + D - 1) % D])
            e(f"s_waitcnt vmcnt({(D-1)*nld})")
            check_tags([ring[k] + o for o in tagoffs])
            e(f"s_cbranch_vccz {exits[k]}")
            if sleep: e(f"s_sleep {sleep}")
        e("s_sub_u32 s48, s48, 1")
        e(f"s_cbranch_scc0 {lp}")
        for k in range(D):
            lab(exits[k])
            for r in range(nregs): e(f"v_mov_b32 v{base+r}, v{ring[k]+r}")
            if k < D - 1: e(f"s_branch {done}")
        lab(done)
        if cnt_idx is not None: G.stampval(cnt_idx, 48)
    def dual_poll(ld_fast, ld_slow, slow_store, base, nregs, tagoffs, ring, nld, cnt_idx):
        lp, x0, x1, done = G.newlab("fp"), G.newlab("fx0"), G.newlab("fx1"), G.newlab("fdone")
        r0, r1 = ring[0], ring[1]
        e(f"s_mov_b32 s49, {G.fast_k}")
        ld_fast(r0)
        lab(lp)
        for (a, b, x) in ((r0, r1, x0), (r1, r0, x1)):
            ld_fast(b)
            e(f"s_waitcnt vmcnt({nld})")
            check_tags([a + o for o in tagoffs])
            e(f"s_cbranch_vccz {x}")
        e("s_sub_u32 s49, s49, 1")
        e(f"s_cbranch_scc0 {lp}")
        slow_store()
        poll([ld_fast, ld_slow, ld_fast], base, nregs, tagoffs, ring, nld, G.sl_unit, cnt_idx)
        e(f"s_branch {done}")
        for (a, x) in ((r0, x0), (r1, x1)):
            lab(x)
            for r in range(nregs): e(f"v_mov_b32 v{base+r}, v{a+r}")
            slow_store()
            if x == x0: e(f"s_branch {done}")
        lab(done)
        G.stampval(cnt_idx + 10, 49)
    def dma_tile128(srd, v0, v1, soff_fn, lds_base, flags):
        e(f"s_lshl_b32 s31, s{S_W}, 13")
        for n in range(8):
            soff_fn(n)
            e(f"s_add_u32 m0, s31, {lds_base + n*1024}")
            v = v1 if (n >> 1) & 1 else v0
            nop(1)
            e(f"buffer_load_dwordx4 v{v}, {sr(srd,4)}, s30 offen{flags} lds")
    def lin(step):
        def f(n):
            if n == 0: e("s_mov_b32 s30, s29")
            else: e(f"s_add_u32 s30, s29, {n*step}")
        return f
    def gemv_loadB(base, vB, tmp0, tmp1):
        if base + 3*8192 + 1024 <= 65535:
            a0, a1, off = V_TL0, V_TL1, base
        else:
            e(f"v_add_u32 v{tmp0}, {base}, v{V_TL0}")
            e(f"v_add_u32 v{tmp1}, {base}, v{V_TL1}")
            a0, a1, off = tmp0, tmp1, 0
        for ks in range(4):
            for t in range(2):
                for u in range(2):
                    r = vB + (t*4 + ks)*4 + 2*u
                    e(f"ds_read_b64_tr_b16 {vr(r,2)}, v{a1 if t else a0} offset:{off + 8192*ks + 1024*u}")
    def gemv_loadA(vaddr, vA, off=0):
        for ks in range(4):
            e(f"ds_read_b128 {vr(vA+4*ks,4)}, v{vaddr} offset:{off + 64*ks}")
    def gemv_mma(vA, vB, vC):
        for ks in range(4):
            for t in range(2):
                c = "0" if ks == 0 else vr(vC+4*t, 4)
                e(f"v_mfma_f32_16x16x32_bf16 {vr(vC+4*t,4)}, {vr(vA+4*ks,4)}, {vr(vB+(t*4+ks)*4,4)}, {c}")
        nop(9)
    def sel_tb(vC, d0, d1):
        e(f"v_cndmask_b32 v{d0}, v{vC}, v{vC+4}, {sr(M_G1,2)}")
        e(f"v_cndmask_b32 v{d1}, v{vC+1}, v{vC+5}, {sr(M_G1,2)}")
    def publish_units(vC, voff, soff, q, fast=False):
        sel_tb(vC, q, q+2)
        lo32()
        e(f"buffer_store_dwordx4 {vr(q,4)}, v{voff}, {sr(SRD_WS,4)}, s{soff} offen" + ("" if fast else " sc1"))
        e("s_mov_b64 exec, -1")
    def wave_red(op, v, tmp):
        for r in (8, 4, 2, 1):
            nop(2)
            e(f"{op}_dpp v{v}, v{v}, v{v} row_ror:{r} row_mask:0xf bank_mask:0xf")
        e(f"v_mov_b32 v{tmp}, v{v}")
        nop(2)
        e(f"v_permlane16_swap_b32 v{v}, v{tmp}")
        nop(1)
        e(f"{op} v{v}, v{v}, v{tmp}")
        e(f"v_mov_b32 v{tmp}, v{v}")
        nop(2)
        e(f"v_permlane32_swap_b32 v{v}, v{tmp}")
        nop(1)
        e(f"{op} v{v}, v{v}, v{tmp}")
    def xg_reduce2(op, va, vb, ta, tb, emit=None):
        em = emit or e
        for perm in ("v_permlane16_swap_b32", "v_permlane32_swap_b32"):
            em(f"v_mov_b32 v{ta}, v{va}")
            em(f"v_mov_b32 v{tb}, v{vb}")
            em("s_nop 0")
            em(f"{perm} v{va}, v{ta}")
            em(f"{perm} v{vb}, v{tb}")
            em("s_nop 0")
            em(f"{op} v{va}, v{va}, v{ta}")
            em(f"{op} v{vb}, v{vb}, v{tb}")
    def wave_red2(op, va, vb, ta, tb):
        for r in (8, 4, 2, 1):
            nop(1)
            e(f"{op}_dpp v{va}, v{va}, v{va} row_ror:{r} row_mask:0xf bank_mask:0xf")
            e(f"{op}_dpp v{vb}, v{vb}, v{vb} row_ror:{r} row_mask:0xf bank_mask:0xf")
        xg_reduce2(op, va, vb, ta, tb)
    def rbf(v):
        e(f"v_cvt_pk_bf16_f32 v{v}, v{v}, v{v}")
        e(f"v_lshlrev_b32 v{v}, 16, v{v}")
    def layernorm(X0, X1, F0, F1, T, OUT):
        S0, S1, T0, T1, Q0, Q1, U0, U1 = range(T, T+8)
        for (X, F) in ((X0, F0), (X1, F1)):
            for k in range(4):
                e(f"v_lshlrev_b32 v{F+2*k}, 16, v{X+k}")
                e(f"v_and_b32 v{F+2*k+1}, 0xffff0000, v{X+k}")
        e(f"v_add_f32 v{S0}, v{F0}, v{F0+1}"); e(f"v_add_f32 v{S1}, v{F1}, v{F1+1}")
        for k in range(2, 8):
            e(f"v_add_f32 v{S0}, v{S0}, v{F0+k}"); e(f"v_add_f32 v{S1}, v{S1}, v{F1+k}")
        wave_red2("v_add_f32", S0, S1, T0, T1)
        e("s_mov_b32 s28, 0x3b000000")
        e(f"v_mul_f32 v{S0}, s28, v{S0}")
        e(f"v_mul_f32 v{S1}, s28, v{S1}")
        for k in range(8):
            e(f"v_sub_f32 v{U0}, v{F0+k}, v{S0}")
            e(f"v_sub_f32 v{U1}, v{F1+k}, v{S1}")
            if k == 0:
                e(f"v_mul_f32 v{Q0}, v{U0}, v{U0}"); e(f"v_mul_f32 v{Q1}, v{U1}, v{U1}")
            else:
                e(f"v_fmac_f32 v{Q0}, v{U0}, v{U0}"); e(f"v_fmac_f32 v{Q1}, v{U1}, v{U1}")
        wave_red2("v_add_f32", Q0, Q1, T0, T1)
        e("s_mov_b32 s29, 0x3727c5ac")
        def both(f): f(Q0, S0); f(Q1, S1)
        both(lambda Q, S: e(f"v_mul_f32 v{Q}, s28, v{Q}"))
        both(lambda Q, S: e(f"v_cvt_pk_bf16_f32 v{Q}, v{Q}, v{Q}"))
        both(lambda Q, S: e(f"v_lshlrev_b32 v{Q}, 16, v{Q}"))
        both(lambda Q, S: e(f"v_add_f32 v{Q}, s29, v{Q}"))
        both(lambda Q, S: e(f"v_cvt_pk_bf16_f32 v{Q}, v{Q}, v{Q}"))
        both(lambda Q, S: e(f"v_lshlrev_b32 v{Q}, 16, v{Q}"))
        both(lambda Q, S: e(f"v_sqrt_f32 v{Q}, v{Q}"))
        both(lambda Q, S: e(f"v_cvt_pk_bf16_f32 v{S}, v{S}, v{S}"))
        both(lambda Q, S: e(f"v_cvt_pk_bf16_f32 v{Q}, v{Q}, v{Q}"))
        both(lambda Q, S: e(f"v_lshlrev_b32 v{S}, 16, v{S}"))
        both(lambda Q, S: e(f"v_lshlrev_b32 v{Q}, 16, v{Q}"))
        both(lambda Q, S: e(f"v_rcp_f32 v{Q}, v{Q}"))
        for (F, S, Q, XB) in ((F0, S0, Q0, 0), (F1, S1, Q1, 1)):
            for k in range(0, 8, 2):
                e(f"v_sub_f32 v{F+k}, v{F+k}, v{S}")
                e(f"v_sub_f32 v{F+k+1}, v{F+k+1}, v{S}")
                e(f"v_cvt_pk_bf16_f32 v{U0}, v{F+k}, v{F+k+1}")
                e(f"v_lshlrev_b32 v{F+k}, 16, v{U0}")
                e(f"v_and_b32 v{F+k+1}, 0xffff0000, v{U0}")
                e(f"v_mul_f32 v{F+k}, v{F+k}, v{Q}")
                e(f"v_mul_f32 v{F+k+1}, v{F+k+1}, v{Q}")
                e(f"v_cvt_pk_bf16_f32 v{OUT+XB*4+k//2}, v{F+k}, v{F+k+1}")
    def layernorm1(X, F, T, OUT):
        S, Q, T0, T1, U, C = range(T, T+6)
        for k in range(4):
            e(f"v_lshlrev_b32 v{F+2*k}, 16, v{X+k}")
            e(f"v_and_b32 v{F+2*k+1}, 0xffff0000, v{X+k}")
        e(f"v_readfirstlane_b32 s28, v{F}")
        nop(2)
        for k in range(8): e(f"v_subrev_f32 v{F+k}, s28, v{F+k}")
        e(f"v_add_f32 v{S}, v{F}, v{F+1}")
        e(f"v_mul_f32 v{Q}, v{F}, v{F}")
        e(f"v_fmac_f32 v{Q}, v{F+1}, v{F+1}")
        for k in range(2, 8):
            e(f"v_add_f32 v{S}, v{S}, v{F+k}")
            e(f"v_fmac_f32 v{Q}, v{F+k}, v{F+k}")
        wave_red2("v_add_f32", S, Q, T0, T1)
        e("s_mov_b32 s29, 0x3b000000")
        e(f"v_mul_f32 v{S}, s29, v{S}")
        e(f"v_mul_f32 v{Q}, s29, v{Q}")
        e(f"v_fma_f32 v{Q}, -v{S}, v{S}, v{Q}")
        e(f"v_add_f32 v{U}, s28, v{S}")
        e(f"v_max_f32 v{Q}, 0, v{Q}")
        e(f"v_cvt_pk_bf16_f32 v{U}, v{U}, v{U}")
        e(f"v_cvt_pk_bf16_f32 v{Q}, v{Q}, v{Q}")
        e(f"v_lshlrev_b32 v{U}, 16, v{U}")
        e(f"v_lshlrev_b32 v{Q}, 16, v{Q}")
        e("s_mov_b32 s29, 0x3727c5ac")
        e(f"v_add_f32 v{Q}, s29, v{Q}")
        e(f"v_subrev_f32 v{U}, s28, v{U}")
        e(f"v_cvt_pk_bf16_f32 v{Q}, v{Q}, v{Q}")
        e(f"v_lshlrev_b32 v{Q}, 16, v{Q}")
        e(f"v_sqrt_f32 v{Q}, v{Q}")
        for k in range(4): e(f"v_sub_f32 v{F+k}, v{F+k}, v{U}")
        e(f"v_cvt_pk_bf16_f32 v{Q}, v{Q}, v{Q}")
        for k in range(4, 8): e(f"v_sub_f32 v{F+k}, v{F+k}, v{U}")
        e(f"v_lshlrev_b32 v{Q}, 16, v{Q}")
        e(f"v_rcp_f32 v{Q}, v{Q}")
        for k in range(0, 8, 2):
            e(f"v_cvt_pk_bf16_f32 v{OUT+k//2}, v{F+k}, v{F+k+1}")
        for k in range(0, 8, 2):
            e(f"v_lshlrev_b32 v{F+k}, 16, v{OUT+k//2}")
            e(f"v_and_b32 v{F+k+1}, 0xffff0000, v{OUT+k//2}")
        for k in range(8): e(f"v_mul_f32 v{F+k}, v{F+k}, v{Q}")
        for k in range(0, 8, 2):
            e(f"v_cvt_pk_bf16_f32 v{OUT+k//2}, v{F+k}, v{F+k+1}")
    def store_stamps():
        if not G.stamps: return
        e("s_getreg_b32 s30, hwreg(HW_REG_XCC_ID)")
        e("v_writelane_b32 v255, s30, 40")
        e(f"s_lshl_b32 s30, s2, 2")
        e(f"s_add_u32 s30, s30, s{S_W}")
        e(f"s_lshl_b32 s30, s30, 8")
        e(f"s_add_u32 s30, s30, {WS_STAMP}")
        e(f"v_lshlrev_b32 v60, 2, v{V_LANE}")
        e(f"buffer_store_dword v255, v60, {sr(SRD_WS,4)}, s30 offen")

    e("s_cmp_ge_u32 s2, 256")
    e("s_cbranch_scc1 L_end")
    if G.stamps:
        e("v_mov_b32 v255, 0")
        e("s_memrealtime s[40:41]")
    e(f"s_load_dwordx16 s[64:79], s[0:1], 0")
    e(f"s_load_dwordx8 s[80:87], s[0:1], 64")
    e(f"s_load_dwordx2 s[88:89], s[0:1], 96")
    e(f"v_and_b32 v{V_LANE}, 63, v0")
    e(f"v_lshrrev_b32 v8, 6, v0")
    e(f"v_and_b32 v{V_L15}, 15, v0")
    e(f"v_readfirstlane_b32 s{S_W}, v8")
    e(f"v_lshrrev_b32 v{V_G}, 4, v{V_LANE}")
    e(f"v_lshlrev_b32 v{V_L16B}, 4, v{V_LANE}")
    e(f"s_mov_b32 s{M_G1}, 0xffff0000"); e(f"s_mov_b32 s{M_G1+1}, 0xffff0000")
    e(f"s_mov_b32 s{M_HI}, 0"); e(f"s_mov_b32 s{M_HI+1}, -1")
    e("s_mov_b32 s63, s2")
    if G.split:
        e("s_and_b32 s28, s2, 3")
        e("s_lshr_b32 s29, s2, 3")
        e("s_bitcmp1_b32 s2, 2")
        e("s_cbranch_scc1 L_att_id")
        e("s_lshl_b32 s28, s28, 1")
        e("s_and_b32 s30, s29, 1")
        e("s_or_b32 s28, s28, s30")
        e("s_lshr_b32 s29, s29, 1")
        e("s_lshl_b32 s29, s29, 3")
        e("s_or_b32 s2, s28, s29")
        e("s_branch L_wgt")
        lab("L_att_id")
        e("s_lshl_b32 s29, s29, 2")
        e("s_add_u32 s2, s28, s29")
        e("s_add_u32 s2, s2, 128")
        e("s_branch L_att")
        lab("L_wgt")
    else:
        e("s_cmp_ge_u32 s2, 128")
        e("s_cbranch_scc1 L_att")

    V_AVW, V_AVR, V_PUB, VD0, VD1 = 56, 57, 55, 58, 59
    RING8 = [224, 232, 240]
    RING4 = [224, 228, 232]
    PUBQ = 48
    e(f"v_lshlrev_b32 v8, 1, v{V_G}")
    e(f"v_xor_b32 v8, v8, v{V_L15}")
    e(f"v_lshlrev_b32 v{V_SW}, 4, v8")
    e("s_and_b32 s28, s2, 7")
    e("s_lshl_b32 s28, s28, 2")
    e("s_bfe_u32 s29, s2, 0x20003")
    e(f"s_add_u32 s{S_H}, s28, s29")
    e(f"s_lshr_b32 s{S_I}, s2, 5")
    if G.fmap:
        e("s_and_b32 s28, s2, 7")
        e("s_sub_u32 s28, s28, 4")
        e("s_lshl_b32 s62, s28, 4")
        e("s_lshr_b32 s29, s2, 3")
        e("s_add_u32 s62, s62, s29")
        e("s_cmp_lt_u32 s28, 2")
        e("s_cselect_b32 s62, s62, 255")
    else:
        e("s_sub_u32 s62, s2, 96")
        e("s_cmp_ge_u32 s2, 96")
        e("s_cselect_b32 s62, s62, 255")
    e(f"v_lshl_add_u32 v{VD0}, v{V_G}, 13, v{V_SW}")
    e(f"v_xor_b32 v{VD1}, 128, v{VD0}")
    e(f"s_lshl_b32 s29, s{S_I}, 7")
    e(f"s_lshl_b32 s28, s{S_W}, 5")
    e("s_add_u32 s29, s29, s28")
    e("s_lshl_b32 s29, s29, 13")
    e(f"s_lshl_b32 s28, s{S_H}, 8")
    e("s_add_u32 s29, s29, s28")
    e("s_waitcnt lgkmcnt(0)")
    if G.stamps: e("v_writelane_b32 v255, s40, 0")
    if G.skew:
        lsk0 = G.newlab("noann")
        e("s_cmp_ge_u32 s2, 8")
        e(f"s_cbranch_scc1 {lsk0}")
        e(f"s_cmp_lg_u32 s{S_W}, 3")
        e(f"s_cbranch_scc1 {lsk0}")
        G.srd(SRD_4, P_DBG, 256)
        e("v_mov_b32 v30, 1")
        e("s_lshl_b32 s28, s2, 2")
        e("v_mov_b32 v31, s28")
        e("s_mov_b64 exec, 1")
        e(f"buffer_store_dword v30, v31, {sr(SRD_4,4)}, 0 offen sc1")
        e("s_mov_b64 exec, -1")
        lab(lsk0)
    G.srd(SRD_1, P_X, 2048)
    G.srd(SRD_2, P_WQ, 4194304)
    X0, X1 = 8, 12
    e(f"s_lshr_b32 s37, s{S_W}, 1")
    e("s_lshl_b32 s37, s37, 10")
    e(f"buffer_load_dwordx4 {vr(X0,4)}, v{V_L16B}, {sr(SRD_1,4)}, s37 offen")
    dma_tile128(SRD_2, VD0, VD1, lin(4*8192), R0, NTW)
    e(f"s_load_dword s{S_TAG}, {sr(P_WS,2)}, {WS_EPOCH}")
    G.srd(SRD_3, P_WUK, 4194304)
    e("s_mov_b32 s36, s29")
    def issue_uk(nfirst, nlast):
        e("s_mov_b32 s29, s36")
        e(f"s_lshl_b32 s31, s{S_W}, 13")
        for n in range(nfirst, nlast):
            lin(4*8192)(n)
            e(f"s_add_u32 m0, s31, {R1 + n*1024}")
            v = VD1 if (n >> 1) & 1 else VD0
            nop(1)
            e(f"buffer_load_dwordx4 v{v}, {sr(SRD_3,4)}, s30 offen{'' if G.pf_uk else NTW} lds")
    issue_uk(0, 8 - G.ukl)
    G.srd(SRD_WS, P_WS, 0x10000000)
    e(f"s_lshl_b32 s32, s{S_H}, 2")
    e(f"s_add_u32 s32, s32, s{S_W}")
    e("s_lshl_b32 s32, s32, 11")
    if G.prew:
        e(f"v_lshlrev_b32 v232, 4, v{V_L15}")
        e(f"v_lshl_add_u32 v232, v{V_G}, 10, v232")
        for r_ in range(4): e(f"v_mov_b32 v{236+r_}, 0")
        e(f"s_lshl_b32 s28, s{S_I}, 8")
        e("s_add_u32 s28, s28, s32")
        lo32()
        for reg in (WS_QPF, WS_CPF):
            e(f"s_add_u32 s30, s28, {reg}")
            e(f"buffer_store_dwordx4 {vr(236,4)}, v232, {sr(SRD_WS,4)}, s30 offen")
        e("s_mov_b64 exec, -1")
    else:
        for reg in (WS_QPF,):
            e(f"s_add_u32 s28, s32, {reg}")
            e(f"buffer_load_dwordx4 {vr(232,4)}, v{V_L16B}, {sr(SRD_WS,4)}, s28 offen sc1")
            e(f"buffer_load_dwordx4 {vr(236,4)}, v{V_L16B}, {sr(SRD_WS,4)}, s28 offen offset:1024 sc1")
    e(f"v_bfe_u32 v17, v{V_LANE}, 2, 2")
    e(f"v_and_b32 v18, 3, v{V_LANE}")
    e(f"v_and_b32 v19, 1, v{V_G}")
    e("v_lshl_add_u32 v20, v19, 2, v17")
    e("v_lshlrev_b32 v20, 1, v20")
    e(f"s_lshl_b32 s28, s{S_W}, 2")
    e("v_xor_b32 v20, s28, v20")
    e("v_lshrrev_b32 v21, 1, v18")
    e("v_add_u32 v20, v20, v21")
    e("v_lshlrev_b32 v20, 4, v20")
    e("v_and_b32 v21, 1, v18")
    e("v_lshl_add_u32 v20, v21, 3, v20")
    e(f"v_lshl_add_u32 v21, v{V_G}, 3, v17")
    e(f"v_lshl_add_u32 v{V_TL0}, v21, 8, v20")
    e(f"v_xor_b32 v{V_TL1}, 32, v{V_TL0}")
    e(f"v_lshrrev_b32 v20, 1, v{V_G}")
    e("v_lshlrev_b32 v20, 8, v20")
    e(f"v_lshl_add_u32 v21, v19, 4, v{V_L15}")
    e(f"s_lshl_b32 s28, s{S_W}, 5")
    e("v_add_u32 v21, s28, v21")
    e(f"v_lshl_add_u32 v{V_AVW}, v21, 1, v20")
    e(f"v_and_b32 v20, 1, v{V_LANE}")
    e("v_lshlrev_b32 v20, 8, v20")
    e(f"v_lshl_add_u32 v{V_AVR}, v{V_G}, 4, v20")
    e(f"v_lshlrev_b32 v{V_PUB}, 4, v{V_L15}")
    e(f"v_lshl_add_u32 v{V_PUB}, v{V_G}, 10, v{V_PUB}")
    e(f"s_lshl_b32 s32, s{S_H}, 2")
    e(f"s_add_u32 s32, s32, s{S_W}")
    e("s_lshl_b32 s32, s32, 11")
    e(f"s_lshl_b32 s33, s{S_I}, 8")
    e("s_add_u32 s33, s33, s32")
    e(f"v_and_b32 v52, 1, v{V_LANE}")
    e("v_lshlrev_b32 v52, 10, v52")
    e(f"v_lshl_add_u32 v52, v{V_G}, 4, v52")
    e(f"s_lshl_b32 s28, s{S_I}, 8")
    e(f"s_add_u32 s28, s28, {L_XN}")
    e("v_add_u32 v52, s28, v52")
    e(f"v_and_b32 v22, 3, v{V_LANE}")
    e(f"v_bfe_u32 v23, v{V_LANE}, 3, 1")
    e("v_lshl_add_u32 v22, v23, 2, v22")
    e("v_lshlrev_b32 v22, 1, v22")
    e(f"v_xor_b32 v22, v22, v{V_G}")
    e(f"v_lshlrev_b32 v23, 8, v{V_L15}")
    e(f"s_lshl_b32 s28, s{S_W}, 13")
    e(f"s_add_u32 s28, s28, {R1}")
    e("v_add_u32 v23, s28, v23")
    for ks in range(4):
        e(f"v_xor_b32 v24, {4*ks}, v22")
        e(f"v_lshl_add_u32 v{248+ks}, v24, 4, v23")
    G.stamp(1)
    e(f"s_waitcnt vmcnt({18 - G.ukl})")
    layernorm1(X0, 16, 24, 40)
    e(f"v_add_u32 v30, s37, v{V_L16B}")
    e(f"ds_write_b128 v30, {vr(40,4)} offset:{L_XN}")
    if G.ukl: issue_uk(8 - G.ukl, 8)
    if G.adapt:
        G.srd(SRD_4, P_DBG, 256)
        lna = G.newlab("noadd")
        e(f"s_cmp_lg_u32 s{S_W}, 0")
        e(f"s_cbranch_scc1 {lna}")
        e("v_mov_b32 v31, 1")
        e("v_mov_b32 v30, 0")
        e("s_mov_b64 exec, 1")
        e(f"buffer_atomic_add v31, v30, {sr(SRD_4,4)}, 0 offen sc1")
        e("s_mov_b64 exec, -1")
        lab(lna)
    G.stamp(2)
    e("s_waitcnt vmcnt(10) lgkmcnt(0)")
    e("s_barrier")
    G.stamp(3)
    VA, VB, VC, WUK = 96, 112, 144, 64
    gemv_loadA(52, VA)
    gemv_loadB(R0, VB, 21, 22)
    e(f"s_add_u32 s{S_TAG}, s{S_TAG}, 0x9e3779b9")
    e(f"s_add_u32 s34, s33, {WS_QP}")
    e(f"s_add_u32 s35, s33, {WS_QPF}")
    e(f"v_mov_b32 v{PUBQ+1}, s{S_TAG}")
    e(f"v_mov_b32 v{PUBQ+3}, s{S_TAG}")
    e("s_waitcnt lgkmcnt(0)")
    gemv_mma(VA, VB, VC)
    publish_units(VC, V_PUB, 35, PUBQ, fast=True)
    G.stamp(4)
    e("s_mov_b32 s37, s34")
    def consume4(soff, u0, lds_dst, cnt_idx, sfast, spub, voff, q):
        u1 = u0 + 4
        def mk(sreg):
            def ld(b):
                e(f"buffer_load_dwordx4 {vr(b,4)}, v{V_L16B}, {sr(SRD_WS,4)}, s{sreg} offen sc1")
                e(f"buffer_load_dwordx4 {vr(b+4,4)}, v{V_L16B}, {sr(SRD_WS,4)}, s{sreg} offen offset:1024 sc1")
            return ld
        def slow_store():
            lo32()
            e(f"buffer_store_dwordx4 {vr(q,4)}, v{voff}, {sr(SRD_WS,4)}, s{spub} offen sc1")
            e("s_mov_b64 exec, -1")
        dual_poll(mk(sfast), mk(soff), slow_store, u0, 8, [1, 3, 5, 7], RING8, 2, cnt_idx)
        nop(1)
        e(f"v_permlane32_swap_b32 v{u0}, v{u0+2}")
        e(f"v_permlane32_swap_b32 v{u1}, v{u1+2}")
        nop(1)
        e(f"v_add_f32 v{u0}, v{u0}, v{u0+2}")
        e(f"v_add_f32 v{u1}, v{u1}, v{u1+2}")
        nop(2)
        e(f"v_permlane16_swap_b32 v{u0}, v{u1}")
        nop(1)
        e(f"v_add_f32 v{u0}, v{u0}, v{u1}")
        write_av(u0, lds_dst)
    def write_av(vsrc, lds_dst):
        e(f"v_cvt_pk_bf16_f32 v54, v{vsrc}, v{vsrc}")
        e(f"ds_write_b16 v{V_AVW}, v54 offset:{lds_dst}")
    e(f"s_add_u32 s34, s32, {WS_QP}")
    e(f"s_add_u32 s35, s32, {WS_QPF}")
    e("s_waitcnt vmcnt(1)")
    for ct in range(2):
        for ks in range(4):
            e(f"ds_read_b128 {vr(WUK+(ct*4+ks)*4,4)}, v{248+ks} offset:{4096*ct}")
    consume4(34, 40, L_AVQ, 32, 35, 37, V_PUB, PUBQ)
    e("s_waitcnt lgkmcnt(0)")
    e("s_barrier")
    G.stamp(5)
    gemv_loadA(V_AVR, VA, L_AVQ)
    e(f"v_lshlrev_b32 v44, 4, v{V_L15}")
    e(f"v_lshl_add_u32 v44, v{V_G}, 15, v44")
    e(f"s_lshl_b32 s34, s{S_H}, 10")
    e(f"s_lshl_b32 s35, s{S_I}, 8")
    e("s_add_u32 s34, s34, s35")
    e(f"s_add_u32 s34, s34, {WS_QA}")
    e(f"s_lshl_b32 s35, s{S_H}, 2")
    e(f"s_add_u32 s35, s35, s{S_I}")
    e("s_lshl_b32 s35, s35, 4")
    e(f"s_add_u32 s35, s35, {WS_FB}")
    e("s_waitcnt lgkmcnt(0)")
    for ks in range(4):
        for ct in range(2):
            c = "0" if ks == 0 else vr(VC+4*ct, 4)
            e(f"v_mfma_f32_16x16x32_bf16 {vr(VC+4*ct,4)}, {vr(VA+4*ks,4)}, {vr(WUK+(ct*4+ks)*4,4)}, {c}")
    nop(9)
    sel_tb(VC, 40, 41)
    e(f"v_cndmask_b32 v40, v40, v41, {sr(M_HI,2)}")
    e(f"v_mul_f32 v40, {fbits((128 ** -0.5) * math.log2(math.e))}, v40")
    write_av(40, L_QS)
    e("s_waitcnt lgkmcnt(0)")
    e("s_barrier")
    def ldFB(b):
        e(f"buffer_load_dwordx2 {vr(b,2)}, v{V_L16B}, {sr(SRD_WS,4)}, s34 offen sc1")
        e(f"buffer_load_dwordx2 {vr(b+2,2)}, v{V_L16B}, {sr(SRD_WS,4)}, s34 offen offset:1024 sc1")
    def gate_poll():
        e(f"s_and_b32 s34, s63, {RM}")
        e("s_lshl_b32 s34, s34, 11")
        e(f"s_add_u32 s34, s34, {WS_FB}")
        poll(ldFB, 40, 4, [0, 1, 2, 3], RING4, 2, 4, 33)
    lskip = G.newlab("nopub")
    e(f"s_cmp_lg_u32 s{S_W}, 0")
    e(f"s_cbranch_scc1 {lskip}")
    e(f"ds_read_b128 {vr(40,4)}, v{V_L16B} offset:{L_QS}")
    e(f"v_mov_b32 v46, s{S_TAG}")
    e(f"v_mov_b32 v47, s{S_TAG}")
    e(f"v_lshlrev_b32 v45, 11, v{V_LANE}")
    e("s_waitcnt lgkmcnt(0)")
    lo32()
    e(f"buffer_store_dwordx4 {vr(40,4)}, v44, {sr(SRD_WS,4)}, s34 offen sc1")
    e(f"s_mov_b64 exec, {hex(REX)}")
    e("s_waitcnt vmcnt(0)")
    e(f"buffer_store_dwordx2 {vr(46,2)}, v45, {sr(SRD_WS,4)}, s35 offen sc1")
    e("s_mov_b64 exec, -1")
    if G.gate == 'B' and G.order != 'B2' and not G.pf_kv: gate_poll()
    lab(lskip)
    G.stamp(6)
    e("s_barrier")
    G.stamp(7)
    if G.pf_kv:
        G.srd(SRD_4, P_CKV, 16777216)
        e("s_lshl_b32 s29, s2, 7")
        e(f"s_lshl_b32 s30, s{S_W}, 5")
        e("s_add_u32 s29, s29, s30")
        e("s_lshl_b32 s29, s29, 10")
        e(f"s_lshl_b32 s31, s{S_W}, 10")
        e("s_add_u32 m0, s31, 155648")
        for n in range(G.pf_kv):
            e(f"s_add_u32 s30, s29, {(31 - n)*1024}")
            e(f"buffer_load_dwordx4 v{V_L16B}, {sr(SRD_4,4)}, s30 offen lds")
        if G.order != 'B2' and G.gate == 'B':
            lg = G.newlab("gate2")
            e(f"s_cmp_lg_u32 s{S_W}, 0")
            e(f"s_cbranch_scc1 {lg}")
            gate_poll()
            lab(lg)
            e("s_barrier")
    FFN_EARLY = (G.order == 'B2')
    R3, RW2 = 106496, 139264
    S_FS, S_HF = 50, 51
    BUV, BO = 160, 192
    def blk_late():
        G.srd(SRD_1, P_WUV, 4194304)
        G.srd(SRD_2, P_WO, 4194304)
        e(f"v_lshl_add_u32 v{VD0}, v{V_G}, 17, v{V_SW}")
        e(f"v_xor_b32 v{VD1}, 128, v{VD0}")
        e(f"s_lshl_b32 s29, s{S_I}, 7")
        e(f"s_lshl_b32 s28, s{S_W}, 2")
        e("s_add_u32 s29, s29, s28")
        e("s_lshl_b32 s29, s29, 13")
        e(f"s_lshl_b32 s28, s{S_H}, 8")
        e("s_add_u32 s29, s29, s28")
        def f_uv(n):
            off = (64*(n & 1) + (n >> 1)) * 8192
            if off == 0: e("s_mov_b32 s30, s29")
            else: e(f"s_add_u32 s30, s29, {off}")
        dma_tile128(SRD_1, VD0, VD1, f_uv, R0, NTW)
        e(f"v_lshl_add_u32 v{VD0}, v{V_G}, 10, v{V_SW}")
        e(f"v_xor_b32 v{VD1}, 128, v{VD0}")
        e(f"s_lshl_b32 s29, s{S_H}, 7")
        e(f"s_lshl_b32 s28, s{S_W}, 5")
        e("s_add_u32 s29, s29, s28")
        e("s_lshl_b32 s29, s29, 10")
        e(f"s_lshl_b32 s28, s{S_I}, 8")
        e("s_add_u32 s29, s29, s28")
        dma_tile128(SRD_2, VD0, VD1, lin(4*1024), R2, NTW)
    def blk_ffn_loads():
        lnf1 = G.newlab("noffn1")
        if G.fmap:
            e("s_lshr_b32 s28, s2, 4")
            e("s_and_b32 s29, s2, 7")
            e("s_lshl_b32 s30, s29, 3")
            e("s_add_u32 s30, s30, s28")
            e(f"s_mov_b32 s{S_FS}, 63")
            e("s_cmp_lt_u32 s29, 4")
            e(f"s_cselect_b32 s{S_FS}, s30, s{S_FS}")
            e("s_add_u32 s30, s28, 32")
            e("s_cmp_lt_u32 s28, 6")
            e("s_cselect_b32 s30, s30, 63")
            e("s_cmp_eq_u32 s29, 6")
            e(f"s_cselect_b32 s{S_FS}, s30, s{S_FS}")
            e("s_add_u32 s30, s28, 38")
            e("s_cmp_eq_u32 s29, 7")
            e(f"s_cselect_b32 s{S_FS}, s30, s{S_FS}")
        else:
            e("s_lshr_b32 s28, s2, 4")
            e("s_and_b32 s29, s2, 7")
            e("s_mul_i32 s29, s29, 6")
            e(f"s_add_u32 s{S_FS}, s28, s29")
            e("s_cmp_ge_u32 s2, 96")
            e(f"s_cselect_b32 s{S_FS}, 63, s{S_FS}")
        e(f"s_bfe_u32 s{S_HF}, s2, 0x10003")
        e(f"s_cmp_ge_u32 s{S_FS}, 43")
        e(f"s_cbranch_scc1 {lnf1}")
        G.srd(SRD_1, P_W1, 1409024)
        G.srd(SRD_2, P_W3, 1409024)
        G.srd(SRD_3, P_W2, 1409024)
        e(f"v_lshrrev_b32 v64, 2, v{V_LANE}")
        e("v_mul_u32_u24 v64, 2752, v64")
        e(f"v_lshrrev_b32 v65, 5, v{V_LANE}")
        e("v_lshlrev_b32 v66, 1, v65")
        e(f"v_and_b32 v67, 3, v{V_LANE}")
        e("v_xor_b32 v67, v66, v67")
        e("v_lshl_add_u32 v64, v67, 4, v64")
        e(f"s_lshl_b32 s29, s{S_HF}, 2")
        e(f"s_add_u32 s29, s29, s{S_W}")
        e(f"s_mul_i32 s29, s29, {64*2752}")
        e(f"s_lshl_b32 s28, s{S_FS}, 6")
        e("s_add_u32 s29, s29, s28")
        e(f"s_lshl_b32 s31, s{S_W}, 12")
        for (srd, base) in ((SRD_1, R3), (SRD_2, R3 + 16384)):
            for n in range(4):
                if n == 0: e("s_mov_b32 s30, s29")
                else: e(f"s_add_u32 s30, s29, {n*16*2752}")
                e(f"s_add_u32 m0, s31, {base + n*1024}")
                nop(1)
                e(f"buffer_load_dwordx4 v64, {sr(srd,4)}, s30 offen lds")
        e(f"v_and_b32 v67, 31, v{V_LANE}")
        e("v_xor_b32 v67, v67, v66")
        e(f"s_and_b32 s28, s{S_W}, 1")
        e("s_lshl_b32 s28, s28, 3")
        e("v_xor_b32 v67, s28, v67")
        e("v_lshlrev_b32 v67, 4, v67")
        e("v_lshl_add_u32 v67, v65, 10, v67")
        e("v_xor_b32 v68, 64, v67")
        e(f"s_lshl_b32 s29, s{S_FS}, 5")
        e(f"s_lshl_b32 s28, s{S_W}, 3")
        e("s_add_u32 s29, s29, s28")
        e("s_lshl_b32 s29, s29, 10")
        e(f"s_lshl_b32 s28, s{S_HF}, 9")
        e("s_add_u32 s29, s29, s28")
        for n in range(4):
            if n == 0: e("s_mov_b32 s30, s29")
            else: e(f"s_add_u32 s30, s29, {n*2048}")
            e(f"s_add_u32 m0, s31, {RW2 + n*1024}")
            nop(1)
            e(f"buffer_load_dwordx4 v{68 if n & 1 else 67}, {sr(SRD_3,4)}, s30 offen{NTW} lds")
        lab(lnf1)
    def blk_ffn_comp():
        lnf2 = G.newlab("noffn2")
        e(f"s_cmp_ge_u32 s{S_FS}, 43")
        e(f"s_cbranch_scc1 {lnf2}")
        e(f"v_bfe_u32 v17, v{V_LANE}, 2, 2")
        e(f"v_and_b32 v18, 3, v{V_LANE}")
        e(f"v_and_b32 v19, 1, v{V_G}")
        e(f"s_and_b32 s28, s{S_W}, 1")
        e("s_lshl_b32 s28, s28, 1")
        e("v_lshrrev_b32 v20, 1, v18")
        e("v_add_u32 v20, s28, v20")
        e("v_lshlrev_b32 v21, 1, v19")
        e("v_xor_b32 v20, v20, v21")
        e("v_lshlrev_b32 v20, 4, v20")
        e("v_and_b32 v21, 1, v18")
        e("v_lshl_add_u32 v20, v21, 3, v20")
        e(f"v_lshl_add_u32 v21, v{V_G}, 3, v17")
        e("v_lshl_add_u32 v20, v21, 6, v20")
        e(f"s_lshr_b32 s28, s{S_W}, 1")
        e("s_lshl_b32 s28, s28, 14")
        e(f"s_add_u32 s28, s28, {R3}")
        e("v_add_u32 v20, s28, v20")
        e(f"v_and_b32 v21, 1, v{V_LANE}")
        e("v_lshlrev_b32 v21, 10, v21")
        e(f"v_lshl_add_u32 v21, v{V_G}, 4, v21")
        e(f"s_lshl_b32 s28, s{S_HF}, 9")
        e("v_add_u32 v21, s28, v21")
        FA, FB_, GA = 96, 128, 76
        e("s_lshl_b32 s28, s2, 2")
        e(f"s_add_u32 s28, s28, s{S_W}")
        e("s_lshl_b32 s28, s28, 8")
        e(f"s_add_u32 s34, s28, {WS_F1}")
        e(f"s_add_u32 s35, s28, {WS_F1F}")
        e("s_xor_b32 s28, s2, 8")
        e("s_lshl_b32 s28, s28, 2")
        e(f"s_add_u32 s28, s28, s{S_W}")
        e("s_lshl_b32 s28, s28, 8")
        e(f"s_add_u32 s36, s28, {WS_F1}")
        e(f"s_add_u32 s37, s28, {WS_F1F}")
        e(f"v_lshlrev_b32 v26, 4, v{V_L15}")
        e(f"v_mov_b32 v41, s{S_TAG}")
        e(f"v_mov_b32 v43, s{S_TAG}")
        e(f"buffer_load_dwordx4 {vr(232,4)}, v26, {sr(SRD_WS,4)}, s37 offen sc1")
        e("s_waitcnt vmcnt(%d)" % (5 if FFN_EARLY else 5 + (0 if G.prew else 2) + (1 if G.touch else 0)))
        e("s_barrier")
        for ks in range(8):
            e(f"ds_read_b128 {vr(FA+4*ks,4)}, v21 offset:{L_XN + 64*ks}")
            for u in range(2):
                e(f"ds_read_b64_tr_b16 {vr(FB_+4*ks+2*u,2)}, v20 offset:{2048*ks + 256*u}")
        e("s_waitcnt lgkmcnt(0)")
        for ks in range(8):
            c = "0" if ks == 0 else vr(GA, 4)
            e(f"v_mfma_f32_16x16x32_bf16 {vr(GA,4)}, {vr(FA+4*ks,4)}, {vr(FB_+4*ks,4)}, {c}")
        e("v_lshl_add_u32 v20, v19, 2, v17")
        e("v_lshlrev_b32 v20, 1, v20")
        e(f"s_lshl_b32 s28, s{S_W}, 3")
        e("v_xor_b32 v20, s28, v20")
        e(f"v_lshl_add_u32 v21, v{V_G}, 3, v17")
        e("v_lshlrev_b32 v21, 9, v21")
        e("v_lshrrev_b32 v22, 1, v18")
        e("v_lshl_add_u32 v21, v22, 4, v21")
        e("v_and_b32 v22, 1, v18")
        e("v_lshl_add_u32 v21, v22, 3, v21")
        e(f"v_add_u32 v21, {RW2}, v21")
        for t in range(4):
            e(f"v_xor_b32 v22, {2*t}, v20")
            e(f"v_lshl_add_u32 v{28+t}, v22, 4, v21")
        e(f"v_mov_b32 v40, v{GA}")
        e(f"v_mov_b32 v42, v{GA+1}")
        e("s_mov_b64 exec, 0xffff")
        e(f"buffer_store_dwordx4 {vr(40,4)}, v26, {sr(SRD_WS,4)}, s35 offen")
        e("s_mov_b64 exec, -1")
        G.stamp(17)
        def ldF(sreg):
            return lambda b: e(f"buffer_load_dwordx4 {vr(b,4)}, v26, {sr(SRD_WS,4)}, s{sreg} offen sc1")
        def f1_slow():
            e("s_mov_b64 exec, 0xffff")
            e(f"buffer_store_dwordx4 {vr(40,4)}, v26, {sr(SRD_WS,4)}, s34 offen sc1")
            e("s_mov_b64 exec, -1")
        dual_poll(ldF(37), ldF(36), f1_slow, 44, 4, [1, 3], RING4, 1, 34)
        G.stamp(18)
        e(f"v_add_f32 v{GA}, v{GA}, v44")
        e(f"v_add_f32 v{GA+1}, v{GA+1}, v46")
        e(f"v_and_b32 v23, 1, v{V_G}")
        e("v_lshlrev_b32 v23, 7, v23")
        e(f"v_lshl_add_u32 v23, v{V_L15}, 2, v23")
        e(f"v_cndmask_b32 v22, v{GA}, v{GA+1}, {sr(M_G1,2)}")
        e(f"s_lshr_b32 s28, s{S_W}, 1")
        e("s_lshl_b32 s28, s28, 8")
        e(f"s_and_b32 s29, s{S_W}, 1")
        e("s_lshl_b32 s29, s29, 6")
        e("s_add_u32 s28, s28, s29")
        e("v_add_u32 v23, s28, v23")
        e(f"ds_write_b32 v23, v22 offset:{L_GUW}")
        e("s_waitcnt lgkmcnt(0)")
        e("s_barrier")
        e(f"v_lshlrev_b32 v23, 2, v{V_LANE}")
        e(f"ds_read_b32 v24, v23 offset:{L_GUW}")
        e(f"ds_read_b32 v25, v23 offset:{L_GUW+256}")
        for t in range(4):
            for u in range(2):
                e(f"ds_read_b64_tr_b16 {vr(FB_+4*t+2*u,2)}, v{28+t} offset:{2048*u}")
        e(f"v_mul_u32_u24 v20, {FP_S*256}, v{V_G}")
        e(f"v_lshl_add_u32 v20, v{V_L15}, 4, v20")
        e(f"s_lshl_b32 s28, s{S_HF}, 2")
        e(f"s_add_u32 s28, s28, s{S_W}")
        e(f"s_mul_i32 s28, s28, {4*FP_S*256}")
        e(f"s_lshl_b32 s29, s{S_FS}, 8")
        e("s_add_u32 s28, s28, s29")
        e(f"s_add_u32 s28, s28, {WS_FP}")
        e("s_waitcnt lgkmcnt(8)")
        rbf(24); rbf(25)
        e("v_mul_f32 v26, 0xbfb8aa3b, v24")
        e("v_exp_f32 v26, v26")
        e(f"v_lshlrev_b32 v23, 1, v{V_LANE}")
        e("v_add_f32 v26, 1.0, v26")
        e("v_rcp_f32 v26, v26")
        e(f"v_and_b32 v21, 1, v{V_LANE}")
        e("v_mul_f32 v26, v24, v26")
        rbf(26)
        e("v_mul_f32 v26, v26, v25")
        e("v_cvt_pk_bf16_f32 v26, v26, v26")
        e(f"ds_write_b16 v23, v26 offset:{L_HW}")
        e("v_lshlrev_b32 v21, 6, v21")
        e(f"v_lshl_add_u32 v21, v{V_G}, 4, v21")
        e("s_waitcnt lgkmcnt(0)")
        DA = 100
        e(f"ds_read_b128 {vr(FA,4)}, v21 offset:{L_HW}")
        e(f"v_mov_b32 v37, s{S_TAG}")
        e(f"v_mov_b32 v39, s{S_TAG}")
        e("s_waitcnt lgkmcnt(0)")
        for t in range(4):
            e(f"v_mfma_f32_16x16x32_bf16 {vr(DA+4*t,4)}, {vr(FA,4)}, {vr(FB_+4*t,4)}, 0")
        nop(9)
        for rr in range(2):
            e(f"v_cndmask_b32 v32, v{DA+rr}, v{DA+4+rr}, {sr(M_G1,2)}")
            e(f"v_cndmask_b32 v33, v{DA+8+rr}, v{DA+12+rr}, {sr(M_G1,2)}")
            e(f"v_cndmask_b32 v{36+2*rr}, v32, v33, {sr(M_HI,2)}")
        e(f"buffer_store_dwordx4 {vr(36,4)}, v20, {sr(SRD_WS,4)}, s28 offen sc1")
        G.stamp(20)
        lab(lnf2)
    def blk_csetup():
        e(f"s_lshl_b32 s28, s{S_I}, 7")
        e(f"s_lshr_b32 s29, s{S_W}, 1")
        e("s_lshl_b32 s29, s29, 6")
        e("s_add_u32 s28, s28, s29")
        e("s_lshl_b32 s38, s28, 9")
        e(f"s_lshl_b32 s29, s{S_H}, 4")
        e("s_add_u32 s38, s38, s29")
        e(f"s_add_u32 s38, s38, {WS_SU}")
        e(f"v_lshlrev_b32 v52, 9, v{V_LANE}")
        e(f"s_and_b32 s34, s63, {RM}")
        e("s_lshl_b32 s34, s34, 13")
        e(f"s_lshl_b32 s28, s{S_I}, 11")
        e("s_add_u32 s34, s34, s28")
        e(f"s_add_u32 s34, s34, {WS_CF}")
        if G.touch:
            e(f"v_lshlrev_b32 v45, 16, v{V_LANE}")
            e(f"s_mov_b32 s28, {WS_OP}")
            e(f"buffer_load_dword v46, v45, {sr(SRD_WS,4)}, s28 offen sc1")
        for reg in (() if G.prew else (WS_CPF,)):
            e(f"s_add_u32 s28, s32, {reg}")
            e(f"buffer_load_dwordx4 {vr(232,4)}, v{V_L16B}, {sr(SRD_WS,4)}, s28 offen sc1")
            e(f"buffer_load_dwordx4 {vr(236,4)}, v{V_L16B}, {sr(SRD_WS,4)}, s28 offen offset:1024 sc1")
        lnw = G.newlab("nowarm")
        e("s_cmp_ge_u32 s62, 32")
        e(f"s_cbranch_scc1 {lnw}")
        e("s_mov_b32 s28, s62")
        e("s_lshl_b32 s28, s28, 13")
        e(f"s_add_u32 s28, s28, {WS_EP}")
        e(f"v_lshlrev_b32 v20, 4, v0")
        e("v_add_u32 v24, 4096, v20")
        e(f"buffer_load_dwordx4 {vr(244,4)}, v20, {sr(SRD_WS,4)}, s28 offen sc1")
        e(f"buffer_load_dwordx4 {vr(248,4)}, v24, {sr(SRD_WS,4)}, s28 offen sc1")
        if G.tout:
            G.srd(SRD_4, P_OUT, 2048)
            e("v_mov_b32 v25, 0")
            e(f"buffer_load_dword v252, v25, {sr(SRD_4,4)}, 0 offen")
        lab(lnw)
        e(f"v_lshl_add_u32 v{VD0}, v{V_G}, 15, v{V_SW}")
        e(f"v_xor_b32 v{VD1}, 128, v{VD0}")
        e(f"s_lshl_b32 s29, s{S_W}, 7")
        e(f"s_add_u32 s29, s29, s{S_I}")
        e("s_lshl_b32 s29, s29, 13")
        e(f"s_lshl_b32 s28, s{S_H}, 8")
        e("s_add_u32 s29, s29, s28")
        e(f"s_add_u32 s29, s29, {WS_OP}")
        e(f"v_lshlrev_b32 v53, 4, v{V_L15}")
        e(f"v_lshl_add_u32 v53, v{V_G}, 13, v53")
        e(f"s_lshl_b32 s28, s{S_I}, 2")
        e(f"s_add_u32 s28, s28, s{S_W}")
        e("s_lshl_b32 s28, s28, 14")
        e(f"s_lshl_b32 s39, s{S_H}, 8")
        e("s_add_u32 s28, s28, s39")
        e(f"s_add_u32 s39, s28, {WS_EP}")
        e(f"v_add_u32 v21, {R1}, v{V_TL0}")
        e(f"v_add_u32 v22, {R1}, v{V_TL1}")
    def blk_waitpre():
        lw1 = G.newlab("w1"); lw2 = G.newlab("w2")
        e(f"s_cmp_ge_u32 s{S_FS}, 43")
        e(f"s_cbranch_scc1 {lw1}")
        e(f"s_waitcnt vmcnt({0 if FFN_EARLY else (12 if G.prew else 14) + (1 if G.touch else 0)})")
        e(f"s_branch {lw2}")
        lab(lw1)
        e("s_waitcnt vmcnt(0)")
        lab(lw2)
        e("s_barrier")
        G.stamp(8)
        gemv_loadB(R0, BUV, 25, 26)
        gemv_loadB(R2, BO, 25, 26)
        G.stamp(9)
    R3, RW2 = 106496, 139264
    S_FS, S_HF = 50, 51
    BUV, BO = 160, 192
    if FFN_EARLY:
        blk_ffn_loads()
        blk_ffn_comp()
        if G.gate == 'B':
            lg = G.newlab("gate2")
            e(f"s_cmp_lg_u32 s{S_W}, 0")
            e(f"s_cbranch_scc1 {lg}")
            gate_poll()
            lab(lg)
            e("s_barrier")
        elif G.gate == 'F':
            lg = G.newlab("gate2"); lg2 = G.newlab("gate3")
            e(f"s_cmp_lt_u32 s{S_FS}, 43")
            e(f"s_cbranch_scc1 {lg2}")
            e(f"s_cmp_lg_u32 s{S_W}, 0")
            e(f"s_cbranch_scc1 {lg}")
            gate_poll()
            lab(lg)
            e("s_barrier")
            lab(lg2)
        blk_late()
        blk_csetup()
        blk_waitpre()
    else:
        blk_late()
        blk_ffn_loads()
        blk_csetup()
        blk_waitpre()
    if not FFN_EARLY:
        SAVE_S = [34, 35, 36, 37, 29]
        for k_, r_ in enumerate(SAVE_S): e(f"s_mov_b32 s{56+k_}, s{r_}")
        e("v_mov_b32 v69, v20"); e("v_mov_b32 v70, v21"); e("v_mov_b32 v71, v22"); e("v_mov_b32 v72, v24")
        blk_ffn_comp()
        for k_, r_ in enumerate(SAVE_S): e(f"s_mov_b32 s{r_}, s{56+k_}")
        e("v_mov_b32 v20, v69"); e("v_mov_b32 v21, v70"); e("v_mov_b32 v22, v71"); e("v_mov_b32 v24, v72")

    lodd = G.newlab("codd"); lj = G.newlab("cjoin")
    e(f"s_cmp_lg_u32 s{S_W}, 0")
    e(f"s_cbranch_scc1 {lodd}")
    poll(ldFB, 40, 4, [0, 1, 2, 3], RING4, 2, G.sl_flag, 35)
    lab(lodd)
    e("s_barrier")
    G.stamp(10)
    e(f"buffer_load_dwordx4 {vr(40,4)}, v52, {sr(SRD_WS,4)}, s38 offen sc1")
    dma_tile128(SRD_WS, VD0, VD1, lin(4*32768), R1, " sc1")
    e(f"s_and_b32 s28, s{S_W}, 1")
    e("s_cmp_lg_u32 s28, 0")
    e(f"s_cbranch_scc1 {lj}")
    e("s_waitcnt vmcnt(8)")
    e("v_mov_b32 v44, v40")
    wave_red("v_max_f32", 44, 45)
    e("v_sub_f32 v40, v40, v44")
    e("v_exp_f32 v40, v40")
    nop(1)
    e("v_mul_f32 v44, v40, v42")
    wave_red("v_add_f32", 44, 45)
    e("v_rcp_f32 v44, v44")
    e(f"s_lshr_b32 s29, s{S_W}, 1")
    e("s_mul_i32 s28, s29, 384")
    e(f"v_lshlrev_b32 v45, 1, v{V_LANE}")
    e("v_mul_f32 v40, v40, v44")
    e("v_add_u32 v46, s28, v45")
    e("v_cvt_pk_bf16_f32 v40, v40, v40")
    e("s_lshl_b32 s28, s29, 7")
    e("s_add_u32 s28, s28, 128")
    e(f"ds_write_b16 v46, v40 offset:{L_WGT}")
    e("v_add_u32 v46, s28, v45")
    e("v_mov_b32 v47, 0")
    e(f"ds_write_b16 v46, v47 offset:{L_WGT}")
    lab(lj)
    e(f"s_add_u32 s34, s33, {WS_CP}")
    e(f"s_add_u32 s35, s33, {WS_CPF}")
    e("s_waitcnt vmcnt(0) lgkmcnt(0)")
    e("s_barrier")
    G.stamp(11)
    gemv_loadA(V_AVR, VA, L_WGT)
    for ks in range(4):
        for t in range(2):
            for u in range(2):
                r = VB + (t*4 + ks)*4 + 2*u
                e(f"ds_read_b64_tr_b16 {vr(r,2)}, v{21+t} offset:{8192*ks + 1024*u}")
    e("s_waitcnt lgkmcnt(0)")
    gemv_mma(VA, VB, VC)
    sel_tb(VC, 40, 41)
    e(f"v_cndmask_b32 v40, v40, v41, {sr(M_HI,2)}")
    write_av(40, L_AVO)
    e("s_waitcnt lgkmcnt(0)")
    e("s_barrier")
    gemv_loadA(V_AVR, VA, L_AVO)
    e("s_waitcnt lgkmcnt(0)")
    gemv_mma(VA, BUV, VC)
    publish_units(VC, V_PUB, 35, PUBQ, fast=True)
    G.stamp(12)
    e("s_mov_b32 s37, s34")
    e(f"s_add_u32 s34, s32, {WS_CP}")
    e(f"s_add_u32 s35, s32, {WS_CPF}")
    consume4(34, 40, L_AVC, 36, 35, 37, V_PUB, PUBQ)
    e("s_waitcnt lgkmcnt(0)")
    e("s_barrier")
    G.stamp(13)
    gemv_loadA(V_AVR, VA, L_AVC)
    e("s_waitcnt lgkmcnt(0)")
    gemv_mma(VA, BO, VC)
    publish_units(VC, 53, 39, PUBQ)
    G.stamp(14)
    e("s_cmp_ge_u32 s62, 32")
    e("s_cbranch_scc1 L_wdone")
    e("s_mov_b32 s35, s62")
    e(f"v_lshlrev_b32 v20, 4, v0")
    e("s_lshl_b32 s28, s35, 13")
    e(f"s_add_u32 s36, s28, {WS_EP}")
    e(f"s_mul_i32 s28, s35, {FP_S*256}")
    e(f"s_add_u32 s37, s28, {WS_FP}")
    G.srd(SRD_1, P_X, 2048)
    e(f"v_lshlrev_b32 v21, 10, v{V_G}")
    e(f"v_lshl_add_u32 v21, v{V_L15}, 1, v21")
    e("s_lshl_b32 s28, s35, 5")
    e(f"buffer_load_ushort v22, v21, {sr(SRD_1,4)}, s28 offen")
    e("v_add_u32 v24, 4096, v20")
    e("v_add_u32 v25, 8192, v20")
    e("v_mov_b32 v23, 176")
    e("v_cmp_ge_u32 s[42:43], v0, v23")
    e(f"v_mov_b32 v26, s{S_TAG}")
    e("v_mov_b32 v27, 0")
    def ldFP(b):
        e(f"buffer_load_dwordx4 {vr(b,4)}, v20, {sr(SRD_WS,4)}, s37 offen sc1")
        e(f"buffer_load_dwordx4 {vr(b+4,4)}, v24, {sr(SRD_WS,4)}, s37 offen sc1")
        e(f"buffer_load_dwordx4 {vr(b+8,4)}, v25, {sr(SRD_WS,4)}, s37 offen sc1")
    def ldE(b):
        e(f"buffer_load_dwordx4 {vr(b,4)}, v20, {sr(SRD_WS,4)}, s36 offen sc1")
        e(f"buffer_load_dwordx4 {vr(b+4,4)}, v24, {sr(SRD_WS,4)}, s36 offen sc1")
    ldFP(108)
    poll(ldE, 100, 8, [1, 3, 5, 7], RING8, 2, G.sl_unit, 37)
    G.stamp(19)
    lp, done, skip = G.newlab("pollfp"), G.newlab("pfpdone"), G.newlab("pfpskip")
    e(f"s_mov_b32 s48, {G.spin}")
    e(f"s_branch {skip}")
    lab(lp)
    ldFP(108)
    e("s_waitcnt vmcnt(0)")
    lab(skip)
    e("v_cndmask_b32 v117, v117, v26, s[42:43]")
    e("v_cndmask_b32 v119, v119, v26, s[42:43]")
    check_tags([109, 111, 113, 115, 117, 119])
    e(f"s_cbranch_vccz {done}")
    e("s_sub_u32 s48, s48, 1")
    e(f"s_cbranch_scc0 {lp}")
    lab(done)
    G.stampval(38, 48)
    e("v_cndmask_b32 v116, v116, v27, s[42:43]")
    e("v_cndmask_b32 v118, v118, v27, s[42:43]")
    G.stamp(15)
    for rr in (0, 2):
        e(f"v_add_f32 v{100+rr}, v{100+rr}, v{104+rr}")
        e(f"v_add_f32 v{108+rr}, v{108+rr}, v{112+rr}")
    for rr in (0, 2):
        e(f"v_add_f32 v{100+rr}, v{100+rr}, v{116+rr}")
    for rr in (0, 2):
        e(f"v_add_f32 v{100+rr}, v{100+rr}, v{108+rr}")
    nop(2)
    e("v_permlane32_swap_b32 v100, v102")
    nop(1)
    e("v_add_f32 v100, v100, v102")
    e("v_mov_b32 v101, v100")
    nop(2)
    e("v_permlane16_swap_b32 v100, v101")
    e(f"v_lshrrev_b32 v27, 5, v{V_LANE}")
    e("v_add_f32 v100, v100, v101")
    e("v_lshlrev_b32 v27, 6, v27")
    e(f"v_lshl_add_u32 v27, v{V_L15}, 2, v27")
    e(f"s_lshl_b32 s28, s{S_W}, 7")
    e("v_add_u32 v28, s28, v27")
    e(f"ds_write_b32 v28, v100 offset:{L_FIN}")
    G.srd(SRD_2, P_OUT, 2048)
    e("s_waitcnt lgkmcnt(0)")
    e("s_barrier")
    e(f"s_cmp_lg_u32 s{S_W}, 0")
    e("s_cbranch_scc1 L_wdone")
    e(f"v_lshlrev_b32 v27, 2, v{V_LANE}")
    for w in range(4):
        e(f"ds_read_b32 v{104+w}, v27 offset:{L_FIN + 128*w}")
    e("s_lshl_b32 s28, s35, 5")
    e("v_lshlrev_b32 v22, 16, v22")
    e("s_waitcnt lgkmcnt(0)")
    e("v_add_f32 v104, v104, v105")
    e("v_add_f32 v106, v106, v107")
    e("v_add_f32 v104, v104, v22")
    e("v_add_f32 v104, v104, v106")
    e("v_cvt_pk_bf16_f32 v104, v104, v104")
    lo32()
    e(f"buffer_store_short v104, v21, {sr(SRD_2,4)}, s28 offen")
    e("s_cmp_lg_u32 s35, 0")
    e("s_cbranch_scc1 L_wdone0")
    e("s_mov_b64 exec, 1")
    e(f"v_mov_b32 v30, s{S_TAG}")
    e("v_mov_b32 v31, 0")
    e(f"buffer_store_dword v30, v31, {sr(SRD_WS,4)}, 0 offen offset:{WS_EPOCH}")
    lab("L_wdone0")
    e("s_mov_b64 exec, -1")
    lab("L_wdone")
    G.stamp(16)
    store_stamps()
    e("s_endpgm")

    lab("L_att")
    S_A, S_FS, S_HF = 38, 37, 39
    e(f"s_sub_u32 s{S_A}, s2, 128")
    e(f"s_lshr_b32 s{S_H}, s{S_A}, 6")
    VCK = 8
    for idx in range(8):
        x = 32*(idx & 3) + 128*(idx >> 2)
        if x == 0: e(f"v_mov_b32 v{VCK+idx}, v{V_L16B}")
        else: e(f"v_xor_b32 v{VCK+idx}, {x}, v{V_L16B}")
    e(f"s_lshl_b32 s29, s{S_A}, 7")
    e(f"s_lshl_b32 s30, s{S_W}, 5")
    e("s_add_u32 s29, s29, s30")
    e("s_lshl_b32 s29, s29, 10")
    e(f"s_lshl_b32 s31, s{S_W}, 15")
    e("s_waitcnt lgkmcnt(0)")
    if G.stamps: e("v_writelane_b32 v255, s40, 0")
    G.srd(SRD_1, P_CKV, 16777216)
    if G.pf_uk:
        G.srd(SRD_2, P_WUK, 4194304)
        e(f"s_and_b32 s28, s{S_A}, 7")
        e("s_lshl_b32 s28, s28, 2")
        e(f"s_bfe_u32 s30, s{S_A}, 0x20003")
        e("s_add_u32 s28, s28, s30")
        e("s_lshl_b32 s28, s28, 8")
        e(f"s_lshr_b32 s30, s{S_A}, 5")
        e("s_lshl_b32 s30, s30, 20")
        e("s_add_u32 s28, s28, s30")
        e(f"s_lshl_b32 s30, s{S_W}, 18")
        e("s_add_u32 s35, s28, s30")
        e(f"v_lshlrev_b32 v40, 13, v{V_G}")
        e(f"v_lshl_add_u32 v40, v{V_L15}, 4, v40")
        e(f"s_lshl_b32 s36, s{S_W}, 13")
        for n in range(8):
            e(f"s_add_u32 s30, s35, {n*4*8192}")
            e(f"s_add_u32 m0, s36, {L_QAL + n*1024}")
            nop(1)
            e(f"buffer_load_dwordx4 v40, {sr(SRD_2,4)}, s30 offen lds")
    e(f"s_load_dword s{S_TAG}, {sr(P_WS,2)}, {WS_EPOCH}")
    G.srd(SRD_WS, P_WS, 0x10000000)
    if G.skew:
        G.srd(SRD_4, P_DBG, 256)
        e(f"v_and_b32 v46, 7, v{V_LANE}")
        e("v_lshlrev_b32 v46, 2, v46")
        e(f"buffer_load_dword v47, v46, {sr(SRD_4,4)}, 0 offen sc1")
    if G.adapt:
        G.srd(SRD_4, P_DBG, 256)
        e("v_mov_b32 v46, 0")
        e("s_mov_b32 s39, 0")
    setup = []
    su = setup.append
    AA, AB, TB, TB2 = 16, 20, 24, 48
    su(f"v_and_b32 v32, 3, v{V_LANE}")
    su(f"v_bfe_u32 v33, v{V_LANE}, 3, 1")
    su("v_lshl_add_u32 v32, v33, 2, v32")
    su("v_lshlrev_b32 v32, 1, v32")
    su(f"v_xor_b32 v33, v32, v{V_G}")
    su(f"v_lshlrev_b32 v34, 10, v{V_L15}")
    su(f"s_add_u32 s37, s31, {L_CKV}")
    for j in range(4):
        su(f"v_xor_b32 v35, {4*j}, v33")
        su(f"v_lshl_add_u32 v{AB+j}, v35, 4, v34")
        su(f"v_add_u32 v{AA+j}, s37, v{AB+j}")
        if L_QAL: su(f"v_add_u32 v{AB+j}, {L_QAL}, v{AB+j}")
    su(f"v_bfe_u32 v32, v{V_LANE}, 2, 2")
    su(f"v_and_b32 v33, 3, v{V_LANE}")
    su(f"v_and_b32 v34, 1, v{V_G}")
    su("v_lshl_add_u32 v35, v34, 2, v32")
    su("v_lshlrev_b32 v35, 1, v35")
    su(f"v_lshl_add_u32 v36, v{V_G}, 3, v32")
    su("v_lshlrev_b32 v36, 10, v36")
    su("v_lshrrev_b32 v37, 1, v33")
    su("v_lshl_add_u32 v36, v37, 4, v36")
    su("v_and_b32 v37, 1, v33")
    su("v_lshl_add_u32 v36, v37, 3, v36")
    su(f"s_lshl_b32 s28, s{S_W}, 8")
    su(f"s_add_u32 s28, s28, {L_CKV}")
    su("v_add_u32 v36, s28, v36")
    for t in range(8):
        su(f"v_xor_b32 v37, {2*t}, v35")
        su(f"v_lshl_add_u32 v{TB+t}, v37, 4, v36")
        su(f"v_add_u32 v{TB2+t}, 65536, v{TB+t}")
    su(f"v_and_b32 v57, 31, v{V_LANE}")
    su("v_lshlrev_b32 v57, 2, v57")
    su(f"s_lshl_b32 s28, s{S_W}, 7")
    su("v_add_u32 v56, s28, v57")
    su(f"v_lshlrev_b32 v58, 2, v{V_L15}")
    su(f"v_lshrrev_b32 v32, 1, v{V_G}")
    su(f"s_lshl_b32 s28, s{S_W}, 2")
    su("v_add_u32 v32, s28, v32")
    su(f"v_and_b32 v33, 1, v{V_G}")
    su("v_lshlrev_b32 v33, 3, v33")
    su(f"v_lshl_add_u32 v33, v{V_L15}, 8, v33")
    su(f"v_xor_b32 v34, v32, v{V_L15}")
    su("v_lshl_add_u32 v59, v34, 4, v33")
    su("v_xor_b32 v63, 32, v59")
    for ks in range(4):
        su(f"v_add_u32 v34, {4*ks}, v{V_G}")
        su(f"v_xor_b32 v34, v34, v{V_L15}")
        su("v_lshlrev_b32 v34, 4, v34")
        su(f"v_lshl_add_u32 v{120+ks}, v{V_L15}, 8, v34")
    su(f"v_lshlrev_b32 v126, 4, v{V_L15}")
    su(f"v_lshl_add_u32 v124, v{V_G}, 10, v126")
    su(f"v_lshlrev_b32 v125, 4, v{V_LANE}")
    su(f"v_and_b32 v126, 31, v{V_LANE}")
    su("v_lshlrev_b32 v126, 7, v126")
    su(f"s_and_b32 s28, s{S_W}, 1")
    su("s_lshl_b32 s28, s28, 7")
    su(f"v_xor_b32 v127, s28, v{V_L16B}")
    for j in range(32):
        idx = (j & 3) + 4*((j >> 3) & 1)
        if j == 0: e("s_mov_b32 s30, s29")
        else: e(f"s_add_u32 s30, s29, {j*1024}")
        e(f"s_add_u32 m0, s31, {L_CKV + j*1024}")
        nop(1)
        e(f"buffer_load_dwordx4 v{VCK+idx}, {sr(SRD_1,4)}, s30 offen{NTC} lds")
        if j == 1:
            for s_ in setup: e(s_)
        if G.adapt:
            if j < G.adapt_max:
                lsk = G.newlab("unthr")
                e("s_cmp_lg_u32 s39, 0")
                e(f"s_cbranch_scc1 {lsk}")
                e(f"buffer_load_dword v47, v46, {sr(SRD_4,4)}, 0 offen sc1")
                e("s_waitcnt vmcnt(0)")
                e("v_readfirstlane_b32 s28, v47")
                e(f"s_cmp_ge_u32 s28, {G.adapt_thr}")
                e("s_cselect_b32 s39, 1, 0")
                lab(lsk)
        elif G.skew and j < 3:
            if j == 0:
                e("s_waitcnt vmcnt(0)")
                e("v_cmp_ne_u32 vcc, 0, v47")
                e("s_and_b32 s28, vcc_lo, 0xff")
                e("s_bcnt1_i32_b32 s39, s28")
            else:
                lsk = G.newlab("unthr")
                e(f"s_cmp_ge_u32 s39, {G.skew_b if j == 1 else G.skew_a}")
                e(f"s_cbranch_scc1 {lsk}")
                e("s_waitcnt vmcnt(0)")
                lab(lsk)
        else:
            w_now = G.thr_w if j < G.thr_n else G.thr2_w
            if w_now and j >= w_now - 1 and j < 31:
                e(f"s_waitcnt vmcnt({w_now - 1})")
    G.stamp(1)
    e(f"s_and_b32 s34, s63, {RM}")
    e("s_lshl_b32 s34, s34, 11")
    e(f"s_add_u32 s34, s34, {WS_FB}")
    e("s_waitcnt lgkmcnt(0)")
    e(f"s_add_u32 s{S_TAG}, s{S_TAG}, 0x9e3779b9")
    e(f"s_lshl_b32 s29, s{S_H}, 15")
    e(f"s_lshl_b32 s30, s{S_W}, 13")
    e("s_add_u32 s29, s29, s30")
    e(f"s_add_u32 s29, s29, {WS_QA}")
    e(f"s_lshl_b32 s31, s{S_W}, 13")
    if G.touch:
        e(f"s_lshl_b32 s28, s{S_A}, 2")
        e(f"s_add_u32 s28, s28, s{S_W}")
        e("s_lshl_b32 s28, s28, 13")
        e(f"s_add_u32 s28, s28, {WS_OP}")
        e("v_mov_b32 v45, 0")
        e("s_mov_b64 exec, 1")
        e(f"buffer_load_dword v46, v45, {sr(SRD_WS,4)}, s28 offen sc1")
        e(f"s_mov_b32 s28, {WS_SU}")
        e(f"buffer_load_dword v47, v45, {sr(SRD_WS,4)}, s28 offen sc1")
        e("s_mov_b64 exec, -1")
    if G.bwave:
        ldFB(236)
        e("s_waitcnt vmcnt(0)")
        G.stamp(2)
        lbp = G.newlab("nobpoll")
        check_tags([236, 237, 238, 239])
        e(f"s_cbranch_vccz {lbp}")
        poll(ldFB, 40, 4, [0, 1, 2, 3], [240, 244, 248], 2, G.sl_flag, 32)
        lab(lbp)
        G.stamp(3)
        for j in range(8):
            if j & 3: e(f"v_xor_b32 v44, {32*(j&3)}, v127")
            else: e("v_mov_b32 v44, v127")
            if j == 0: e("s_mov_b32 s30, s29")
            else: e(f"s_add_u32 s30, s29, {j*1024}")
            e(f"s_add_u32 m0, s31, {L_QAL + j*1024}")
            nop(1)
            e(f"buffer_load_dwordx4 v44, {sr(SRD_WS,4)}, s30 offen sc1 lds")
        for ks in range(16):
            for kt in range(2):
                e(f"ds_read_b128 {ar((kt*16+ks)*4,4)}, v{AA+(ks&3)} offset:{16384*kt + 256*(ks>>2)}")
        e("s_barrier")
    else:
        lbp0 = G.newlab("nobp0")
        e(f"s_cmp_lg_u32 s{S_W}, 0")
        e(f"s_cbranch_scc1 {lbp0}")
        ldFB(236)
        lab(lbp0)
        e("s_waitcnt vmcnt(0)")
        G.stamp(2)
        lbp = G.newlab("nobpoll")
        e(f"s_cmp_lg_u32 s{S_W}, 0")
        e(f"s_cbranch_scc1 {lbp}")
        check_tags([236, 237, 238, 239])
        e(f"s_cbranch_vccz {lbp}")
        poll(ldFB, 40, 4, [0, 1, 2, 3], [240, 244, 248], 2, G.sl_flag, 32)
        lab(lbp)
        e("s_barrier")
        G.stamp(3)
        for j in range(8):
            if j & 3: e(f"v_xor_b32 v44, {32*(j&3)}, v127")
            else: e("v_mov_b32 v44, v127")
            if j == 0: e("s_mov_b32 s30, s29")
            else: e(f"s_add_u32 s30, s29, {j*1024}")
            e(f"s_add_u32 m0, s31, {L_QAL + j*1024}")
            nop(1)
            e(f"buffer_load_dwordx4 v44, {sr(SRD_WS,4)}, s30 offen sc1 lds")
        for ks in range(16):
            for kt in range(2):
                e(f"ds_read_b128 {ar((kt*16+ks)*4,4)}, v{AA+(ks&3)} offset:{16384*kt + 256*(ks>>2)}")
    for n in range(32):
        ks_, t = n >> 3, n & 7
        base = (TB2 if ks_ >= 2 else TB) + t
        for u in range(2):
            e(f"ds_read_b64_tr_b16 {ar(128+n*4+2*u,2)}, v{base} offset:{(ks_&1)*32768 + 4096*u}")
    e(f"s_lshl_b32 s28, s{S_A}, 2")
    e(f"s_add_u32 s28, s28, s{S_W}")
    e("s_lshl_b32 s28, s28, 13")
    e(f"s_add_u32 s34, s28, {WS_OP}")
    e("s_add_u32 s35, s34, 4096")
    e(f"s_lshl_b32 s28, s{S_W}, 7")
    e(f"s_add_u32 s28, s28, s{S_A}")
    e("s_lshl_b32 s28, s28, 9")
    e(f"s_add_u32 s36, s28, {WS_SU}")
    e(f"s_lshl_b32 s28, s{S_W}, 7")
    e(f"s_add_u32 s28, s28, s{S_A}")
    e("s_lshl_b32 s28, s28, 4")
    e(f"s_add_u32 s37, s28, {WS_CF}")
    e(f"v_lshlrev_b32 v126, 13, v{V_LANE}")
    e(f"v_mov_b32 v252, s{S_TAG}")
    e(f"v_mov_b32 v253, s{S_TAG}")
    e("s_waitcnt vmcnt(0) lgkmcnt(0)")
    e("s_barrier")
    G.stamp(4)
    QB, SC = 64, 192
    def rdB(ks):
        st = ks % 3
        for ht in range(2):
            e(f"ds_read_b128 {vr(QB+(st*2+ht)*4,4)}, v{AB+(ks&3)} offset:{16384*ht + 256*(ks>>2)}")
    def pslot(n): return 32 + n
    rdB(0); rdB(1)
    for ks in range(16):
        if ks + 2 < 16:
            rdB(ks + 2); e("s_waitcnt lgkmcnt(4)")
        elif ks + 1 < 16: e("s_waitcnt lgkmcnt(2)")
        else: e("s_waitcnt lgkmcnt(0)")
        st = ks % 3
        for kt in range(2):
            for ht in range(2):
                d = SC + (kt*2+ht)*4
                c = "0" if ks == 0 else vr(d, 4)
                e(f"v_mfma_f32_16x16x32_bf16 {vr(d,4)}, {ar((kt*16+ks)*4,4)}, {vr(QB+(st*2+ht)*4,4)}, {c}")
    nop(9)
    G.stamp(5)
    MXR = 32
    for step in range(4):
        for ht in range(2):
            a = SC + ht*4; b = SC + (2+ht)*4
            if step == 0: e(f"v_max3_f32 v{MXR+ht}, v{a}, v{a+1}, v{a+2}")
            elif step == 1: e(f"v_max3_f32 v{MXR+ht}, v{MXR+ht}, v{a+3}, v{b}")
            elif step == 2: e(f"v_max3_f32 v{MXR+ht}, v{MXR+ht}, v{b+1}, v{b+2}")
            else: e(f"v_max_f32 v{MXR+ht}, v{MXR+ht}, v{b+3}")
    xg_reduce2("v_max_f32", MXR, MXR+1, MXR+2, MXR+3)
    e(f"v_cndmask_b32 v36, v{MXR}, v{MXR+1}, {sr(M_G1,2)}")
    e(f"ds_write_b32 v56, v36 offset:{L_MX}")
    e("s_waitcnt lgkmcnt(0)")
    e("s_barrier")
    for ht in range(2):
        for w in range(4):
            e(f"ds_read_b32 v{40+ht*4+w}, v58 offset:{L_MX + 128*w + 64*ht}")
    e("s_waitcnt lgkmcnt(0)")
    sm = []
    a_ = sm.append
    for ht in range(2):
        a_(f"v_max3_f32 v{MXR+ht}, v{40+ht*4}, v{41+ht*4}, v{42+ht*4}")
    for ht in range(2):
        a_(f"v_max_f32 v{MXR+ht}, v{MXR+ht}, v{43+ht*4}")
    LS = 34
    for kt in range(2):
        for ht in range(2):
            d = SC + (kt*2+ht)*4
            for r in range(4): a_(f"v_sub_f32 v{d+r}, v{d+r}, v{MXR+ht}")
    for kt in range(2):
        for ht in range(2):
            d = SC + (kt*2+ht)*4
            for r in range(4): a_(f"v_exp_f32 v{d+r}, v{d+r}")
    for kt in range(2):
        for ht in range(2):
            d = SC + (kt*2+ht)*4
            q = 88 + (kt*2+ht)*2
            a_(f"v_cvt_pk_bf16_f32 v{q}, v{d}, v{d+1}")
            a_(f"v_cvt_pk_bf16_f32 v{q+1}, v{d+2}, v{d+3}")
            a_(f"ds_write_b64 v{63 if kt else 59}, {vr(q,2)} offset:{L_P + 4096*ht}")
    for ht in range(2):
        a = SC + ht*4
        a_(f"v_add_f32 v{LS+ht}, v{a}, v{a+1}")
    for x in (2, 3, 8, 9, 10, 11):
        for ht in range(2):
            a_(f"v_add_f32 v{LS+ht}, v{LS+ht}, v{SC+ht*4+x}")
    xg_reduce2("v_add_f32", LS, LS+1, 46, 47, emit=a_)
    a_(f"v_cndmask_b32 v36, v{LS}, v{LS+1}, {sr(M_G1,2)}")
    a_(f"ds_write_b32 v56, v36 offset:{L_LP}")
    for ins in sm: e(ins)
    e("s_waitcnt lgkmcnt(0)")
    e("s_barrier")
    G.stamp(6)
    PA, OC = 208, 128
    for ht in range(2):
        for ks in range(4):
            e(f"ds_read_b128 {vr(PA+(ht*4+ks)*4,4)}, v{120+ks} offset:{L_P + 4096*ht}")
    for w in range(4):
        e(f"ds_read_b32 v{240+w}, v57 offset:{L_LP + 128*w}")
    def mm(ks, t, ht):
        d = OC + (ht*8+t)*4
        c = "0" if ks == 0 else vr(d, 4)
        e(f"v_mfma_f32_16x16x32_bf16 {vr(d,4)}, {vr(PA+(ht*4+ks)*4,4)}, {ar(pslot(ks*8+t)*4,4)}, {c}")
    ST0 = 88
    for ks in range(4):
        e(f"s_waitcnt lgkmcnt({11 - ks})")
        for t in range(8): mm(ks, t, 0)
    e("s_waitcnt lgkmcnt(0)")
    cv = []
    for tp in range(4):
        for r in range(4):
            cv.append(f"v_cvt_pk_bf16_f32 v{ST0+4*r+tp}, v{OC+(2*tp)*4+r}, v{OC+(2*tp+1)*4+r}")
    seq = [(ks, t) for ks in range(4) for t in range(8)]
    for idx, (ks, t) in enumerate(seq):
        mm(ks, t, 1)
        if 8 <= idx < 24: e(cv[idx - 8])
        if idx == 24:
            for r in range(4):
                e(f"buffer_store_dwordx4 {vr(ST0+4*r,4)}, v124, {sr(SRD_WS,4)}, s34 offen offset:{r*256} sc1")
    G.stamp(7)
    e("v_add_f32 v240, v240, v241")
    e("v_add_f32 v242, v242, v243")
    e(f"v_cndmask_b32 v44, v{MXR}, v{MXR+1}, {sr(M_G1,2)}")
    e("v_mov_b32 v45, 0")
    e("v_add_f32 v46, v240, v242")
    e("v_mov_b32 v47, 0")
    nop(4)
    for r in range(4):
        for tp in range(4):
            e(f"v_cvt_pk_bf16_f32 v{ST0+16+4*r+tp}, v{OC+(8+2*tp)*4+r}, v{OC+(8+2*tp+1)*4+r}")
        e(f"buffer_store_dwordx4 {vr(ST0+16+4*r,4)}, v124, {sr(SRD_WS,4)}, s35 offen offset:{r*256} sc1")
    lo32()
    e(f"buffer_store_dwordx4 {vr(44,4)}, v125, {sr(SRD_WS,4)}, s36 offen sc1")
    e(f"s_mov_b64 exec, {hex(REX)}")
    e("s_waitcnt vmcnt(0)")
    G.stamp(8)
    e(f"buffer_store_dwordx2 {vr(252,2)}, v126, {sr(SRD_WS,4)}, s37 offen sc1")
    e("s_mov_b64 exec, -1")
    G.stamp(9)
    lab("L_adone")
    store_stamps()
    lab("L_end")
    e("s_endpgm")

    tail = []
    if prepost:
        for nm, off, spin in (("pre_kernel", 0x900000, 400), ("post_kernel", 0x900100, 0)):
            tail += [f".globl {nm}", ".p2align 8", f".type {nm},@function", f"{nm}:",
                     "  s_memrealtime s[10:11]",
                     "  s_cmp_ge_u32 s2, 1", f"  s_cbranch_scc1 L_{nm}_end",
                     "  s_load_dwordx2 s[4:5], s[0:1], 96"]
            if spin:
                tail += [f"  s_mov_b32 s6, {spin}", f"L_{nm}_sp:", "  s_sleep 8", "  s_sub_u32 s6, s6, 1", "  s_cmp_lg_u32 s6, 0", f"  s_cbranch_scc1 L_{nm}_sp",
                         "  s_memrealtime s[10:11]"]
            tail += ["  s_waitcnt lgkmcnt(0)", "  s_mov_b32 s12, s4", "  s_and_b32 s13, s5, 0xffff", "  s_mov_b32 s14, 0x10000000", "  s_mov_b32 s15, 0x20000",
                     "  v_mov_b32 v1, s10", f"  v_mov_b32 v2, {off}", "  s_mov_b64 exec, 1",
                     "  buffer_store_dword v1, v2, s[12:15], 0 offen", "  s_waitcnt vmcnt(0)", f"L_{nm}_end:", "  s_endpgm"]
        tail.append('.section .rodata,"a"')
        for nm in ("pre_kernel", "post_kernel"):
            tail += [".p2align 6", f".amdhsa_kernel {nm}", "  .amdhsa_next_free_vgpr 32",
                 "  .amdhsa_next_free_sgpr 24", "  .amdhsa_accum_offset 32", "  .amdhsa_group_segment_fixed_size 0",
                 "  .amdhsa_kernarg_size 104", "  .amdhsa_user_sgpr_count 2", "  .amdhsa_user_sgpr_kernarg_segment_ptr 1",
                 "  .amdhsa_system_sgpr_workgroup_id_x 1", ".end_amdhsa_kernel"]
    if extra_empty:
        tail += [".globl empty_kernel", ".p2align 8", ".type empty_kernel,@function", "empty_kernel:", "  s_endpgm"]
        tail += ['.section .rodata,"a"', ".p2align 6", ".amdhsa_kernel empty_kernel", "  .amdhsa_next_free_vgpr 32",
                 "  .amdhsa_next_free_sgpr 16", "  .amdhsa_accum_offset 32", "  .amdhsa_group_segment_fixed_size 0",
                 "  .amdhsa_kernarg_size 104", "  .amdhsa_user_sgpr_count 2", "  .amdhsa_user_sgpr_kernarg_segment_ptr 1",
                 "  .amdhsa_system_sgpr_workgroup_id_x 1", ".end_amdhsa_kernel"]
    tail.append('.section .rodata,"a"')
    tail.append(".p2align 6")
    tail.append(f".amdhsa_kernel {NAME}_kernel")
    tail.append("  .amdhsa_next_free_vgpr 512")
    tail.append("  .amdhsa_next_free_sgpr 102")
    tail.append("  .amdhsa_accum_offset 256")
    tail.append("  .amdhsa_group_segment_fixed_size 0")
    tail.append("  .amdhsa_kernarg_size 104")
    tail.append("  .amdhsa_user_sgpr_count 2")
    tail.append("  .amdhsa_user_sgpr_kernarg_segment_ptr 1")
    tail.append("  .amdhsa_system_sgpr_workgroup_id_x 1")
    tail.append(".end_amdhsa_kernel")
    for ln in G.L:
        if "buffer_" in ln:
            m = re.search(r"offset:(\d+)", ln)
            assert not m or int(m.group(1)) <= 4095, ln
    return "\n".join(hdr + G.L + tail) + "\n"

if __name__ == "__main__":
    import argparse
    ap = argparse.ArgumentParser()
    ap.add_argument("-o", default=f"cdna_kernels/{NAME}.s")
    ap.add_argument("--stamps", action="store_true")
    ap.add_argument("--extra-empty", type=int, default=0)
    ap.add_argument("--prepost", action="store_true")
    ap.add_argument("--set", action="append", default=[], help="key=value generator option")
    a = ap.parse_args()
    kw = {}
    for s_ in a.set:
        k, v = s_.split("=")
        kw[k] = int(v) if re.fullmatch(r"-?\d+", v) else v
    s = build(stamps=a.stamps, extra_empty=a.extra_empty, prepost=a.prepost, **kw)
    open(a.o, "w").write(s)
    print("wrote", a.o, len(s), "bytes")
```

```python
import sys, math, struct, re
NAME = "parallel_sum__compressed_kv_cla__glu_gated_swiglu__decode"

WS_EPOCH = 0x0
WS_FB    = 0x1000
WS_F1    = 0x660000
WS_F1F   = 0x640000
WS_QP    = 0x20000
WS_QA    = 0x60000
WS_CP    = 0x70000
WS_EP    = 0xB0000
WS_FP    = 0xF0000
WS_SU    = 0x150000
WS_QPF   = 0x190000
WS_CPF   = 0x600000
WS_CF    = 0x1D0000
WS_OP    = 0x200000
WS_STAMP = 0x800000
FP_S = 48
NFFN = 86

R0, R1, R2 = 8192, 40960, 73728
L_XN  = 0
L_AVQ = 2048
L_AVO = L_AVQ + 512
L_AVC = L_AVO + 512
L_WGT = L_AVC + 512
L_QS  = L_WGT + 512
L_FIN = L_QS + 512
L_GUW = L_FIN + 512
L_HW = L_GUW + 512
L_CKV = 32768
L_QAL = 0
L_MX  = 32768
L_LP  = 32768 + 512
L_P   = 32768 + 4096
L_GU  = 16384
L_H   = 16384 + 512
LDS_BYTES = 163840

P_X, P_CKV, P_WQ, P_WUK, P_WUV, P_WO, P_BX, P_W1, P_W3, P_W2, P_OUT, P_DBG, P_WS = 64, 66, 68, 70, 72, 74, 76, 78, 80, 82, 84, 86, 88
S_W, S_H, S_I, S_TAG = 3, 4, 5, 6
SRD_WS, SRD_1, SRD_2, SRD_3, SRD_4 = 8, 12, 16, 20, 24
M_G1, M_HI = 44, 46
V_LANE, V_L15, V_G, V_L16B, V_SW, V_TL0, V_TL1 = 1, 2, 3, 4, 5, 6, 7

def vr(a, n): return f"v[{a}:{a+n-1}]"
def ar(a, n): return f"a[{a}:{a+n-1}]"
def sr(a, n): return f"s[{a}:{a+n-1}]"
def fbits(x): return hex(struct.unpack("<I", struct.pack("<f", x))[0])

class Gen:
    def __init__(self, **kw):
        d = dict(stamps=False, nt_ckv=0, nt_w=1, spin=200000, thr_n=3, thr_w=1, thr2_w=0,
                 gate='N', depth=3, sl_unit=1, sl_flag=4, uk_late=1, fast_k=24, pf_uk=0, prew=0, order='A', touch=0, pf_kv=16, split=0, fmap=1, bwave=0, ukl=0, tout=0, skew=0, skew_a=3, skew_b=4, adapt=0, adapt_thr=64, adapt_max=5)
        d.update(kw)
        self.__dict__.update(d)
        self.L = []
        self.nlab = 0
    def e(self, s): self.L.append("  " + s)
    def lab(self, s): self.L.append(s + ":")
    def newlab(self, p):
        self.nlab += 1
        return f"L_{p}_{self.nlab}"
    def nop(self, n):
        while n > 0:
            k = min(n, 16)
            self.e(f"s_nop {k-1}")
            n -= k
    def stamp(self, idx):
        if not self.stamps: return
        self.e("s_memrealtime s[40:41]")
        self.e("s_waitcnt lgkmcnt(0)")
        self.e(f"v_writelane_b32 v255, s40, {idx}")
    def stampval(self, idx, sreg):
        if not self.stamps: return
        self.e(f"v_writelane_b32 v255, s{sreg}, {idx}")
    def srd(self, dst, ptr, size):
        self.e(f"s_mov_b32 s{dst}, s{ptr}")
        self.e(f"s_and_b32 s{dst+1}, s{ptr+1}, 0xffff")
        self.e(f"s_mov_b32 s{dst+2}, {size}")
        self.e(f"s_mov_b32 s{dst+3}, 0x20000")

def build(extra_empty=0, prepost=False, **kw):
    G = Gen(**kw)
    RM = 3 if G.split else 7
    REX = 0xf if G.split else 0xff
    e, lab, nop = G.e, G.lab, G.nop
    NTW = " nt" if G.nt_w else ""
    NTC = " nt" if G.nt_ckv else ""
    hdr = []
    if prepost:
        hdr.append(f"; @launch kernel=pre_kernel grid=(256,1,1) block=(64,1,1) lds=0")
        hdr.append(f"; @launch kernel={NAME}_kernel grid=(256,1,1) block=(256,1,1) lds={LDS_BYTES}")
        hdr.append(f"; @launch kernel=post_kernel grid=(256,1,1) block=(64,1,1) lds=0")
    elif extra_empty:
        hdr.append(f"; @launch kernel={NAME}_kernel grid=(256,1,1) block=(256,1,1) lds={LDS_BYTES}")
        for _ in range(extra_empty):
            hdr.append(f"; @launch kernel=empty_kernel grid=(256,1,1) block=(256,1,1) lds=0")
    else:
        hdr.append(f"; @launch grid=(256,1,1) block=(256,1,1) lds={LDS_BYTES}")
    hdr.append('.amdgcn_target "amdgcn-amd-amdhsa--gfx950"')
    hdr.append(".text")
    hdr.append(f".globl {NAME}_kernel")
    hdr.append(".p2align 8")
    hdr.append(f".type {NAME}_kernel,@function")
    hdr.append(f"{NAME}_kernel:")

    def lo32():
        e("s_mov_b32 exec_lo, -1"); e("s_mov_b32 exec_hi, 0")
    def check_tags(tagregs):
        first = True
        for k in range(0, len(tagregs), 2):
            a = tagregs[k]; b = tagregs[k+1] if k + 1 < len(tagregs) else tagregs[k]
            e(f"v_xor_b32 v61, s{S_TAG}, v{a}")
            e(f"v_xor_b32 v62, s{S_TAG}, v{b}")
            if first:
                e("v_or_b32 v60, v61, v62"); first = False
            else:
                e("v_or3_b32 v60, v60, v61, v62")
        e("v_cmp_ne_u32 vcc, 0, v60")
    def poll(mk_loads, base, nregs, tagoffs, ring, nld, sleep, cnt_idx=None):
        ring = ring[:G.depth]
        D = len(ring)
        lp, done = G.newlab("poll"), G.newlab("pdone")
        e(f"s_mov_b32 s48, {G.spin}")
        mk = mk_loads if isinstance(mk_loads, (list, tuple)) else [mk_loads] * D
        for k in range(D - 1):
            mk[k](ring[k])
            if sleep: e(f"s_sleep {sleep}")
        exits = [G.newlab("pexit") for _ in range(D)]
        lab(lp)
        for k in range(D):
            mk[(k + D - 1) % D](ring[(k + D - 1) % D])
            e(f"s_waitcnt vmcnt({(D-1)*nld})")
            check_tags([ring[k] + o for o in tagoffs])
            e(f"s_cbranch_vccz {exits[k]}")
            if sleep: e(f"s_sleep {sleep}")
        e("s_sub_u32 s48, s48, 1")
        e(f"s_cbranch_scc0 {lp}")
        for k in range(D):
            lab(exits[k])
            for r in range(nregs): e(f"v_mov_b32 v{base+r}, v{ring[k]+r}")
            if k < D - 1: e(f"s_branch {done}")
        lab(done)
        if cnt_idx is not None: G.stampval(cnt_idx, 48)
    def dual_poll(ld_fast, ld_slow, slow_store, base, nregs, tagoffs, ring, nld, cnt_idx):
        lp, x0, x1, done = G.newlab("fp"), G.newlab("fx0"), G.newlab("fx1"), G.newlab("fdone")
        r0, r1 = ring[0], ring[1]
        e(f"s_mov_b32 s49, {G.fast_k}")
        ld_fast(r0)
        lab(lp)
        for (a, b, x) in ((r0, r1, x0), (r1, r0, x1)):
            ld_fast(b)
            e(f"s_waitcnt vmcnt({nld})")
            check_tags([a + o for o in tagoffs])
            e(f"s_cbranch_vccz {x}")
        e("s_sub_u32 s49, s49, 1")
        e(f"s_cbranch_scc0 {lp}")
        slow_store()
        poll([ld_fast, ld_slow, ld_fast], base, nregs, tagoffs, ring, nld, G.sl_unit, cnt_idx)
        e(f"s_branch {done}")
        for (a, x) in ((r0, x0), (r1, x1)):
            lab(x)
            for r in range(nregs): e(f"v_mov_b32 v{base+r}, v{a+r}")
            slow_store()
            if x == x0: e(f"s_branch {done}")
        lab(done)
        G.stampval(cnt_idx + 10, 49)
    def dma_tile128(srd, v0, v1, soff_fn, lds_base, flags):
        e(f"s_lshl_b32 s31, s{S_W}, 13")
        for n in range(8):
            soff_fn(n)
            e(f"s_add_u32 m0, s31, {lds_base + n*1024}")
            v = v1 if (n >> 1) & 1 else v0
            nop(1)
            e(f"buffer_load_dwordx4 v{v}, {sr(srd,4)}, s30 offen{flags} lds")
    def lin(step):
        def f(n):
            if n == 0: e("s_mov_b32 s30, s29")
            else: e(f"s_add_u32 s30, s29, {n*step}")
        return f
    def gemv_loadB(base, vB, tmp0, tmp1):
        if base + 3*8192 + 1024 <= 65535:
            a0, a1, off = V_TL0, V_TL1, base
        else:
            e(f"v_add_u32 v{tmp0}, {base}, v{V_TL0}")
            e(f"v_add_u32 v{tmp1}, {base}, v{V_TL1}")
            a0, a1, off = tmp0, tmp1, 0
        for ks in range(4):
            for t in range(2):
                for u in range(2):
                    r = vB + (t*4 + ks)*4 + 2*u
                    e(f"ds_read_b64_tr_b16 {vr(r,2)}, v{a1 if t else a0} offset:{off + 8192*ks + 1024*u}")
    def gemv_loadA(vaddr, vA, off=0):
        for ks in range(4):
            e(f"ds_read_b128 {vr(vA+4*ks,4)}, v{vaddr} offset:{off + 64*ks}")
    def gemv_mma(vA, vB, vC):
        for ks in range(4):
            for t in range(2):
                c = "0" if ks == 0 else vr(vC+4*t, 4)
                e(f"v_mfma_f32_16x16x32_bf16 {vr(vC+4*t,4)}, {vr(vA+4*ks,4)}, {vr(vB+(t*4+ks)*4,4)}, {c}")
        nop(9)
    def sel_tb(vC, d0, d1):
        e(f"v_cndmask_b32 v{d0}, v{vC}, v{vC+4}, {sr(M_G1,2)}")
        e(f"v_cndmask_b32 v{d1}, v{vC+1}, v{vC+5}, {sr(M_G1,2)}")
    def publish_units(vC, voff, soff, q, fast=False):
        sel_tb(vC, q, q+2)
        lo32()
        e(f"buffer_store_dwordx4 {vr(q,4)}, v{voff}, {sr(SRD_WS,4)}, s{soff} offen" + ("" if fast else " sc1"))
        e("s_mov_b64 exec, -1")
    def wave_red(op, v, tmp):
        for r in (8, 4, 2, 1):
            nop(2)
            e(f"{op}_dpp v{v}, v{v}, v{v} row_ror:{r} row_mask:0xf bank_mask:0xf")
        e(f"v_mov_b32 v{tmp}, v{v}")
        nop(2)
        e(f"v_permlane16_swap_b32 v{v}, v{tmp}")
        nop(1)
        e(f"{op} v{v}, v{v}, v{tmp}")
        e(f"v_mov_b32 v{tmp}, v{v}")
        nop(2)
        e(f"v_permlane32_swap_b32 v{v}, v{tmp}")
        nop(1)
        e(f"{op} v{v}, v{v}, v{tmp}")
    def xg_reduce2(op, va, vb, ta, tb, emit=None):
        em = emit or e
        for perm in ("v_permlane16_swap_b32", "v_permlane32_swap_b32"):
            em(f"v_mov_b32 v{ta}, v{va}")
            em(f"v_mov_b32 v{tb}, v{vb}")
            em("s_nop 0")
            em(f"{perm} v{va}, v{ta}")
            em(f"{perm} v{vb}, v{tb}")
            em("s_nop 0")
            em(f"{op} v{va}, v{va}, v{ta}")
            em(f"{op} v{vb}, v{vb}, v{tb}")
    def wave_red2(op, va, vb, ta, tb):
        for r in (8, 4, 2, 1):
            nop(1)
            e(f"{op}_dpp v{va}, v{va}, v{va} row_ror:{r} row_mask:0xf bank_mask:0xf")
            e(f"{op}_dpp v{vb}, v{vb}, v{vb} row_ror:{r} row_mask:0xf bank_mask:0xf")
        xg_reduce2(op, va, vb, ta, tb)
    def rbf(v):
        e(f"v_cvt_pk_bf16_f32 v{v}, v{v}, v{v}")
        e(f"v_lshlrev_b32 v{v}, 16, v{v}")
    def layernorm(X0, X1, F0, F1, T, OUT):
        S0, S1, T0, T1, Q0, Q1, U0, U1 = range(T, T+8)
        for (X, F) in ((X0, F0), (X1, F1)):
            for k in range(4):
                e(f"v_lshlrev_b32 v{F+2*k}, 16, v{X+k}")
                e(f"v_and_b32 v{F+2*k+1}, 0xffff0000, v{X+k}")
        e(f"v_add_f32 v{S0}, v{F0}, v{F0+1}"); e(f"v_add_f32 v{S1}, v{F1}, v{F1+1}")
        for k in range(2, 8):
            e(f"v_add_f32 v{S0}, v{S0}, v{F0+k}"); e(f"v_add_f32 v{S1}, v{S1}, v{F1+k}")
        wave_red2("v_add_f32", S0, S1, T0, T1)
        e("s_mov_b32 s28, 0x3b000000")
        e(f"v_mul_f32 v{S0}, s28, v{S0}")
        e(f"v_mul_f32 v{S1}, s28, v{S1}")
        for k in range(8):
            e(f"v_sub_f32 v{U0}, v{F0+k}, v{S0}")
            e(f"v_sub_f32 v{U1}, v{F1+k}, v{S1}")
            if k == 0:
                e(f"v_mul_f32 v{Q0}, v{U0}, v{U0}"); e(f"v_mul_f32 v{Q1}, v{U1}, v{U1}")
            else:
                e(f"v_fmac_f32 v{Q0}, v{U0}, v{U0}"); e(f"v_fmac_f32 v{Q1}, v{U1}, v{U1}")
        wave_red2("v_add_f32", Q0, Q1, T0, T1)
        e("s_mov_b32 s29, 0x3727c5ac")
        def both(f): f(Q0, S0); f(Q1, S1)
        both(lambda Q, S: e(f"v_mul_f32 v{Q}, s28, v{Q}"))
        both(lambda Q, S: e(f"v_cvt_pk_bf16_f32 v{Q}, v{Q}, v{Q}"))
        both(lambda Q, S: e(f"v_lshlrev_b32 v{Q}, 16, v{Q}"))
        both(lambda Q, S: e(f"v_add_f32 v{Q}, s29, v{Q}"))
        both(lambda Q, S: e(f"v_cvt_pk_bf16_f32 v{Q}, v{Q}, v{Q}"))
        both(lambda Q, S: e(f"v_lshlrev_b32 v{Q}, 16, v{Q}"))
        both(lambda Q, S: e(f"v_sqrt_f32 v{Q}, v{Q}"))
        both(lambda Q, S: e(f"v_cvt_pk_bf16_f32 v{S}, v{S}, v{S}"))
        both(lambda Q, S: e(f"v_cvt_pk_bf16_f32 v{Q}, v{Q}, v{Q}"))
        both(lambda Q, S: e(f"v_lshlrev_b32 v{S}, 16, v{S}"))
        both(lambda Q, S: e(f"v_lshlrev_b32 v{Q}, 16, v{Q}"))
        both(lambda Q, S: e(f"v_rcp_f32 v{Q}, v{Q}"))
        for (F, S, Q, XB) in ((F0, S0, Q0, 0), (F1, S1, Q1, 1)):
            for k in range(0, 8, 2):
                e(f"v_sub_f32 v{F+k}, v{F+k}, v{S}")
                e(f"v_sub_f32 v{F+k+1}, v{F+k+1}, v{S}")
                e(f"v_cvt_pk_bf16_f32 v{U0}, v{F+k}, v{F+k+1}")
                e(f"v_lshlrev_b32 v{F+k}, 16, v{U0}")
                e(f"v_and_b32 v{F+k+1}, 0xffff0000, v{U0}")
                e(f"v_mul_f32 v{F+k}, v{F+k}, v{Q}")
                e(f"v_mul_f32 v{F+k+1}, v{F+k+1}, v{Q}")
                e(f"v_cvt_pk_bf16_f32 v{OUT+XB*4+k//2}, v{F+k}, v{F+k+1}")
    def layernorm1(X, F, T, OUT):
        S, Q, T0, T1, U, C = range(T, T+6)
        for k in range(4):
            e(f"v_lshlrev_b32 v{F+2*k}, 16, v{X+k}")
            e(f"v_and_b32 v{F+2*k+1}, 0xffff0000, v{X+k}")
        e(f"v_readfirstlane_b32 s28, v{F}")
        nop(2)
        for k in range(8): e(f"v_subrev_f32 v{F+k}, s28, v{F+k}")
        e(f"v_add_f32 v{S}, v{F}, v{F+1}")
        e(f"v_mul_f32 v{Q}, v{F}, v{F}")
        e(f"v_fmac_f32 v{Q}, v{F+1}, v{F+1}")
        for k in range(2, 8):
            e(f"v_add_f32 v{S}, v{S}, v{F+k}")
            e(f"v_fmac_f32 v{Q}, v{F+k}, v{F+k}")
        wave_red2("v_add_f32", S, Q, T0, T1)
        e("s_mov_b32 s29, 0x3b000000")
        e(f"v_mul_f32 v{S}, s29, v{S}")
        e(f"v_mul_f32 v{Q}, s29, v{Q}")
        e(f"v_fma_f32 v{Q}, -v{S}, v{S}, v{Q}")
        e(f"v_add_f32 v{U}, s28, v{S}")
        e(f"v_max_f32 v{Q}, 0, v{Q}")
        e(f"v_cvt_pk_bf16_f32 v{U}, v{U}, v{U}")
        e(f"v_cvt_pk_bf16_f32 v{Q}, v{Q}, v{Q}")
        e(f"v_lshlrev_b32 v{U}, 16, v{U}")
        e(f"v_lshlrev_b32 v{Q}, 16, v{Q}")
        e("s_mov_b32 s29, 0x3727c5ac")
        e(f"v_add_f32 v{Q}, s29, v{Q}")
        e(f"v_subrev_f32 v{U}, s28, v{U}")
        e(f"v_cvt_pk_bf16_f32 v{Q}, v{Q}, v{Q}")
        e(f"v_lshlrev_b32 v{Q}, 16, v{Q}")
        e(f"v_sqrt_f32 v{Q}, v{Q}")
        for k in range(4): e(f"v_sub_f32 v{F+k}, v{F+k}, v{U}")
        e(f"v_cvt_pk_bf16_f32 v{Q}, v{Q}, v{Q}")
        for k in range(4, 8): e(f"v_sub_f32 v{F+k}, v{F+k}, v{U}")
        e(f"v_lshlrev_b32 v{Q}, 16, v{Q}")
        e(f"v_rcp_f32 v{Q}, v{Q}")
        for k in range(0, 8, 2):
            e(f"v_cvt_pk_bf16_f32 v{OUT+k//2}, v{F+k}, v{F+k+1}")
        for k in range(0, 8, 2):
            e(f"v_lshlrev_b32 v{F+k}, 16, v{OUT+k//2}")
            e(f"v_and_b32 v{F+k+1}, 0xffff0000, v{OUT+k//2}")
        for k in range(8): e(f"v_mul_f32 v{F+k}, v{F+k}, v{Q}")
        for k in range(0, 8, 2):
            e(f"v_cvt_pk_bf16_f32 v{OUT+k//2}, v{F+k}, v{F+k+1}")
    def store_stamps():
        if not G.stamps: return
        e("s_getreg_b32 s30, hwreg(HW_REG_XCC_ID)")
        e("v_writelane_b32 v255, s30, 40")
        e(f"s_lshl_b32 s30, s2, 2")
        e(f"s_add_u32 s30, s30, s{S_W}")
        e(f"s_lshl_b32 s30, s30, 8")
        e(f"s_add_u32 s30, s30, {WS_STAMP}")
        e(f"v_lshlrev_b32 v60, 2, v{V_LANE}")
        e(f"buffer_store_dword v255, v60, {sr(SRD_WS,4)}, s30 offen")

    e("s_cmp_ge_u32 s2, 256")
    e("s_cbranch_scc1 L_end")
    if G.stamps:
        e("v_mov_b32 v255, 0")
        e("s_memrealtime s[40:41]")
    e(f"s_load_dwordx16 s[64:79], s[0:1], 0")
    e(f"s_load_dwordx8 s[80:87], s[0:1], 64")
    e(f"s_load_dwordx2 s[88:89], s[0:1], 96")
    e(f"v_and_b32 v{V_LANE}, 63, v0")
    e(f"v_lshrrev_b32 v8, 6, v0")
    e(f"v_and_b32 v{V_L15}, 15, v0")
    e(f"v_readfirstlane_b32 s{S_W}, v8")
    e(f"v_lshrrev_b32 v{V_G}, 4, v{V_LANE}")
    e(f"v_lshlrev_b32 v{V_L16B}, 4, v{V_LANE}")
    e(f"s_mov_b32 s{M_G1}, 0xffff0000"); e(f"s_mov_b32 s{M_G1+1}, 0xffff0000")
    e(f"s_mov_b32 s{M_HI}, 0"); e(f"s_mov_b32 s{M_HI+1}, -1")
    e("s_mov_b32 s63, s2")
    if G.split:
        e("s_and_b32 s28, s2, 3")
        e("s_lshr_b32 s29, s2, 3")
        e("s_bitcmp1_b32 s2, 2")
        e("s_cbranch_scc1 L_att_id")
        e("s_lshl_b32 s28, s28, 1")
        e("s_and_b32 s30, s29, 1")
        e("s_or_b32 s28, s28, s30")
        e("s_lshr_b32 s29, s29, 1")
        e("s_lshl_b32 s29, s29, 3")
        e("s_or_b32 s2, s28, s29")
        e("s_branch L_wgt")
        lab("L_att_id")
        e("s_lshl_b32 s29, s29, 2")
        e("s_add_u32 s2, s28, s29")
        e("s_add_u32 s2, s2, 128")
        e("s_branch L_att")
        lab("L_wgt")
    else:
        e("s_cmp_ge_u32 s2, 128")
        e("s_cbranch_scc1 L_att")

    V_AVW, V_AVR, V_PUB, VD0, VD1 = 56, 57, 55, 58, 59
    RING8 = [224, 232, 240]
    RING4 = [224, 228, 232]
    PUBQ = 48
    e(f"v_lshlrev_b32 v8, 1, v{V_G}")
    e(f"v_xor_b32 v8, v8, v{V_L15}")
    e(f"v_lshlrev_b32 v{V_SW}, 4, v8")
    e("s_and_b32 s28, s2, 7")
    e("s_lshl_b32 s28, s28, 2")
    e("s_bfe_u32 s29, s2, 0x20003")
    e(f"s_add_u32 s{S_H}, s28, s29")
    e(f"s_lshr_b32 s{S_I}, s2, 5")
    if G.fmap:
        e("s_and_b32 s28, s2, 7")
        e("s_sub_u32 s28, s28, 4")
        e("s_lshl_b32 s62, s28, 4")
        e("s_lshr_b32 s29, s2, 3")
        e("s_add_u32 s62, s62, s29")
        e("s_cmp_lt_u32 s28, 2")
        e("s_cselect_b32 s62, s62, 255")
    else:
        e("s_sub_u32 s62, s2, 96")
        e("s_cmp_ge_u32 s2, 96")
        e("s_cselect_b32 s62, s62, 255")
    e(f"v_lshl_add_u32 v{VD0}, v{V_G}, 13, v{V_SW}")
    e(f"v_xor_b32 v{VD1}, 128, v{VD0}")
    e(f"s_lshl_b32 s29, s{S_I}, 7")
    e(f"s_lshl_b32 s28, s{S_W}, 5")
    e("s_add_u32 s29, s29, s28")
    e("s_lshl_b32 s29, s29, 13")
    e(f"s_lshl_b32 s28, s{S_H}, 8")
    e("s_add_u32 s29, s29, s28")
    e("s_waitcnt lgkmcnt(0)")
    if G.stamps: e("v_writelane_b32 v255, s40, 0")
    if G.skew:
        lsk0 = G.newlab("noann")
        e("s_cmp_ge_u32 s2, 8")
        e(f"s_cbranch_scc1 {lsk0}")
        e(f"s_cmp_lg_u32 s{S_W}, 3")
        e(f"s_cbranch_scc1 {lsk0}")
        G.srd(SRD_4, P_DBG, 256)
        e("v_mov_b32 v30, 1")
        e("s_lshl_b32 s28, s2, 2")
        e("v_mov_b32 v31, s28")
        e("s_mov_b64 exec, 1")
        e(f"buffer_store_dword v30, v31, {sr(SRD_4,4)}, 0 offen sc1")
        e("s_mov_b64 exec, -1")
        lab(lsk0)
    G.srd(SRD_1, P_X, 2048)
    G.srd(SRD_2, P_WQ, 4194304)
    X0, X1 = 8, 12
    e(f"s_lshr_b32 s37, s{S_W}, 1")
    e("s_lshl_b32 s37, s37, 10")
    e(f"buffer_load_dwordx4 {vr(X0,4)}, v{V_L16B}, {sr(SRD_1,4)}, s37 offen")
    dma_tile128(SRD_2, VD0, VD1, lin(4*8192), R0, NTW)
    e(f"s_load_dword s{S_TAG}, {sr(P_WS,2)}, {WS_EPOCH}")
    G.srd(SRD_3, P_WUK, 4194304)
    e("s_mov_b32 s36, s29")
    def issue_uk(nfirst, nlast):
        e("s_mov_b32 s29, s36")
        e(f"s_lshl_b32 s31, s{S_W}, 13")
        for n in range(nfirst, nlast):
            lin(4*8192)(n)
            e(f"s_add_u32 m0, s31, {R1 + n*1024}")
            v = VD1 if (n >> 1) & 1 else VD0
            nop(1)
            e(f"buffer_load_dwordx4 v{v}, {sr(SRD_3,4)}, s30 offen{'' if G.pf_uk else NTW} lds")
    issue_uk(0, 8 - G.ukl)
    G.srd(SRD_WS, P_WS, 0x10000000)
    e(f"s_lshl_b32 s32, s{S_H}, 2")
    e(f"s_add_u32 s32, s32, s{S_W}")
    e("s_lshl_b32 s32, s32, 11")
    if G.prew:
        e(f"v_lshlrev_b32 v232, 4, v{V_L15}")
        e(f"v_lshl_add_u32 v232, v{V_G}, 10, v232")
        for r_ in range(4): e(f"v_mov_b32 v{236+r_}, 0")
        e(f"s_lshl_b32 s28, s{S_I}, 8")
        e("s_add_u32 s28, s28, s32")
        lo32()
        for reg in (WS_QPF, WS_CPF):
            e(f"s_add_u32 s30, s28, {reg}")
            e(f"buffer_store_dwordx4 {vr(236,4)}, v232, {sr(SRD_WS,4)}, s30 offen")
        e("s_mov_b64 exec, -1")
    else:
        for reg in (WS_QPF,):
            e(f"s_add_u32 s28, s32, {reg}")
            e(f"buffer_load_dwordx4 {vr(232,4)}, v{V_L16B}, {sr(SRD_WS,4)}, s28 offen sc1")
            e(f"buffer_load_dwordx4 {vr(236,4)}, v{V_L16B}, {sr(SRD_WS,4)}, s28 offen offset:1024 sc1")
    e(f"v_bfe_u32 v17, v{V_LANE}, 2, 2")
    e(f"v_and_b32 v18, 3, v{V_LANE}")
    e(f"v_and_b32 v19, 1, v{V_G}")
    e("v_lshl_add_u32 v20, v19, 2, v17")
    e("v_lshlrev_b32 v20, 1, v20")
    e(f"s_lshl_b32 s28, s{S_W}, 2")
    e("v_xor_b32 v20, s28, v20")
    e("v_lshrrev_b32 v21, 1, v18")
    e("v_add_u32 v20, v20, v21")
    e("v_lshlrev_b32 v20, 4, v20")
    e("v_and_b32 v21, 1, v18")
    e("v_lshl_add_u32 v20, v21, 3, v20")
    e(f"v_lshl_add_u32 v21, v{V_G}, 3, v17")
    e(f"v_lshl_add_u32 v{V_TL0}, v21, 8, v20")
    e(f"v_xor_b32 v{V_TL1}, 32, v{V_TL0}")
    e(f"v_lshrrev_b32 v20, 1, v{V_G}")
    e("v_lshlrev_b32 v20, 8, v20")
    e(f"v_lshl_add_u32 v21, v19, 4, v{V_L15}")
    e(f"s_lshl_b32 s28, s{S_W}, 5")
    e("v_add_u32 v21, s28, v21")
    e(f"v_lshl_add_u32 v{V_AVW}, v21, 1, v20")
    e(f"v_and_b32 v20, 1, v{V_LANE}")
    e("v_lshlrev_b32 v20, 8, v20")
    e(f"v_lshl_add_u32 v{V_AVR}, v{V_G}, 4, v20")
    e(f"v_lshlrev_b32 v{V_PUB}, 4, v{V_L15}")
    e(f"v_lshl_add_u32 v{V_PUB}, v{V_G}, 10, v{V_PUB}")
    e(f"s_lshl_b32 s32, s{S_H}, 2")
    e(f"s_add_u32 s32, s32, s{S_W}")
    e("s_lshl_b32 s32, s32, 11")
    e(f"s_lshl_b32 s33, s{S_I}, 8")
    e("s_add_u32 s33, s33, s32")
    e(f"v_and_b32 v52, 1, v{V_LANE}")
    e("v_lshlrev_b32 v52, 10, v52")
    e(f"v_lshl_add_u32 v52, v{V_G}, 4, v52")
    e(f"s_lshl_b32 s28, s{S_I}, 8")
    e(f"s_add_u32 s28, s28, {L_XN}")
    e("v_add_u32 v52, s28, v52")
    e(f"v_and_b32 v22, 3, v{V_LANE}")
    e(f"v_bfe_u32 v23, v{V_LANE}, 3, 1")
    e("v_lshl_add_u32 v22, v23, 2, v22")
    e("v_lshlrev_b32 v22, 1, v22")
    e(f"v_xor_b32 v22, v22, v{V_G}")
    e(f"v_lshlrev_b32 v23, 8, v{V_L15}")
    e(f"s_lshl_b32 s28, s{S_W}, 13")
    e(f"s_add_u32 s28, s28, {R1}")
    e("v_add_u32 v23, s28, v23")
    for ks in range(4):
        e(f"v_xor_b32 v24, {4*ks}, v22")
        e(f"v_lshl_add_u32 v{248+ks}, v24, 4, v23")
    G.stamp(1)
    e(f"s_waitcnt vmcnt({18 - G.ukl})")
    layernorm1(X0, 16, 24, 40)
    e(f"v_add_u32 v30, s37, v{V_L16B}")
    e(f"ds_write_b128 v30, {vr(40,4)} offset:{L_XN}")
    if G.ukl: issue_uk(8 - G.ukl, 8)
    if G.adapt:
        G.srd(SRD_4, P_DBG, 256)
        lna = G.newlab("noadd")
        e(f"s_cmp_lg_u32 s{S_W}, 0")
        e(f"s_cbranch_scc1 {lna}")
        e("v_mov_b32 v31, 1")
        e("v_mov_b32 v30, 0")
        e("s_mov_b64 exec, 1")
        e(f"buffer_atomic_add v31, v30, {sr(SRD_4,4)}, 0 offen sc1")
        e("s_mov_b64 exec, -1")
        lab(lna)
    G.stamp(2)
    e("s_waitcnt vmcnt(10) lgkmcnt(0)")
    e("s_barrier")
    G.stamp(3)
    VA, VB, VC, WUK = 96, 112, 144, 64
    gemv_loadA(52, VA)
    gemv_loadB(R0, VB, 21, 22)
    e(f"s_add_u32 s{S_TAG}, s{S_TAG}, 0x9e3779b9")
    e(f"s_add_u32 s34, s33, {WS_QP}")
    e(f"s_add_u32 s35, s33, {WS_QPF}")
    e(f"v_mov_b32 v{PUBQ+1}, s{S_TAG}")
    e(f"v_mov_b32 v{PUBQ+3}, s{S_TAG}")
    e("s_waitcnt lgkmcnt(0)")
    gemv_mma(VA, VB, VC)
    publish_units(VC, V_PUB, 35, PUBQ, fast=True)
    G.stamp(4)
    e("s_mov_b32 s37, s34")
    def consume4(soff, u0, lds_dst, cnt_idx, sfast, spub, voff, q):
        u1 = u0 + 4
        def mk(sreg):
            def ld(b):
                e(f"buffer_load_dwordx4 {vr(b,4)}, v{V_L16B}, {sr(SRD_WS,4)}, s{sreg} offen sc1")
                e(f"buffer_load_dwordx4 {vr(b+4,4)}, v{V_L16B}, {sr(SRD_WS,4)}, s{sreg} offen offset:1024 sc1")
            return ld
        def slow_store():
            lo32()
            e(f"buffer_store_dwordx4 {vr(q,4)}, v{voff}, {sr(SRD_WS,4)}, s{spub} offen sc1")
            e("s_mov_b64 exec, -1")
        dual_poll(mk(sfast), mk(soff), slow_store, u0, 8, [1, 3, 5, 7], RING8, 2, cnt_idx)
        nop(1)
        e(f"v_permlane32_swap_b32 v{u0}, v{u0+2}")
        e(f"v_permlane32_swap_b32 v{u1}, v{u1+2}")
        nop(1)
        e(f"v_add_f32 v{u0}, v{u0}, v{u0+2}")
        e(f"v_add_f32 v{u1}, v{u1}, v{u1+2}")
        nop(2)
        e(f"v_permlane16_swap_b32 v{u0}, v{u1}")
        nop(1)
        e(f"v_add_f32 v{u0}, v{u0}, v{u1}")
        write_av(u0, lds_dst)
    def write_av(vsrc, lds_dst):
        e(f"v_cvt_pk_bf16_f32 v54, v{vsrc}, v{vsrc}")
        e(f"ds_write_b16 v{V_AVW}, v54 offset:{lds_dst}")
    e(f"s_add_u32 s34, s32, {WS_QP}")
    e(f"s_add_u32 s35, s32, {WS_QPF}")
    e("s_waitcnt vmcnt(1)")
    for ct in range(2):
        for ks in range(4):
            e(f"ds_read_b128 {vr(WUK+(ct*4+ks)*4,4)}, v{248+ks} offset:{4096*ct}")
    consume4(34, 40, L_AVQ, 32, 35, 37, V_PUB, PUBQ)
    e("s_waitcnt lgkmcnt(0)")
    e("s_barrier")
    G.stamp(5)
    gemv_loadA(V_AVR, VA, L_AVQ)
    e(f"v_lshlrev_b32 v44, 4, v{V_L15}")
    e(f"v_lshl_add_u32 v44, v{V_G}, 15, v44")
    e(f"s_lshl_b32 s34, s{S_H}, 10")
    e(f"s_lshl_b32 s35, s{S_I}, 8")
    e("s_add_u32 s34, s34, s35")
    e(f"s_add_u32 s34, s34, {WS_QA}")
    e(f"s_lshl_b32 s35, s{S_H}, 2")
    e(f"s_add_u32 s35, s35, s{S_I}")
    e("s_lshl_b32 s35, s35, 4")
    e(f"s_add_u32 s35, s35, {WS_FB}")
    e("s_waitcnt lgkmcnt(0)")
    for ks in range(4):
        for ct in range(2):
            c = "0" if ks == 0 else vr(VC+4*ct, 4)
            e(f"v_mfma_f32_16x16x32_bf16 {vr(VC+4*ct,4)}, {vr(VA+4*ks,4)}, {vr(WUK+(ct*4+ks)*4,4)}, {c}")
    nop(9)
    sel_tb(VC, 40, 41)
    e(f"v_cndmask_b32 v40, v40, v41, {sr(M_HI,2)}")
    e(f"v_mul_f32 v40, {fbits((128 ** -0.5) * math.log2(math.e))}, v40")
    write_av(40, L_QS)
    e("s_waitcnt lgkmcnt(0)")
    e("s_barrier")
    def ldFB(b):
        e(f"buffer_load_dwordx2 {vr(b,2)}, v{V_L16B}, {sr(SRD_WS,4)}, s34 offen sc1")
        e(f"buffer_load_dwordx2 {vr(b+2,2)}, v{V_L16B}, {sr(SRD_WS,4)}, s34 offen offset:1024 sc1")
    def gate_poll():
        e(f"s_and_b32 s34, s63, {RM}")
        e("s_lshl_b32 s34, s34, 11")
        e(f"s_add_u32 s34, s34, {WS_FB}")
        poll(ldFB, 40, 4, [0, 1, 2, 3], RING4, 2, 4, 33)
    lskip = G.newlab("nopub")
    e(f"s_cmp_lg_u32 s{S_W}, 0")
    e(f"s_cbranch_scc1 {lskip}")
    e(f"ds_read_b128 {vr(40,4)}, v{V_L16B} offset:{L_QS}")
    e(f"v_mov_b32 v46, s{S_TAG}")
    e(f"v_mov_b32 v47, s{S_TAG}")
    e(f"v_lshlrev_b32 v45, 11, v{V_LANE}")
    e("s_waitcnt lgkmcnt(0)")
    lo32()
    e(f"buffer_store_dwordx4 {vr(40,4)}, v44, {sr(SRD_WS,4)}, s34 offen sc1")
    e(f"s_mov_b64 exec, {hex(REX)}")
    e("s_waitcnt vmcnt(0)")
    e(f"buffer_store_dwordx2 {vr(46,2)}, v45, {sr(SRD_WS,4)}, s35 offen sc1")
    e("s_mov_b64 exec, -1")
    if G.gate == 'B' and G.order != 'B2' and not G.pf_kv: gate_poll()
    lab(lskip)
    G.stamp(6)
    e("s_barrier")
    G.stamp(7)
    if G.pf_kv:
        G.srd(SRD_4, P_CKV, 16777216)
        e("s_lshl_b32 s29, s2, 7")
        e(f"s_lshl_b32 s30, s{S_W}, 5")
        e("s_add_u32 s29, s29, s30")
        e("s_lshl_b32 s29, s29, 10")
        e(f"s_lshl_b32 s31, s{S_W}, 10")
        e("s_add_u32 m0, s31, 155648")
        for n in range(G.pf_kv):
            e(f"s_add_u32 s30, s29, {(31 - n)*1024}")
            e(f"buffer_load_dwordx4 v{V_L16B}, {sr(SRD_4,4)}, s30 offen lds")
        if G.order != 'B2' and G.gate == 'B':
            lg = G.newlab("gate2")
            e(f"s_cmp_lg_u32 s{S_W}, 0")
            e(f"s_cbranch_scc1 {lg}")
            gate_poll()
            lab(lg)
            e("s_barrier")
    FFN_EARLY = (G.order == 'B2')
    R3, RW2 = 106496, 139264
    S_FS, S_HF = 50, 51
    BUV, BO = 160, 192
    def blk_late():
        G.srd(SRD_1, P_WUV, 4194304)
        G.srd(SRD_2, P_WO, 4194304)
        e(f"v_lshl_add_u32 v{VD0}, v{V_G}, 17, v{V_SW}")
        e(f"v_xor_b32 v{VD1}, 128, v{VD0}")
        e(f"s_lshl_b32 s29, s{S_I}, 7")
        e(f"s_lshl_b32 s28, s{S_W}, 2")
        e("s_add_u32 s29, s29, s28")
        e("s_lshl_b32 s29, s29, 13")
        e(f"s_lshl_b32 s28, s{S_H}, 8")
        e("s_add_u32 s29, s29, s28")
        def f_uv(n):
            off = (64*(n & 1) + (n >> 1)) * 8192
            if off == 0: e("s_mov_b32 s30, s29")
            else: e(f"s_add_u32 s30, s29, {off}")
        dma_tile128(SRD_1, VD0, VD1, f_uv, R0, NTW)
        e(f"v_lshl_add_u32 v{VD0}, v{V_G}, 10, v{V_SW}")
        e(f"v_xor_b32 v{VD1}, 128, v{VD0}")
        e(f"s_lshl_b32 s29, s{S_H}, 7")
        e(f"s_lshl_b32 s28, s{S_W}, 5")
        e("s_add_u32 s29, s29, s28")
        e("s_lshl_b32 s29, s29, 10")
        e(f"s_lshl_b32 s28, s{S_I}, 8")
        e("s_add_u32 s29, s29, s28")
        dma_tile128(SRD_2, VD0, VD1, lin(4*1024), R2, NTW)
    def blk_ffn_loads():
        lnf1 = G.newlab("noffn1")
        if G.fmap:
            e("s_lshr_b32 s28, s2, 4")
            e("s_and_b32 s29, s2, 7")
            e("s_lshl_b32 s30, s29, 3")
            e("s_add_u32 s30, s30, s28")
            e(f"s_mov_b32 s{S_FS}, 63")
            e("s_cmp_lt_u32 s29, 4")
            e(f"s_cselect_b32 s{S_FS}, s30, s{S_FS}")
            e("s_add_u32 s30, s28, 32")
            e("s_cmp_lt_u32 s28, 6")
            e("s_cselect_b32 s30, s30, 63")
            e("s_cmp_eq_u32 s29, 6")
            e(f"s_cselect_b32 s{S_FS}, s30, s{S_FS}")
            e("s_add_u32 s30, s28, 38")
            e("s_cmp_eq_u32 s29, 7")
            e(f"s_cselect_b32 s{S_FS}, s30, s{S_FS}")
        else:
            e("s_lshr_b32 s28, s2, 4")
            e("s_and_b32 s29, s2, 7")
            e("s_mul_i32 s29, s29, 6")
            e(f"s_add_u32 s{S_FS}, s28, s29")
            e("s_cmp_ge_u32 s2, 96")
            e(f"s_cselect_b32 s{S_FS}, 63, s{S_FS}")
        e(f"s_bfe_u32 s{S_HF}, s2, 0x10003")
        e(f"s_cmp_ge_u32 s{S_FS}, 43")
        e(f"s_cbranch_scc1 {lnf1}")
        G.srd(SRD_1, P_W1, 1409024)
        G.srd(SRD_2, P_W3, 1409024)
        G.srd(SRD_3, P_W2, 1409024)
        e(f"v_lshrrev_b32 v64, 2, v{V_LANE}")
        e("v_mul_u32_u24 v64, 2752, v64")
        e(f"v_lshrrev_b32 v65, 5, v{V_LANE}")
        e("v_lshlrev_b32 v66, 1, v65")
        e(f"v_and_b32 v67, 3, v{V_LANE}")
        e("v_xor_b32 v67, v66, v67")
        e("v_lshl_add_u32 v64, v67, 4, v64")
        e(f"s_lshl_b32 s29, s{S_HF}, 2")
        e(f"s_add_u32 s29, s29, s{S_W}")
        e(f"s_mul_i32 s29, s29, {64*2752}")
        e(f"s_lshl_b32 s28, s{S_FS}, 6")
        e("s_add_u32 s29, s29, s28")
        e(f"s_lshl_b32 s31, s{S_W}, 12")
        for (srd, base) in ((SRD_1, R3), (SRD_2, R3 + 16384)):
            for n in range(4):
                if n == 0: e("s_mov_b32 s30, s29")
                else: e(f"s_add_u32 s30, s29, {n*16*2752}")
                e(f"s_add_u32 m0, s31, {base + n*1024}")
                nop(1)
                e(f"buffer_load_dwordx4 v64, {sr(srd,4)}, s30 offen lds")
        e(f"v_and_b32 v67, 31, v{V_LANE}")
        e("v_xor_b32 v67, v67, v66")
        e(f"s_and_b32 s28, s{S_W}, 1")
        e("s_lshl_b32 s28, s28, 3")
        e("v_xor_b32 v67, s28, v67")
        e("v_lshlrev_b32 v67, 4, v67")
        e("v_lshl_add_u32 v67, v65, 10, v67")
        e("v_xor_b32 v68, 64, v67")
        e(f"s_lshl_b32 s29, s{S_FS}, 5")
        e(f"s_lshl_b32 s28, s{S_W}, 3")
        e("s_add_u32 s29, s29, s28")
        e("s_lshl_b32 s29, s29, 10")
        e(f"s_lshl_b32 s28, s{S_HF}, 9")
        e("s_add_u32 s29, s29, s28")
        for n in range(4):
            if n == 0: e("s_mov_b32 s30, s29")
            else: e(f"s_add_u32 s30, s29, {n*2048}")
            e(f"s_add_u32 m0, s31, {RW2 + n*1024}")
            nop(1)
            e(f"buffer_load_dwordx4 v{68 if n & 1 else 67}, {sr(SRD_3,4)}, s30 offen{NTW} lds")
        lab(lnf1)
    def blk_ffn_comp():
        lnf2 = G.newlab("noffn2")
        e(f"s_cmp_ge_u32 s{S_FS}, 43")
        e(f"s_cbranch_scc1 {lnf2}")
        e(f"v_bfe_u32 v17, v{V_LANE}, 2, 2")
        e(f"v_and_b32 v18, 3, v{V_LANE}")
        e(f"v_and_b32 v19, 1, v{V_G}")
        e(f"s_and_b32 s28, s{S_W}, 1")
        e("s_lshl_b32 s28, s28, 1")
        e("v_lshrrev_b32 v20, 1, v18")
        e("v_add_u32 v20, s28, v20")
        e("v_lshlrev_b32 v21, 1, v19")
        e("v_xor_b32 v20, v20, v21")
        e("v_lshlrev_b32 v20, 4, v20")
        e("v_and_b32 v21, 1, v18")
        e("v_lshl_add_u32 v20, v21, 3, v20")
        e(f"v_lshl_add_u32 v21, v{V_G}, 3, v17")
        e("v_lshl_add_u32 v20, v21, 6, v20")
        e(f"s_lshr_b32 s28, s{S_W}, 1")
        e("s_lshl_b32 s28, s28, 14")
        e(f"s_add_u32 s28, s28, {R3}")
        e("v_add_u32 v20, s28, v20")
        e(f"v_and_b32 v21, 1, v{V_LANE}")
        e("v_lshlrev_b32 v21, 10, v21")
        e(f"v_lshl_add_u32 v21, v{V_G}, 4, v21")
        e(f"s_lshl_b32 s28, s{S_HF}, 9")
        e("v_add_u32 v21, s28, v21")
        FA, FB_, GA = 96, 128, 76
        e("s_lshl_b32 s28, s2, 2")
        e(f"s_add_u32 s28, s28, s{S_W}")
        e("s_lshl_b32 s28, s28, 8")
        e(f"s_add_u32 s34, s28, {WS_F1}")
        e(f"s_add_u32 s35, s28, {WS_F1F}")
        e("s_xor_b32 s28, s2, 8")
        e("s_lshl_b32 s28, s28, 2")
        e(f"s_add_u32 s28, s28, s{S_W}")
        e("s_lshl_b32 s28, s28, 8")
        e(f"s_add_u32 s36, s28, {WS_F1}")
        e(f"s_add_u32 s37, s28, {WS_F1F}")
        e(f"v_lshlrev_b32 v26, 4, v{V_L15}")
        e(f"v_mov_b32 v41, s{S_TAG}")
        e(f"v_mov_b32 v43, s{S_TAG}")
        e(f"buffer_load_dwordx4 {vr(232,4)}, v26, {sr(SRD_WS,4)}, s37 offen sc1")
        e("s_waitcnt vmcnt(%d)" % (5 if FFN_EARLY else 5 + (0 if G.prew else 2) + (1 if G.touch else 0)))
        e("s_barrier")
        for ks in range(8):
            e(f"ds_read_b128 {vr(FA+4*ks,4)}, v21 offset:{L_XN + 64*ks}")
            for u in range(2):
                e(f"ds_read_b64_tr_b16 {vr(FB_+4*ks+2*u,2)}, v20 offset:{2048*ks + 256*u}")
        e("s_waitcnt lgkmcnt(0)")
        for ks in range(8):
            c = "0" if ks == 0 else vr(GA, 4)
            e(f"v_mfma_f32_16x16x32_bf16 {vr(GA,4)}, {vr(FA+4*ks,4)}, {vr(FB_+4*ks,4)}, {c}")
        e("v_lshl_add_u32 v20, v19, 2, v17")
        e("v_lshlrev_b32 v20, 1, v20")
        e(f"s_lshl_b32 s28, s{S_W}, 3")
        e("v_xor_b32 v20, s28, v20")
        e(f"v_lshl_add_u32 v21, v{V_G}, 3, v17")
        e("v_lshlrev_b32 v21, 9, v21")
        e("v_lshrrev_b32 v22, 1, v18")
        e("v_lshl_add_u32 v21, v22, 4, v21")
        e("v_and_b32 v22, 1, v18")
        e("v_lshl_add_u32 v21, v22, 3, v21")
        e(f"v_add_u32 v21, {RW2}, v21")
        for t in range(4):
            e(f"v_xor_b32 v22, {2*t}, v20")
            e(f"v_lshl_add_u32 v{28+t}, v22, 4, v21")
        e(f"v_mov_b32 v40, v{GA}")
        e(f"v_mov_b32 v42, v{GA+1}")
        e("s_mov_b64 exec, 0xffff")
        e(f"buffer_store_dwordx4 {vr(40,4)}, v26, {sr(SRD_WS,4)}, s35 offen")
        e("s_mov_b64 exec, -1")
        G.stamp(17)
        def ldF(sreg):
            return lambda b: e(f"buffer_load_dwordx4 {vr(b,4)}, v26, {sr(SRD_WS,4)}, s{sreg} offen sc1")
        def f1_slow():
            e("s_mov_b64 exec, 0xffff")
            e(f"buffer_store_dwordx4 {vr(40,4)}, v26, {sr(SRD_WS,4)}, s34 offen sc1")
            e("s_mov_b64 exec, -1")
        dual_poll(ldF(37), ldF(36), f1_slow, 44, 4, [1, 3], RING4, 1, 34)
        G.stamp(18)
        e(f"v_add_f32 v{GA}, v{GA}, v44")
        e(f"v_add_f32 v{GA+1}, v{GA+1}, v46")
        e(f"v_and_b32 v23, 1, v{V_G}")
        e("v_lshlrev_b32 v23, 7, v23")
        e(f"v_lshl_add_u32 v23, v{V_L15}, 2, v23")
        e(f"v_cndmask_b32 v22, v{GA}, v{GA+1}, {sr(M_G1,2)}")
        e(f"s_lshr_b32 s28, s{S_W}, 1")
        e("s_lshl_b32 s28, s28, 8")
        e(f"s_and_b32 s29, s{S_W}, 1")
        e("s_lshl_b32 s29, s29, 6")
        e("s_add_u32 s28, s28, s29")
        e("v_add_u32 v23, s28, v23")
        e(f"ds_write_b32 v23, v22 offset:{L_GUW}")
        e("s_waitcnt lgkmcnt(0)")
        e("s_barrier")
        e(f"v_lshlrev_b32 v23, 2, v{V_LANE}")
        e(f"ds_read_b32 v24, v23 offset:{L_GUW}")
        e(f"ds_read_b32 v25, v23 offset:{L_GUW+256}")
        for t in range(4):
            for u in range(2):
                e(f"ds_read_b64_tr_b16 {vr(FB_+4*t+2*u,2)}, v{28+t} offset:{2048*u}")
        e(f"v_mul_u32_u24 v20, {FP_S*256}, v{V_G}")
        e(f"v_lshl_add_u32 v20, v{V_L15}, 4, v20")
        e(f"s_lshl_b32 s28, s{S_HF}, 2")
        e(f"s_add_u32 s28, s28, s{S_W}")
        e(f"s_mul_i32 s28, s28, {4*FP_S*256}")
        e(f"s_lshl_b32 s29, s{S_FS}, 8")
        e("s_add_u32 s28, s28, s29")
        e(f"s_add_u32 s28, s28, {WS_FP}")
        e("s_waitcnt lgkmcnt(8)")
        rbf(24); rbf(25)
        e("v_mul_f32 v26, 0xbfb8aa3b, v24")
        e("v_exp_f32 v26, v26")
        e(f"v_lshlrev_b32 v23, 1, v{V_LANE}")
        e("v_add_f32 v26, 1.0, v26")
        e("v_rcp_f32 v26, v26")
        e(f"v_and_b32 v21, 1, v{V_LANE}")
        e("v_mul_f32 v26, v24, v26")
        rbf(26)
        e("v_mul_f32 v26, v26, v25")
        e("v_cvt_pk_bf16_f32 v26, v26, v26")
        e(f"ds_write_b16 v23, v26 offset:{L_HW}")
        e("v_lshlrev_b32 v21, 6, v21")
        e(f"v_lshl_add_u32 v21, v{V_G}, 4, v21")
        e("s_waitcnt lgkmcnt(0)")
        DA = 100
        e(f"ds_read_b128 {vr(FA,4)}, v21 offset:{L_HW}")
        e(f"v_mov_b32 v37, s{S_TAG}")
        e(f"v_mov_b32 v39, s{S_TAG}")
        e("s_waitcnt lgkmcnt(0)")
        for t in range(4):
            e(f"v_mfma_f32_16x16x32_bf16 {vr(DA+4*t,4)}, {vr(FA,4)}, {vr(FB_+4*t,4)}, 0")
        nop(9)
        for rr in range(2):
            e(f"v_cndmask_b32 v32, v{DA+rr}, v{DA+4+rr}, {sr(M_G1,2)}")
            e(f"v_cndmask_b32 v33, v{DA+8+rr}, v{DA+12+rr}, {sr(M_G1,2)}")
            e(f"v_cndmask_b32 v{36+2*rr}, v32, v33, {sr(M_HI,2)}")
        e(f"buffer_store_dwordx4 {vr(36,4)}, v20, {sr(SRD_WS,4)}, s28 offen sc1")
        G.stamp(20)
        lab(lnf2)
    def blk_csetup():
        e(f"s_lshl_b32 s28, s{S_I}, 7")
        e(f"s_lshr_b32 s29, s{S_W}, 1")
        e("s_lshl_b32 s29, s29, 6")
        e("s_add_u32 s28, s28, s29")
        e("s_lshl_b32 s38, s28, 9")
        e(f"s_lshl_b32 s29, s{S_H}, 4")
        e("s_add_u32 s38, s38, s29")
        e(f"s_add_u32 s38, s38, {WS_SU}")
        e(f"v_lshlrev_b32 v52, 9, v{V_LANE}")
        e(f"s_and_b32 s34, s63, {RM}")
        e("s_lshl_b32 s34, s34, 13")
        e(f"s_lshl_b32 s28, s{S_I}, 11")
        e("s_add_u32 s34, s34, s28")
        e(f"s_add_u32 s34, s34, {WS_CF}")
        if G.touch:
            e(f"v_lshlrev_b32 v45, 16, v{V_LANE}")
            e(f"s_mov_b32 s28, {WS_OP}")
            e(f"buffer_load_dword v46, v45, {sr(SRD_WS,4)}, s28 offen sc1")
        for reg in (() if G.prew else (WS_CPF,)):
            e(f"s_add_u32 s28, s32, {reg}")
            e(f"buffer_load_dwordx4 {vr(232,4)}, v{V_L16B}, {sr(SRD_WS,4)}, s28 offen sc1")
            e(f"buffer_load_dwordx4 {vr(236,4)}, v{V_L16B}, {sr(SRD_WS,4)}, s28 offen offset:1024 sc1")
        lnw = G.newlab("nowarm")
        e("s_cmp_ge_u32 s62, 32")
        e(f"s_cbranch_scc1 {lnw}")
        e("s_mov_b32 s28, s62")
        e("s_lshl_b32 s28, s28, 13")
        e(f"s_add_u32 s28, s28, {WS_EP}")
        e(f"v_lshlrev_b32 v20, 4, v0")
        e("v_add_u32 v24, 4096, v20")
        e(f"buffer_load_dwordx4 {vr(244,4)}, v20, {sr(SRD_WS,4)}, s28 offen sc1")
        e(f"buffer_load_dwordx4 {vr(248,4)}, v24, {sr(SRD_WS,4)}, s28 offen sc1")
        if G.tout:
            G.srd(SRD_4, P_OUT, 2048)
            e("v_mov_b32 v25, 0")
            e(f"buffer_load_dword v252, v25, {sr(SRD_4,4)}, 0 offen")
        lab(lnw)
        e(f"v_lshl_add_u32 v{VD0}, v{V_G}, 15, v{V_SW}")
        e(f"v_xor_b32 v{VD1}, 128, v{VD0}")
        e(f"s_lshl_b32 s29, s{S_W}, 7")
        e(f"s_add_u32 s29, s29, s{S_I}")
        e("s_lshl_b32 s29, s29, 13")
        e(f"s_lshl_b32 s28, s{S_H}, 8")
        e("s_add_u32 s29, s29, s28")
        e(f"s_add_u32 s29, s29, {WS_OP}")
        e(f"v_lshlrev_b32 v53, 4, v{V_L15}")
        e(f"v_lshl_add_u32 v53, v{V_G}, 13, v53")
        e(f"s_lshl_b32 s28, s{S_I}, 2")
        e(f"s_add_u32 s28, s28, s{S_W}")
        e("s_lshl_b32 s28, s28, 14")
        e(f"s_lshl_b32 s39, s{S_H}, 8")
        e("s_add_u32 s28, s28, s39")
        e(f"s_add_u32 s39, s28, {WS_EP}")
        e(f"v_add_u32 v21, {R1}, v{V_TL0}")
        e(f"v_add_u32 v22, {R1}, v{V_TL1}")
    def blk_waitpre():
        lw1 = G.newlab("w1"); lw2 = G.newlab("w2")
        e(f"s_cmp_ge_u32 s{S_FS}, 43")
        e(f"s_cbranch_scc1 {lw1}")
        e(f"s_waitcnt vmcnt({0 if FFN_EARLY else (12 if G.prew else 14) + (1 if G.touch else 0)})")
        e(f"s_branch {lw2}")
        lab(lw1)
        e("s_waitcnt vmcnt(0)")
        lab(lw2)
        e("s_barrier")
        G.stamp(8)
        gemv_loadB(R0, BUV, 25, 26)
        gemv_loadB(R2, BO, 25, 26)
        G.stamp(9)
    R3, RW2 = 106496, 139264
    S_FS, S_HF = 50, 51
    BUV, BO = 160, 192
    if FFN_EARLY:
        blk_ffn_loads()
        blk_ffn_comp()
        if G.gate == 'B':
            lg = G.newlab("gate2")
            e(f"s_cmp_lg_u32 s{S_W}, 0")
            e(f"s_cbranch_scc1 {lg}")
            gate_poll()
            lab(lg)
            e("s_barrier")
        elif G.gate == 'F':
            lg = G.newlab("gate2"); lg2 = G.newlab("gate3")
            e(f"s_cmp_lt_u32 s{S_FS}, 43")
            e(f"s_cbranch_scc1 {lg2}")
            e(f"s_cmp_lg_u32 s{S_W}, 0")
            e(f"s_cbranch_scc1 {lg}")
            gate_poll()
            lab(lg)
            e("s_barrier")
            lab(lg2)
        blk_late()
        blk_csetup()
        blk_waitpre()
    else:
        blk_late()
        blk_ffn_loads()
        blk_csetup()
        blk_waitpre()
    if not FFN_EARLY:
        SAVE_S = [34, 35, 36, 37, 29]
        for k_, r_ in enumerate(SAVE_S): e(f"s_mov_b32 s{56+k_}, s{r_}")
        e("v_mov_b32 v69, v20"); e("v_mov_b32 v70, v21"); e("v_mov_b32 v71, v22"); e("v_mov_b32 v72, v24")
        blk_ffn_comp()
        for k_, r_ in enumerate(SAVE_S): e(f"s_mov_b32 s{r_}, s{56+k_}")
        e("v_mov_b32 v20, v69"); e("v_mov_b32 v21, v70"); e("v_mov_b32 v22, v71"); e("v_mov_b32 v24, v72")

    lodd = G.newlab("codd"); lj = G.newlab("cjoin")
    e(f"s_cmp_lg_u32 s{S_W}, 0")
    e(f"s_cbranch_scc1 {lodd}")
    poll(ldFB, 40, 4, [0, 1, 2, 3], RING4, 2, G.sl_flag, 35)
    lab(lodd)
    e("s_barrier")
    G.stamp(10)
    e(f"buffer_load_dwordx4 {vr(40,4)}, v52, {sr(SRD_WS,4)}, s38 offen sc1")
    dma_tile128(SRD_WS, VD0, VD1, lin(4*32768), R1, " sc1")
    e(f"s_and_b32 s28, s{S_W}, 1")
    e("s_cmp_lg_u32 s28, 0")
    e(f"s_cbranch_scc1 {lj}")
    e("s_waitcnt vmcnt(8)")
    e("v_mov_b32 v44, v40")
    wave_red("v_max_f32", 44, 45)
    e("v_sub_f32 v40, v40, v44")
    e("v_exp_f32 v40, v40")
    nop(1)
    e("v_mul_f32 v44, v40, v42")
    wave_red("v_add_f32", 44, 45)
    e("v_rcp_f32 v44, v44")
    e(f"s_lshr_b32 s29, s{S_W}, 1")
    e("s_mul_i32 s28, s29, 384")
    e(f"v_lshlrev_b32 v45, 1, v{V_LANE}")
    e("v_mul_f32 v40, v40, v44")
    e("v_add_u32 v46, s28, v45")
    e("v_cvt_pk_bf16_f32 v40, v40, v40")
    e("s_lshl_b32 s28, s29, 7")
    e("s_add_u32 s28, s28, 128")
    e(f"ds_write_b16 v46, v40 offset:{L_WGT}")
    e("v_add_u32 v46, s28, v45")
    e("v_mov_b32 v47, 0")
    e(f"ds_write_b16 v46, v47 offset:{L_WGT}")
    lab(lj)
    e(f"s_add_u32 s34, s33, {WS_CP}")
    e(f"s_add_u32 s35, s33, {WS_CPF}")
    e("s_waitcnt vmcnt(0) lgkmcnt(0)")
    e("s_barrier")
    G.stamp(11)
    gemv_loadA(V_AVR, VA, L_WGT)
    for ks in range(4):
        for t in range(2):
            for u in range(2):
                r = VB + (t*4 + ks)*4 + 2*u
                e(f"ds_read_b64_tr_b16 {vr(r,2)}, v{21+t} offset:{8192*ks + 1024*u}")
    e("s_waitcnt lgkmcnt(0)")
    gemv_mma(VA, VB, VC)
    sel_tb(VC, 40, 41)
    e(f"v_cndmask_b32 v40, v40, v41, {sr(M_HI,2)}")
    write_av(40, L_AVO)
    e("s_waitcnt lgkmcnt(0)")
    e("s_barrier")
    gemv_loadA(V_AVR, VA, L_AVO)
    e("s_waitcnt lgkmcnt(0)")
    gemv_mma(VA, BUV, VC)
    publish_units(VC, V_PUB, 35, PUBQ, fast=True)
    G.stamp(12)
    e("s_mov_b32 s37, s34")
    e(f"s_add_u32 s34, s32, {WS_CP}")
    e(f"s_add_u32 s35, s32, {WS_CPF}")
    consume4(34, 40, L_AVC, 36, 35, 37, V_PUB, PUBQ)
    e("s_waitcnt lgkmcnt(0)")
    e("s_barrier")
    G.stamp(13)
    gemv_loadA(V_AVR, VA, L_AVC)
    e("s_waitcnt lgkmcnt(0)")
    gemv_mma(VA, BO, VC)
    publish_units(VC, 53, 39, PUBQ)
    G.stamp(14)
    e("s_cmp_ge_u32 s62, 32")
    e("s_cbranch_scc1 L_wdone")
    e("s_mov_b32 s35, s62")
    e(f"v_lshlrev_b32 v20, 4, v0")
    e("s_lshl_b32 s28, s35, 13")
    e(f"s_add_u32 s36, s28, {WS_EP}")
    e(f"s_mul_i32 s28, s35, {FP_S*256}")
    e(f"s_add_u32 s37, s28, {WS_FP}")
    G.srd(SRD_1, P_X, 2048)
    e(f"v_lshlrev_b32 v21, 10, v{V_G}")
    e(f"v_lshl_add_u32 v21, v{V_L15}, 1, v21")
    e("s_lshl_b32 s28, s35, 5")
    e(f"buffer_load_ushort v22, v21, {sr(SRD_1,4)}, s28 offen")
    e("v_add_u32 v24, 4096, v20")
    e("v_add_u32 v25, 8192, v20")
    e("v_mov_b32 v23, 176")
    e("v_cmp_ge_u32 s[42:43], v0, v23")
    e(f"v_mov_b32 v26, s{S_TAG}")
    e("v_mov_b32 v27, 0")
    def ldFP(b):
        e(f"buffer_load_dwordx4 {vr(b,4)}, v20, {sr(SRD_WS,4)}, s37 offen sc1")
        e(f"buffer_load_dwordx4 {vr(b+4,4)}, v24, {sr(SRD_WS,4)}, s37 offen sc1")
        e(f"buffer_load_dwordx4 {vr(b+8,4)}, v25, {sr(SRD_WS,4)}, s37 offen sc1")
    def ldE(b):
        e(f"buffer_load_dwordx4 {vr(b,4)}, v20, {sr(SRD_WS,4)}, s36 offen sc1")
        e(f"buffer_load_dwordx4 {vr(b+4,4)}, v24, {sr(SRD_WS,4)}, s36 offen sc1")
    ldFP(108)
    poll(ldE, 100, 8, [1, 3, 5, 7], RING8, 2, G.sl_unit, 37)
    G.stamp(19)
    lp, done, skip = G.newlab("pollfp"), G.newlab("pfpdone"), G.newlab("pfpskip")
    e(f"s_mov_b32 s48, {G.spin}")
    e(f"s_branch {skip}")
    lab(lp)
    ldFP(108)
    e("s_waitcnt vmcnt(0)")
    lab(skip)
    e("v_cndmask_b32 v117, v117, v26, s[42:43]")
    e("v_cndmask_b32 v119, v119, v26, s[42:43]")
    check_tags([109, 111, 113, 115, 117, 119])
    e(f"s_cbranch_vccz {done}")
    e("s_sub_u32 s48, s48, 1")
    e(f"s_cbranch_scc0 {lp}")
    lab(done)
    G.stampval(38, 48)
    e("v_cndmask_b32 v116, v116, v27, s[42:43]")
    e("v_cndmask_b32 v118, v118, v27, s[42:43]")
    G.stamp(15)
    for rr in (0, 2):
        e(f"v_add_f32 v{100+rr}, v{100+rr}, v{104+rr}")
        e(f"v_add_f32 v{108+rr}, v{108+rr}, v{112+rr}")
    for rr in (0, 2):
        e(f"v_add_f32 v{100+rr}, v{100+rr}, v{116+rr}")
    for rr in (0, 2):
        e(f"v_add_f32 v{100+rr}, v{100+rr}, v{108+rr}")
    nop(2)
    e("v_permlane32_swap_b32 v100, v102")
    nop(1)
    e("v_add_f32 v100, v100, v102")
    e("v_mov_b32 v101, v100")
    nop(2)
    e("v_permlane16_swap_b32 v100, v101")
    e(f"v_lshrrev_b32 v27, 5, v{V_LANE}")
    e("v_add_f32 v100, v100, v101")
    e("v_lshlrev_b32 v27, 6, v27")
    e(f"v_lshl_add_u32 v27, v{V_L15}, 2, v27")
    e(f"s_lshl_b32 s28, s{S_W}, 7")
    e("v_add_u32 v28, s28, v27")
    e(f"ds_write_b32 v28, v100 offset:{L_FIN}")
    G.srd(SRD_2, P_OUT, 2048)
    e("s_waitcnt lgkmcnt(0)")
    e("s_barrier")
    e(f"s_cmp_lg_u32 s{S_W}, 0")
    e("s_cbranch_scc1 L_wdone")
    e(f"v_lshlrev_b32 v27, 2, v{V_LANE}")
    for w in range(4):
        e(f"ds_read_b32 v{104+w}, v27 offset:{L_FIN + 128*w}")
    e("s_lshl_b32 s28, s35, 5")
    e("v_lshlrev_b32 v22, 16, v22")
    e("s_waitcnt lgkmcnt(0)")
    e("v_add_f32 v104, v104, v105")
    e("v_add_f32 v106, v106, v107")
    e("v_add_f32 v104, v104, v22")
    e("v_add_f32 v104, v104, v106")
    e("v_cvt_pk_bf16_f32 v104, v104, v104")
    lo32()
    e(f"buffer_store_short v104, v21, {sr(SRD_2,4)}, s28 offen")
    e("s_cmp_lg_u32 s35, 0")
    e("s_cbranch_scc1 L_wdone0")
    e("s_mov_b64 exec, 1")
    e(f"v_mov_b32 v30, s{S_TAG}")
    e("v_mov_b32 v31, 0")
    e(f"buffer_store_dword v30, v31, {sr(SRD_WS,4)}, 0 offen offset:{WS_EPOCH}")
    lab("L_wdone0")
    e("s_mov_b64 exec, -1")
    lab("L_wdone")
    G.stamp(16)
    store_stamps()
    e("s_endpgm")

    lab("L_att")
    S_A, S_FS, S_HF = 38, 37, 39
    e(f"s_sub_u32 s{S_A}, s2, 128")
    e(f"s_lshr_b32 s{S_H}, s{S_A}, 6")
    VCK = 8
    for idx in range(8):
        x = 32*(idx & 3) + 128*(idx >> 2)
        if x == 0: e(f"v_mov_b32 v{VCK+idx}, v{V_L16B}")
        else: e(f"v_xor_b32 v{VCK+idx}, {x}, v{V_L16B}")
    e(f"s_lshl_b32 s29, s{S_A}, 7")
    e(f"s_lshl_b32 s30, s{S_W}, 5")
    e("s_add_u32 s29, s29, s30")
    e("s_lshl_b32 s29, s29, 10")
    e(f"s_lshl_b32 s31, s{S_W}, 15")
    e("s_waitcnt lgkmcnt(0)")
    if G.stamps: e("v_writelane_b32 v255, s40, 0")
    G.srd(SRD_1, P_CKV, 16777216)
    if G.pf_uk:
        G.srd(SRD_2, P_WUK, 4194304)
        e(f"s_and_b32 s28, s{S_A}, 7")
        e("s_lshl_b32 s28, s28, 2")
        e(f"s_bfe_u32 s30, s{S_A}, 0x20003")
        e("s_add_u32 s28, s28, s30")
        e("s_lshl_b32 s28, s28, 8")
        e(f"s_lshr_b32 s30, s{S_A}, 5")
        e("s_lshl_b32 s30, s30, 20")
        e("s_add_u32 s28, s28, s30")
        e(f"s_lshl_b32 s30, s{S_W}, 18")
        e("s_add_u32 s35, s28, s30")
        e(f"v_lshlrev_b32 v40, 13, v{V_G}")
        e(f"v_lshl_add_u32 v40, v{V_L15}, 4, v40")
        e(f"s_lshl_b32 s36, s{S_W}, 13")
        for n in range(8):
            e(f"s_add_u32 s30, s35, {n*4*8192}")
            e(f"s_add_u32 m0, s36, {L_QAL + n*1024}")
            nop(1)
            e(f"buffer_load_dwordx4 v40, {sr(SRD_2,4)}, s30 offen lds")
    e(f"s_load_dword s{S_TAG}, {sr(P_WS,2)}, {WS_EPOCH}")
    G.srd(SRD_WS, P_WS, 0x10000000)
    if G.skew:
        e(f"s_load_dwordx8 s[52:59], {sr(P_DBG,2)}, 0")
    if G.adapt:
        G.srd(SRD_4, P_DBG, 256)
        e("v_mov_b32 v46, 0")
        e("s_mov_b32 s39, 0")
    setup = []
    su = setup.append
    AA, AB, TB, TB2 = 16, 20, 24, 48
    su(f"v_and_b32 v32, 3, v{V_LANE}")
    su(f"v_bfe_u32 v33, v{V_LANE}, 3, 1")
    su("v_lshl_add_u32 v32, v33, 2, v32")
    su("v_lshlrev_b32 v32, 1, v32")
    su(f"v_xor_b32 v33, v32, v{V_G}")
    su(f"v_lshlrev_b32 v34, 10, v{V_L15}")
    su(f"s_add_u32 s37, s31, {L_CKV}")
    for j in range(4):
        su(f"v_xor_b32 v35, {4*j}, v33")
        su(f"v_lshl_add_u32 v{AB+j}, v35, 4, v34")
        su(f"v_add_u32 v{AA+j}, s37, v{AB+j}")
        if L_QAL: su(f"v_add_u32 v{AB+j}, {L_QAL}, v{AB+j}")
    su(f"v_bfe_u32 v32, v{V_LANE}, 2, 2")
    su(f"v_and_b32 v33, 3, v{V_LANE}")
    su(f"v_and_b32 v34, 1, v{V_G}")
    su("v_lshl_add_u32 v35, v34, 2, v32")
    su("v_lshlrev_b32 v35, 1, v35")
    su(f"v_lshl_add_u32 v36, v{V_G}, 3, v32")
    su("v_lshlrev_b32 v36, 10, v36")
    su("v_lshrrev_b32 v37, 1, v33")
    su("v_lshl_add_u32 v36, v37, 4, v36")
    su("v_and_b32 v37, 1, v33")
    su("v_lshl_add_u32 v36, v37, 3, v36")
    su(f"s_lshl_b32 s28, s{S_W}, 8")
    su(f"s_add_u32 s28, s28, {L_CKV}")
    su("v_add_u32 v36, s28, v36")
    for t in range(8):
        su(f"v_xor_b32 v37, {2*t}, v35")
        su(f"v_lshl_add_u32 v{TB+t}, v37, 4, v36")
        su(f"v_add_u32 v{TB2+t}, 65536, v{TB+t}")
    su(f"v_and_b32 v57, 31, v{V_LANE}")
    su("v_lshlrev_b32 v57, 2, v57")
    su(f"s_lshl_b32 s28, s{S_W}, 7")
    su("v_add_u32 v56, s28, v57")
    su(f"v_lshlrev_b32 v58, 2, v{V_L15}")
    su(f"v_lshrrev_b32 v32, 1, v{V_G}")
    su(f"s_lshl_b32 s28, s{S_W}, 2")
    su("v_add_u32 v32, s28, v32")
    su(f"v_and_b32 v33, 1, v{V_G}")
    su("v_lshlrev_b32 v33, 3, v33")
    su(f"v_lshl_add_u32 v33, v{V_L15}, 8, v33")
    su(f"v_xor_b32 v34, v32, v{V_L15}")
    su("v_lshl_add_u32 v59, v34, 4, v33")
    su("v_xor_b32 v63, 32, v59")
    for ks in range(4):
        su(f"v_add_u32 v34, {4*ks}, v{V_G}")
        su(f"v_xor_b32 v34, v34, v{V_L15}")
        su("v_lshlrev_b32 v34, 4, v34")
        su(f"v_lshl_add_u32 v{120+ks}, v{V_L15}, 8, v34")
    su(f"v_lshlrev_b32 v126, 4, v{V_L15}")
    su(f"v_lshl_add_u32 v124, v{V_G}, 10, v126")
    su(f"v_lshlrev_b32 v125, 4, v{V_LANE}")
    su(f"v_and_b32 v126, 31, v{V_LANE}")
    su("v_lshlrev_b32 v126, 7, v126")
    su(f"s_and_b32 s28, s{S_W}, 1")
    su("s_lshl_b32 s28, s28, 7")
    su(f"v_xor_b32 v127, s28, v{V_L16B}")
    for j in range(32):
        idx = (j & 3) + 4*((j >> 3) & 1)
        if j == 0: e("s_mov_b32 s30, s29")
        else: e(f"s_add_u32 s30, s29, {j*1024}")
        e(f"s_add_u32 m0, s31, {L_CKV + j*1024}")
        nop(1)
        e(f"buffer_load_dwordx4 v{VCK+idx}, {sr(SRD_1,4)}, s30 offen{NTC} lds")
        if j == 1:
            for s_ in setup: e(s_)
        if G.adapt:
            if j < G.adapt_max:
                lsk = G.newlab("unthr")
                e("s_cmp_lg_u32 s39, 0")
                e(f"s_cbranch_scc1 {lsk}")
                e(f"buffer_load_dword v47, v46, {sr(SRD_4,4)}, 0 offen sc1")
                e("s_waitcnt vmcnt(0)")
                e("v_readfirstlane_b32 s28, v47")
                e(f"s_cmp_ge_u32 s28, {G.adapt_thr}")
                e("s_cselect_b32 s39, 1, 0")
                lab(lsk)
        elif G.skew and j < 3:
            if j == 0:
                e("s_waitcnt vmcnt(0) lgkmcnt(0)")
                e("s_add_u32 s39, s52, s53")
                for r_ in range(54, 60): e(f"s_add_u32 s39, s39, s{r_}")
            else:
                lsk = G.newlab("unthr")
                e(f"s_cmp_ge_u32 s39, {G.skew_b if j == 1 else G.skew_a}")
                e(f"s_cbranch_scc1 {lsk}")
                e("s_waitcnt vmcnt(0)")
                lab(lsk)
        else:
            w_now = G.thr_w if j < G.thr_n else G.thr2_w
            if w_now and j >= w_now - 1 and j < 31:
                e(f"s_waitcnt vmcnt({w_now - 1})")
    G.stamp(1)
    e(f"s_and_b32 s34, s63, {RM}")
    e("s_lshl_b32 s34, s34, 11")
    e(f"s_add_u32 s34, s34, {WS_FB}")
    e("s_waitcnt lgkmcnt(0)")
    e(f"s_add_u32 s{S_TAG}, s{S_TAG}, 0x9e3779b9")
    e(f"s_lshl_b32 s29, s{S_H}, 15")
    e(f"s_lshl_b32 s30, s{S_W}, 13")
    e("s_add_u32 s29, s29, s30")
    e(f"s_add_u32 s29, s29, {WS_QA}")
    e(f"s_lshl_b32 s31, s{S_W}, 13")
    if G.touch:
        e(f"s_lshl_b32 s28, s{S_A}, 2")
        e(f"s_add_u32 s28, s28, s{S_W}")
        e("s_lshl_b32 s28, s28, 13")
        e(f"s_add_u32 s28, s28, {WS_OP}")
        e("v_mov_b32 v45, 0")
        e("s_mov_b64 exec, 1")
        e(f"buffer_load_dword v46, v45, {sr(SRD_WS,4)}, s28 offen sc1")
        e(f"s_mov_b32 s28, {WS_SU}")
        e(f"buffer_load_dword v47, v45, {sr(SRD_WS,4)}, s28 offen sc1")
        e("s_mov_b64 exec, -1")
    if G.bwave:
        ldFB(236)
        e("s_waitcnt vmcnt(0)")
        G.stamp(2)
        lbp = G.newlab("nobpoll")
        check_tags([236, 237, 238, 239])
        e(f"s_cbranch_vccz {lbp}")
        poll(ldFB, 40, 4, [0, 1, 2, 3], [240, 244, 248], 2, G.sl_flag, 32)
        lab(lbp)
        G.stamp(3)
        for j in range(8):
            if j & 3: e(f"v_xor_b32 v44, {32*(j&3)}, v127")
            else: e("v_mov_b32 v44, v127")
            if j == 0: e("s_mov_b32 s30, s29")
            else: e(f"s_add_u32 s30, s29, {j*1024}")
            e(f"s_add_u32 m0, s31, {L_QAL + j*1024}")
            nop(1)
            e(f"buffer_load_dwordx4 v44, {sr(SRD_WS,4)}, s30 offen sc1 lds")
        for ks in range(16):
            for kt in range(2):
                e(f"ds_read_b128 {ar((kt*16+ks)*4,4)}, v{AA+(ks&3)} offset:{16384*kt + 256*(ks>>2)}")
        e("s_barrier")
    else:
        lbp0 = G.newlab("nobp0")
        e(f"s_cmp_lg_u32 s{S_W}, 0")
        e(f"s_cbranch_scc1 {lbp0}")
        ldFB(236)
        lab(lbp0)
        e("s_waitcnt vmcnt(0)")
        G.stamp(2)
        lbp = G.newlab("nobpoll")
        e(f"s_cmp_lg_u32 s{S_W}, 0")
        e(f"s_cbranch_scc1 {lbp}")
        check_tags([236, 237, 238, 239])
        e(f"s_cbranch_vccz {lbp}")
        poll(ldFB, 40, 4, [0, 1, 2, 3], [240, 244, 248], 2, G.sl_flag, 32)
        lab(lbp)
        e("s_barrier")
        G.stamp(3)
        for j in range(8):
            if j & 3: e(f"v_xor_b32 v44, {32*(j&3)}, v127")
            else: e("v_mov_b32 v44, v127")
            if j == 0: e("s_mov_b32 s30, s29")
            else: e(f"s_add_u32 s30, s29, {j*1024}")
            e(f"s_add_u32 m0, s31, {L_QAL + j*1024}")
            nop(1)
            e(f"buffer_load_dwordx4 v44, {sr(SRD_WS,4)}, s30 offen sc1 lds")
        for ks in range(16):
            for kt in range(2):
                e(f"ds_read_b128 {ar((kt*16+ks)*4,4)}, v{AA+(ks&3)} offset:{16384*kt + 256*(ks>>2)}")
    for n in range(32):
        ks_, t = n >> 3, n & 7
        base = (TB2 if ks_ >= 2 else TB) + t
        for u in range(2):
            e(f"ds_read_b64_tr_b16 {ar(128+n*4+2*u,2)}, v{base} offset:{(ks_&1)*32768 + 4096*u}")
    e(f"s_lshl_b32 s28, s{S_A}, 2")
    e(f"s_add_u32 s28, s28, s{S_W}")
    e("s_lshl_b32 s28, s28, 13")
    e(f"s_add_u32 s34, s28, {WS_OP}")
    e("s_add_u32 s35, s34, 4096")
    e(f"s_lshl_b32 s28, s{S_W}, 7")
    e(f"s_add_u32 s28, s28, s{S_A}")
    e("s_lshl_b32 s28, s28, 9")
    e(f"s_add_u32 s36, s28, {WS_SU}")
    e(f"s_lshl_b32 s28, s{S_W}, 7")
    e(f"s_add_u32 s28, s28, s{S_A}")
    e("s_lshl_b32 s28, s28, 4")
    e(f"s_add_u32 s37, s28, {WS_CF}")
    e(f"v_lshlrev_b32 v126, 13, v{V_LANE}")
    e(f"v_mov_b32 v252, s{S_TAG}")
    e(f"v_mov_b32 v253, s{S_TAG}")
    e("s_waitcnt vmcnt(0) lgkmcnt(0)")
    e("s_barrier")
    G.stamp(4)
    QB, SC = 64, 192
    def rdB(ks):
        st = ks % 3
        for ht in range(2):
            e(f"ds_read_b128 {vr(QB+(st*2+ht)*4,4)}, v{AB+(ks&3)} offset:{16384*ht + 256*(ks>>2)}")
    def pslot(n): return 32 + n
    rdB(0); rdB(1)
    for ks in range(16):
        if ks + 2 < 16:
            rdB(ks + 2); e("s_waitcnt lgkmcnt(4)")
        elif ks + 1 < 16: e("s_waitcnt lgkmcnt(2)")
        else: e("s_waitcnt lgkmcnt(0)")
        st = ks % 3
        for kt in range(2):
            for ht in range(2):
                d = SC + (kt*2+ht)*4
                c = "0" if ks == 0 else vr(d, 4)
                e(f"v_mfma_f32_16x16x32_bf16 {vr(d,4)}, {ar((kt*16+ks)*4,4)}, {vr(QB+(st*2+ht)*4,4)}, {c}")
    nop(9)
    G.stamp(5)
    MXR = 32
    for step in range(4):
        for ht in range(2):
            a = SC + ht*4; b = SC + (2+ht)*4
            if step == 0: e(f"v_max3_f32 v{MXR+ht}, v{a}, v{a+1}, v{a+2}")
            elif step == 1: e(f"v_max3_f32 v{MXR+ht}, v{MXR+ht}, v{a+3}, v{b}")
            elif step == 2: e(f"v_max3_f32 v{MXR+ht}, v{MXR+ht}, v{b+1}, v{b+2}")
            else: e(f"v_max_f32 v{MXR+ht}, v{MXR+ht}, v{b+3}")
    xg_reduce2("v_max_f32", MXR, MXR+1, MXR+2, MXR+3)
    e(f"v_cndmask_b32 v36, v{MXR}, v{MXR+1}, {sr(M_G1,2)}")
    e(f"ds_write_b32 v56, v36 offset:{L_MX}")
    e("s_waitcnt lgkmcnt(0)")
    e("s_barrier")
    for ht in range(2):
        for w in range(4):
            e(f"ds_read_b32 v{40+ht*4+w}, v58 offset:{L_MX + 128*w + 64*ht}")
    e("s_waitcnt lgkmcnt(0)")
    sm = []
    a_ = sm.append
    for ht in range(2):
        a_(f"v_max3_f32 v{MXR+ht}, v{40+ht*4}, v{41+ht*4}, v{42+ht*4}")
    for ht in range(2):
        a_(f"v_max_f32 v{MXR+ht}, v{MXR+ht}, v{43+ht*4}")
    LS = 34
    for kt in range(2):
        for ht in range(2):
            d = SC + (kt*2+ht)*4
            for r in range(4): a_(f"v_sub_f32 v{d+r}, v{d+r}, v{MXR+ht}")
    for kt in range(2):
        for ht in range(2):
            d = SC + (kt*2+ht)*4
            for r in range(4): a_(f"v_exp_f32 v{d+r}, v{d+r}")
    for kt in range(2):
        for ht in range(2):
            d = SC + (kt*2+ht)*4
            q = 88 + (kt*2+ht)*2
            a_(f"v_cvt_pk_bf16_f32 v{q}, v{d}, v{d+1}")
            a_(f"v_cvt_pk_bf16_f32 v{q+1}, v{d+2}, v{d+3}")
            a_(f"ds_write_b64 v{63 if kt else 59}, {vr(q,2)} offset:{L_P + 4096*ht}")
    for ht in range(2):
        a = SC + ht*4
        a_(f"v_add_f32 v{LS+ht}, v{a}, v{a+1}")
    for x in (2, 3, 8, 9, 10, 11):
        for ht in range(2):
            a_(f"v_add_f32 v{LS+ht}, v{LS+ht}, v{SC+ht*4+x}")
    xg_reduce2("v_add_f32", LS, LS+1, 46, 47, emit=a_)
    a_(f"v_cndmask_b32 v36, v{LS}, v{LS+1}, {sr(M_G1,2)}")
    a_(f"ds_write_b32 v56, v36 offset:{L_LP}")
    for ins in sm: e(ins)
    e("s_waitcnt lgkmcnt(0)")
    e("s_barrier")
    G.stamp(6)
    PA, OC = 208, 128
    for ht in range(2):
        for ks in range(4):
            e(f"ds_read_b128 {vr(PA+(ht*4+ks)*4,4)}, v{120+ks} offset:{L_P + 4096*ht}")
    for w in range(4):
        e(f"ds_read_b32 v{240+w}, v57 offset:{L_LP + 128*w}")
    def mm(ks, t, ht):
        d = OC + (ht*8+t)*4
        c = "0" if ks == 0 else vr(d, 4)
        e(f"v_mfma_f32_16x16x32_bf16 {vr(d,4)}, {vr(PA+(ht*4+ks)*4,4)}, {ar(pslot(ks*8+t)*4,4)}, {c}")
    ST0 = 88
    for ks in range(4):
        e(f"s_waitcnt lgkmcnt({11 - ks})")
        for t in range(8): mm(ks, t, 0)
    e("s_waitcnt lgkmcnt(0)")
    cv = []
    for tp in range(4):
        for r in range(4):
            cv.append(f"v_cvt_pk_bf16_f32 v{ST0+4*r+tp}, v{OC+(2*tp)*4+r}, v{OC+(2*tp+1)*4+r}")
    seq = [(ks, t) for ks in range(4) for t in range(8)]
    for idx, (ks, t) in enumerate(seq):
        mm(ks, t, 1)
        if 8 <= idx < 24: e(cv[idx - 8])
        if idx == 24:
            for r in range(4):
                e(f"buffer_store_dwordx4 {vr(ST0+4*r,4)}, v124, {sr(SRD_WS,4)}, s34 offen offset:{r*256} sc1")
    G.stamp(7)
    e("v_add_f32 v240, v240, v241")
    e("v_add_f32 v242, v242, v243")
    e(f"v_cndmask_b32 v44, v{MXR}, v{MXR+1}, {sr(M_G1,2)}")
    e("v_mov_b32 v45, 0")
    e("v_add_f32 v46, v240, v242")
    e("v_mov_b32 v47, 0")
    nop(4)
    for r in range(4):
        for tp in range(4):
            e(f"v_cvt_pk_bf16_f32 v{ST0+16+4*r+tp}, v{OC+(8+2*tp)*4+r}, v{OC+(8+2*tp+1)*4+r}")
        e(f"buffer_store_dwordx4 {vr(ST0+16+4*r,4)}, v124, {sr(SRD_WS,4)}, s35 offen offset:{r*256} sc1")
    lo32()
    e(f"buffer_store_dwordx4 {vr(44,4)}, v125, {sr(SRD_WS,4)}, s36 offen sc1")
    e(f"s_mov_b64 exec, {hex(REX)}")
    e("s_waitcnt vmcnt(0)")
    G.stamp(8)
    e(f"buffer_store_dwordx2 {vr(252,2)}, v126, {sr(SRD_WS,4)}, s37 offen sc1")
    e("s_mov_b64 exec, -1")
    G.stamp(9)
    lab("L_adone")
    store_stamps()
    lab("L_end")
    e("s_endpgm")

    tail = []
    if prepost:
        for nm, off, spin in (("pre_kernel", 0x900000, 400), ("post_kernel", 0x900100, 0)):
            tail += [f".globl {nm}", ".p2align 8", f".type {nm},@function", f"{nm}:",
                     "  s_memrealtime s[10:11]",
                     "  s_cmp_ge_u32 s2, 1", f"  s_cbranch_scc1 L_{nm}_end",
                     "  s_load_dwordx2 s[4:5], s[0:1], 96"]
            if spin:
                tail += [f"  s_mov_b32 s6, {spin}", f"L_{nm}_sp:", "  s_sleep 8", "  s_sub_u32 s6, s6, 1", "  s_cmp_lg_u32 s6, 0", f"  s_cbranch_scc1 L_{nm}_sp",
                         "  s_memrealtime s[10:11]"]
            tail += ["  s_waitcnt lgkmcnt(0)", "  s_mov_b32 s12, s4", "  s_and_b32 s13, s5, 0xffff", "  s_mov_b32 s14, 0x10000000", "  s_mov_b32 s15, 0x20000",
                     "  v_mov_b32 v1, s10", f"  v_mov_b32 v2, {off}", "  s_mov_b64 exec, 1",
                     "  buffer_store_dword v1, v2, s[12:15], 0 offen", "  s_waitcnt vmcnt(0)", f"L_{nm}_end:", "  s_endpgm"]
        tail.append('.section .rodata,"a"')
        for nm in ("pre_kernel", "post_kernel"):
            tail += [".p2align 6", f".amdhsa_kernel {nm}", "  .amdhsa_next_free_vgpr 32",
                 "  .amdhsa_next_free_sgpr 24", "  .amdhsa_accum_offset 32", "  .amdhsa_group_segment_fixed_size 0",
                 "  .amdhsa_kernarg_size 104", "  .amdhsa_user_sgpr_count 2", "  .amdhsa_user_sgpr_kernarg_segment_ptr 1",
                 "  .amdhsa_system_sgpr_workgroup_id_x 1", ".end_amdhsa_kernel"]
    if extra_empty:
        tail += [".globl empty_kernel", ".p2align 8", ".type empty_kernel,@function", "empty_kernel:", "  s_endpgm"]
        tail += ['.section .rodata,"a"', ".p2align 6", ".amdhsa_kernel empty_kernel", "  .amdhsa_next_free_vgpr 32",
                 "  .amdhsa_next_free_sgpr 16", "  .amdhsa_accum_offset 32", "  .amdhsa_group_segment_fixed_size 0",
                 "  .amdhsa_kernarg_size 104", "  .amdhsa_user_sgpr_count 2", "  .amdhsa_user_sgpr_kernarg_segment_ptr 1",
                 "  .amdhsa_system_sgpr_workgroup_id_x 1", ".end_amdhsa_kernel"]
    tail.append('.section .rodata,"a"')
    tail.append(".p2align 6")
    tail.append(f".amdhsa_kernel {NAME}_kernel")
    tail.append("  .amdhsa_next_free_vgpr 512")
    tail.append("  .amdhsa_next_free_sgpr 102")
    tail.append("  .amdhsa_accum_offset 256")
    tail.append("  .amdhsa_group_segment_fixed_size 0")
    tail.append("  .amdhsa_kernarg_size 104")
    tail.append("  .amdhsa_user_sgpr_count 2")
    tail.append("  .amdhsa_user_sgpr_kernarg_segment_ptr 1")
    tail.append("  .amdhsa_system_sgpr_workgroup_id_x 1")
    tail.append(".end_amdhsa_kernel")
    for ln in G.L:
        if "buffer_" in ln:
            m = re.search(r"offset:(\d+)", ln)
            assert not m or int(m.group(1)) <= 4095, ln
    return "\n".join(hdr + G.L + tail) + "\n"

if __name__ == "__main__":
    import argparse
    ap = argparse.ArgumentParser()
    ap.add_argument("-o", default=f"cdna_kernels/{NAME}.s")
    ap.add_argument("--stamps", action="store_true")
    ap.add_argument("--extra-empty", type=int, default=0)
    ap.add_argument("--prepost", action="store_true")
    ap.add_argument("--set", action="append", default=[], help="key=value generator option")
    a = ap.parse_args()
    kw = {}
    for s_ in a.set:
        k, v = s_.split("=")
        kw[k] = int(v) if re.fullmatch(r"-?\d+", v) else v
    s = build(stamps=a.stamps, extra_empty=a.extra_empty, prepost=a.prepost, **kw)
    open(a.o, "w").write(s)
    print("wrote", a.o, len(s), "bytes")
```

```python
import sys, math, struct, re
NAME = "parallel_sum__compressed_kv_cla__glu_gated_swiglu__decode"

WS_EPOCH = 0x0
WS_FB    = 0x1000
WS_F1    = 0x660000
WS_F1F   = 0x640000
WS_QP    = 0x20000
WS_QA    = 0x60000
WS_CP    = 0x70000
WS_EP    = 0xB0000
WS_FP    = 0xF0000
WS_SU    = 0x150000
WS_QPF   = 0x190000
WS_CPF   = 0x600000
WS_CF    = 0x1D0000
WS_OP    = 0x200000
WS_STAMP = 0x800000
FP_S = 48
NFFN = 86

R0, R1, R2 = 8192, 40960, 73728
L_XN  = 0
L_AVQ = 2048
L_AVO = L_AVQ + 512
L_AVC = L_AVO + 512
L_WGT = L_AVC + 512
L_QS  = L_WGT + 512
L_FIN = L_QS + 512
L_GUW = L_FIN + 512
L_HW = L_GUW + 512
L_CKV = 32768
L_QAL = 0
L_MX  = 32768
L_LP  = 32768 + 512
L_P   = 32768 + 4096
L_GU  = 16384
L_H   = 16384 + 512
LDS_BYTES = 163840

P_X, P_CKV, P_WQ, P_WUK, P_WUV, P_WO, P_BX, P_W1, P_W3, P_W2, P_OUT, P_DBG, P_WS = 64, 66, 68, 70, 72, 74, 76, 78, 80, 82, 84, 86, 88
S_W, S_H, S_I, S_TAG = 3, 4, 5, 6
SRD_WS, SRD_1, SRD_2, SRD_3, SRD_4 = 8, 12, 16, 20, 24
M_G1, M_HI = 44, 46
V_LANE, V_L15, V_G, V_L16B, V_SW, V_TL0, V_TL1 = 1, 2, 3, 4, 5, 6, 7

def vr(a, n): return f"v[{a}:{a+n-1}]"
def ar(a, n): return f"a[{a}:{a+n-1}]"
def sr(a, n): return f"s[{a}:{a+n-1}]"
def fbits(x): return hex(struct.unpack("<I", struct.pack("<f", x))[0])

class Gen:
    def __init__(self, **kw):
        d = dict(stamps=False, nt_ckv=0, nt_w=1, spin=200000, thr_n=3, thr_w=1, thr2_w=0,
                 gate='N', depth=3, sl_unit=1, sl_flag=4, uk_late=1, fast_k=24, pf_uk=0, prew=0, order='A', touch=0, pf_kv=16, split=0, fmap=1, bwave=0, uneven=0, ukl=0, tout=0, skew=0, skew_a=3, skew_b=4, adapt=0, adapt_thr=64, adapt_max=5)
        d.update(kw)
        self.__dict__.update(d)
        self.L = []
        self.nlab = 0
    def e(self, s): self.L.append("  " + s)
    def lab(self, s): self.L.append(s + ":")
    def newlab(self, p):
        self.nlab += 1
        return f"L_{p}_{self.nlab}"
    def nop(self, n):
        while n > 0:
            k = min(n, 16)
            self.e(f"s_nop {k-1}")
            n -= k
    def stamp(self, idx):
        if not self.stamps: return
        self.e("s_memrealtime s[40:41]")
        self.e("s_waitcnt lgkmcnt(0)")
        self.e(f"v_writelane_b32 v255, s40, {idx}")
    def stampval(self, idx, sreg):
        if not self.stamps: return
        self.e(f"v_writelane_b32 v255, s{sreg}, {idx}")
    def srd(self, dst, ptr, size):
        self.e(f"s_mov_b32 s{dst}, s{ptr}")
        self.e(f"s_and_b32 s{dst+1}, s{ptr+1}, 0xffff")
        self.e(f"s_mov_b32 s{dst+2}, {size}")
        self.e(f"s_mov_b32 s{dst+3}, 0x20000")

def build(extra_empty=0, prepost=False, **kw):
    G = Gen(**kw)
    RM = 3 if G.split else 7
    REX = 0xf if G.split else 0xff
    e, lab, nop = G.e, G.lab, G.nop
    NTW = " nt" if G.nt_w else ""
    NTC = " nt" if G.nt_ckv else ""
    hdr = []
    if prepost:
        hdr.append(f"; @launch kernel=pre_kernel grid=(256,1,1) block=(64,1,1) lds=0")
        hdr.append(f"; @launch kernel={NAME}_kernel grid=(256,1,1) block=(256,1,1) lds={LDS_BYTES}")
        hdr.append(f"; @launch kernel=post_kernel grid=(256,1,1) block=(64,1,1) lds=0")
    elif extra_empty:
        hdr.append(f"; @launch kernel={NAME}_kernel grid=(256,1,1) block=(256,1,1) lds={LDS_BYTES}")
        for _ in range(extra_empty):
            hdr.append(f"; @launch kernel=empty_kernel grid=(256,1,1) block=(256,1,1) lds=0")
    else:
        hdr.append(f"; @launch grid=(256,1,1) block=(256,1,1) lds={LDS_BYTES}")
    hdr.append('.amdgcn_target "amdgcn-amd-amdhsa--gfx950"')
    hdr.append(".text")
    hdr.append(f".globl {NAME}_kernel")
    hdr.append(".p2align 8")
    hdr.append(f".type {NAME}_kernel,@function")
    hdr.append(f"{NAME}_kernel:")

    def lo32():
        e("s_mov_b32 exec_lo, -1"); e("s_mov_b32 exec_hi, 0")
    def check_tags(tagregs):
        first = True
        for k in range(0, len(tagregs), 2):
            a = tagregs[k]; b = tagregs[k+1] if k + 1 < len(tagregs) else tagregs[k]
            e(f"v_xor_b32 v61, s{S_TAG}, v{a}")
            e(f"v_xor_b32 v62, s{S_TAG}, v{b}")
            if first:
                e("v_or_b32 v60, v61, v62"); first = False
            else:
                e("v_or3_b32 v60, v60, v61, v62")
        e("v_cmp_ne_u32 vcc, 0, v60")
    def poll(mk_loads, base, nregs, tagoffs, ring, nld, sleep, cnt_idx=None):
        ring = ring[:G.depth]
        D = len(ring)
        lp, done = G.newlab("poll"), G.newlab("pdone")
        e(f"s_mov_b32 s48, {G.spin}")
        mk = mk_loads if isinstance(mk_loads, (list, tuple)) else [mk_loads] * D
        for k in range(D - 1):
            mk[k](ring[k])
            if sleep: e(f"s_sleep {sleep}")
        exits = [G.newlab("pexit") for _ in range(D)]
        lab(lp)
        for k in range(D):
            mk[(k + D - 1) % D](ring[(k + D - 1) % D])
            e(f"s_waitcnt vmcnt({(D-1)*nld})")
            check_tags([ring[k] + o for o in tagoffs])
            e(f"s_cbranch_vccz {exits[k]}")
            if sleep: e(f"s_sleep {sleep}")
        e("s_sub_u32 s48, s48, 1")
        e(f"s_cbranch_scc0 {lp}")
        for k in range(D):
            lab(exits[k])
            for r in range(nregs): e(f"v_mov_b32 v{base+r}, v{ring[k]+r}")
            if k < D - 1: e(f"s_branch {done}")
        lab(done)
        if cnt_idx is not None: G.stampval(cnt_idx, 48)
    def dual_poll(ld_fast, ld_slow, slow_store, base, nregs, tagoffs, ring, nld, cnt_idx):
        lp, x0, x1, done = G.newlab("fp"), G.newlab("fx0"), G.newlab("fx1"), G.newlab("fdone")
        r0, r1 = ring[0], ring[1]
        e(f"s_mov_b32 s49, {G.fast_k}")
        ld_fast(r0)
        lab(lp)
        for (a, b, x) in ((r0, r1, x0), (r1, r0, x1)):
            ld_fast(b)
            e(f"s_waitcnt vmcnt({nld})")
            check_tags([a + o for o in tagoffs])
            e(f"s_cbranch_vccz {x}")
        e("s_sub_u32 s49, s49, 1")
        e(f"s_cbranch_scc0 {lp}")
        slow_store()
        poll([ld_fast, ld_slow, ld_fast], base, nregs, tagoffs, ring, nld, G.sl_unit, cnt_idx)
        e(f"s_branch {done}")
        for (a, x) in ((r0, x0), (r1, x1)):
            lab(x)
            for r in range(nregs): e(f"v_mov_b32 v{base+r}, v{a+r}")
            slow_store()
            if x == x0: e(f"s_branch {done}")
        lab(done)
        G.stampval(cnt_idx + 10, 49)
    def dma_tile128(srd, v0, v1, soff_fn, lds_base, flags):
        e(f"s_lshl_b32 s31, s{S_W}, 13")
        for n in range(8):
            soff_fn(n)
            e(f"s_add_u32 m0, s31, {lds_base + n*1024}")
            v = v1 if (n >> 1) & 1 else v0
            nop(1)
            e(f"buffer_load_dwordx4 v{v}, {sr(srd,4)}, s30 offen{flags} lds")
    def lin(step):
        def f(n):
            if n == 0: e("s_mov_b32 s30, s29")
            else: e(f"s_add_u32 s30, s29, {n*step}")
        return f
    def gemv_loadB(base, vB, tmp0, tmp1):
        if base + 3*8192 + 1024 <= 65535:
            a0, a1, off = V_TL0, V_TL1, base
        else:
            e(f"v_add_u32 v{tmp0}, {base}, v{V_TL0}")
            e(f"v_add_u32 v{tmp1}, {base}, v{V_TL1}")
            a0, a1, off = tmp0, tmp1, 0
        for ks in range(4):
            for t in range(2):
                for u in range(2):
                    r = vB + (t*4 + ks)*4 + 2*u
                    e(f"ds_read_b64_tr_b16 {vr(r,2)}, v{a1 if t else a0} offset:{off + 8192*ks + 1024*u}")
    def gemv_loadA(vaddr, vA, off=0):
        for ks in range(4):
            e(f"ds_read_b128 {vr(vA+4*ks,4)}, v{vaddr} offset:{off + 64*ks}")
    def gemv_mma(vA, vB, vC):
        for ks in range(4):
            for t in range(2):
                c = "0" if ks == 0 else vr(vC+4*t, 4)
                e(f"v_mfma_f32_16x16x32_bf16 {vr(vC+4*t,4)}, {vr(vA+4*ks,4)}, {vr(vB+(t*4+ks)*4,4)}, {c}")
        nop(9)
    def sel_tb(vC, d0, d1):
        e(f"v_cndmask_b32 v{d0}, v{vC}, v{vC+4}, {sr(M_G1,2)}")
        e(f"v_cndmask_b32 v{d1}, v{vC+1}, v{vC+5}, {sr(M_G1,2)}")
    def publish_units(vC, voff, soff, q, fast=False):
        sel_tb(vC, q, q+2)
        lo32()
        e(f"buffer_store_dwordx4 {vr(q,4)}, v{voff}, {sr(SRD_WS,4)}, s{soff} offen" + ("" if fast else " sc1"))
        e("s_mov_b64 exec, -1")
    def wave_red(op, v, tmp):
        for r in (8, 4, 2, 1):
            nop(2)
            e(f"{op}_dpp v{v}, v{v}, v{v} row_ror:{r} row_mask:0xf bank_mask:0xf")
        e(f"v_mov_b32 v{tmp}, v{v}")
        nop(2)
        e(f"v_permlane16_swap_b32 v{v}, v{tmp}")
        nop(1)
        e(f"{op} v{v}, v{v}, v{tmp}")
        e(f"v_mov_b32 v{tmp}, v{v}")
        nop(2)
        e(f"v_permlane32_swap_b32 v{v}, v{tmp}")
        nop(1)
        e(f"{op} v{v}, v{v}, v{tmp}")
    def xg_reduce2(op, va, vb, ta, tb, emit=None):
        em = emit or e
        for perm in ("v_permlane16_swap_b32", "v_permlane32_swap_b32"):
            em(f"v_mov_b32 v{ta}, v{va}")
            em(f"v_mov_b32 v{tb}, v{vb}")
            em("s_nop 0")
            em(f"{perm} v{va}, v{ta}")
            em(f"{perm} v{vb}, v{tb}")
            em("s_nop 0")
            em(f"{op} v{va}, v{va}, v{ta}")
            em(f"{op} v{vb}, v{vb}, v{tb}")
    def wave_red2(op, va, vb, ta, tb):
        for r in (8, 4, 2, 1):
            nop(1)
            e(f"{op}_dpp v{va}, v{va}, v{va} row_ror:{r} row_mask:0xf bank_mask:0xf")
            e(f"{op}_dpp v{vb}, v{vb}, v{vb} row_ror:{r} row_mask:0xf bank_mask:0xf")
        xg_reduce2(op, va, vb, ta, tb)
    def rbf(v):
        e(f"v_cvt_pk_bf16_f32 v{v}, v{v}, v{v}")
        e(f"v_lshlrev_b32 v{v}, 16, v{v}")
    def layernorm(X0, X1, F0, F1, T, OUT):
        S0, S1, T0, T1, Q0, Q1, U0, U1 = range(T, T+8)
        for (X, F) in ((X0, F0), (X1, F1)):
            for k in range(4):
                e(f"v_lshlrev_b32 v{F+2*k}, 16, v{X+k}")
                e(f"v_and_b32 v{F+2*k+1}, 0xffff0000, v{X+k}")
        e(f"v_add_f32 v{S0}, v{F0}, v{F0+1}"); e(f"v_add_f32 v{S1}, v{F1}, v{F1+1}")
        for k in range(2, 8):
            e(f"v_add_f32 v{S0}, v{S0}, v{F0+k}"); e(f"v_add_f32 v{S1}, v{S1}, v{F1+k}")
        wave_red2("v_add_f32", S0, S1, T0, T1)
        e("s_mov_b32 s28, 0x3b000000")
        e(f"v_mul_f32 v{S0}, s28, v{S0}")
        e(f"v_mul_f32 v{S1}, s28, v{S1}")
        for k in range(8):
            e(f"v_sub_f32 v{U0}, v{F0+k}, v{S0}")
            e(f"v_sub_f32 v{U1}, v{F1+k}, v{S1}")
            if k == 0:
                e(f"v_mul_f32 v{Q0}, v{U0}, v{U0}"); e(f"v_mul_f32 v{Q1}, v{U1}, v{U1}")
            else:
                e(f"v_fmac_f32 v{Q0}, v{U0}, v{U0}"); e(f"v_fmac_f32 v{Q1}, v{U1}, v{U1}")
        wave_red2("v_add_f32", Q0, Q1, T0, T1)
        e("s_mov_b32 s29, 0x3727c5ac")
        def both(f): f(Q0, S0); f(Q1, S1)
        both(lambda Q, S: e(f"v_mul_f32 v{Q}, s28, v{Q}"))
        both(lambda Q, S: e(f"v_cvt_pk_bf16_f32 v{Q}, v{Q}, v{Q}"))
        both(lambda Q, S: e(f"v_lshlrev_b32 v{Q}, 16, v{Q}"))
        both(lambda Q, S: e(f"v_add_f32 v{Q}, s29, v{Q}"))
        both(lambda Q, S: e(f"v_cvt_pk_bf16_f32 v{Q}, v{Q}, v{Q}"))
        both(lambda Q, S: e(f"v_lshlrev_b32 v{Q}, 16, v{Q}"))
        both(lambda Q, S: e(f"v_sqrt_f32 v{Q}, v{Q}"))
        both(lambda Q, S: e(f"v_cvt_pk_bf16_f32 v{S}, v{S}, v{S}"))
        both(lambda Q, S: e(f"v_cvt_pk_bf16_f32 v{Q}, v{Q}, v{Q}"))
        both(lambda Q, S: e(f"v_lshlrev_b32 v{S}, 16, v{S}"))
        both(lambda Q, S: e(f"v_lshlrev_b32 v{Q}, 16, v{Q}"))
        both(lambda Q, S: e(f"v_rcp_f32 v{Q}, v{Q}"))
        for (F, S, Q, XB) in ((F0, S0, Q0, 0), (F1, S1, Q1, 1)):
            for k in range(0, 8, 2):
                e(f"v_sub_f32 v{F+k}, v{F+k}, v{S}")
                e(f"v_sub_f32 v{F+k+1}, v{F+k+1}, v{S}")
                e(f"v_cvt_pk_bf16_f32 v{U0}, v{F+k}, v{F+k+1}")
                e(f"v_lshlrev_b32 v{F+k}, 16, v{U0}")
                e(f"v_and_b32 v{F+k+1}, 0xffff0000, v{U0}")
                e(f"v_mul_f32 v{F+k}, v{F+k}, v{Q}")
                e(f"v_mul_f32 v{F+k+1}, v{F+k+1}, v{Q}")
                e(f"v_cvt_pk_bf16_f32 v{OUT+XB*4+k//2}, v{F+k}, v{F+k+1}")
    def layernorm1(X, F, T, OUT):
        S, Q, T0, T1, U, C = range(T, T+6)
        for k in range(4):
            e(f"v_lshlrev_b32 v{F+2*k}, 16, v{X+k}")
            e(f"v_and_b32 v{F+2*k+1}, 0xffff0000, v{X+k}")
        e(f"v_readfirstlane_b32 s28, v{F}")
        nop(2)
        for k in range(8): e(f"v_subrev_f32 v{F+k}, s28, v{F+k}")
        e(f"v_add_f32 v{S}, v{F}, v{F+1}")
        e(f"v_mul_f32 v{Q}, v{F}, v{F}")
        e(f"v_fmac_f32 v{Q}, v{F+1}, v{F+1}")
        for k in range(2, 8):
            e(f"v_add_f32 v{S}, v{S}, v{F+k}")
            e(f"v_fmac_f32 v{Q}, v{F+k}, v{F+k}")
        wave_red2("v_add_f32", S, Q, T0, T1)
        e("s_mov_b32 s29, 0x3b000000")
        e(f"v_mul_f32 v{S}, s29, v{S}")
        e(f"v_mul_f32 v{Q}, s29, v{Q}")
        e(f"v_fma_f32 v{Q}, -v{S}, v{S}, v{Q}")
        e(f"v_add_f32 v{U}, s28, v{S}")
        e(f"v_max_f32 v{Q}, 0, v{Q}")
        e(f"v_cvt_pk_bf16_f32 v{U}, v{U}, v{U}")
        e(f"v_cvt_pk_bf16_f32 v{Q}, v{Q}, v{Q}")
        e(f"v_lshlrev_b32 v{U}, 16, v{U}")
        e(f"v_lshlrev_b32 v{Q}, 16, v{Q}")
        e("s_mov_b32 s29, 0x3727c5ac")
        e(f"v_add_f32 v{Q}, s29, v{Q}")
        e(f"v_subrev_f32 v{U}, s28, v{U}")
        e(f"v_cvt_pk_bf16_f32 v{Q}, v{Q}, v{Q}")
        e(f"v_lshlrev_b32 v{Q}, 16, v{Q}")
        e(f"v_sqrt_f32 v{Q}, v{Q}")
        for k in range(4): e(f"v_sub_f32 v{F+k}, v{F+k}, v{U}")
        e(f"v_cvt_pk_bf16_f32 v{Q}, v{Q}, v{Q}")
        for k in range(4, 8): e(f"v_sub_f32 v{F+k}, v{F+k}, v{U}")
        e(f"v_lshlrev_b32 v{Q}, 16, v{Q}")
        e(f"v_rcp_f32 v{Q}, v{Q}")
        for k in range(0, 8, 2):
            e(f"v_cvt_pk_bf16_f32 v{OUT+k//2}, v{F+k}, v{F+k+1}")
        for k in range(0, 8, 2):
            e(f"v_lshlrev_b32 v{F+k}, 16, v{OUT+k//2}")
            e(f"v_and_b32 v{F+k+1}, 0xffff0000, v{OUT+k//2}")
        for k in range(8): e(f"v_mul_f32 v{F+k}, v{F+k}, v{Q}")
        for k in range(0, 8, 2):
            e(f"v_cvt_pk_bf16_f32 v{OUT+k//2}, v{F+k}, v{F+k+1}")
    def store_stamps():
        if not G.stamps: return
        e("s_getreg_b32 s30, hwreg(HW_REG_XCC_ID)")
        e("v_writelane_b32 v255, s30, 40")
        e(f"s_lshl_b32 s30, s2, 2")
        e(f"s_add_u32 s30, s30, s{S_W}")
        e(f"s_lshl_b32 s30, s30, 8")
        e(f"s_add_u32 s30, s30, {WS_STAMP}")
        e(f"v_lshlrev_b32 v60, 2, v{V_LANE}")
        e(f"buffer_store_dword v255, v60, {sr(SRD_WS,4)}, s30 offen")

    e("s_cmp_ge_u32 s2, 256")
    e("s_cbranch_scc1 L_end")
    if G.stamps:
        e("v_mov_b32 v255, 0")
        e("s_memrealtime s[40:41]")
    e(f"s_load_dwordx16 s[64:79], s[0:1], 0")
    e(f"s_load_dwordx8 s[80:87], s[0:1], 64")
    e(f"s_load_dwordx2 s[88:89], s[0:1], 96")
    e(f"v_and_b32 v{V_LANE}, 63, v0")
    e(f"v_lshrrev_b32 v8, 6, v0")
    e(f"v_and_b32 v{V_L15}, 15, v0")
    e(f"v_readfirstlane_b32 s{S_W}, v8")
    e(f"v_lshrrev_b32 v{V_G}, 4, v{V_LANE}")
    e(f"v_lshlrev_b32 v{V_L16B}, 4, v{V_LANE}")
    e(f"s_mov_b32 s{M_G1}, 0xffff0000"); e(f"s_mov_b32 s{M_G1+1}, 0xffff0000")
    e(f"s_mov_b32 s{M_HI}, 0"); e(f"s_mov_b32 s{M_HI+1}, -1")
    e("s_mov_b32 s63, s2")
    if G.split:
        e("s_and_b32 s28, s2, 3")
        e("s_lshr_b32 s29, s2, 3")
        e("s_bitcmp1_b32 s2, 2")
        e("s_cbranch_scc1 L_att_id")
        e("s_lshl_b32 s28, s28, 1")
        e("s_and_b32 s30, s29, 1")
        e("s_or_b32 s28, s28, s30")
        e("s_lshr_b32 s29, s29, 1")
        e("s_lshl_b32 s29, s29, 3")
        e("s_or_b32 s2, s28, s29")
        e("s_branch L_wgt")
        lab("L_att_id")
        e("s_lshl_b32 s29, s29, 2")
        e("s_add_u32 s2, s28, s29")
        e("s_add_u32 s2, s2, 128")
        e("s_branch L_att")
        lab("L_wgt")
    else:
        e("s_cmp_ge_u32 s2, 128")
        e("s_cbranch_scc1 L_att")

    V_AVW, V_AVR, V_PUB, VD0, VD1 = 56, 57, 55, 58, 59
    RING8 = [224, 232, 240]
    RING4 = [224, 228, 232]
    PUBQ = 48
    e(f"v_lshlrev_b32 v8, 1, v{V_G}")
    e(f"v_xor_b32 v8, v8, v{V_L15}")
    e(f"v_lshlrev_b32 v{V_SW}, 4, v8")
    e("s_and_b32 s28, s2, 7")
    e("s_lshl_b32 s28, s28, 2")
    e("s_bfe_u32 s29, s2, 0x20003")
    e(f"s_add_u32 s{S_H}, s28, s29")
    e(f"s_lshr_b32 s{S_I}, s2, 5")
    if G.fmap:
        e("s_and_b32 s28, s2, 7")
        e("s_sub_u32 s28, s28, 4")
        e("s_lshl_b32 s62, s28, 4")
        e("s_lshr_b32 s29, s2, 3")
        e("s_add_u32 s62, s62, s29")
        e("s_cmp_lt_u32 s28, 2")
        e("s_cselect_b32 s62, s62, 255")
    else:
        e("s_sub_u32 s62, s2, 96")
        e("s_cmp_ge_u32 s2, 96")
        e("s_cselect_b32 s62, s62, 255")
    e(f"v_lshl_add_u32 v{VD0}, v{V_G}, 13, v{V_SW}")
    e(f"v_xor_b32 v{VD1}, 128, v{VD0}")
    e(f"s_lshl_b32 s29, s{S_I}, 7")
    e(f"s_lshl_b32 s28, s{S_W}, 5")
    e("s_add_u32 s29, s29, s28")
    e("s_lshl_b32 s29, s29, 13")
    e(f"s_lshl_b32 s28, s{S_H}, 8")
    e("s_add_u32 s29, s29, s28")
    e("s_waitcnt lgkmcnt(0)")
    if G.stamps: e("v_writelane_b32 v255, s40, 0")
    if G.skew:
        lsk0 = G.newlab("noann")
        e("s_cmp_ge_u32 s2, 8")
        e(f"s_cbranch_scc1 {lsk0}")
        e(f"s_cmp_lg_u32 s{S_W}, 3")
        e(f"s_cbranch_scc1 {lsk0}")
        G.srd(SRD_4, P_DBG, 256)
        e("v_mov_b32 v30, 1")
        e("s_lshl_b32 s28, s2, 2")
        e("v_mov_b32 v31, s28")
        e("s_mov_b64 exec, 1")
        e(f"buffer_store_dword v30, v31, {sr(SRD_4,4)}, 0 offen sc1")
        e("s_mov_b64 exec, -1")
        lab(lsk0)
    G.srd(SRD_1, P_X, 2048)
    G.srd(SRD_2, P_WQ, 4194304)
    X0, X1 = 8, 12
    e(f"s_lshr_b32 s37, s{S_W}, 1")
    e("s_lshl_b32 s37, s37, 10")
    e(f"buffer_load_dwordx4 {vr(X0,4)}, v{V_L16B}, {sr(SRD_1,4)}, s37 offen")
    dma_tile128(SRD_2, VD0, VD1, lin(4*8192), R0, NTW)
    e(f"s_load_dword s{S_TAG}, {sr(P_WS,2)}, {WS_EPOCH}")
    G.srd(SRD_3, P_WUK, 4194304)
    e("s_mov_b32 s36, s29")
    def issue_uk(nfirst, nlast):
        e("s_mov_b32 s29, s36")
        e(f"s_lshl_b32 s31, s{S_W}, 13")
        for n in range(nfirst, nlast):
            lin(4*8192)(n)
            e(f"s_add_u32 m0, s31, {R1 + n*1024}")
            v = VD1 if (n >> 1) & 1 else VD0
            nop(1)
            e(f"buffer_load_dwordx4 v{v}, {sr(SRD_3,4)}, s30 offen{'' if G.pf_uk else NTW} lds")
    issue_uk(0, 8 - G.ukl)
    G.srd(SRD_WS, P_WS, 0x10000000)
    e(f"s_lshl_b32 s32, s{S_H}, 2")
    e(f"s_add_u32 s32, s32, s{S_W}")
    e("s_lshl_b32 s32, s32, 11")
    if G.prew:
        e(f"v_lshlrev_b32 v232, 4, v{V_L15}")
        e(f"v_lshl_add_u32 v232, v{V_G}, 10, v232")
        for r_ in range(4): e(f"v_mov_b32 v{236+r_}, 0")
        e(f"s_lshl_b32 s28, s{S_I}, 8")
        e("s_add_u32 s28, s28, s32")
        lo32()
        for reg in (WS_QPF, WS_CPF):
            e(f"s_add_u32 s30, s28, {reg}")
            e(f"buffer_store_dwordx4 {vr(236,4)}, v232, {sr(SRD_WS,4)}, s30 offen")
        e("s_mov_b64 exec, -1")
    else:
        for reg in (WS_QPF,):
            e(f"s_add_u32 s28, s32, {reg}")
            e(f"buffer_load_dwordx4 {vr(232,4)}, v{V_L16B}, {sr(SRD_WS,4)}, s28 offen sc1")
            e(f"buffer_load_dwordx4 {vr(236,4)}, v{V_L16B}, {sr(SRD_WS,4)}, s28 offen offset:1024 sc1")
    e(f"v_bfe_u32 v17, v{V_LANE}, 2, 2")
    e(f"v_and_b32 v18, 3, v{V_LANE}")
    e(f"v_and_b32 v19, 1, v{V_G}")
    e("v_lshl_add_u32 v20, v19, 2, v17")
    e("v_lshlrev_b32 v20, 1, v20")
    e(f"s_lshl_b32 s28, s{S_W}, 2")
    e("v_xor_b32 v20, s28, v20")
    e("v_lshrrev_b32 v21, 1, v18")
    e("v_add_u32 v20, v20, v21")
    e("v_lshlrev_b32 v20, 4, v20")
    e("v_and_b32 v21, 1, v18")
    e("v_lshl_add_u32 v20, v21, 3, v20")
    e(f"v_lshl_add_u32 v21, v{V_G}, 3, v17")
    e(f"v_lshl_add_u32 v{V_TL0}, v21, 8, v20")
    e(f"v_xor_b32 v{V_TL1}, 32, v{V_TL0}")
    e(f"v_lshrrev_b32 v20, 1, v{V_G}")
    e("v_lshlrev_b32 v20, 8, v20")
    e(f"v_lshl_add_u32 v21, v19, 4, v{V_L15}")
    e(f"s_lshl_b32 s28, s{S_W}, 5")
    e("v_add_u32 v21, s28, v21")
    e(f"v_lshl_add_u32 v{V_AVW}, v21, 1, v20")
    e(f"v_and_b32 v20, 1, v{V_LANE}")
    e("v_lshlrev_b32 v20, 8, v20")
    e(f"v_lshl_add_u32 v{V_AVR}, v{V_G}, 4, v20")
    e(f"v_lshlrev_b32 v{V_PUB}, 4, v{V_L15}")
    e(f"v_lshl_add_u32 v{V_PUB}, v{V_G}, 10, v{V_PUB}")
    e(f"s_lshl_b32 s32, s{S_H}, 2")
    e(f"s_add_u32 s32, s32, s{S_W}")
    e("s_lshl_b32 s32, s32, 11")
    e(f"s_lshl_b32 s33, s{S_I}, 8")
    e("s_add_u32 s33, s33, s32")
    e(f"v_and_b32 v52, 1, v{V_LANE}")
    e("v_lshlrev_b32 v52, 10, v52")
    e(f"v_lshl_add_u32 v52, v{V_G}, 4, v52")
    e(f"s_lshl_b32 s28, s{S_I}, 8")
    e(f"s_add_u32 s28, s28, {L_XN}")
    e("v_add_u32 v52, s28, v52")
    e(f"v_and_b32 v22, 3, v{V_LANE}")
    e(f"v_bfe_u32 v23, v{V_LANE}, 3, 1")
    e("v_lshl_add_u32 v22, v23, 2, v22")
    e("v_lshlrev_b32 v22, 1, v22")
    e(f"v_xor_b32 v22, v22, v{V_G}")
    e(f"v_lshlrev_b32 v23, 8, v{V_L15}")
    e(f"s_lshl_b32 s28, s{S_W}, 13")
    e(f"s_add_u32 s28, s28, {R1}")
    e("v_add_u32 v23, s28, v23")
    for ks in range(4):
        e(f"v_xor_b32 v24, {4*ks}, v22")
        e(f"v_lshl_add_u32 v{248+ks}, v24, 4, v23")
    G.stamp(1)
    e(f"s_waitcnt vmcnt({18 - G.ukl})")
    layernorm1(X0, 16, 24, 40)
    e(f"v_add_u32 v30, s37, v{V_L16B}")
    e(f"ds_write_b128 v30, {vr(40,4)} offset:{L_XN}")
    if G.ukl: issue_uk(8 - G.ukl, 8)
    if G.adapt:
        G.srd(SRD_4, P_DBG, 256)
        lna = G.newlab("noadd")
        e(f"s_cmp_lg_u32 s{S_W}, 0")
        e(f"s_cbranch_scc1 {lna}")
        e("v_mov_b32 v31, 1")
        e("v_mov_b32 v30, 0")
        e("s_mov_b64 exec, 1")
        e(f"buffer_atomic_add v31, v30, {sr(SRD_4,4)}, 0 offen sc1")
        e("s_mov_b64 exec, -1")
        lab(lna)
    G.stamp(2)
    e("s_waitcnt vmcnt(10) lgkmcnt(0)")
    e("s_barrier")
    G.stamp(3)
    VA, VB, VC, WUK = 96, 112, 144, 64
    gemv_loadA(52, VA)
    gemv_loadB(R0, VB, 21, 22)
    e(f"s_add_u32 s{S_TAG}, s{S_TAG}, 0x9e3779b9")
    e(f"s_add_u32 s34, s33, {WS_QP}")
    e(f"s_add_u32 s35, s33, {WS_QPF}")
    e(f"v_mov_b32 v{PUBQ+1}, s{S_TAG}")
    e(f"v_mov_b32 v{PUBQ+3}, s{S_TAG}")
    e("s_waitcnt lgkmcnt(0)")
    gemv_mma(VA, VB, VC)
    publish_units(VC, V_PUB, 35, PUBQ, fast=True)
    G.stamp(4)
    e("s_mov_b32 s37, s34")
    def consume4(soff, u0, lds_dst, cnt_idx, sfast, spub, voff, q):
        u1 = u0 + 4
        def mk(sreg):
            def ld(b):
                e(f"buffer_load_dwordx4 {vr(b,4)}, v{V_L16B}, {sr(SRD_WS,4)}, s{sreg} offen sc1")
                e(f"buffer_load_dwordx4 {vr(b+4,4)}, v{V_L16B}, {sr(SRD_WS,4)}, s{sreg} offen offset:1024 sc1")
            return ld
        def slow_store():
            lo32()
            e(f"buffer_store_dwordx4 {vr(q,4)}, v{voff}, {sr(SRD_WS,4)}, s{spub} offen sc1")
            e("s_mov_b64 exec, -1")
        dual_poll(mk(sfast), mk(soff), slow_store, u0, 8, [1, 3, 5, 7], RING8, 2, cnt_idx)
        nop(1)
        e(f"v_permlane32_swap_b32 v{u0}, v{u0+2}")
        e(f"v_permlane32_swap_b32 v{u1}, v{u1+2}")
        nop(1)
        e(f"v_add_f32 v{u0}, v{u0}, v{u0+2}")
        e(f"v_add_f32 v{u1}, v{u1}, v{u1+2}")
        nop(2)
        e(f"v_permlane16_swap_b32 v{u0}, v{u1}")
        nop(1)
        e(f"v_add_f32 v{u0}, v{u0}, v{u1}")
        write_av(u0, lds_dst)
    def write_av(vsrc, lds_dst):
        e(f"v_cvt_pk_bf16_f32 v54, v{vsrc}, v{vsrc}")
        e(f"ds_write_b16 v{V_AVW}, v54 offset:{lds_dst}")
    e(f"s_add_u32 s34, s32, {WS_QP}")
    e(f"s_add_u32 s35, s32, {WS_QPF}")
    e("s_waitcnt vmcnt(1)")
    for ct in range(2):
        for ks in range(4):
            e(f"ds_read_b128 {vr(WUK+(ct*4+ks)*4,4)}, v{248+ks} offset:{4096*ct}")
    consume4(34, 40, L_AVQ, 32, 35, 37, V_PUB, PUBQ)
    e("s_waitcnt lgkmcnt(0)")
    e("s_barrier")
    G.stamp(5)
    gemv_loadA(V_AVR, VA, L_AVQ)
    e(f"v_lshlrev_b32 v44, 4, v{V_L15}")
    e(f"v_lshl_add_u32 v44, v{V_G}, 15, v44")
    e(f"s_lshl_b32 s34, s{S_H}, 10")
    e(f"s_lshl_b32 s35, s{S_I}, 8")
    e("s_add_u32 s34, s34, s35")
    e(f"s_add_u32 s34, s34, {WS_QA}")
    e(f"s_lshl_b32 s35, s{S_H}, 2")
    e(f"s_add_u32 s35, s35, s{S_I}")
    e("s_lshl_b32 s35, s35, 4")
    e(f"s_add_u32 s35, s35, {WS_FB}")
    e("s_waitcnt lgkmcnt(0)")
    for ks in range(4):
        for ct in range(2):
            c = "0" if ks == 0 else vr(VC+4*ct, 4)
            e(f"v_mfma_f32_16x16x32_bf16 {vr(VC+4*ct,4)}, {vr(VA+4*ks,4)}, {vr(WUK+(ct*4+ks)*4,4)}, {c}")
    nop(9)
    sel_tb(VC, 40, 41)
    e(f"v_cndmask_b32 v40, v40, v41, {sr(M_HI,2)}")
    e(f"v_mul_f32 v40, {fbits((128 ** -0.5) * math.log2(math.e))}, v40")
    write_av(40, L_QS)
    e("s_waitcnt lgkmcnt(0)")
    e("s_barrier")
    def ldFB(b):
        e(f"buffer_load_dwordx2 {vr(b,2)}, v{V_L16B}, {sr(SRD_WS,4)}, s34 offen sc1")
        e(f"buffer_load_dwordx2 {vr(b+2,2)}, v{V_L16B}, {sr(SRD_WS,4)}, s34 offen offset:1024 sc1")
    def gate_poll():
        e(f"s_and_b32 s34, s63, {RM}")
        e("s_lshl_b32 s34, s34, 11")
        e(f"s_add_u32 s34, s34, {WS_FB}")
        poll(ldFB, 40, 4, [0, 1, 2, 3], RING4, 2, 4, 33)
    lskip = G.newlab("nopub")
    e(f"s_cmp_lg_u32 s{S_W}, 0")
    e(f"s_cbranch_scc1 {lskip}")
    e(f"ds_read_b128 {vr(40,4)}, v{V_L16B} offset:{L_QS}")
    e(f"v_mov_b32 v46, s{S_TAG}")
    e(f"v_mov_b32 v47, s{S_TAG}")
    e(f"v_lshlrev_b32 v45, 11, v{V_LANE}")
    e("s_waitcnt lgkmcnt(0)")
    lo32()
    e(f"buffer_store_dwordx4 {vr(40,4)}, v44, {sr(SRD_WS,4)}, s34 offen sc1")
    e(f"s_mov_b64 exec, {hex(REX)}")
    e("s_waitcnt vmcnt(0)")
    e(f"buffer_store_dwordx2 {vr(46,2)}, v45, {sr(SRD_WS,4)}, s35 offen sc1")
    e("s_mov_b64 exec, -1")
    if G.gate == 'B' and G.order != 'B2' and not G.pf_kv: gate_poll()
    lab(lskip)
    G.stamp(6)
    e("s_barrier")
    G.stamp(7)
    if G.pf_kv:
        G.srd(SRD_4, P_CKV, 16777216)
        PN0 = G.uneven if G.uneven else 32
        PN1 = 64 - PN0
        e(f"s_add_u32 s30, s{S_W}, 1")
        e(f"s_mul_i32 s30, s30, {PN0}")
        e(f"s_sub_u32 s28, s{S_W}, 1")
        e(f"s_mul_i32 s28, s28, {PN1}")
        e(f"s_add_u32 s28, s28, {2*PN0}")
        e(f"s_cmp_lt_u32 s{S_W}, 2")
        e("s_cselect_b32 s30, s30, s28")
        e("s_lshl_b32 s29, s2, 7")
        e("s_add_u32 s29, s29, s30")
        e("s_lshl_b32 s29, s29, 10")
        e(f"s_lshl_b32 s31, s{S_W}, 10")
        e("s_add_u32 m0, s31, 155648")
        c0 = G.pf_kv * PN0 // 32; c1 = G.pf_kv * PN1 // 32
        lpf = G.newlab("pfdone")
        for n in range(c1):
            if n == c0 and c0 < c1:
                e(f"s_cmp_lt_u32 s{S_W}, 2")
                e(f"s_cbranch_scc1 {lpf}")
            e(f"s_sub_u32 s30, s29, {(n + 1)*1024}")
            e(f"buffer_load_dwordx4 v{V_L16B}, {sr(SRD_4,4)}, s30 offen lds")
        lab(lpf)
        if G.order != 'B2' and G.gate == 'B':
            lg = G.newlab("gate2")
            e(f"s_cmp_lg_u32 s{S_W}, 0")
            e(f"s_cbranch_scc1 {lg}")
            gate_poll()
            lab(lg)
            e("s_barrier")
    FFN_EARLY = (G.order == 'B2')
    R3, RW2 = 106496, 139264
    S_FS, S_HF = 50, 51
    BUV, BO = 160, 192
    def blk_late():
        G.srd(SRD_1, P_WUV, 4194304)
        G.srd(SRD_2, P_WO, 4194304)
        e(f"v_lshl_add_u32 v{VD0}, v{V_G}, 17, v{V_SW}")
        e(f"v_xor_b32 v{VD1}, 128, v{VD0}")
        e(f"s_lshl_b32 s29, s{S_I}, 7")
        e(f"s_lshl_b32 s28, s{S_W}, 2")
        e("s_add_u32 s29, s29, s28")
        e("s_lshl_b32 s29, s29, 13")
        e(f"s_lshl_b32 s28, s{S_H}, 8")
        e("s_add_u32 s29, s29, s28")
        def f_uv(n):
            off = (64*(n & 1) + (n >> 1)) * 8192
            if off == 0: e("s_mov_b32 s30, s29")
            else: e(f"s_add_u32 s30, s29, {off}")
        dma_tile128(SRD_1, VD0, VD1, f_uv, R0, NTW)
        e(f"v_lshl_add_u32 v{VD0}, v{V_G}, 10, v{V_SW}")
        e(f"v_xor_b32 v{VD1}, 128, v{VD0}")
        e(f"s_lshl_b32 s29, s{S_H}, 7")
        e(f"s_lshl_b32 s28, s{S_W}, 5")
        e("s_add_u32 s29, s29, s28")
        e("s_lshl_b32 s29, s29, 10")
        e(f"s_lshl_b32 s28, s{S_I}, 8")
        e("s_add_u32 s29, s29, s28")
        dma_tile128(SRD_2, VD0, VD1, lin(4*1024), R2, NTW)
    def blk_ffn_loads():
        lnf1 = G.newlab("noffn1")
        if G.fmap:
            e("s_lshr_b32 s28, s2, 4")
            e("s_and_b32 s29, s2, 7")
            e("s_lshl_b32 s30, s29, 3")
            e("s_add_u32 s30, s30, s28")
            e(f"s_mov_b32 s{S_FS}, 63")
            e("s_cmp_lt_u32 s29, 4")
            e(f"s_cselect_b32 s{S_FS}, s30, s{S_FS}")
            e("s_add_u32 s30, s28, 32")
            e("s_cmp_lt_u32 s28, 6")
            e("s_cselect_b32 s30, s30, 63")
            e("s_cmp_eq_u32 s29, 6")
            e(f"s_cselect_b32 s{S_FS}, s30, s{S_FS}")
            e("s_add_u32 s30, s28, 38")
            e("s_cmp_eq_u32 s29, 7")
            e(f"s_cselect_b32 s{S_FS}, s30, s{S_FS}")
        else:
            e("s_lshr_b32 s28, s2, 4")
            e("s_and_b32 s29, s2, 7")
            e("s_mul_i32 s29, s29, 6")
            e(f"s_add_u32 s{S_FS}, s28, s29")
            e("s_cmp_ge_u32 s2, 96")
            e(f"s_cselect_b32 s{S_FS}, 63, s{S_FS}")
        e(f"s_bfe_u32 s{S_HF}, s2, 0x10003")
        e(f"s_cmp_ge_u32 s{S_FS}, 43")
        e(f"s_cbranch_scc1 {lnf1}")
        G.srd(SRD_1, P_W1, 1409024)
        G.srd(SRD_2, P_W3, 1409024)
        G.srd(SRD_3, P_W2, 1409024)
        e(f"v_lshrrev_b32 v64, 2, v{V_LANE}")
        e("v_mul_u32_u24 v64, 2752, v64")
        e(f"v_lshrrev_b32 v65, 5, v{V_LANE}")
        e("v_lshlrev_b32 v66, 1, v65")
        e(f"v_and_b32 v67, 3, v{V_LANE}")
        e("v_xor_b32 v67, v66, v67")
        e("v_lshl_add_u32 v64, v67, 4, v64")
        e(f"s_lshl_b32 s29, s{S_HF}, 2")
        e(f"s_add_u32 s29, s29, s{S_W}")
        e(f"s_mul_i32 s29, s29, {64*2752}")
        e(f"s_lshl_b32 s28, s{S_FS}, 6")
        e("s_add_u32 s29, s29, s28")
        e(f"s_lshl_b32 s31, s{S_W}, 12")
        for (srd, base) in ((SRD_1, R3), (SRD_2, R3 + 16384)):
            for n in range(4):
                if n == 0: e("s_mov_b32 s30, s29")
                else: e(f"s_add_u32 s30, s29, {n*16*2752}")
                e(f"s_add_u32 m0, s31, {base + n*1024}")
                nop(1)
                e(f"buffer_load_dwordx4 v64, {sr(srd,4)}, s30 offen lds")
        e(f"v_and_b32 v67, 31, v{V_LANE}")
        e("v_xor_b32 v67, v67, v66")
        e(f"s_and_b32 s28, s{S_W}, 1")
        e("s_lshl_b32 s28, s28, 3")
        e("v_xor_b32 v67, s28, v67")
        e("v_lshlrev_b32 v67, 4, v67")
        e("v_lshl_add_u32 v67, v65, 10, v67")
        e("v_xor_b32 v68, 64, v67")
        e(f"s_lshl_b32 s29, s{S_FS}, 5")
        e(f"s_lshl_b32 s28, s{S_W}, 3")
        e("s_add_u32 s29, s29, s28")
        e("s_lshl_b32 s29, s29, 10")
        e(f"s_lshl_b32 s28, s{S_HF}, 9")
        e("s_add_u32 s29, s29, s28")
        for n in range(4):
            if n == 0: e("s_mov_b32 s30, s29")
            else: e(f"s_add_u32 s30, s29, {n*2048}")
            e(f"s_add_u32 m0, s31, {RW2 + n*1024}")
            nop(1)
            e(f"buffer_load_dwordx4 v{68 if n & 1 else 67}, {sr(SRD_3,4)}, s30 offen{NTW} lds")
        lab(lnf1)
    def blk_ffn_comp():
        lnf2 = G.newlab("noffn2")
        e(f"s_cmp_ge_u32 s{S_FS}, 43")
        e(f"s_cbranch_scc1 {lnf2}")
        e(f"v_bfe_u32 v17, v{V_LANE}, 2, 2")
        e(f"v_and_b32 v18, 3, v{V_LANE}")
        e(f"v_and_b32 v19, 1, v{V_G}")
        e(f"s_and_b32 s28, s{S_W}, 1")
        e("s_lshl_b32 s28, s28, 1")
        e("v_lshrrev_b32 v20, 1, v18")
        e("v_add_u32 v20, s28, v20")
        e("v_lshlrev_b32 v21, 1, v19")
        e("v_xor_b32 v20, v20, v21")
        e("v_lshlrev_b32 v20, 4, v20")
        e("v_and_b32 v21, 1, v18")
        e("v_lshl_add_u32 v20, v21, 3, v20")
        e(f"v_lshl_add_u32 v21, v{V_G}, 3, v17")
        e("v_lshl_add_u32 v20, v21, 6, v20")
        e(f"s_lshr_b32 s28, s{S_W}, 1")
        e("s_lshl_b32 s28, s28, 14")
        e(f"s_add_u32 s28, s28, {R3}")
        e("v_add_u32 v20, s28, v20")
        e(f"v_and_b32 v21, 1, v{V_LANE}")
        e("v_lshlrev_b32 v21, 10, v21")
        e(f"v_lshl_add_u32 v21, v{V_G}, 4, v21")
        e(f"s_lshl_b32 s28, s{S_HF}, 9")
        e("v_add_u32 v21, s28, v21")
        FA, FB_, GA = 96, 128, 76
        e("s_lshl_b32 s28, s2, 2")
        e(f"s_add_u32 s28, s28, s{S_W}")
        e("s_lshl_b32 s28, s28, 8")
        e(f"s_add_u32 s34, s28, {WS_F1}")
        e(f"s_add_u32 s35, s28, {WS_F1F}")
        e("s_xor_b32 s28, s2, 8")
        e("s_lshl_b32 s28, s28, 2")
        e(f"s_add_u32 s28, s28, s{S_W}")
        e("s_lshl_b32 s28, s28, 8")
        e(f"s_add_u32 s36, s28, {WS_F1}")
        e(f"s_add_u32 s37, s28, {WS_F1F}")
        e(f"v_lshlrev_b32 v26, 4, v{V_L15}")
        e(f"v_mov_b32 v41, s{S_TAG}")
        e(f"v_mov_b32 v43, s{S_TAG}")
        e(f"buffer_load_dwordx4 {vr(232,4)}, v26, {sr(SRD_WS,4)}, s37 offen sc1")
        e("s_waitcnt vmcnt(%d)" % (5 if FFN_EARLY else 5 + (0 if G.prew else 2) + (1 if G.touch else 0)))
        e("s_barrier")
        for ks in range(8):
            e(f"ds_read_b128 {vr(FA+4*ks,4)}, v21 offset:{L_XN + 64*ks}")
            for u in range(2):
                e(f"ds_read_b64_tr_b16 {vr(FB_+4*ks+2*u,2)}, v20 offset:{2048*ks + 256*u}")
        e("s_waitcnt lgkmcnt(0)")
        for ks in range(8):
            c = "0" if ks == 0 else vr(GA, 4)
            e(f"v_mfma_f32_16x16x32_bf16 {vr(GA,4)}, {vr(FA+4*ks,4)}, {vr(FB_+4*ks,4)}, {c}")
        e("v_lshl_add_u32 v20, v19, 2, v17")
        e("v_lshlrev_b32 v20, 1, v20")
        e(f"s_lshl_b32 s28, s{S_W}, 3")
        e("v_xor_b32 v20, s28, v20")
        e(f"v_lshl_add_u32 v21, v{V_G}, 3, v17")
        e("v_lshlrev_b32 v21, 9, v21")
        e("v_lshrrev_b32 v22, 1, v18")
        e("v_lshl_add_u32 v21, v22, 4, v21")
        e("v_and_b32 v22, 1, v18")
        e("v_lshl_add_u32 v21, v22, 3, v21")
        e(f"v_add_u32 v21, {RW2}, v21")
        for t in range(4):
            e(f"v_xor_b32 v22, {2*t}, v20")
            e(f"v_lshl_add_u32 v{28+t}, v22, 4, v21")
        e(f"v_mov_b32 v40, v{GA}")
        e(f"v_mov_b32 v42, v{GA+1}")
        e("s_mov_b64 exec, 0xffff")
        e(f"buffer_store_dwordx4 {vr(40,4)}, v26, {sr(SRD_WS,4)}, s35 offen")
        e("s_mov_b64 exec, -1")
        G.stamp(17)
        def ldF(sreg):
            return lambda b: e(f"buffer_load_dwordx4 {vr(b,4)}, v26, {sr(SRD_WS,4)}, s{sreg} offen sc1")
        def f1_slow():
            e("s_mov_b64 exec, 0xffff")
            e(f"buffer_store_dwordx4 {vr(40,4)}, v26, {sr(SRD_WS,4)}, s34 offen sc1")
            e("s_mov_b64 exec, -1")
        dual_poll(ldF(37), ldF(36), f1_slow, 44, 4, [1, 3], RING4, 1, 34)
        G.stamp(18)
        e(f"v_add_f32 v{GA}, v{GA}, v44")
        e(f"v_add_f32 v{GA+1}, v{GA+1}, v46")
        e(f"v_and_b32 v23, 1, v{V_G}")
        e("v_lshlrev_b32 v23, 7, v23")
        e(f"v_lshl_add_u32 v23, v{V_L15}, 2, v23")
        e(f"v_cndmask_b32 v22, v{GA}, v{GA+1}, {sr(M_G1,2)}")
        e(f"s_lshr_b32 s28, s{S_W}, 1")
        e("s_lshl_b32 s28, s28, 8")
        e(f"s_and_b32 s29, s{S_W}, 1")
        e("s_lshl_b32 s29, s29, 6")
        e("s_add_u32 s28, s28, s29")
        e("v_add_u32 v23, s28, v23")
        e(f"ds_write_b32 v23, v22 offset:{L_GUW}")
        e("s_waitcnt lgkmcnt(0)")
        e("s_barrier")
        e(f"v_lshlrev_b32 v23, 2, v{V_LANE}")
        e(f"ds_read_b32 v24, v23 offset:{L_GUW}")
        e(f"ds_read_b32 v25, v23 offset:{L_GUW+256}")
        for t in range(4):
            for u in range(2):
                e(f"ds_read_b64_tr_b16 {vr(FB_+4*t+2*u,2)}, v{28+t} offset:{2048*u}")
        e(f"v_mul_u32_u24 v20, {FP_S*256}, v{V_G}")
        e(f"v_lshl_add_u32 v20, v{V_L15}, 4, v20")
        e(f"s_lshl_b32 s28, s{S_HF}, 2")
        e(f"s_add_u32 s28, s28, s{S_W}")
        e(f"s_mul_i32 s28, s28, {4*FP_S*256}")
        e(f"s_lshl_b32 s29, s{S_FS}, 8")
        e("s_add_u32 s28, s28, s29")
        e(f"s_add_u32 s28, s28, {WS_FP}")
        e("s_waitcnt lgkmcnt(8)")
        rbf(24); rbf(25)
        e("v_mul_f32 v26, 0xbfb8aa3b, v24")
        e("v_exp_f32 v26, v26")
        e(f"v_lshlrev_b32 v23, 1, v{V_LANE}")
        e("v_add_f32 v26, 1.0, v26")
        e("v_rcp_f32 v26, v26")
        e(f"v_and_b32 v21, 1, v{V_LANE}")
        e("v_mul_f32 v26, v24, v26")
        rbf(26)
        e("v_mul_f32 v26, v26, v25")
        e("v_cvt_pk_bf16_f32 v26, v26, v26")
        e(f"ds_write_b16 v23, v26 offset:{L_HW}")
        e("v_lshlrev_b32 v21, 6, v21")
        e(f"v_lshl_add_u32 v21, v{V_G}, 4, v21")
        e("s_waitcnt lgkmcnt(0)")
        DA = 100
        e(f"ds_read_b128 {vr(FA,4)}, v21 offset:{L_HW}")
        e(f"v_mov_b32 v37, s{S_TAG}")
        e(f"v_mov_b32 v39, s{S_TAG}")
        e("s_waitcnt lgkmcnt(0)")
        for t in range(4):
            e(f"v_mfma_f32_16x16x32_bf16 {vr(DA+4*t,4)}, {vr(FA,4)}, {vr(FB_+4*t,4)}, 0")
        nop(9)
        for rr in range(2):
            e(f"v_cndmask_b32 v32, v{DA+rr}, v{DA+4+rr}, {sr(M_G1,2)}")
            e(f"v_cndmask_b32 v33, v{DA+8+rr}, v{DA+12+rr}, {sr(M_G1,2)}")
            e(f"v_cndmask_b32 v{36+2*rr}, v32, v33, {sr(M_HI,2)}")
        e(f"buffer_store_dwordx4 {vr(36,4)}, v20, {sr(SRD_WS,4)}, s28 offen sc1")
        G.stamp(20)
        lab(lnf2)
    def blk_csetup():
        e(f"s_lshl_b32 s28, s{S_I}, 7")
        e(f"s_lshr_b32 s29, s{S_W}, 1")
        e("s_lshl_b32 s29, s29, 6")
        e("s_add_u32 s28, s28, s29")
        e("s_lshl_b32 s38, s28, 9")
        e(f"s_lshl_b32 s29, s{S_H}, 4")
        e("s_add_u32 s38, s38, s29")
        e(f"s_add_u32 s38, s38, {WS_SU}")
        e(f"v_lshlrev_b32 v52, 9, v{V_LANE}")
        e(f"s_and_b32 s34, s63, {RM}")
        e("s_lshl_b32 s34, s34, 13")
        e(f"s_lshl_b32 s28, s{S_I}, 11")
        e("s_add_u32 s34, s34, s28")
        e(f"s_add_u32 s34, s34, {WS_CF}")
        if G.touch:
            e(f"v_lshlrev_b32 v45, 16, v{V_LANE}")
            e(f"s_mov_b32 s28, {WS_OP}")
            e(f"buffer_load_dword v46, v45, {sr(SRD_WS,4)}, s28 offen sc1")
        for reg in (() if G.prew else (WS_CPF,)):
            e(f"s_add_u32 s28, s32, {reg}")
            e(f"buffer_load_dwordx4 {vr(232,4)}, v{V_L16B}, {sr(SRD_WS,4)}, s28 offen sc1")
            e(f"buffer_load_dwordx4 {vr(236,4)}, v{V_L16B}, {sr(SRD_WS,4)}, s28 offen offset:1024 sc1")
        lnw = G.newlab("nowarm")
        e("s_cmp_ge_u32 s62, 32")
        e(f"s_cbranch_scc1 {lnw}")
        e("s_mov_b32 s28, s62")
        e("s_lshl_b32 s28, s28, 13")
        e(f"s_add_u32 s28, s28, {WS_EP}")
        e(f"v_lshlrev_b32 v20, 4, v0")
        e("v_add_u32 v24, 4096, v20")
        e(f"buffer_load_dwordx4 {vr(244,4)}, v20, {sr(SRD_WS,4)}, s28 offen sc1")
        e(f"buffer_load_dwordx4 {vr(248,4)}, v24, {sr(SRD_WS,4)}, s28 offen sc1")
        if G.tout:
            G.srd(SRD_4, P_OUT, 2048)
            e("v_mov_b32 v25, 0")
            e(f"buffer_load_dword v252, v25, {sr(SRD_4,4)}, 0 offen")
        lab(lnw)
        e(f"v_lshl_add_u32 v{VD0}, v{V_G}, 15, v{V_SW}")
        e(f"v_xor_b32 v{VD1}, 128, v{VD0}")
        e(f"s_lshl_b32 s29, s{S_W}, 7")
        e(f"s_add_u32 s29, s29, s{S_I}")
        e("s_lshl_b32 s29, s29, 13")
        e(f"s_lshl_b32 s28, s{S_H}, 8")
        e("s_add_u32 s29, s29, s28")
        e(f"s_add_u32 s29, s29, {WS_OP}")
        e(f"v_lshlrev_b32 v53, 4, v{V_L15}")
        e(f"v_lshl_add_u32 v53, v{V_G}, 13, v53")
        e(f"s_lshl_b32 s28, s{S_I}, 2")
        e(f"s_add_u32 s28, s28, s{S_W}")
        e("s_lshl_b32 s28, s28, 14")
        e(f"s_lshl_b32 s39, s{S_H}, 8")
        e("s_add_u32 s28, s28, s39")
        e(f"s_add_u32 s39, s28, {WS_EP}")
        e(f"v_add_u32 v21, {R1}, v{V_TL0}")
        e(f"v_add_u32 v22, {R1}, v{V_TL1}")
    def blk_waitpre():
        lw1 = G.newlab("w1"); lw2 = G.newlab("w2")
        e(f"s_cmp_ge_u32 s{S_FS}, 43")
        e(f"s_cbranch_scc1 {lw1}")
        e(f"s_waitcnt vmcnt({0 if FFN_EARLY else (12 if G.prew else 14) + (1 if G.touch else 0)})")
        e(f"s_branch {lw2}")
        lab(lw1)
        e("s_waitcnt vmcnt(0)")
        lab(lw2)
        e("s_barrier")
        G.stamp(8)
        gemv_loadB(R0, BUV, 25, 26)
        gemv_loadB(R2, BO, 25, 26)
        G.stamp(9)
    R3, RW2 = 106496, 139264
    S_FS, S_HF = 50, 51
    BUV, BO = 160, 192
    if FFN_EARLY:
        blk_ffn_loads()
        blk_ffn_comp()
        if G.gate == 'B':
            lg = G.newlab("gate2")
            e(f"s_cmp_lg_u32 s{S_W}, 0")
            e(f"s_cbranch_scc1 {lg}")
            gate_poll()
            lab(lg)
            e("s_barrier")
        elif G.gate == 'F':
            lg = G.newlab("gate2"); lg2 = G.newlab("gate3")
            e(f"s_cmp_lt_u32 s{S_FS}, 43")
            e(f"s_cbranch_scc1 {lg2}")
            e(f"s_cmp_lg_u32 s{S_W}, 0")
            e(f"s_cbranch_scc1 {lg}")
            gate_poll()
            lab(lg)
            e("s_barrier")
            lab(lg2)
        blk_late()
        blk_csetup()
        blk_waitpre()
    else:
        blk_late()
        blk_ffn_loads()
        blk_csetup()
        blk_waitpre()
    if not FFN_EARLY:
        SAVE_S = [34, 35, 36, 37, 29]
        for k_, r_ in enumerate(SAVE_S): e(f"s_mov_b32 s{56+k_}, s{r_}")
        e("v_mov_b32 v69, v20"); e("v_mov_b32 v70, v21"); e("v_mov_b32 v71, v22"); e("v_mov_b32 v72, v24")
        blk_ffn_comp()
        for k_, r_ in enumerate(SAVE_S): e(f"s_mov_b32 s{r_}, s{56+k_}")
        e("v_mov_b32 v20, v69"); e("v_mov_b32 v21, v70"); e("v_mov_b32 v22, v71"); e("v_mov_b32 v24, v72")

    lodd = G.newlab("codd"); lj = G.newlab("cjoin")
    e(f"s_cmp_lg_u32 s{S_W}, 0")
    e(f"s_cbranch_scc1 {lodd}")
    poll(ldFB, 40, 4, [0, 1, 2, 3], RING4, 2, G.sl_flag, 35)
    lab(lodd)
    e("s_barrier")
    G.stamp(10)
    e(f"buffer_load_dwordx4 {vr(40,4)}, v52, {sr(SRD_WS,4)}, s38 offen sc1")
    dma_tile128(SRD_WS, VD0, VD1, lin(4*32768), R1, " sc1")
    e(f"s_and_b32 s28, s{S_W}, 1")
    e("s_cmp_lg_u32 s28, 0")
    e(f"s_cbranch_scc1 {lj}")
    e("s_waitcnt vmcnt(8)")
    e("v_mov_b32 v44, v40")
    wave_red("v_max_f32", 44, 45)
    e("v_sub_f32 v40, v40, v44")
    e("v_exp_f32 v40, v40")
    nop(1)
    e("v_mul_f32 v44, v40, v42")
    wave_red("v_add_f32", 44, 45)
    e("v_rcp_f32 v44, v44")
    e(f"s_lshr_b32 s29, s{S_W}, 1")
    e("s_mul_i32 s28, s29, 384")
    e(f"v_lshlrev_b32 v45, 1, v{V_LANE}")
    e("v_mul_f32 v40, v40, v44")
    e("v_add_u32 v46, s28, v45")
    e("v_cvt_pk_bf16_f32 v40, v40, v40")
    e("s_lshl_b32 s28, s29, 7")
    e("s_add_u32 s28, s28, 128")
    e(f"ds_write_b16 v46, v40 offset:{L_WGT}")
    e("v_add_u32 v46, s28, v45")
    e("v_mov_b32 v47, 0")
    e(f"ds_write_b16 v46, v47 offset:{L_WGT}")
    lab(lj)
    e(f"s_add_u32 s34, s33, {WS_CP}")
    e(f"s_add_u32 s35, s33, {WS_CPF}")
    e("s_waitcnt vmcnt(0) lgkmcnt(0)")
    e("s_barrier")
    G.stamp(11)
    gemv_loadA(V_AVR, VA, L_WGT)
    for ks in range(4):
        for t in range(2):
            for u in range(2):
                r = VB + (t*4 + ks)*4 + 2*u
                e(f"ds_read_b64_tr_b16 {vr(r,2)}, v{21+t} offset:{8192*ks + 1024*u}")
    e("s_waitcnt lgkmcnt(0)")
    gemv_mma(VA, VB, VC)
    sel_tb(VC, 40, 41)
    e(f"v_cndmask_b32 v40, v40, v41, {sr(M_HI,2)}")
    write_av(40, L_AVO)
    e("s_waitcnt lgkmcnt(0)")
    e("s_barrier")
    gemv_loadA(V_AVR, VA, L_AVO)
    e("s_waitcnt lgkmcnt(0)")
    gemv_mma(VA, BUV, VC)
    publish_units(VC, V_PUB, 35, PUBQ, fast=True)
    G.stamp(12)
    e("s_mov_b32 s37, s34")
    e(f"s_add_u32 s34, s32, {WS_CP}")
    e(f"s_add_u32 s35, s32, {WS_CPF}")
    consume4(34, 40, L_AVC, 36, 35, 37, V_PUB, PUBQ)
    e("s_waitcnt lgkmcnt(0)")
    e("s_barrier")
    G.stamp(13)
    gemv_loadA(V_AVR, VA, L_AVC)
    e("s_waitcnt lgkmcnt(0)")
    gemv_mma(VA, BO, VC)
    publish_units(VC, 53, 39, PUBQ)
    G.stamp(14)
    e("s_cmp_ge_u32 s62, 32")
    e("s_cbranch_scc1 L_wdone")
    e("s_mov_b32 s35, s62")
    e(f"v_lshlrev_b32 v20, 4, v0")
    e("s_lshl_b32 s28, s35, 13")
    e(f"s_add_u32 s36, s28, {WS_EP}")
    e(f"s_mul_i32 s28, s35, {FP_S*256}")
    e(f"s_add_u32 s37, s28, {WS_FP}")
    G.srd(SRD_1, P_X, 2048)
    e(f"v_lshlrev_b32 v21, 10, v{V_G}")
    e(f"v_lshl_add_u32 v21, v{V_L15}, 1, v21")
    e("s_lshl_b32 s28, s35, 5")
    e(f"buffer_load_ushort v22, v21, {sr(SRD_1,4)}, s28 offen")
    e("v_add_u32 v24, 4096, v20")
    e("v_add_u32 v25, 8192, v20")
    e("v_mov_b32 v23, 176")
    e("v_cmp_ge_u32 s[42:43], v0, v23")
    e(f"v_mov_b32 v26, s{S_TAG}")
    e("v_mov_b32 v27, 0")
    def ldFP(b):
        e(f"buffer_load_dwordx4 {vr(b,4)}, v20, {sr(SRD_WS,4)}, s37 offen sc1")
        e(f"buffer_load_dwordx4 {vr(b+4,4)}, v24, {sr(SRD_WS,4)}, s37 offen sc1")
        e(f"buffer_load_dwordx4 {vr(b+8,4)}, v25, {sr(SRD_WS,4)}, s37 offen sc1")
    def ldE(b):
        e(f"buffer_load_dwordx4 {vr(b,4)}, v20, {sr(SRD_WS,4)}, s36 offen sc1")
        e(f"buffer_load_dwordx4 {vr(b+4,4)}, v24, {sr(SRD_WS,4)}, s36 offen sc1")
    ldFP(108)
    poll(ldE, 100, 8, [1, 3, 5, 7], RING8, 2, G.sl_unit, 37)
    G.stamp(19)
    lp, done, skip = G.newlab("pollfp"), G.newlab("pfpdone"), G.newlab("pfpskip")
    e(f"s_mov_b32 s48, {G.spin}")
    e(f"s_branch {skip}")
    lab(lp)
    ldFP(108)
    e("s_waitcnt vmcnt(0)")
    lab(skip)
    e("v_cndmask_b32 v117, v117, v26, s[42:43]")
    e("v_cndmask_b32 v119, v119, v26, s[42:43]")
    check_tags([109, 111, 113, 115, 117, 119])
    e(f"s_cbranch_vccz {done}")
    e("s_sub_u32 s48, s48, 1")
    e(f"s_cbranch_scc0 {lp}")
    lab(done)
    G.stampval(38, 48)
    e("v_cndmask_b32 v116, v116, v27, s[42:43]")
    e("v_cndmask_b32 v118, v118, v27, s[42:43]")
    G.stamp(15)
    for rr in (0, 2):
        e(f"v_add_f32 v{100+rr}, v{100+rr}, v{104+rr}")
        e(f"v_add_f32 v{108+rr}, v{108+rr}, v{112+rr}")
    for rr in (0, 2):
        e(f"v_add_f32 v{100+rr}, v{100+rr}, v{116+rr}")
    for rr in (0, 2):
        e(f"v_add_f32 v{100+rr}, v{100+rr}, v{108+rr}")
    nop(2)
    e("v_permlane32_swap_b32 v100, v102")
    nop(1)
    e("v_add_f32 v100, v100, v102")
    e("v_mov_b32 v101, v100")
    nop(2)
    e("v_permlane16_swap_b32 v100, v101")
    e(f"v_lshrrev_b32 v27, 5, v{V_LANE}")
    e("v_add_f32 v100, v100, v101")
    e("v_lshlrev_b32 v27, 6, v27")
    e(f"v_lshl_add_u32 v27, v{V_L15}, 2, v27")
    e(f"s_lshl_b32 s28, s{S_W}, 7")
    e("v_add_u32 v28, s28, v27")
    e(f"ds_write_b32 v28, v100 offset:{L_FIN}")
    G.srd(SRD_2, P_OUT, 2048)
    e("s_waitcnt lgkmcnt(0)")
    e("s_barrier")
    e(f"s_cmp_lg_u32 s{S_W}, 0")
    e("s_cbranch_scc1 L_wdone")
    e(f"v_lshlrev_b32 v27, 2, v{V_LANE}")
    for w in range(4):
        e(f"ds_read_b32 v{104+w}, v27 offset:{L_FIN + 128*w}")
    e("s_lshl_b32 s28, s35, 5")
    e("v_lshlrev_b32 v22, 16, v22")
    e("s_waitcnt lgkmcnt(0)")
    e("v_add_f32 v104, v104, v105")
    e("v_add_f32 v106, v106, v107")
    e("v_add_f32 v104, v104, v22")
    e("v_add_f32 v104, v104, v106")
    e("v_cvt_pk_bf16_f32 v104, v104, v104")
    lo32()
    e(f"buffer_store_short v104, v21, {sr(SRD_2,4)}, s28 offen")
    e("s_cmp_lg_u32 s35, 0")
    e("s_cbranch_scc1 L_wdone0")
    e("s_mov_b64 exec, 1")
    e(f"v_mov_b32 v30, s{S_TAG}")
    e("v_mov_b32 v31, 0")
    e(f"buffer_store_dword v30, v31, {sr(SRD_WS,4)}, 0 offen offset:{WS_EPOCH}")
    lab("L_wdone0")
    e("s_mov_b64 exec, -1")
    lab("L_wdone")
    G.stamp(16)
    store_stamps()
    e("s_endpgm")

    lab("L_att")
    S_A, S_FS, S_HF = 38, 37, 39
    e(f"s_sub_u32 s{S_A}, s2, 128")
    e(f"s_lshr_b32 s{S_H}, s{S_A}, 6")
    VCK = 8
    N0 = G.uneven if G.uneven else 32
    N1 = 64 - N0
    if G.uneven:
        e(f"s_mul_i32 s30, s{S_W}, {N0}")
        e(f"s_sub_u32 s28, s{S_W}, 2")
        e(f"s_mul_i32 s28, s28, {N1}")
        e(f"s_add_u32 s28, s28, {2*N0}")
        e(f"s_cmp_lt_u32 s{S_W}, 2")
        e("s_cselect_b32 s30, s30, s28")
        e("s_lshr_b32 s28, s30, 3")
        e("s_and_b32 s28, s28, 1")
        e("s_lshl_b32 s28, s28, 7")
        e(f"v_xor_b32 v32, s28, v{V_L16B}")
    else:
        e(f"s_lshl_b32 s30, s{S_W}, 5")
        e(f"v_mov_b32 v32, v{V_L16B}")
    for idx in range(8):
        x = 32*(idx & 3) + 128*(idx >> 2)
        if x == 0: e(f"v_mov_b32 v{VCK+idx}, v32")
        else: e(f"v_xor_b32 v{VCK+idx}, {x}, v32")
    e(f"s_lshl_b32 s29, s{S_A}, 7")
    e("s_add_u32 s29, s29, s30")
    e("s_lshl_b32 s29, s29, 10")
    e("s_lshl_b32 s31, s30, 10")
    e("s_waitcnt lgkmcnt(0)")
    if G.stamps: e("v_writelane_b32 v255, s40, 0")
    G.srd(SRD_1, P_CKV, 16777216)
    if G.pf_uk:
        G.srd(SRD_2, P_WUK, 4194304)
        e(f"s_and_b32 s28, s{S_A}, 7")
        e("s_lshl_b32 s28, s28, 2")
        e(f"s_bfe_u32 s30, s{S_A}, 0x20003")
        e("s_add_u32 s28, s28, s30")
        e("s_lshl_b32 s28, s28, 8")
        e(f"s_lshr_b32 s30, s{S_A}, 5")
        e("s_lshl_b32 s30, s30, 20")
        e("s_add_u32 s28, s28, s30")
        e(f"s_lshl_b32 s30, s{S_W}, 18")
        e("s_add_u32 s35, s28, s30")
        e(f"v_lshlrev_b32 v40, 13, v{V_G}")
        e(f"v_lshl_add_u32 v40, v{V_L15}, 4, v40")
        e(f"s_lshl_b32 s36, s{S_W}, 13")
        for n in range(8):
            e(f"s_add_u32 s30, s35, {n*4*8192}")
            e(f"s_add_u32 m0, s36, {L_QAL + n*1024}")
            nop(1)
            e(f"buffer_load_dwordx4 v40, {sr(SRD_2,4)}, s30 offen lds")
    e(f"s_load_dword s{S_TAG}, {sr(P_WS,2)}, {WS_EPOCH}")
    G.srd(SRD_WS, P_WS, 0x10000000)
    if G.skew:
        e(f"s_load_dwordx8 s[52:59], {sr(P_DBG,2)}, 0")
    if G.adapt:
        G.srd(SRD_4, P_DBG, 256)
        e("v_mov_b32 v46, 0")
        e("s_mov_b32 s39, 0")
    setup = []
    su = setup.append
    AA, AB, TB, TB2 = 16, 20, 24, 48
    su(f"v_and_b32 v32, 3, v{V_LANE}")
    su(f"v_bfe_u32 v33, v{V_LANE}, 3, 1")
    su("v_lshl_add_u32 v32, v33, 2, v32")
    su("v_lshlrev_b32 v32, 1, v32")
    su(f"v_xor_b32 v33, v32, v{V_G}")
    su(f"v_lshlrev_b32 v34, 10, v{V_L15}")
    su(f"s_lshl_b32 s37, s{S_W}, 15")
    su(f"s_add_u32 s37, s37, {L_CKV}")
    for j in range(4):
        su(f"v_xor_b32 v35, {4*j}, v33")
        su(f"v_lshl_add_u32 v{AB+j}, v35, 4, v34")
        su(f"v_add_u32 v{AA+j}, s37, v{AB+j}")
        if L_QAL: su(f"v_add_u32 v{AB+j}, {L_QAL}, v{AB+j}")
    su(f"v_bfe_u32 v32, v{V_LANE}, 2, 2")
    su(f"v_and_b32 v33, 3, v{V_LANE}")
    su(f"v_and_b32 v34, 1, v{V_G}")
    su("v_lshl_add_u32 v35, v34, 2, v32")
    su("v_lshlrev_b32 v35, 1, v35")
    su(f"v_lshl_add_u32 v36, v{V_G}, 3, v32")
    su("v_lshlrev_b32 v36, 10, v36")
    su("v_lshrrev_b32 v37, 1, v33")
    su("v_lshl_add_u32 v36, v37, 4, v36")
    su("v_and_b32 v37, 1, v33")
    su("v_lshl_add_u32 v36, v37, 3, v36")
    su(f"s_lshl_b32 s28, s{S_W}, 8")
    su(f"s_add_u32 s28, s28, {L_CKV}")
    su("v_add_u32 v36, s28, v36")
    for t in range(8):
        su(f"v_xor_b32 v37, {2*t}, v35")
        su(f"v_lshl_add_u32 v{TB+t}, v37, 4, v36")
        su(f"v_add_u32 v{TB2+t}, 65536, v{TB+t}")
    su(f"v_and_b32 v57, 31, v{V_LANE}")
    su("v_lshlrev_b32 v57, 2, v57")
    su(f"s_lshl_b32 s28, s{S_W}, 7")
    su("v_add_u32 v56, s28, v57")
    su(f"v_lshlrev_b32 v58, 2, v{V_L15}")
    su(f"v_lshrrev_b32 v32, 1, v{V_G}")
    su(f"s_lshl_b32 s28, s{S_W}, 2")
    su("v_add_u32 v32, s28, v32")
    su(f"v_and_b32 v33, 1, v{V_G}")
    su("v_lshlrev_b32 v33, 3, v33")
    su(f"v_lshl_add_u32 v33, v{V_L15}, 8, v33")
    su(f"v_xor_b32 v34, v32, v{V_L15}")
    su("v_lshl_add_u32 v59, v34, 4, v33")
    su("v_xor_b32 v63, 32, v59")
    for ks in range(4):
        su(f"v_add_u32 v34, {4*ks}, v{V_G}")
        su(f"v_xor_b32 v34, v34, v{V_L15}")
        su("v_lshlrev_b32 v34, 4, v34")
        su(f"v_lshl_add_u32 v{120+ks}, v{V_L15}, 8, v34")
    su(f"v_lshlrev_b32 v126, 4, v{V_L15}")
    su(f"v_lshl_add_u32 v124, v{V_G}, 10, v126")
    su(f"v_lshlrev_b32 v125, 4, v{V_LANE}")
    su(f"v_and_b32 v126, 31, v{V_LANE}")
    su("v_lshlrev_b32 v126, 7, v126")
    su(f"s_and_b32 s28, s{S_W}, 1")
    su("s_lshl_b32 s28, s28, 7")
    su(f"v_xor_b32 v127, s28, v{V_L16B}")
    lstream = G.newlab("streamdone")
    for j in range(N1):
        if G.uneven and j == N0:
            e(f"s_cmp_lt_u32 s{S_W}, 2")
            e(f"s_cbranch_scc1 {lstream}")
        idx = (j & 3) + 4*((j >> 3) & 1)
        if j == 0: e("s_mov_b32 s30, s29")
        else: e(f"s_add_u32 s30, s29, {j*1024}")
        e(f"s_add_u32 m0, s31, {L_CKV + j*1024}")
        nop(1)
        e(f"buffer_load_dwordx4 v{VCK+idx}, {sr(SRD_1,4)}, s30 offen{NTC} lds")
        if j == 1:
            for s_ in setup: e(s_)
        if G.adapt:
            if j < G.adapt_max:
                lsk = G.newlab("unthr")
                e("s_cmp_lg_u32 s39, 0")
                e(f"s_cbranch_scc1 {lsk}")
                e(f"buffer_load_dword v47, v46, {sr(SRD_4,4)}, 0 offen sc1")
                e("s_waitcnt vmcnt(0)")
                e("v_readfirstlane_b32 s28, v47")
                e(f"s_cmp_ge_u32 s28, {G.adapt_thr}")
                e("s_cselect_b32 s39, 1, 0")
                lab(lsk)
        elif G.skew and j < 3:
            if j == 0:
                e("s_waitcnt vmcnt(0) lgkmcnt(0)")
                e("s_add_u32 s39, s52, s53")
                for r_ in range(54, 60): e(f"s_add_u32 s39, s39, s{r_}")
            else:
                lsk = G.newlab("unthr")
                e(f"s_cmp_ge_u32 s39, {G.skew_b if j == 1 else G.skew_a}")
                e(f"s_cbranch_scc1 {lsk}")
                e("s_waitcnt vmcnt(0)")
                lab(lsk)
        else:
            w_now = G.thr_w if j < G.thr_n else G.thr2_w
            if w_now and j >= w_now - 1 and j < 31:
                e(f"s_waitcnt vmcnt({w_now - 1})")
    lab(lstream)
    G.stamp(1)
    e(f"s_and_b32 s34, s63, {RM}")
    e("s_lshl_b32 s34, s34, 11")
    e(f"s_add_u32 s34, s34, {WS_FB}")
    e("s_waitcnt lgkmcnt(0)")
    e(f"s_add_u32 s{S_TAG}, s{S_TAG}, 0x9e3779b9")
    e(f"s_lshl_b32 s29, s{S_H}, 15")
    e(f"s_lshl_b32 s30, s{S_W}, 13")
    e("s_add_u32 s29, s29, s30")
    e(f"s_add_u32 s29, s29, {WS_QA}")
    e(f"s_lshl_b32 s31, s{S_W}, 13")
    if G.touch:
        e(f"s_lshl_b32 s28, s{S_A}, 2")
        e(f"s_add_u32 s28, s28, s{S_W}")
        e("s_lshl_b32 s28, s28, 13")
        e(f"s_add_u32 s28, s28, {WS_OP}")
        e("v_mov_b32 v45, 0")
        e("s_mov_b64 exec, 1")
        e(f"buffer_load_dword v46, v45, {sr(SRD_WS,4)}, s28 offen sc1")
        e(f"s_mov_b32 s28, {WS_SU}")
        e(f"buffer_load_dword v47, v45, {sr(SRD_WS,4)}, s28 offen sc1")
        e("s_mov_b64 exec, -1")
    if G.uneven:
        lq = G.newlab("noqa"); lbp = G.newlab("nobpoll")
        e(f"s_cmp_ge_u32 s{S_W}, 2")
        e(f"s_cbranch_scc1 {lq}")
        ldFB(236)
        e("s_waitcnt vmcnt(0)")
        check_tags([236, 237, 238, 239])
        e(f"s_cbranch_vccz {lbp}")
        poll(ldFB, 40, 4, [0, 1, 2, 3], [240, 244, 248], 2, G.sl_flag, 32)
        lab(lbp)
        G.stamp(3)
        e(f"s_lshl_b32 s29, s{S_H}, 15")
        e(f"s_lshl_b32 s30, s{S_W}, 14")
        e("s_add_u32 s29, s29, s30")
        e(f"s_add_u32 s29, s29, {WS_QA}")
        e(f"s_lshl_b32 s31, s{S_W}, 14")
        for j in range(16):
            x = 32*(j & 3) + 128*((j >> 3) & 1)
            if x: e(f"v_xor_b32 v44, {x}, v{V_L16B}")
            else: e(f"v_mov_b32 v44, v{V_L16B}")
            if j == 0: e("s_mov_b32 s30, s29")
            else: e(f"s_add_u32 s30, s29, {j*1024}")
            e(f"s_add_u32 m0, s31, {L_QAL + j*1024}")
            nop(1)
            e(f"buffer_load_dwordx4 v44, {sr(SRD_WS,4)}, s30 offen sc1 lds")
        lab(lq)
        e("s_waitcnt vmcnt(0)")
        G.stamp(2)
        e("s_barrier")
        for ks in range(16):
            for kt in range(2):
                e(f"ds_read_b128 {ar((kt*16+ks)*4,4)}, v{AA+(ks&3)} offset:{16384*kt + 256*(ks>>2)}")
    elif G.bwave:
        ldFB(236)
        e("s_waitcnt vmcnt(0)")
        G.stamp(2)
        lbp = G.newlab("nobpoll")
        check_tags([236, 237, 238, 239])
        e(f"s_cbranch_vccz {lbp}")
        poll(ldFB, 40, 4, [0, 1, 2, 3], [240, 244, 248], 2, G.sl_flag, 32)
        lab(lbp)
        G.stamp(3)
        for j in range(8):
            if j & 3: e(f"v_xor_b32 v44, {32*(j&3)}, v127")
            else: e("v_mov_b32 v44, v127")
            if j == 0: e("s_mov_b32 s30, s29")
            else: e(f"s_add_u32 s30, s29, {j*1024}")
            e(f"s_add_u32 m0, s31, {L_QAL + j*1024}")
            nop(1)
            e(f"buffer_load_dwordx4 v44, {sr(SRD_WS,4)}, s30 offen sc1 lds")
        for ks in range(16):
            for kt in range(2):
                e(f"ds_read_b128 {ar((kt*16+ks)*4,4)}, v{AA+(ks&3)} offset:{16384*kt + 256*(ks>>2)}")
        e("s_barrier")
    else:
        lbp0 = G.newlab("nobp0")
        e(f"s_cmp_lg_u32 s{S_W}, 0")
        e(f"s_cbranch_scc1 {lbp0}")
        ldFB(236)
        lab(lbp0)
        e("s_waitcnt vmcnt(0)")
        G.stamp(2)
        lbp = G.newlab("nobpoll")
        e(f"s_cmp_lg_u32 s{S_W}, 0")
        e(f"s_cbranch_scc1 {lbp}")
        check_tags([236, 237, 238, 239])
        e(f"s_cbranch_vccz {lbp}")
        poll(ldFB, 40, 4, [0, 1, 2, 3], [240, 244, 248], 2, G.sl_flag, 32)
        lab(lbp)
        e("s_barrier")
        G.stamp(3)
        for j in range(8):
            if j & 3: e(f"v_xor_b32 v44, {32*(j&3)}, v127")
            else: e("v_mov_b32 v44, v127")
            if j == 0: e("s_mov_b32 s30, s29")
            else: e(f"s_add_u32 s30, s29, {j*1024}")
            e(f"s_add_u32 m0, s31, {L_QAL + j*1024}")
            nop(1)
            e(f"buffer_load_dwordx4 v44, {sr(SRD_WS,4)}, s30 offen sc1 lds")
        for ks in range(16):
            for kt in range(2):
                e(f"ds_read_b128 {ar((kt*16+ks)*4,4)}, v{AA+(ks&3)} offset:{16384*kt + 256*(ks>>2)}")
    for n in range(32):
        ks_, t = n >> 3, n & 7
        base = (TB2 if ks_ >= 2 else TB) + t
        for u in range(2):
            e(f"ds_read_b64_tr_b16 {ar(128+n*4+2*u,2)}, v{base} offset:{(ks_&1)*32768 + 4096*u}")
    e(f"s_lshl_b32 s28, s{S_A}, 2")
    e(f"s_add_u32 s28, s28, s{S_W}")
    e("s_lshl_b32 s28, s28, 13")
    e(f"s_add_u32 s34, s28, {WS_OP}")
    e("s_add_u32 s35, s34, 4096")
    e(f"s_lshl_b32 s28, s{S_W}, 7")
    e(f"s_add_u32 s28, s28, s{S_A}")
    e("s_lshl_b32 s28, s28, 9")
    e(f"s_add_u32 s36, s28, {WS_SU}")
    e(f"s_lshl_b32 s28, s{S_W}, 7")
    e(f"s_add_u32 s28, s28, s{S_A}")
    e("s_lshl_b32 s28, s28, 4")
    e(f"s_add_u32 s37, s28, {WS_CF}")
    e(f"v_lshlrev_b32 v126, 13, v{V_LANE}")
    e(f"v_mov_b32 v252, s{S_TAG}")
    e(f"v_mov_b32 v253, s{S_TAG}")
    e("s_waitcnt vmcnt(0) lgkmcnt(0)")
    e("s_barrier")
    G.stamp(4)
    QB, SC = 64, 192
    def rdB(ks):
        st = ks % 3
        for ht in range(2):
            e(f"ds_read_b128 {vr(QB+(st*2+ht)*4,4)}, v{AB+(ks&3)} offset:{16384*ht + 256*(ks>>2)}")
    def pslot(n): return 32 + n
    rdB(0); rdB(1)
    for ks in range(16):
        if ks + 2 < 16:
            rdB(ks + 2); e("s_waitcnt lgkmcnt(4)")
        elif ks + 1 < 16: e("s_waitcnt lgkmcnt(2)")
        else: e("s_waitcnt lgkmcnt(0)")
        st = ks % 3
        for kt in range(2):
            for ht in range(2):
                d = SC + (kt*2+ht)*4
                c = "0" if ks == 0 else vr(d, 4)
                e(f"v_mfma_f32_16x16x32_bf16 {vr(d,4)}, {ar((kt*16+ks)*4,4)}, {vr(QB+(st*2+ht)*4,4)}, {c}")
    nop(9)
    G.stamp(5)
    MXR = 32
    for step in range(4):
        for ht in range(2):
            a = SC + ht*4; b = SC + (2+ht)*4
            if step == 0: e(f"v_max3_f32 v{MXR+ht}, v{a}, v{a+1}, v{a+2}")
            elif step == 1: e(f"v_max3_f32 v{MXR+ht}, v{MXR+ht}, v{a+3}, v{b}")
            elif step == 2: e(f"v_max3_f32 v{MXR+ht}, v{MXR+ht}, v{b+1}, v{b+2}")
            else: e(f"v_max_f32 v{MXR+ht}, v{MXR+ht}, v{b+3}")
    xg_reduce2("v_max_f32", MXR, MXR+1, MXR+2, MXR+3)
    e(f"v_cndmask_b32 v36, v{MXR}, v{MXR+1}, {sr(M_G1,2)}")
    e(f"ds_write_b32 v56, v36 offset:{L_MX}")
    e("s_waitcnt lgkmcnt(0)")
    e("s_barrier")
    for ht in range(2):
        for w in range(4):
            e(f"ds_read_b32 v{40+ht*4+w}, v58 offset:{L_MX + 128*w + 64*ht}")
    e("s_waitcnt lgkmcnt(0)")
    sm = []
    a_ = sm.append
    for ht in range(2):
        a_(f"v_max3_f32 v{MXR+ht}, v{40+ht*4}, v{41+ht*4}, v{42+ht*4}")
    for ht in range(2):
        a_(f"v_max_f32 v{MXR+ht}, v{MXR+ht}, v{43+ht*4}")
    LS = 34
    for kt in range(2):
        for ht in range(2):
            d = SC + (kt*2+ht)*4
            for r in range(4): a_(f"v_sub_f32 v{d+r}, v{d+r}, v{MXR+ht}")
    for kt in range(2):
        for ht in range(2):
            d = SC + (kt*2+ht)*4
            for r in range(4): a_(f"v_exp_f32 v{d+r}, v{d+r}")
    for kt in range(2):
        for ht in range(2):
            d = SC + (kt*2+ht)*4
            q = 88 + (kt*2+ht)*2
            a_(f"v_cvt_pk_bf16_f32 v{q}, v{d}, v{d+1}")
            a_(f"v_cvt_pk_bf16_f32 v{q+1}, v{d+2}, v{d+3}")
            a_(f"ds_write_b64 v{63 if kt else 59}, {vr(q,2)} offset:{L_P + 4096*ht}")
    for ht in range(2):
        a = SC + ht*4
        a_(f"v_add_f32 v{LS+ht}, v{a}, v{a+1}")
    for x in (2, 3, 8, 9, 10, 11):
        for ht in range(2):
            a_(f"v_add_f32 v{LS+ht}, v{LS+ht}, v{SC+ht*4+x}")
    xg_reduce2("v_add_f32", LS, LS+1, 46, 47, emit=a_)
    a_(f"v_cndmask_b32 v36, v{LS}, v{LS+1}, {sr(M_G1,2)}")
    a_(f"ds_write_b32 v56, v36 offset:{L_LP}")
    for ins in sm: e(ins)
    e("s_waitcnt lgkmcnt(0)")
    e("s_barrier")
    G.stamp(6)
    PA, OC = 208, 128
    for ht in range(2):
        for ks in range(4):
            e(f"ds_read_b128 {vr(PA+(ht*4+ks)*4,4)}, v{120+ks} offset:{L_P + 4096*ht}")
    for w in range(4):
        e(f"ds_read_b32 v{240+w}, v57 offset:{L_LP + 128*w}")
    def mm(ks, t, ht):
        d = OC + (ht*8+t)*4
        c = "0" if ks == 0 else vr(d, 4)
        e(f"v_mfma_f32_16x16x32_bf16 {vr(d,4)}, {vr(PA+(ht*4+ks)*4,4)}, {ar(pslot(ks*8+t)*4,4)}, {c}")
    ST0 = 88
    for ks in range(4):
        e(f"s_waitcnt lgkmcnt({11 - ks})")
        for t in range(8): mm(ks, t, 0)
    e("s_waitcnt lgkmcnt(0)")
    cv = []
    for tp in range(4):
        for r in range(4):
            cv.append(f"v_cvt_pk_bf16_f32 v{ST0+4*r+tp}, v{OC+(2*tp)*4+r}, v{OC+(2*tp+1)*4+r}")
    seq = [(ks, t) for ks in range(4) for t in range(8)]
    for idx, (ks, t) in enumerate(seq):
        mm(ks, t, 1)
        if 8 <= idx < 24: e(cv[idx - 8])
        if idx == 24:
            for r in range(4):
                e(f"buffer_store_dwordx4 {vr(ST0+4*r,4)}, v124, {sr(SRD_WS,4)}, s34 offen offset:{r*256} sc1")
    G.stamp(7)
    e("v_add_f32 v240, v240, v241")
    e("v_add_f32 v242, v242, v243")
    e(f"v_cndmask_b32 v44, v{MXR}, v{MXR+1}, {sr(M_G1,2)}")
    e("v_mov_b32 v45, 0")
    e("v_add_f32 v46, v240, v242")
    e("v_mov_b32 v47, 0")
    nop(4)
    for r in range(4):
        for tp in range(4):
            e(f"v_cvt_pk_bf16_f32 v{ST0+16+4*r+tp}, v{OC+(8+2*tp)*4+r}, v{OC+(8+2*tp+1)*4+r}")
        e(f"buffer_store_dwordx4 {vr(ST0+16+4*r,4)}, v124, {sr(SRD_WS,4)}, s35 offen offset:{r*256} sc1")
    lo32()
    e(f"buffer_store_dwordx4 {vr(44,4)}, v125, {sr(SRD_WS,4)}, s36 offen sc1")
    e(f"s_mov_b64 exec, {hex(REX)}")
    e("s_waitcnt vmcnt(0)")
    G.stamp(8)
    e(f"buffer_store_dwordx2 {vr(252,2)}, v126, {sr(SRD_WS,4)}, s37 offen sc1")
    e("s_mov_b64 exec, -1")
    G.stamp(9)
    lab("L_adone")
    store_stamps()
    lab("L_end")
    e("s_endpgm")

    tail = []
    if prepost:
        for nm, off, spin in (("pre_kernel", 0x900000, 400), ("post_kernel", 0x900100, 0)):
            tail += [f".globl {nm}", ".p2align 8", f".type {nm},@function", f"{nm}:",
                     "  s_memrealtime s[10:11]",
                     "  s_cmp_ge_u32 s2, 1", f"  s_cbranch_scc1 L_{nm}_end",
                     "  s_load_dwordx2 s[4:5], s[0:1], 96"]
            if spin:
                tail += [f"  s_mov_b32 s6, {spin}", f"L_{nm}_sp:", "  s_sleep 8", "  s_sub_u32 s6, s6, 1", "  s_cmp_lg_u32 s6, 0", f"  s_cbranch_scc1 L_{nm}_sp",
                         "  s_memrealtime s[10:11]"]
            tail += ["  s_waitcnt lgkmcnt(0)", "  s_mov_b32 s12, s4", "  s_and_b32 s13, s5, 0xffff", "  s_mov_b32 s14, 0x10000000", "  s_mov_b32 s15, 0x20000",
                     "  v_mov_b32 v1, s10", f"  v_mov_b32 v2, {off}", "  s_mov_b64 exec, 1",
                     "  buffer_store_dword v1, v2, s[12:15], 0 offen", "  s_waitcnt vmcnt(0)", f"L_{nm}_end:", "  s_endpgm"]
        tail.append('.section .rodata,"a"')
        for nm in ("pre_kernel", "post_kernel"):
            tail += [".p2align 6", f".amdhsa_kernel {nm}", "  .amdhsa_next_free_vgpr 32",
                 "  .amdhsa_next_free_sgpr 24", "  .amdhsa_accum_offset 32", "  .amdhsa_group_segment_fixed_size 0",
                 "  .amdhsa_kernarg_size 104", "  .amdhsa_user_sgpr_count 2", "  .amdhsa_user_sgpr_kernarg_segment_ptr 1",
                 "  .amdhsa_system_sgpr_workgroup_id_x 1", ".end_amdhsa_kernel"]
    if extra_empty:
        tail += [".globl empty_kernel", ".p2align 8", ".type empty_kernel,@function", "empty_kernel:", "  s_endpgm"]
        tail += ['.section .rodata,"a"', ".p2align 6", ".amdhsa_kernel empty_kernel", "  .amdhsa_next_free_vgpr 32",
                 "  .amdhsa_next_free_sgpr 16", "  .amdhsa_accum_offset 32", "  .amdhsa_group_segment_fixed_size 0",
                 "  .amdhsa_kernarg_size 104", "  .amdhsa_user_sgpr_count 2", "  .amdhsa_user_sgpr_kernarg_segment_ptr 1",
                 "  .amdhsa_system_sgpr_workgroup_id_x 1", ".end_amdhsa_kernel"]
    tail.append('.section .rodata,"a"')
    tail.append(".p2align 6")
    tail.append(f".amdhsa_kernel {NAME}_kernel")
    tail.append("  .amdhsa_next_free_vgpr 512")
    tail.append("  .amdhsa_next_free_sgpr 102")
    tail.append("  .amdhsa_accum_offset 256")
    tail.append("  .amdhsa_group_segment_fixed_size 0")
    tail.append("  .amdhsa_kernarg_size 104")
    tail.append("  .amdhsa_user_sgpr_count 2")
    tail.append("  .amdhsa_user_sgpr_kernarg_segment_ptr 1")
    tail.append("  .amdhsa_system_sgpr_workgroup_id_x 1")
    tail.append(".end_amdhsa_kernel")
    for ln in G.L:
        if "buffer_" in ln:
            m = re.search(r"offset:(\d+)", ln)
            assert not m or int(m.group(1)) <= 4095, ln
    return "\n".join(hdr + G.L + tail) + "\n"

if __name__ == "__main__":
    import argparse
    ap = argparse.ArgumentParser()
    ap.add_argument("-o", default=f"cdna_kernels/{NAME}.s")
    ap.add_argument("--stamps", action="store_true")
    ap.add_argument("--extra-empty", type=int, default=0)
    ap.add_argument("--prepost", action="store_true")
    ap.add_argument("--set", action="append", default=[], help="key=value generator option")
    a = ap.parse_args()
    kw = {}
    for s_ in a.set:
        k, v = s_.split("=")
        kw[k] = int(v) if re.fullmatch(r"-?\d+", v) else v
    s = build(stamps=a.stamps, extra_empty=a.extra_empty, prepost=a.prepost, **kw)
    open(a.o, "w").write(s)
    print("wrote", a.o, len(s), "bytes")
```
